```python
import torch

def _softmax(x, axis=-1):
    return torch.softmax(x, dim=axis)
def _gelu(x):
    return torch.nn.functional.gelu(x, approximate="tanh")
def _silu(x):
    return torch.nn.functional.silu(x)
def _sigmoid(x):
    return torch.sigmoid(x)
def _layernorm(x, axis=-1, eps=1e-5):
    m = x.mean(dim=axis, keepdim=True)
    v = x.var(dim=axis, keepdim=True, unbiased=False)
    return (x - m) / torch.sqrt(v + eps)
def _scatter_add(tgt, idx, src, axis=0):
    return tgt.clone().index_add_(axis, idx, src)
def _segment_sum(src, seg, n):
    out = torch.zeros((n,) + src.shape[1:], dtype=src.dtype)
    return out.index_add_(0, seg, src)
def _pad(x, pw):
    flat = tuple(v for pair in reversed(pw) for v in pair)
    return torch.nn.functional.pad(x, flat)

kernel_name = 'interleave_layers__linear_kernel_hedgehog__glu_gated_reglu__prompt'

def setup_inputs():

    _w = (lambda a: (lambda t: t.to(torch.bfloat16) if t.is_floating_point() else t)(torch.as_tensor(a)))
    def _A_setup():
        B, S, D, H = 1, 2048, 512, 32
        Dh = D // H
        return {
            "x": _w((lambda *s: torch.randn(*s, dtype=torch.bfloat16) * 0.05)(B, S, D)),
            "wqkv": _w((lambda *s: torch.randn(*s, dtype=torch.bfloat16) * 0.4)(D, 3 * D)),
            "w_phi": _w((lambda *s: torch.randn(*s, dtype=torch.bfloat16) * 0.4)(H, Dh, Dh) * (Dh ** -0.5)),
            "wo": _w((lambda *s: torch.randn(*s, dtype=torch.bfloat16) * 0.05)(D, D)),
        }
    _A_in = _A_setup()

    def _B_setup():
        B, S, D, F = 1, 2048, 512, 1792
        return {
            "x": _w((lambda *s: torch.randn(*s, dtype=torch.bfloat16) * 0.05)(B, S, D)),
            "W_gate": _w((lambda *s: torch.randn(*s, dtype=torch.bfloat16) * 0.8)(D, F) * (2.0 / D) ** 0.5),
            "W_up": _w((lambda *s: torch.randn(*s, dtype=torch.bfloat16) * 0.8)(D, F) * (2.0 / D) ** 0.5),
            "W_down": _w((lambda *s: torch.randn(*s, dtype=torch.bfloat16) * 0.8)(F, D) * (1.0 / F) ** 0.5),
        }
    _B_in = _B_setup()

    return {
        "A_x": _A_in["x"],
        "A_wqkv": _A_in["wqkv"],
        "A_w_phi": _A_in["w_phi"],
        "A_wo": _A_in["wo"],
        "B_x": _B_in["x"],
        "B_W_gate": _B_in["W_gate"],
        "B_W_up": _B_in["W_up"],
        "B_W_down": _B_in["W_down"],
    }

def reference(A_x, A_wqkv, A_w_phi, A_wo, B_x, B_W_gate, B_W_up, B_W_down):
    def _A_ref(x, wqkv, w_phi, wo):
        B, S, D = x.shape
        H = 32; Dh = D // H
        qkv = (lambda x, *d: x.permute(*d))((x @ wqkv).reshape(B, S, 3, H, Dh), 2, 0, 3, 1, 4)
        q, k, v = qkv[0], qkv[1], qkv[2]
        pq = torch.einsum("bhsd,hdf->bhsf", q, w_phi)
        pk = torch.einsum("bhsd,hdf->bhsf", k, w_phi)
        phi_q = torch.concatenate([_softmax(pq, axis=-1), _softmax(-pq, axis=-1)], axis=-1)
        phi_k = torch.concatenate([_softmax(pk, axis=-1), _softmax(-pk, axis=-1)], axis=-1)
        kv = torch.einsum("bhsf,bhsd->bhfd", phi_k, v)
        z  = torch.einsum("bhsf->bhf", phi_k)
        num = torch.einsum("bhqf,bhfd->bhqd", phi_q, kv)
        den = torch.einsum("bhqf,bhf->bhq", phi_q, z)[..., None] + 1e-6
        o = num / den
        return (lambda x, *d: x.permute(*d))(o, 0, 2, 1, 3).reshape(B, S, D) @ wo

    def _B_ref(x, W_gate, W_up, W_down):
        gate = torch.einsum("bsd,df->bsf", x, W_gate)
        up = torch.einsum("bsd,df->bsf", x, W_up)
        gate = gate * (lambda x, dt: x.to(dt))(gate > 0, gate.dtype)
        h = gate * up
        return torch.einsum("bsf,fd->bsd", h, W_down)

    x = A_x
    x = x + _A_ref(_layernorm(x, axis=-1), A_wqkv, A_w_phi, A_wo)
    x = x + _B_ref(_layernorm(x, axis=-1), B_W_gate, B_W_up, B_W_down)
    x = x + _A_ref(_layernorm(x, axis=-1), A_wqkv, A_w_phi, A_wo)
    x = x + _B_ref(_layernorm(x, axis=-1), B_W_gate, B_W_up, B_W_down)
    return x
```

```python
import re, contextlib

TRANS = ('v_exp_f32', 'v_log_f32', 'v_rcp_f32', 'v_rsq_f32', 'v_sqrt_f32', 'v_sin_f32', 'v_cos_f32')
RX = re.compile(r'^-?\|?([vas])(\d+)\|?$')
RR = re.compile(r'^-?\|?([vas])\[(\d+):(\d+)\]\|?$')

def regs(tok):
    tok = tok.strip()
    m = RX.match(tok)
    if m: return [(m.group(1), int(m.group(2)))]
    m = RR.match(tok)
    if m: return [(m.group(1), i) for i in range(int(m.group(2)), int(m.group(3)) + 1)]
    if tok in ('vcc', 'vcc_lo', 'vcc_hi'): return [('s', 'vcc')]
    if tok in ('exec', 'exec_lo', 'exec_hi'): return [('s', 'exec')]
    if tok == 'm0': return [('s', 'm0')]
    return []

class Ins:
    __slots__ = ('text', 'op', 'kind', 'dst', 'src', 'A', 'B', 'C', 'passes', 'maybe', 'dpp', 'wide', 'data',
                 'lds', 'waits', 'nops', 'vmidx', 'lgidx', 'srcv')
    def __init__(s, text, maybe=False):
        s.text = text; s.maybe = maybe
        s.dst = set(); s.src = set(); s.A = s.B = s.C = None; s.passes = 0; s.dpp = False; s.wide = False
        s.data = set(); s.lds = False; s.waits = []; s.nops = 1; s.vmidx = None; s.lgidx = None
        t = text.split(';')[0].strip()
        if t.endswith(':') or t.startswith('.') or t == '':
            s.op = t; s.kind = 'label'; s.nops = 0; return
        parts = t.split(None, 1)
        op = parts[0]; s.op = op
        rest = parts[1] if len(parts) > 1 else ''
        ops = []; depth = 0; cur = ''
        for ch in rest:
            if ch == '[': depth += 1
            if ch == ']': depth -= 1
            if ch == ',' and depth == 0: ops.append(cur.strip()); cur = ''
            else: cur += ch
        if cur.strip(): ops.append(cur.strip())
        mods = []
        if ops:
            w = ops[-1].split()
            ops[-1] = w[0]; mods = w[1:]
        R = [regs(o) for o in ops]
        allr = lambda l: set(x for r in l for x in r)
        if op.startswith('v_mfma'):
            s.kind = 'mfma'; s.dst = set(R[0]); s.A = set(R[1]); s.B = set(R[2]); s.C = R[3]
            s.src = s.A | s.B | set(s.C)
            s.passes = 8 if '32x32x16' in op else 4 if '16x16x32' in op else None
            assert s.passes, op
        elif op.startswith('v_'):
            s.kind = 'valu'
            s.dst = set(R[0]); s.src = allr(R[1:])
            if 'permlane' in op and 'swap' in op: s.dst = allr(R); s.src = allr(R)
            if op.startswith(('v_fmac', 'v_dot2c', 'v_pk_fmac', 'v_writelane')): s.src |= s.dst
            if op.endswith('_dpp') or any(m.startswith(('quad_perm', 'row_')) for m in mods):
                s.dpp = True; s.src |= s.dst
            if op.startswith('v_cmpx'): s.dst.add(('s', 'exec'))
        elif op.startswith('ds_'):
            s.kind = 'ds'
            if op.startswith(('ds_read', 'ds_bpermute', 'ds_permute', 'ds_swizzle')): s.dst = set(R[0]); s.src = allr(R[1:])
            else: s.src = allr(R)
        elif op.startswith('buffer_'):
            s.kind = 'vmem'
            if 'lds' in mods:
                s.lds = True; s.src = allr(R) | {('s', 'm0')}
            elif op.startswith('buffer_load'): s.dst = set(R[0]); s.src = allr(R[1:])
            else:
                s.src = allr(R); s.data = set(R[0]); s.wide = len(R[0]) >= 3
        elif op.startswith(('s_load', 's_memtime', 's_memrealtime', 's_buffer_load')):
            s.kind = 'smem'; s.dst = set(R[0]); s.src = allr(R[1:])
        elif op == 's_waitcnt': s.kind = 'wait'
        elif op == 's_nop': s.kind = 'nop'; s.nops = int(ops[0]) + 1
        elif op in ('s_barrier', 's_endpgm', 's_setprio', 's_sleep') or op.startswith(('s_cbranch', 's_branch')): s.kind = 'ctl'
        elif op == 'WAIT': s.kind = 'pseudo'; s.nops = 0
        elif op.startswith('s_'):
            s.kind = 'salu'
            if op.startswith(('s_cmp', 's_bitcmp')): s.src = allr(R)
            else: s.dst = set(R[0]); s.src = allr(R[1:])
            if 'saveexec' in op: s.dst.add(('s', 'exec'))
        else:
            raise ValueError('unknown op ' + text)
        s.srcv = set(x for x in s.src if x[0] != 's')

class Asm:
    def __init__(s):
        s.cur = []; s.maybe = False
    def I(s, text):
        r = None
        for l in text.split('\n'):
            l = l.strip()
            if not l: continue
            r = Ins(l, s.maybe); s.cur.append(r)
        return r
    def wait(s, *toks):
        w = Ins('WAIT'); w.waits = [t for t in toks if t is not None]; s.cur.append(w); return w
    @contextlib.contextmanager
    def cap(s):
        old = s.cur; lst = []; s.cur = lst
        try: yield lst
        finally: s.cur = old
    @contextlib.contextmanager
    def group(s):
        old = s.cur; lst = []; s.cur = lst
        try: yield lst
        finally:
            s.cur = old; s.cur.append(lst)
    @contextlib.contextmanager
    def cond(s):
        old = s.maybe; s.maybe = True
        try: yield
        finally: s.maybe = old
    def put(s, lst): s.cur.extend(lst)
    def weave(s, base, *streams):
        def isM(x): return (not isinstance(x, list)) and x.kind == 'mfma'
        ng = sum(1 for x in base if isM(x))
        slots = [[] for _ in range(ng + 1)]
        for items, g0, g1 in streams:
            g1 = min(g1, ng - 1); n = len(items)
            if g1 < g0: slots[ng].extend(items); continue
            span = g1 - g0 + 1
            for i, it in enumerate(items): slots[g0 + (i * span) // n].append(it)
        g = 0
        for x in base:
            s.cur.append(x)
            if isM(x): s.cur.extend(slots[g]); g += 1
        s.cur.extend(slots[ng])

    @staticmethod
    def flat(l):
        for x in l:
            if isinstance(x, list): yield from Asm.flat(x)
            else: yield x

    def finish(s, stats=None):
        src = list(Asm.flat(s.cur)); out = []
        vmq = []; lgq = []
        smem_out = False
        nnop = 0
        def cnt_after(q, ins):
            i = q.index(ins); return sum(1 for x in q[i + 1:] if not x.maybe)
        for ins in src:
            needv = None; needl = None
            def need(p):
                nonlocal needv, needl
                if p in vmq:
                    c = cnt_after(vmq, p); needv = c if needv is None else min(needv, c)
                elif p in lgq:
                    c = 0 if any(x.kind == 'smem' for x in lgq) else cnt_after(lgq, p)
                    needl = c if needl is None else min(needl, c)
            for t in ins.waits: need(t)
            touched = ins.src | ins.dst
            if touched:
                for p in vmq:
                    if p.dst and (p.dst & ins.src or (p.dst & ins.dst and ins.kind != 'vmem')): need(p)
                for p in lgq:
                    if p.dst and (p.dst & ins.src or (p.dst & ins.dst and not (ins.kind == 'ds' and p.kind == 'ds'))): need(p)
            if needv is not None or needl is not None:
                w = []
                if needv is not None:
                    needv = min(needv, 63); w.append(f'vmcnt({needv})')
                if needl is not None:
                    needl = min(needl, 15); w.append(f'lgkmcnt({needl})')
                wi = Ins('s_waitcnt ' + ' '.join(w), ins.maybe)
                s._applywait(wi, vmq, lgq); out.append(wi)
            if ins.kind == 'pseudo': continue
            if ins.kind == 'wait': s._applywait(ins, vmq, lgq)
            n = s._hazard(out, ins)
            while n > 0:
                k = min(n, 16); out.append(Ins(f's_nop {k - 1}', ins.maybe)); n -= k; nnop += k
            out.append(ins)
            if ins.kind == 'vmem': vmq.append(ins)
            if ins.kind in ('ds', 'smem'): lgq.append(ins)
        if stats is not None:
            stats['n'] = sum(1 for x in out if x.kind != 'label'); stats['nopstates'] = nnop
        return '\n'.join(('' if x.kind == 'label' else '  ') + x.text for x in out)

    @staticmethod
    def _applywait(w, vmq, lgq):
        if w.maybe: return
        m = re.search(r'vmcnt\((\d+)\)', w.text)
        if m:
            n = int(m.group(1))
            k = len(vmq); c = 0
            while k > 0 and c < n:
                k -= 1
                if not vmq[k].maybe: c += 1
            if n > 0:
                while k > 0 and vmq[k - 1].maybe and c < n: k -= 1
            del vmq[:k]
        m = re.search(r'lgkmcnt\((\d+)\)', w.text)
        if m:
            n = int(m.group(1))
            if n == 0: del lgq[:]
            elif not any(x.kind == 'smem' for x in lgq):
                k = len(lgq); c = 0
                while k > 0 and c < n:
                    k -= 1
                    if not lgq[k].maybe: c += 1
                del lgq[:k]

    @staticmethod
    def _hazard(out, c):
        if c.kind in ('label', 'wait', 'nop', 'ctl', 'pseudo'): return 0
        need = 0; dist = 0
        cv = c.kind in ('valu', 'mfma', 'ds', 'vmem')
        for p in reversed(out):
            if dist >= 20: break
            req = 0
            if p.kind == 'mfma':
                P = p.passes
                if c.kind == 'mfma':
                    if p.dst & (c.A | c.B): req = max(req, 12 if P == 8 else 8)
                    cs = set(c.C)
                    if p.dst & cs and not (p.dst == cs and P == c.passes): req = max(req, 10 if P == 8 else 6)
                    if p.dst & c.dst and not (p.dst == cs and P == c.passes): req = max(req, 10 if P == 8 else 6)
                elif cv:
                    if p.dst & (c.src | c.dst): req = max(req, 12 if P == 8 else 8)
                    if set(p.C) & c.dst: req = max(req, 7 if P == 8 else 3)
            elif p.kind == 'valu':
                pv = set(x for x in p.dst if x[0] != 's'); ps = p.dst - pv
                if c.kind == 'mfma':
                    if pv & c.src: req = max(req, 2)
                    if ('s', 'exec') in ps: req = max(req, 4)
                if c.kind == 'valu':
                    if p.op.replace('_e32', '').replace('_e64', '') in TRANS and pv & c.src: req = max(req, 1)
                    if ('permlane' in c.op or c.dpp) and pv & c.src: req = max(req, 2)
                    if c.op.startswith(('v_readfirstlane', 'v_readlane')) and pv & c.src: req = max(req, 1)
                    if ps & c.src: req = max(req, 4 if c.op.startswith(('v_readlane', 'v_writelane')) else 2)
                    if ('s', 'exec') in ps: req = max(req, 5)
                    if 'op_sel' in p.text and not p.op.startswith('v_pk') and pv & (c.src | c.dst): req = max(req, 1)
                if p.op.startswith('v_dot') and cv and pv & (c.src | c.dst):
                    same = c.kind == 'valu' and c.op == p.op
                    if same:
                        ops = c.text.split(None, 1)[1].split(',')
                        ab = set(regs(ops[1])) | set(regs(ops[2]))
                        if pv & ab: req = max(req, 3)
                    else: req = max(req, 3)
                if c.kind == 'vmem' and ps & c.src: req = max(req, 5)
                if c.kind in ('salu', 'smem') and ps & c.src: req = max(req, 1)
            elif p.kind == 'salu':
                if ('s', 'm0') in p.dst and c.kind == 'vmem' and c.lds: req = max(req, 1)
            elif p.kind == 'vmem':
                if p.wide and p.data & c.dst: req = max(req, 2)
            need = max(need, req - dist)
            if not p.maybe or p.maybe == c.maybe: dist += p.nops
        return need
```

```python
import sys
from asm import Asm
NAME = 'interleave_layers__linear_kernel_hedgehog__glu_gated_reglu__prompt'

FX, FO, FH = 0x2000, 0x4000, 0x6000
ST = 0x40000
XB = (0x200000, 0x400000)
KVP = 0x600000
HB = 0x800000
WQKV, WO_P, WD_P, WGU = 0x1000000, 0x1180000, 0x1200000, 0x1400000
TS = 0x2000000
WS_SIZE = 0x10000000
OOB = 0x7ffffff0
XA = 0x20000; PS = 2112
KVA = 0x26400; ZA = 0x26C00; ZERO = 0x26D00; RS = 0x27100; ROLE = 0x27300
LDS_MAIN = 163840

def v(a, n=1): return f'v{a}' if n == 1 else f'v[{a}:{a+n-1}]'
def a_(a, n=1): return f'a{a}' if n == 1 else f'a[{a}:{a+n-1}]'
def s_(a, n=1): return f's{a}' if n == 1 else f's[{a}:{a+n-1}]'

def kd(name, vgpr, acc, sgpr=102):
    return f'''.section .rodata,"a"
.p2align 6
.amdhsa_kernel {name}
  .amdhsa_next_free_vgpr {vgpr}
  .amdhsa_next_free_sgpr {sgpr}
  .amdhsa_accum_offset {acc}
  .amdhsa_group_segment_fixed_size 0
  .amdhsa_kernarg_size 88
  .amdhsa_user_sgpr_count 2
  .amdhsa_user_sgpr_kernarg_segment_ptr 1
  .amdhsa_system_sgpr_workgroup_id_x 1
.end_amdhsa_kernel
.text
'''
def head(name):
    return f'.globl {name}\n.p2align 8\n.type {name},@function\n{name}:\n'

def srd(I, d, b, size):
    I(f's_mov_b32 s{d}, s{b}\ns_mov_b32 s{d+1}, s{b+1}\ns_mov_b32 s{d+2}, {hex(size)}\ns_mov_b32 s{d+3}, 0x20000')

def gen_prep():
    k = Asm(); I = k.I
    I('s_cmp_ge_u32 s2, 256\ns_cbranch_scc1 P_END')
    I('s_load_dwordx4 s[36:39], s[0:1], 0\ns_load_dwordx4 s[40:43], s[0:1], 16\ns_load_dwordx2 s[44:45], s[0:1], 40')
    I('s_load_dwordx4 s[48:51], s[0:1], 48\ns_load_dwordx2 s[46:47], s[0:1], 80')
    I('v_lshrrev_b32 v1, 6, v0\nv_and_b32 v0, 63, v0\nv_readfirstlane_b32 s24, v1')
    I('v_lshlrev_b32 v1, 4, v0')
    I('s_waitcnt lgkmcnt(0)')
    srd(I, 8, 46, WS_SIZE); srd(I, 12, 36, 2048*1024); srd(I, 20, 40, 32*512)
    I('s_lshl_b32 s25, s2, 3\ns_lshl_b32 s26, s24, 1\ns_add_u32 s25, s25, s26')
    I('s_lshl_b32 s26, s25, 10')
    I('buffer_load_dwordx4 v[8:11], v1, s[12:15], s26 offen\nbuffer_load_dwordx4 v[12:15], v1, s[12:15], s26 offen offset:1024')
    I('s_mov_b32 s19, 0x20000\ns_mov_b32 s33, 16\ns_mov_b32 s34, 0\ns_mov_b32 s32, 0\ns_mov_b32 s30, 1024\ns_mov_b32 s31, 0xbb000000\ns_mov_b32 s35, 0')
    I('s_cmp_ge_u32 s2, 48\ns_cbranch_scc1 P_N1')
    I('s_mov_b32 s16, s38\ns_mov_b32 s17, s39\ns_mov_b32 s18, 0x180000\ns_movk_i32 s28, 3072')
    I('s_lshr_b32 s52, s2, 4\ns_and_b32 s35, s2, 15')
    I('s_add_u32 s53, s52, 1\ns_cmp_eq_u32 s52, 2\ns_cselect_b32 s53, 0, s53\ns_lshl_b32 s53, s53, 10\ns_lshl_b32 s27, s35, 6\ns_add_u32 s27, s27, s53')
    I(f's_mul_i32 s29, s35, 3\ns_add_u32 s29, s29, s52\ns_lshl_b32 s29, s29, 15\ns_add_u32 s29, s29, {hex(WQKV)}')
    I('s_cmp_eq_u32 s52, 1\ns_cselect_b32 s32, 1, 2\ns_branch P_GO')
    I('P_N1:\ns_cmp_ge_u32 s2, 160\ns_cbranch_scc1 P_N3')
    I(f's_mov_b32 s18, {hex(512*3584)}\ns_movk_i32 s28, 3584\ns_mov_b32 s34, 1')
    I('s_cmp_ge_u32 s2, 104\ns_cbranch_scc1 P_N2')
    I(f's_mov_b32 s16, s44\ns_mov_b32 s17, s45\ns_sub_u32 s52, s2, 48\ns_mov_b32 s53, {hex(WGU)}\ns_branch P_GU')
    I(f'P_N2:\ns_mov_b32 s16, s48\ns_mov_b32 s17, s49\ns_sub_u32 s52, s2, 104\ns_mov_b32 s53, {hex(WGU+256)}')
    I('P_GU:\ns_lshl_b32 s27, s52, 6\ns_lshl_b32 s29, s52, 16\ns_add_u32 s29, s29, s53\ns_branch P_GO')
    I('P_N3:\ns_mov_b32 s31, 0\ns_movk_i32 s28, 1024\ns_movk_i32 s30, 2048')
    I('s_cmp_ge_u32 s2, 176\ns_cbranch_scc1 P_N4')
    I('s_mov_b32 s16, s42\ns_mov_b32 s17, s43\ns_mov_b32 s18, 0x80000\ns_sub_u32 s52, s2, 160')
    I(f's_lshl_b32 s27, s52, 6\ns_lshr_b32 s53, s52, 1\ns_lshl_b32 s53, s53, 16\ns_and_b32 s52, s52, 1\ns_lshl_b32 s52, s52, 10\ns_add_u32 s29, s52, s53\ns_add_u32 s29, s29, {hex(WO_P)}\ns_branch P_GO')
    I(f'P_N4:\ns_mov_b32 s16, s50\ns_mov_b32 s17, s51\ns_mov_b32 s18, {hex(1792*1024)}\ns_mov_b32 s33, 14')
    I('s_sub_u32 s52, s2, 176\ns_cmp_ge_u32 s52, 64\ns_cselect_b32 s33, 0, s33\ns_and_b32 s52, s52, 63')
    I('s_and_b32 s53, s52, 15\ns_lshr_b32 s52, s52, 4')
    I(f's_mul_i32 s27, s52, {448*1024}\ns_lshl_b32 s54, s53, 6\ns_add_u32 s27, s27, s54')
    I(f's_lshr_b32 s54, s53, 1\ns_mul_i32 s29, s54, {224*1024}\ns_and_b32 s54, s53, 1\ns_lshl_b32 s54, s54, 10\ns_add_u32 s29, s29, s54')
    I(f's_mul_i32 s54, s52, {56*1024}\ns_add_u32 s29, s29, s54\ns_add_u32 s29, s29, {hex(WD_P)}')
    I('P_GO:')
    I('v_and_b32 v2, 31, v0\nv_lshrrev_b32 v3, 5, v0')
    I('v_and_b32 v4, 19, v2\nv_bfe_u32 v5, v2, 2, 1\nv_bfe_u32 v6, v2, 3, 1\nv_lshl_or_b32 v4, v5, 3, v4\nv_lshl_or_b32 v4, v6, 2, v4')
    I('v_mul_lo_u32 v7, v4, s28\nv_lshl_add_u32 v7, v3, 4, v7')
    I('s_lshl_b32 s52, s28, 7\ns_mul_i32 s52, s52, s24\ns_add_u32 s27, s27, s52\ns_lshl_b32 s53, s28, 5')
    for b in range(4):
        I(f'buffer_load_dwordx4 v[{32+8*b}:{35+8*b}], v7, s[16:19], s27 offen\nbuffer_load_dwordx4 v[{36+8*b}:{39+8*b}], v7, s[16:19], s27 offen offset:32')
        if b < 3: I('s_add_u32 s27, s27, s53')
    I('v_lshrrev_b32 v16, 3, v2\nv_and_b32 v17, 3, v2\nv_lshl_or_b32 v16, v16, 2, v17')
    I('v_lshlrev_b32 v17, 1, v16\nv_lshl_or_b32 v17, v3, 8, v17\nv_lshl_or_b32 v17, v5, 9, v17')
    I('s_lshl_b32 s52, s35, 10')
    for i in range(8): I(f'buffer_load_ushort v{64+i}, v17, s[20:23], s52 offen offset:{32*i}')
    I('v_lshl_or_b32 v16, v5, 4, v16\ns_cmp_eq_u32 s32, 1\ns_cselect_b64 s[54:55], -1, 0')
    I('v_cndmask_b32 v16, v4, v16, s[54:55]')
    I('v_lshlrev_b32 v18, 3, v3\nv_sub_u32 v16, v16, v18')
    I('v_and_b32 v18, 1, v16\nv_lshlrev_b32 v18, 4, v18\nv_mov_b32 v19, 0x3f80\nv_lshlrev_b32 v18, v18, v19\nv_ashrrev_i32 v16, 1, v16')
    for p in range(2):
        for r in range(4):
            I(f'v_cmp_eq_u32 vcc, {8*p+r}, v16\nv_cndmask_b32 v{24+4*p+r}, 0, v18, vcc')
    I(f's_lshr_b32 s52, s25, 5\ns_lshl_b32 s53, s52, 15\ns_and_b32 s56, s25, 31\ns_lshl_b32 s57, s56, 4\ns_add_u32 s53, s53, s57\ns_add_u32 s53, s53, {hex(XB[0])}')
    I('v_lshlrev_b32 v20, 9, v0')
    I('buffer_store_dwordx4 v[8:11], v20, s[8:11], s53 offen\nbuffer_store_dwordx4 v[12:15], v20, s[8:11], s53 offen offset:16')
    I('s_mov_b32 s58, 0x3f803f80')
    for r in range(2):
        b = 8 + 4*r; o = 72 + 2*r
        for i in range(4):
            I(f'v_dot2_f32_bf16 v{o}, v{b+i}, s58, {"0" if i == 0 else v(o)}')
        for i in range(4):
            I(f'v_dot2_f32_bf16 v{o+1}, v{b+i}, v{b+i}, {"0" if i == 0 else v(o+1)}')
    for mod in ('quad_perm:[1,0,3,2]', 'quad_perm:[2,3,0,1]', 'row_half_mirror'):
        for o in range(72, 76): I(f'v_add_f32_dpp v{o}, v{o}, v{o} {mod} row_mask:0xf bank_mask:0xf')
    I(f'v_and_b32 v21, 7, v0\nv_cmp_eq_u32 vcc, 0, v21\nv_mov_b32 v21, {hex(OOB)}\nv_cndmask_b32 v21, v21, v0, vcc')
    I(f's_lshl_b32 s52, s52, 11\ns_lshl_b32 s57, s56, 6\ns_add_u32 s52, s52, s57\ns_add_u32 s52, s52, {hex(ST)}')
    I('buffer_store_dwordx2 v[72:73], v21, s[8:11], s52 offen\nbuffer_store_dwordx2 v[74:75], v21, s[8:11], s52 offen offset:64')
    for r in range(4): I(f'v_lshl_or_b32 v{64+r}, v{65+2*r}, 16, v{64+2*r}')
    I('s_cmp_eq_u32 s32, 2\ns_cselect_b64 s[54:55], -1, 0\nv_cmp_eq_u32 vcc, 0, v5')
    for r in range(4):
        I(f'v_cndmask_b32 v68, 0, v{64+r}, vcc\nv_cndmask_b32 v69, v{64+r}, 0, vcc')
        I(f'v_cndmask_b32 v{24+r}, v{24+r}, v68, s[54:55]\nv_cndmask_b32 v{28+r}, v{28+r}, v69, s[54:55]')
    for b in range(4):
        d = 128 + 16*b
        I(f'v_mfma_f32_32x32x16_bf16 {v(d,16)}, {v(32+8*b,4)}, v[24:27], 0')
        I(f'v_mfma_f32_32x32x16_bf16 {v(d,16)}, {v(36+8*b,4)}, v[28:31], {v(d,16)}')
    I('v_pk_add_f32 v[76:77], v[128:129], v[130:131]')
    for r in range(132, 192, 2): I(f'v_pk_add_f32 v[76:77], v[76:77], {v(r,2)}')
    I('v_add_f32 v76, v76, v77\nv_lshlrev_b32 v22, 2, v0\ns_lshl_b32 s52, s24, 8\nv_add_u32 v22, s52, v22')
    t = I('ds_write_b32 v22, v76'); k.wait(t); I('s_barrier')
    I('v_lshlrev_b32 v22, 2, v2')
    for i in range(8): I(f'ds_read_b32 v{80+i}, v22 offset:{128*i}')
    for i in range(1, 8): I(f'v_add_f32 v80, v80, v{80+i}')
    I('v_mul_f32 v80, s31, v80\nv_mov_b32 v81, v80')
    I('v_and_b32 v22, 15, v2\nv_lshl_or_b32 v22, v3, 5, v22\nv_lshlrev_b32 v22, 4, v22\nv_lshrrev_b32 v23, 4, v2\nv_lshl_or_b32 v22, v23, 15, v22')
    I('s_cmp_eq_u32 s34, 1\ns_cselect_b64 s[54:55], -1, 0\nv_cndmask_b32 v22, v1, v22, s[54:55]')
    I('s_lshl_b32 s52, s30, 3\ns_mul_i32 s52, s52, s24\ns_add_u32 s29, s29, s52\ns_lshl_b32 s56, s24, 2')
    for b in range(4):
        d = 128 + 16*b
        for r in range(0, 16, 2): I(f'v_pk_add_f32 {v(d+r,2)}, {v(d+r,2)}, v[80:81]')
        for r in range(8): I(f'v_cvt_pk_bf16_f32 v{d+r}, v{d+2*r}, v{d+2*r+1}')
    for b in range(4):
        d = 128 + 16*b
        I(f's_cmp_ge_u32 s56, s33\ns_cbranch_scc1 P_FIN')
        I(f'buffer_store_dwordx4 {v(d,4)}, v22, s[8:11], s29 offen\ns_add_u32 s29, s29, s30')
        I(f'buffer_store_dwordx4 {v(d+4,4)}, v22, s[8:11], s29 offen\ns_add_u32 s29, s29, s30\ns_add_u32 s56, s56, 1')
    I('P_FIN:\ns_waitcnt vmcnt(0)\nP_END:\ns_endpgm')
    return k

WS, XS, OS, DS = 's[8:11]', 's[12:15]', 's[16:19]', 's[20:23]'
sW, sG, sRK, sR, sJ, sHB, sCG, sTAG, sE, sLIM = 24, 25, 26, 27, 28, 29, 30, 31, 32, 33
sQKV, sGU, sWO, sWD = 34, 35, 36, 37
sXIN, sXO, sXPUB, sSTIN, sSTPUB = 38, 39, 40, 41, 42
sHPUB, sHIN, sFXC, sFXP, sFOC, sFOP, sKVP, sKVC, sNAT, sM0 = 43, 44, 45, 46, 47, 48, 49, 50, 51, 52
sSELLO, sSELHI, sONES, sLOG2E, sTSB = 53, 54, 55, 56, 57
sT0 = 60
vL, vL16, vL16b, vFX, vFO, vL0, vSTL, vPUB, vPHW, vTRA, vTRB, vKVW, vZW, vKVR, vZR, vREDW, vNAT, vSTW, vRSW, vRSR = range(20)
vRSTD, vC, vT0, vT1, vT2, vT3, vT4, vT5 = range(24, 32)
vRES = 32; vTMP = 48; vACC = 64; vXB = 128; aRING = 224

class Main:
    def __init__(s, stop=None, ts=False):
        s.k = Asm(); s.I = s.k.I; s.stop = stop; s.ts = ts; s.nl = 0; s.nts = 0; s.tsnames = []
    def label(s, p):
        s.nl += 1; return f'{p}_{s.nl}'
    def stamp(s, name):
        if not s.ts: return
        r = 80 + 2*(s.nts % 10)
        s.tsnames.append(name)
        with s.k.group():
            s.I(f's_memtime s[78:79]\ns_waitcnt lgkmcnt(0)\nv_writelane_b32 v23, s78, {s.nts}')
        s.nts += 1
    class SO:
        def __init__(o, m, tmp): o.m = m; o.tmp = tmp; o.key = None
        def get(o, base, off):
            hi = off & ~4095; lo = off & 4095
            if hi == 0: return f's{base}', lo
            if o.key != (base, hi):
                o.m.I(f's_add_u32 s{o.tmp}, s{base}, {hex(hi)}'); o.key = (base, hi)
            return f's{o.tmp}', lo
    def ld(s, so, dst, voff, base, off, mod='', op='buffer_load_dwordx4', srdn=WS):
        with s.k.group():
            r, lo = so.get(base, off)
            t = s.I(f'{op} {dst}, v{voff}, {srdn}, {r} offen' + (f' offset:{lo}' if lo else '') + (' ' + mod if mod else ''))
        return t
    def dma_tile(s, so, base, off, slot):
        t = None
        for h in range(2):
            for i in range(4):
                with s.k.group():
                    if i == 0:
                        s.I(f's_add_u32 m0, s{sM0}, {hex(slot*0x8000 + h*4096)}')
                        s.I(f's_add_u32 s{so}, s{base}, {hex(off + h*4096)}')
                    t = s.I(f'buffer_load_dwordx4 v{vL16}, {WS}, s{so} offen' + (f' offset:{i*1024}' if i else '') + ' lds')
        return t
    def check(s, vt, p):
        s.I(f's_add_u32 s{sT0+8}, s{sTAG}, {p}\nv_subrev_u32 v{vt}, s{sT0+8}, v{vt}\nv_cmp_lt_u32 vcc, 15, v{vt}')
    def poll(s, voff, sbase, off, p, vt=vT0):
        I = s.I; L = s.label('POLL'); D = s.label('PD')
        I(f's_mov_b32 s{sT0+9}, 0')
        I(f'{L}:')
        I(f'buffer_load_dword v{vt}, v{voff}, {WS}, s{sbase} offen' + (f' offset:{off}' if off else '') + ' sc1')
        I('s_waitcnt vmcnt(0)')
        s.check(vt, p)
        I(f's_cbranch_vccz {D}')
        with s.k.cond():
            I(f's_add_u32 s{sT0+9}, s{sT0+9}, 1\ns_cmp_lt_u32 s{sT0+9}, s{sLIM}\ns_cbranch_scc1 {L}\ns_mov_b32 s{sLIM}, 1')
        I(f'{D}:')
    def flag(s, sbase, off, p):
        with s.k.group():
            s.I(f's_add_u32 s{sT0+10}, s{sTAG}, {p}\nv_mov_b32 v{vT5}, s{sT0+10}')
            s.I(f'buffer_store_dword v{vT5}, v{vL0}, {WS}, s{sbase} offen' + (f' offset:{off}' if off else ''))
    def ldsA(s, slot, kc):
        a = slot*0x8000 + kc*1024
        return (vL16, a) if a < 0x10000 else (vL16b, a - 0x10000)
    def gemm(s, steps, fences={}, LA=6):
        I = s.I; n = len(steps); nr = 0; last = None
        blocked = sorted((f[0], g) for g, f in fences.items())
        def limit(i):
            for st, g in blocked:
                if g > i: return st
            return n
        def rd():
            nonlocal nr, last
            vr, off = s.ldsA(steps[nr][0], steps[nr][1])
            last = I(f'ds_read_b128 {a_(aRING + 4*(nr % 8), 4)}, v{vr} offset:{off}'); nr += 1
        with s.k.cap() as base:
            while nr < min(LA, limit(-1)): rd()
            for i, (slot, kc, acc, first) in enumerate(steps):
                assert nr > i
                I(f'v_mfma_f32_32x32x16_bf16 {v(acc,16)}, {a_(aRING + 4*(i % 8), 4)}, {v(vXB+4*kc,4)}, {"0" if first else v(acc,16)}')
                if i in fences:
                    assert nr == fences[i][0], (nr, i, fences[i])
                    s.k.wait(last, *fences[i][1]); I('s_barrier')
                c = 0
                while nr < min(i + 1 + LA, limit(i), n) and c < 2: rd(); c += 1
        return base, last

    def init(s):
        I = s.I; k = s.k
        I('s_cmp_ge_u32 s2, 256\ns_cbranch_scc1 M_END')
        I('s_load_dwordx2 s[4:5], s[0:1], 0\ns_load_dwordx4 s[60:63], s[0:1], 64\ns_load_dwordx2 s[6:7], s[0:1], 80')
        I(f's_getreg_b32 s{sG}, hwreg(HW_REG_XCC_ID)\ns_and_b32 s{sG}, s{sG}, 7')
        I(f'v_lshrrev_b32 v1, 6, v0\nv_and_b32 v0, 63, v0\nv_readfirstlane_b32 s{sW}, v1')
        if s.ts: I('v_mov_b32 v23, 0')
        s.stamp('start')
        I(f'v_lshlrev_b32 v{vL16}, 4, v0\nv_add_u32 v{vL16b}, 0x10000, v{vL16}')
        I(f'v_cmp_eq_u32 vcc, 0, v0\nv_mov_b32 v{vT0}, {hex(OOB)}\nv_cndmask_b32 v{vL0}, v{vT0}, v0, vcc')
        I(f's_mov_b32 s{sLIM}, 20000')
        I('s_waitcnt lgkmcnt(0)')
        srd(I, 20, 62, 256); srd(I, 8, 6, WS_SIZE); srd(I, 12, 4, 2048*1024); srd(I, 16, 60, 2048*1024)
        I(f's_load_dword s{sE}, s[6:7], 0')
        I(f's_cmp_lg_u32 s{sW}, 0\ns_cbranch_scc1 M_NOCEN')
        with k.cond():
            I(f's_or_b32 s64, s{sG}, 0x80\nv_mov_b32 v{vT0}, s64\nv_lshlrev_b32 v{vT1}, 2, v0')
            I(f'buffer_store_byte v{vT0}, v{vL0}, {DS}, s2 offen')
            I('s_mov_b32 s65, 0')
            I('M_CEN:')
            I(f'buffer_load_dword v48, v{vT1}, {DS}, 0 offen sc1\ns_waitcnt vmcnt(0)')
            for b in range(4): I(f'v_bfe_u32 v{49+b}, v48, {8*b}, 8')
            for b in range(4): I(f'v_cmp_eq_u32 s[{66+2*b}:{67+2*b}], s64, v{49+b}')
            I('s_nop 3')
            for b in range(4): I(f's_bcnt1_i32_b64 s{74+b}, s[{66+2*b}:{67+2*b}]')
            I('s_add_u32 s74, s74, s75\ns_add_u32 s76, s76, s77\ns_add_u32 s74, s74, s76')
            I('s_cmp_ge_u32 s74, 32\ns_cbranch_scc1 M_CEND')
            I(f's_add_u32 s65, s65, 1\ns_cmp_lt_u32 s65, s{sLIM}\ns_cbranch_scc1 M_CEN')
            I('M_CEND:')
            I(f's_mov_b32 s{sRK}, 0')
            for b in range(4):
                I(f'v_add_u32 v48, {b}, v{vT1}\nv_cmp_gt_u32 vcc, s2, v48\ns_nop 3\ns_and_b64 s[{66+2*b}:{67+2*b}], s[{66+2*b}:{67+2*b}], vcc')
                I(f's_bcnt1_i32_b64 s74, s[{66+2*b}:{67+2*b}]\ns_add_u32 s{sRK}, s{sRK}, s74')
            I(f'v_mov_b32 v48, s{sRK}\nv_mov_b32 v49, {hex(ROLE)}\nds_write_b32 v49, v48')
            I('s_waitcnt lgkmcnt(0)')
        I('M_NOCEN:')
        I(f'v_and_b32 v50, 15, v0\nv_lshrrev_b32 v51, 4, v0\nv_and_b32 v52, 31, v0\nv_lshrrev_b32 v53, 5, v0')
        I(f'v_lshlrev_b32 v{vFX}, 2, v50')
        I(f'v_bfe_u32 v54, v0, 2, 1\nv_and_b32 v55, 3, v0\nv_lshlrev_b32 v55, 2, v55\nv_lshl_or_b32 v{vFO}, v54, 7, v55')
        I(f'v_lshlrev_b32 v54, 6, v52\nv_lshl_or_b32 v{vSTL}, v53, 5, v54')
        I(f'v_lshlrev_b32 v54, 4, v50\nv_lshl_or_b32 v{vPUB}, v51, 9, v54')
        I(f's_lshl_b32 s64, s{sW}, 9\ns_add_u32 s64, s64, {hex(XA)}\ns_movk_i32 s65, {6*PS}')
        I(f'v_mul_lo_u32 v54, v53, s65\nv_lshl_add_u32 v54, v52, 4, v54\nv_add_u32 v{vPHW}, s64, v54')
        I(f's_movk_i32 s65, {PS}\nv_bfe_u32 v54, v0, 1, 1\nv_mul_lo_u32 v54, v54, s65\nv_and_b32 v55, 1, v0\nv_lshl_add_u32 v54, v55, 3, v54')
        I(f'v_lshrrev_b32 v55, 2, v50\nv_lshl_add_u32 v55, v51, 3, v55\nv_lshl_add_u32 v54, v55, 4, v54')
        I(f's_lshr_b32 s66, s{sW}, 1\ns_mul_i32 s66, s66, {6*PS}\ns_add_u32 s66, s66, {hex(XA)}\ns_and_b32 s67, s{sW}, 1\ns_mul_i32 s67, s67, {2*PS}\ns_add_u32 s67, s67, s66\ns_add_u32 s66, s66, {4*PS}')
        I(f'v_add_u32 v{vTRA}, s67, v54\nv_add_u32 v{vTRB}, s66, v54')
        I(f'v_lshlrev_b32 v54, 4, v50\nv_lshl_or_b32 v54, v53, 8, v54\nv_and_b32 v55, 1, v51\nv_lshl_or_b32 v54, v55, 3, v54')
        I(f's_lshl_b32 s64, s{sW}, 9\ns_add_u32 s64, s64, {hex(KVA)}\nv_add_u32 v{vKVW}, s64, v54')
        I(f's_lshl_b32 s64, s{sW}, 5\ns_add_u32 s64, s64, {hex(ZA)}\nv_lshlrev_b32 v54, 1, v50\nv_add_u32 v{vZW}, s64, v54')
        I(f'v_and_b32 v54, 3, v0\nv_bfe_u32 v55, v0, 2, 1\nv_lshl_or_b32 v54, v55, 3, v54\nv_bfe_u32 v55, v0, 3, 1\nv_lshl_or_b32 v54, v55, 2, v54')
        I(f'v_lshlrev_b32 v54, 4, v54\nv_lshl_or_b32 v54, v53, 10, v54\nv_add_u32 v54, {hex(KVA)}, v54')
        I(f'v_lshlrev_b32 v55, 6, v53\nv_add_u32 v55, {hex(ZA)}, v55\nv_bfe_u32 v56, v0, 4, 1\nv_cmp_eq_u32 vcc, v56, v53\nv_mov_b32 v57, {hex(ZERO)}')
        I(f'v_cndmask_b32 v{vKVR}, v57, v54, vcc\nv_cndmask_b32 v{vZR}, v57, v55, vcc')
        I(f'v_lshlrev_b32 v54, 4, v50\nv_lshl_or_b32 v54, v53, 8, v54\nv_lshl_or_b32 v54, v56, 13, v54\ns_lshl_b32 s64, s{sW}, 11\nv_add_u32 v{vREDW}, s64, v54')
        I(f'v_lshlrev_b32 v54, 10, v50\nv_lshl_or_b32 v{vNAT}, v51, 4, v54')
        I(f'v_lshlrev_b32 v54, 6, v50\nv_lshl_or_b32 v54, v53, 2, v54\nv_cmp_eq_u32 vcc, 0, v56\nv_mov_b32 v55, {hex(OOB)}\nv_cndmask_b32 v{vSTW}, v55, v54, vcc')
        I(f's_lshl_b32 s64, s{sW}, 7\ns_add_u32 s64, s64, {hex(RS)}\nv_lshlrev_b32 v54, 2, v52\nv_add_u32 v{vRSW}, s64, v54')
        I(f'v_mov_b32 v56, 0\nv_mov_b32 v57, 0\nv_mov_b32 v58, 0\nv_mov_b32 v59, 0\nv_add_u32 v54, {hex(ZERO)}, v{vL16}\nds_write_b128 v54, v[56:59]')
        I(f's_mov_b32 s{sSELLO}, 0x3f80\ns_mov_b32 s{sSELHI}, 0x3f800000\ns_mov_b32 s{sONES}, 0x3f803f80\ns_mov_b32 s{sLOG2E}, 0x3fb8aa3b')
        I(f's_lshl_b32 s{sM0}, s{sW}, 13')
        I('s_waitcnt lgkmcnt(0)\ns_barrier')
        I(f'v_mov_b32 v49, {hex(ROLE)}\nds_read_b32 v48, v49\nv_readfirstlane_b32 s{sRK}, v48')
        I(f's_and_b32 s{sRK}, s{sRK}, 31')
        I(f's_mul_i32 s{sTAG}, s{sE}, 0x9E3779B1\ns_add_u32 s{sTAG}, s{sTAG}, 0x7F4A7C15')
        I(f's_lshr_b32 s64, s{sRK}, 4\ns_lshl_b32 s{sR}, s{sG}, 1\ns_add_u32 s{sR}, s{sR}, s64\ns_and_b32 s{sJ}, s{sRK}, 15\ns_lshr_b32 s{sHB}, s{sJ}, 3\ns_and_b32 s{sCG}, s{sJ}, 7')
        I(f's_mul_i32 s64, s{sJ}, {96*1024}\ns_add_u32 s64, s64, s{sM0}\ns_add_u32 s{sQKV}, s64, {hex(WQKV)}')
        I(f's_lshl_b32 s66, s{sR}, 2\ns_add_u32 s65, s66, s{sW}')
        I(f's_lshl_b32 s64, s65, 15\ns_add_u32 s{sXIN}, s64, {hex(XB[0])}')
        I(f's_lshl_b32 s64, s65, 11\ns_add_u32 s{sSTIN}, s64, {hex(ST)}')
    def init2(s):
        I = s.I
        I(f's_mul_i32 s64, s{sJ}, {224*1024}\ns_add_u32 s64, s64, s{sM0}\ns_add_u32 s{sGU}, s64, {hex(WGU)}')
        I(f's_lshl_b32 s64, s{sCG}, 16\ns_lshl_b32 s67, s{sW}, 14\ns_add_u32 s64, s64, s67\ns_add_u32 s{sWO}, s64, {hex(WO_P)}')
        I(f's_mul_i32 s64, s{sCG}, {224*1024}\ns_mul_i32 s67, s{sW}, {56*1024}\ns_add_u32 s64, s64, s67\ns_add_u32 s{sWD}, s64, {hex(WD_P)}')
        I(f's_lshl_b32 s67, s{sHB}, 1\ns_add_u32 s66, s66, s67')
        I(f's_lshr_b32 s67, s{sW}, 1\ns_add_u32 s67, s67, s66\ns_and_b32 s68, s{sW}, 1')
        I(f's_lshl_b32 s64, s66, 15\ns_add_u32 s64, s64, s{sM0}\ns_add_u32 s{sXO}, s64, {hex(XB[0])}')
        I(f's_lshl_b32 s64, s67, 15\ns_lshl_b32 s69, s{sCG}, 12\ns_add_u32 s64, s64, s69\ns_lshl_b32 s69, s68, 8\ns_add_u32 s64, s64, s69\ns_add_u32 s{sXPUB}, s64, {hex(XB[0])}')
        I(f's_lshl_b32 s64, s67, 11\ns_lshl_b32 s69, s68, 10\ns_add_u32 s64, s64, s69\ns_lshl_b32 s69, s{sCG}, 3\ns_add_u32 s64, s64, s69\ns_add_u32 s{sSTPUB}, s64, {hex(ST)}')
        I(f's_mul_i32 s64, s65, {112*1024}\ns_mul_i32 s69, s{sJ}, {7*1024}\ns_add_u32 s64, s64, s69\ns_add_u32 s{sHPUB}, s64, {hex(HB)}')
        I(f's_mul_i32 s64, s66, {112*1024}\ns_mul_i32 s69, s{sW}, {28*1024}\ns_add_u32 s64, s64, s69\ns_add_u32 s{sHIN}, s64, {hex(HB)}')
        I(f's_lshl_b32 s64, s65, 7\ns_add_u32 s{sFXC}, s64, {hex(FX)}')
        I(f's_lshl_b32 s69, s{sJ}, 2\ns_add_u32 s64, s64, s69\ns_add_u32 s{sFOP}, s64, {hex(FO)}')
        I(f's_lshl_b32 s64, s67, 7\ns_lshl_b32 s69, s{sCG}, 3\ns_add_u32 s64, s64, s69\ns_lshl_b32 s69, s68, 2\ns_add_u32 s64, s64, s69\ns_add_u32 s{sFXP}, s64, {hex(FX)}')
        I(f's_lshl_b32 s64, s66, 7\ns_lshl_b32 s69, s{sW}, 4\ns_add_u32 s64, s64, s69\ns_add_u32 s{sFOC}, s64, {hex(FO)}')
        I(f's_lshl_b32 s64, s{sJ}, 2\ns_add_u32 s64, s64, s{sW}\ns_lshl_b32 s64, s64, 14\ns_add_u32 s{sKVC}, s64, {hex(KVP)}')
        I(f's_lshl_b32 s64, s{sR}, 10\ns_add_u32 s{sKVP}, s64, s{sKVC}')
        I(f's_lshl_b32 s64, s{sR}, 17\ns_lshl_b32 s69, s{sHB}, 16\ns_add_u32 s64, s64, s69\ns_lshl_b32 s69, s{sW}, 14\ns_add_u32 s64, s64, s69\ns_lshl_b32 s69, s{sCG}, 7\ns_add_u32 s{sNAT}, s64, s69')
        I(f's_lshl_b32 s64, s{sHB}, 8\ns_lshl_b32 s69, s{sW}, 6\ns_add_u32 s64, s64, s69\ns_add_u32 s64, s64, {hex(RS)}\nv_add_u32 v{vRSR}, s64, v{vFX}')

    def xloads(s, buf):
        so = s.SO(s, sT0)
        d = buf*0x20000
        s.ld(so, v(vTMP, 4), vSTL, sSTIN, d, 'sc1'); s.ld(so, v(vTMP+4, 4), vSTL, sSTIN, d + 16, 'sc1')
        for kc in range(32): s.ld(so, v(vXB + 4*kc, 4), vL16, sXIN, buf*0x200000 + kc*1024, 'sc1')
    def stats(s):
        I = s.I; t = vTMP
        I(f'v_add_f32 v{t}, v{t}, v{t+2}\nv_add_f32 v{t+1}, v{t+1}, v{t+3}\nv_add_f32 v{t+4}, v{t+4}, v{t+6}\nv_add_f32 v{t+5}, v{t+5}, v{t+7}')
        I(f'v_add_f32 v{t}, v{t}, v{t+4}\nv_add_f32 v{t+1}, v{t+1}, v{t+5}')
        I(f'v_permlane32_swap_b32 v{t}, v{t+1}')
        I(f'v_add_f32 v{t}, v{t}, v{t+1}')
        I(f'v_mul_f32 v{t}, 0x3b000000, v{t}')
        I(f'v_mov_b32 v{t+1}, v{t}')
        I(f'v_permlane32_swap_b32 v{t}, v{t+1}')
        I(f'v_fma_f32 v{t+1}, -v{t}, v{t}, v{t+1}')
        I(f'v_max_f32 v{t+1}, 0, v{t+1}')
        I(f'v_add_f32 v{t+1}, 0x3727c5ac, v{t+1}')
    def phi(s, p, tA, tB, out, emit=None):
        I = s.I; mx, mn = vT0, vT2
        I(f'v_max3_f32 v{mx}, v{p}, v{p+1}, v{p+2}\nv_min3_f32 v{mn}, v{p}, v{p+1}, v{p+2}')
        for r in range(3, 15, 2): I(f'v_max3_f32 v{mx}, v{mx}, v{p+r}, v{p+r+1}\nv_min3_f32 v{mn}, v{mn}, v{p+r}, v{p+r+1}')
        I(f'v_max_f32 v{mx}, v{mx}, v{p+15}\nv_min_f32 v{mn}, v{mn}, v{p+15}')
        I(f'v_mul_f32 v{mx}, v{mx}, v{vC}\nv_mul_f32 v{mn}, v{mn}, v{vC}')
        for sg, t, m in ((0, tA, mx), (1, tB, mn)):
            for r in range(0, 16, 2):
                if sg == 0: I(f'v_pk_fma_f32 {v(t+r,2)}, {v(p+r,2)}, {v(vC-1,2)}, {v(m,2)} op_sel:[0,1,0] op_sel_hi:[1,1,0] neg_lo:[0,0,1] neg_hi:[0,0,1]')
                else: I(f'v_pk_fma_f32 {v(t+r,2)}, {v(p+r,2)}, {v(vC-1,2)}, {v(m,2)} op_sel:[0,1,0] op_sel_hi:[1,1,0] neg_lo:[1,0,0] neg_hi:[1,0,0]')
            for r in range(16): I(f'v_exp_f32 v{t+r}, v{t+r}')
            I(f'v_pk_add_f32 {v(vT4,2)}, {v(t,2)}, {v(t+2,2)}')
            for r in range(4, 16, 2): I(f'v_pk_add_f32 {v(vT4,2)}, {v(vT4,2)}, {v(t+r,2)}')
            I(f'v_add_f32 v{vT4}, v{vT4}, v{vT5}\nv_rcp_f32 v{vT4}, v{vT4}')
            for r in range(0, 16, 2): I(f'v_pk_mul_f32 {v(t+r,2)}, {v(t+r,2)}, {v(vT4,2)} op_sel_hi:[1,0]')
            for r in range(8):
                I(f'v_cvt_pk_bf16_f32 v{out+8*sg+r}, v{t+2*r}, v{t+2*r+1}')
                if emit and r % 4 == 3: emit(2*sg + r//4)

    def qkv(s, L):
        I = s.I; k = s.k
        b = 2*L; SK, SV, SQ, SF = b % 4, (b+1) % 4, (b+2) % 4, (b+3) % 4
        bA, bB = L, 1 - L
        aK, aV, aQ = vACC, vACC+16, vACC+32
        fill = []
        if L == 0:
            s.dma_tile(sT0+1, sQKV, 0, SK); tv = s.dma_tile(sT0+1, sQKV, 0x8000, SV)
            s.xloads(bA)
            s.init2()
            k.wait(tv); I('s_barrier')
            with k.cap() as f1:
                s.tQ = s.dma_tile(sT0+1, sQKV, 0x10000, SQ)
                so = s.SO(s, sT0+2)
                s.ld(so, v(vTMP+8, 4), vNAT, sNAT, 0, srdn=XS); s.ld(so, v(vTMP+12, 4), vNAT, sNAT, 64, srdn=XS)
                s.tG = {0: s.dma_tile(sT0+1, sGU, 0, SF)}
            fill.append((f1, 24, 60))
        else:
            s.poll(vFX, sFXC, 0, 2*L)
            s.stamp('x_ok')
            s.xloads(bA)
        s.stamp('qkv0')
        with k.cap() as f2:
            s.stats()
            I(f'v_rsq_f32 v{vRSTD}, v{vTMP+1}')
            I(f'v_mul_f32 v{vC}, s{sLOG2E}, v{vRSTD}')
        fill.append((f2, 4, 20))
        steps = []
        for kc in range(32): steps += [(SV, kc, aV, kc == 0), (SK, kc, aK, kc == 0)]
        base, _ = s.gemm(steps)
        k.weave(base, *fill)
        s.stamp('kv_gemm')
        if L == 0:
            for i in range(8):
                I(f'v_lshlrev_b32 v{vRES+2*i}, 16, v{vTMP+8+i}\nv_and_b32 v{vRES+2*i+1}, 0xffff0000, v{vTMP+8+i}')
        for r in range(0, 16, 2): I(f'v_pk_mul_f32 {v(aV+r,2)}, {v(aV+r,2)}, {v(vRSTD,2)} op_sel_hi:[1,0]')
        for r in range(8): I(f'v_cvt_pk_bf16_f32 v{aV+r}, v{aV+2*r}, v{aV+2*r+1}')
        I(f'ds_write_b128 v{vPHW}, {v(aV,4)} offset:{4*PS}\nds_write_b128 v{vPHW}, {v(aV+4,4)} offset:{5*PS}')
        tw = []
        s.phi(aK, vACC+32, vACC+48, vTMP, emit=lambda n: tw.append(I(f'ds_write_b128 v{vPHW}, {v(vTMP+4*n,4)} offset:{n*PS}')))
        for r in range(4): I(f'v_mov_b32 v{72+r}, s{sONES}')
        k.wait(tw[-1], s.tQ); I('s_barrier')
        s.stamp('phik')
        for u in range(4):
            for p in range(2):
                I(f'ds_read_b64_tr_b16 {v(96+4*u+2*p,2)}, v{vTRA} offset:{u*512+p*64}')
            for p in range(2):
                I(f'ds_read_b64_tr_b16 {v(112+4*u+2*p,2)}, v{vTRB} offset:{u*512+p*64}')
        for u in range(4):
            I(f'v_mfma_f32_16x16x32_bf16 v[64:67], {v(96+4*u,4)}, {v(112+4*u,4)}, {"0" if u == 0 else "v[64:67]"}')
            I(f'v_mfma_f32_16x16x32_bf16 v[68:71], v[72:75], {v(96+4*u,4)}, {"0" if u == 0 else "v[68:71]"}')
        I(f'v_mov_b32 v79, s{sTAG}')
        I('v_cvt_pk_bf16_f32 v76, v64, v65\nv_cvt_pk_bf16_f32 v77, v66, v67\nv_mov_b32 v78, v68')
        so = s.SO(s, sT0)
        s.ld(so, 'v[76:79]', vL16, sKVP, L*0x100000, 'sc1', op='buffer_store_dwordx4')
        s.stamp('kvpub')
        if s.stop == f'kv{L}': return True
        with k.cap() as f1:
            s.tG[1] = s.dma_tile(sT0+1, sGU, 0x8000, SK)
            s.tG[2] = s.dma_tile(sT0+1, sGU, 0x10000, SV)
        with k.cap() as f2:
            so = s.SO(s, sT0+2)
            for i in range(16): s.ld(so, v(vXB + 4*i, 4), vL16, sWO, i*1024)
        base, _ = s.gemm([(SQ, kc, aQ, kc == 0) for kc in range(32)])
        k.weave(base, (f1, 0, 15), (f2, 16, 31))
        s.phi(aQ, vACC, vACC+16, vTMP)
        s.stamp('phiq')
        kb = vXB + 64
        Lb = s.label('KV'); D = s.label('KVD')
        I(f's_mov_b32 s{sT0+9}, 0')
        I(f'{Lb}:')
        so = s.SO(s, sT0)
        for r in range(16): s.ld(so, v(kb + 4*r, 4), vL16, sKVC, L*0x100000 + r*1024, 'sc1')
        I(f'v_xor_b32 v{vT0}, s{sTAG}, v{kb+3}')
        for r in range(1, 16):
            I(f'v_xor_b32 v{vT1}, s{sTAG}, v{kb+4*r+3}\nv_or_b32 v{vT0}, v{vT0}, v{vT1}')
        I(f'v_cmp_ne_u32 vcc, 0, v{vT0}')
        I(f's_cbranch_vccz {D}')
        with k.cond():
            I(f's_add_u32 s{sT0+9}, s{sT0+9}, 1\ns_cmp_lt_u32 s{sT0+9}, s{sLIM}\ns_cbranch_scc1 {Lb}\ns_mov_b32 s{sLIM}, 1')
        I(f'{D}:')
        s.stamp('kv_ok')
        if L == 0:
            so = s.SO(s, sT0+2)
            for i in range(28): s.ld(so, a_(4*i, 4), vL16, sWD, i*1024)
        for r in range(16):
            for e in range(4):
                I(f'v_dot2_f32_bf16 v{64+e}, v{kb+4*r+e//2}, s{sSELHI if e & 1 else sSELLO}, {"0" if r == 0 else v(64+e)}')
            if r == 1: I(f'v_add_f32 v68, v{kb+2}, v{kb+6}')
            if r > 1: I(f'v_add_f32 v68, v68, v{kb+4*r+2}')
        I('v_cvt_pk_bf16_f32 v70, v64, v65\nv_cvt_pk_bf16_f32 v71, v66, v67\nv_cvt_pk_bf16_f32 v68, v68, v68')
        I(f'ds_write_b64 v{vKVW}, v[70:71]')
        t = I(f'ds_write_b16 v{vZW}, v68')
        k.wait(t); I('s_barrier')
        for n in range(4):
            I(f'ds_read_b128 {a_(aRING+8*n,4)}, v{vZR} offset:{n*16}\nds_read_b128 {a_(aRING+8*n+4,4)}, v{vKVR} offset:{n*256}')
        for n in range(4):
            I(f'v_mfma_f32_32x32x16_bf16 v[80:95], {a_(aRING+8*n,4)}, {v(vTMP+4*n,4)}, {"0" if n == 0 else "v[80:95]"}')
        for n in range(4):
            I(f'v_mfma_f32_32x32x16_bf16 v[64:79], {a_(aRING+8*n+4,4)}, {v(vTMP+4*n,4)}, {"0" if n == 0 else "v[64:79]"}')
        I('v_add_f32 v80, 0x358637bd, v80\nv_add_f32 v88, 0x358637bd, v88\nv_rcp_f32 v80, v80\nv_rcp_f32 v88, v88')
        so = s.SO(s, sT0)
        I(f's_lshl_b32 s{sT0+3}, s{sJ}, 11\ns_add_u32 s{sT0+3}, s{sT0+3}, s{sXIN}')
        for c in range(2):
            for r in range(0, 8, 2): I(f'v_pk_mul_f32 {v(64+8*c+r,2)}, {v(64+8*c+r,2)}, {v(80+8*c,2)} op_sel_hi:[1,0]')
            for r in range(4): I(f'v_cvt_pk_bf16_f32 v{96+4*c+r}, v{64+8*c+2*r}, v{64+8*c+2*r+1}')
            t = s.ld(so, v(96+4*c, 4), vL16, sT0+3, bB*0x200000 + c*1024, op='buffer_store_dwordx4')
        k.wait(t)
        s.flag(sFOP, 0, L + 1)
        s.stamp('opub')
        return s.stop == f'o{L}'

    def red_write(s, slot, rt2, ct):
        I = s.I; a = vACC + 32*rt2 + 16*ct; t = None
        for h in range(2):
            for r in range(4): I(f'v_cvt_pk_bf16_f32 v{a+8*h+r}, v{a+8*h+2*r}, v{a+8*h+2*r+1}')
            t = I(f'ds_write_b128 v{vT1}, {v(a+8*h,4)} offset:{rt2*16384 + (2*ct+h)*512}')
        return t
    def red_finish(s, slot, scale, L, buf, p, final, pre, after=None):
        I = s.I; k = s.k; rb = vXB + 64
        I(f's_add_u32 s{sT0+3}, s{sM0}, {hex(slot*0x8000)}\nv_add_u32 v{vT0}, s{sT0+3}, v{vL16}')
        k.wait(*pre); I('s_barrier')
        if scale: I(f'ds_read_b32 v{vT2}, v{vRSR}')
        t = None
        for c in range(2):
            for src in range(4): t = I(f'ds_read_b128 {v(rb+16*c+4*src,4)}, v{vT0} offset:{src*2048 + c*1024}')
        so = s.SO(s, sT0)
        for c in range(2):
            for src in range(4):
                for e in range(8):
                    d = (vACC if scale else vRES) + 8*c + e
                    I(f'v_dot2_f32_bf16 v{d}, v{rb+16*c+4*src+e//2}, s{sSELHI if e & 1 else sSELLO}, {"0" if scale and src == 0 else v(d)}')
            if scale:
                for e in range(0, 8, 2): I(f'v_pk_fma_f32 {v(vRES+8*c+e,2)}, {v(vACC+8*c+e,2)}, {v(vT2,2)}, {v(vRES+8*c+e,2)} op_sel_hi:[1,0,1]')
            for r in range(4): I(f'v_cvt_pk_bf16_f32 v{vTMP+4*c+r}, v{vRES+8*c+2*r}, v{vRES+8*c+2*r+1}')
            if final: s.ld(so, v(vTMP+4*c, 4), vNAT, sNAT, 64*c, op='buffer_store_dwordx4', srdn=OS)
            else: s.ld(so, v(vTMP+4*c, 4), vPUB, sXPUB, buf*0x200000 + 2048*c, op='buffer_store_dwordx4')
        if final: return
        for r in range(8):
            I(f'v_dot2_f32_bf16 v{vT2}, v{vTMP+r}, s{sONES}, {"0" if r == 0 else v(vT2)}')
            I(f'v_dot2_f32_bf16 v{vT3}, v{vTMP+r}, v{vTMP+r}, {"0" if r == 0 else v(vT3)}')
        I(f'v_permlane32_swap_b32 v{vT2}, v{vT3}\nv_add_f32 v{vT2}, v{vT2}, v{vT3}\nv_mov_b32 v{vT3}, v{vT2}')
        I(f'v_permlane16_swap_b32 v{vT2}, v{vT3}\nv_add_f32 v{vT2}, v{vT2}, v{vT3}')
        t2 = s.ld(so, v(vT2), vSTW, sSTPUB, buf*0x20000, op='buffer_store_dword')
        k.wait(t2)
        s.flag(sFXP, 0, p)
        if after: after()

    def wo(s, L):
        I = s.I; k = s.k
        b = 2*L; SQ = (b+2) % 4; bA, bB = L, 1 - L
        I(f'v_add_u32 v{vT1}, {hex(SQ*0x8000)}, v{vREDW}')
        s.poll(vFO, sFOC, 0, L + 1)
        s.stamp('o_ok')
        so = s.SO(s, sT0); ob = vXB + 64
        for rt2 in range(2):
            for kk in range(8): s.ld(so, v(ob + 32*rt2 + 4*kk, 4), vL16, sXO, bB*0x200000 + rt2*0x8000 + kk*1024, 'sc1')
        with k.cap() as base:
            for rt2 in range(2):
                for kk in range(8):
                    for ct in range(2):
                        a = vACC + 32*rt2 + 16*ct
                        I(f'v_mfma_f32_32x32x16_bf16 {v(a,16)}, {v(vXB+8*kk+4*ct,4)}, {v(ob+32*rt2+4*kk,4)}, {"0" if kk == 0 else v(a,16)}')
        with k.cap() as f1:
            s.red_write(SQ, 0, 0); s.red_write(SQ, 0, 1)
        k.weave(base, (f1, 19, 30))
        s.red_write(SQ, 1, 0); t = s.red_write(SQ, 1, 1)
        s.stamp('wo_gemm')
        def after():
            s.tG[3] = s.dma_tile(sT0+1, sGU, 3*0x8000, SQ)
            if L == 0:
                so = s.SO(s, sT0+2)
                for i in range(28, 56): s.ld(so, a_(4*i, 4), vL16, sWD, i*1024)
        s.red_finish(SQ, False, L, bA, 2*L + 1, False, [t, s.tG[0], s.tG[1], s.tG[2]], after)
        s.stamp('x1pub')
        return s.stop == f'x{2*L+1}'

    def gu_epi(s, L, t):
        I = s.I; a = vACC + 16*(t % 4)
        for r in range(8): I(f'v_max_f32 v{a+r}, 0, v{a+r}')
        for r in range(8): I(f'v_mul_f32 v{a+r}, v{a+r}, v{a+8+r}')
        for r in range(4): I(f'v_cvt_pk_bf16_f32 v{a+8+r}, v{a+2*r}, v{a+2*r+1}')
        return s.ld(s.soH, v(a+8, 4), vL16, sHPUB, t*1024, op='buffer_store_dwordx4')
    def gu(s, L):
        I = s.I; k = s.k
        b = 2*L; slot = lambda t: (b + 3 + t) % 4
        bA = L
        s.poll(vFX, sFXC, 0, 2*L + 1)
        s.stamp('x1_ok')
        s.xloads(bA)
        fill = []
        with k.cap() as f:
            s.stats()
            I(f'v_rcp_f32 v{vRSTD}, v{vTMP+1}')
            s.tRS = I(f'ds_write_b32 v{vRSW}, v{vRSTD}')
        fill.append((f, 4, 20))
        steps = []
        for kc in range(32): steps += [(slot(0), kc, vACC, kc == 0), (slot(1), kc, vACC+16, kc == 0)]
        for t in range(2, 7): steps += [(slot(t), kc, vACC + 16*(t % 4), kc == 0) for kc in range(32)]
        s.soH = s.SO(s, sT0+4)
        th = {}
        for t in range(2, 7):
            g0 = 32*t
            with k.cap() as f:
                if t == 2: s.gu_epi(L, 0)
                th[t-1] = s.gu_epi(L, t-1)
            fill.append((f, g0 + (1 if t == 2 else 4), g0 + (17 if t == 2 else 12)))
            with k.cap() as f:
                if t == 2: s.tG[4] = s.dma_tile(sT0+1, sGU, 4*0x8000, slot(4))
                if t == 3:
                    s.tG[5] = s.dma_tile(sT0+1, sGU, 5*0x8000, slot(5))
                    s.tG[6] = s.dma_tile(sT0+1, sGU, 6*0x8000, slot(6))
                if t >= 4 and L == 0:
                    s.tQ = s.dma_tile(sT0+1, sQKV, (t-4)*0x8000, slot(t-1))
            fill.append((f, g0 + (18 if t == 2 else 13), g0 + 26))
        fences = {}
        for t in range(2, 7): fences[32*t - 4] = (32*t, [s.tG[t]])
        base, last = s.gemm(steps, fences)
        with k.cap() as f:
            with k.group():
                k.wait(th[5])
                I(f's_add_u32 s{sT0+5}, s{sFOP}, {hex(FH - FO)}')
                s.flag(sT0+5, 0, 7*L + 6)
        fill.append((f, 32*6 + 27, 32*6 + 27))
        k.weave(base, *fill)
        k.wait(last); I('s_barrier')
        s.gu_epi(L, 6)
        s.stamp('gu')
        return s.stop == f'h{L}'

    def down(s, L):
        I = s.I; k = s.k
        b = 2*L; SR = (b + 3 + 6) % 4; bB = 1 - L
        I(f'v_add_u32 v{vT1}, {hex(SR*0x8000)}, v{vREDW}')
        I(f's_add_u32 s{sT0+6}, s{sFOC}, {hex(FH - FO)}')
        s.poll(vFO, sT0+6, 0, 7*L + 6)
        s.flag(sT0+5, 0, 7*L + 7)
        s.stamp('h_ok')
        order = [(t, jj, rt2) for t in range(7) for jj in range(4) for rt2 in range(2)]
        so = [s.SO(s, sT0), s.SO(s, sT0+2)]
        def hld(i):
            t, jj, rt2 = order[i]
            s.ld(so[rt2], v(vXB + 4*(i % 32), 4), vL16, sHIN, rt2*112*1024 + (7*jj + t)*1024, 'sc1')
        for i in range(32): hld(i)
        for i, (t, jj, rt2) in enumerate(order):
            for ct in range(2):
                a = vACC + 32*rt2 + 16*ct
                I(f'v_mfma_f32_32x32x16_bf16 {v(a,16)}, {a_(8*(7*jj+t)+4*ct,4)}, {v(vXB+4*(i%32),4)}, {"0" if i < 2 else v(a,16)}')
            if i == 8: I(f'buffer_load_dword v{vT0}, v{vFO}, {WS}, s{sT0+6} offen sc1')
            if i < 16: hld(i + 32)
            if i == 24:
                D = s.label('H7')
                s.check(vT0, 7*L + 7)
                I(f's_cbranch_vccz {D}')
                with k.cond(): s.poll(vFO, sT0+6, 0, 7*L + 7)
                I(f'{D}:')
                for q in range(48, 56): hld(q)
        for rt2 in range(2):
            for ct in range(2): t = s.red_write(SR, rt2, ct)
        s.stamp('dn_gemm')
        def after():
            s.tG = {0: s.dma_tile(sT0+1, sGU, 0, SR)}
        s.red_finish(SR, True, L, bB, 2*L + 2, L == 1, [t, s.tQ, s.tRS], after)
        s.stamp('x2pub')
        return s.stop == f'x{2*L+2}'

    def gen(s):
        I = s.I
        s.init()
        for L in range(2):
            if s.qkv(L) or s.wo(L) or s.gu(L) or s.down(L): break
        I(f's_or_b32 s64, s{sR}, s{sJ}\ns_or_b32 s64, s64, s{sW}\ns_cmp_lg_u32 s64, 0\ns_cbranch_scc1 M_FIN')
        with s.k.cond():
            I(f's_add_u32 s64, s{sE}, 1\nv_mov_b32 v{vT5}, s64\nbuffer_store_dword v{vT5}, v{vL0}, {WS}, 0 offen')
        I('M_FIN:')
        if s.ts:
            s.stamp('end')
            I(f'v_writelane_b32 v23, s{sLIM}, 62\nv_writelane_b32 v23, s2, 63')
            I(f's_lshl_b32 s64, s{sR}, 4\ns_add_u32 s64, s64, s{sJ}\ns_lshl_b32 s64, s64, 2\ns_add_u32 s64, s64, s{sW}\ns_lshl_b32 s64, s64, 8\ns_add_u32 s64, s64, {hex(TS)}')
            I(f'v_lshlrev_b32 v{vT0}, 2, v0\nbuffer_store_dword v23, v{vT0}, {WS}, s64 offen')
        I('s_waitcnt vmcnt(0)\nM_END:\ns_endpgm')
        return s.k

HEADER = open('cdna_kernels/' + NAME + '.s.ref').read().split('; Override')[0] if __name__ == '__main__' else ''

def build(stop=None, ts=False, header=''):
    st1 = {}; st2 = {}
    m = Main(stop, ts)
    prep = gen_prep().finish(st1); main = m.gen().finish(st2)
    txt = header
    txt += f'; @launch kernel=prep_kernel grid=(256,1,1) block=(256,1,1) lds=1024\n'
    txt += f'; @launch kernel={NAME}_kernel grid=(256,1,1) block=(256,1,1) lds={LDS_MAIN}\n'
    txt += '.amdgcn_target "amdgcn-amd-amdhsa--gfx950"\n.text\n'
    txt += head('prep_kernel') + prep + '\n' + head(NAME + '_kernel') + main + '\n'
    txt += kd('prep_kernel', 192, 192) + kd(NAME + '_kernel', 512, 256)
    return txt, (st1, st2, m.tsnames)

if __name__ == '__main__':
    txt, st = build(header=HEADER)
    out = sys.argv[1] if len(sys.argv) > 1 else 'cdna_kernels/' + NAME + '.s'
    open(out, 'w').write(txt); print(st, len(txt))
```

```python
import re, contextlib

TRANS = ('v_exp_f32', 'v_log_f32', 'v_rcp_f32', 'v_rsq_f32', 'v_sqrt_f32', 'v_sin_f32', 'v_cos_f32')
RX = re.compile(r'^-?\|?([vas])(\d+)\|?$')
RR = re.compile(r'^-?\|?([vas])\[(\d+):(\d+)\]\|?$')

def regs(tok):
    tok = tok.strip()
    m = RX.match(tok)
    if m: return [(m.group(1), int(m.group(2)))]
    m = RR.match(tok)
    if m: return [(m.group(1), i) for i in range(int(m.group(2)), int(m.group(3)) + 1)]
    if tok in ('vcc', 'vcc_lo', 'vcc_hi'): return [('s', 'vcc')]
    if tok in ('exec', 'exec_lo', 'exec_hi'): return [('s', 'exec')]
    if tok == 'm0': return [('s', 'm0')]
    return []

class Ins:
    __slots__ = ('text', 'op', 'kind', 'dst', 'src', 'A', 'B', 'C', 'passes', 'maybe', 'dpp', 'wide', 'data',
                 'lds', 'waits', 'nops', 'vmidx', 'lgidx', 'srcv')
    def __init__(s, text, maybe=False):
        s.text = text; s.maybe = maybe
        s.dst = set(); s.src = set(); s.A = s.B = s.C = None; s.passes = 0; s.dpp = False; s.wide = False
        s.data = set(); s.lds = False; s.waits = []; s.nops = 1; s.vmidx = None; s.lgidx = None
        t = text.split(';')[0].strip()
        if t.endswith(':') or t.startswith('.') or t == '':
            s.op = t; s.kind = 'label'; s.nops = 0; return
        parts = t.split(None, 1)
        op = parts[0]; s.op = op
        rest = parts[1] if len(parts) > 1 else ''
        ops = []; depth = 0; cur = ''
        for ch in rest:
            if ch == '[': depth += 1
            if ch == ']': depth -= 1
            if ch == ',' and depth == 0: ops.append(cur.strip()); cur = ''
            else: cur += ch
        if cur.strip(): ops.append(cur.strip())
        mods = []
        if ops:
            w = ops[-1].split()
            ops[-1] = w[0]; mods = w[1:]
        R = [regs(o) for o in ops]
        allr = lambda l: set(x for r in l for x in r)
        if op.startswith('v_mfma'):
            s.kind = 'mfma'; s.dst = set(R[0]); s.A = set(R[1]); s.B = set(R[2]); s.C = R[3]
            s.src = s.A | s.B | set(s.C)
            s.passes = 8 if '32x32x16' in op else 4 if '16x16x32' in op else None
            assert s.passes, op
        elif op.startswith('v_'):
            s.kind = 'valu'
            s.dst = set(R[0]); s.src = allr(R[1:])
            if 'permlane' in op and 'swap' in op: s.dst = allr(R); s.src = allr(R)
            if op.startswith(('v_fmac', 'v_dot2c', 'v_pk_fmac', 'v_writelane')): s.src |= s.dst
            if op.endswith('_dpp') or any(m.startswith(('quad_perm', 'row_')) for m in mods):
                s.dpp = True; s.src |= s.dst
            if op.startswith('v_cmpx'): s.dst.add(('s', 'exec'))
        elif op.startswith('ds_'):
            s.kind = 'ds'
            if op.startswith(('ds_read', 'ds_bpermute', 'ds_permute', 'ds_swizzle')): s.dst = set(R[0]); s.src = allr(R[1:])
            else: s.src = allr(R)
        elif op.startswith('buffer_'):
            s.kind = 'vmem'
            if 'lds' in mods:
                s.lds = True; s.src = allr(R) | {('s', 'm0')}
            elif op.startswith('buffer_load'): s.dst = set(R[0]); s.src = allr(R[1:])
            else:
                s.src = allr(R); s.data = set(R[0]); s.wide = len(R[0]) >= 3
        elif op.startswith(('s_load', 's_memtime', 's_memrealtime', 's_buffer_load')):
            s.kind = 'smem'; s.dst = set(R[0]); s.src = allr(R[1:])
        elif op == 's_waitcnt': s.kind = 'wait'
        elif op == 's_nop': s.kind = 'nop'; s.nops = int(ops[0]) + 1
        elif op in ('s_barrier', 's_endpgm', 's_setprio', 's_sleep') or op.startswith(('s_cbranch', 's_branch')): s.kind = 'ctl'
        elif op == 'WAIT': s.kind = 'pseudo'; s.nops = 0
        elif op.startswith('s_'):
            s.kind = 'salu'
            if op.startswith(('s_cmp', 's_bitcmp')): s.src = allr(R)
            else: s.dst = set(R[0]); s.src = allr(R[1:])
            if 'saveexec' in op: s.dst.add(('s', 'exec'))
        else:
            raise ValueError('unknown op ' + text)
        s.srcv = set(x for x in s.src if x[0] != 's')

class Asm:
    def __init__(s):
        s.cur = []; s.maybe = False
    def I(s, text):
        r = None
        for l in text.split('\n'):
            l = l.strip()
            if not l: continue
            r = Ins(l, s.maybe); s.cur.append(r)
        return r
    def wait(s, *toks):
        w = Ins('WAIT'); w.waits = [t for t in toks if t is not None]; s.cur.append(w); return w
    @contextlib.contextmanager
    def cap(s):
        old = s.cur; lst = []; s.cur = lst
        try: yield lst
        finally: s.cur = old
    @contextlib.contextmanager
    def group(s):
        old = s.cur; lst = []; s.cur = lst
        try: yield lst
        finally:
            s.cur = old; s.cur.append(lst)
    @contextlib.contextmanager
    def cond(s):
        old = s.maybe; s.maybe = True
        try: yield
        finally: s.maybe = old
    def put(s, lst): s.cur.extend(lst)
    def weave(s, base, *streams):
        def isM(x): return (not isinstance(x, list)) and x.kind == 'mfma'
        ng = sum(1 for x in base if isM(x))
        slots = [[] for _ in range(ng + 1)]
        for items, g0, g1 in streams:
            g1 = min(g1, ng - 1); n = len(items)
            if g1 < g0: slots[ng].extend(items); continue
            span = g1 - g0 + 1
            for i, it in enumerate(items): slots[g0 + (i * span) // n].append(it)
        g = 0
        for x in base:
            s.cur.append(x)
            if isM(x): s.cur.extend(slots[g]); g += 1
        s.cur.extend(slots[ng])

    def sprinkle(s, base, items, first, every):
        it = list(items)
        for i, x in enumerate(base):
            s.cur.append(x)
            if it and i >= first and (i - first) % every == 0: s.cur.append(it.pop(0))
        s.cur.extend(it)

    @staticmethod
    def flat(l):
        for x in l:
            if isinstance(x, list): yield from Asm.flat(x)
            else: yield x

    def finish(s, stats=None):
        src = list(Asm.flat(s.cur)); out = []
        vmq = []; lgq = []
        issued = set()
        nnop = 0
        def cnt_after(q, ins):
            i = q.index(ins); return sum(1 for x in q[i + 1:] if not x.maybe)
        for ins in src:
            needv = None; needl = None
            def need(p):
                nonlocal needv, needl
                if p in vmq:
                    c = cnt_after(vmq, p); needv = c if needv is None else min(needv, c)
                elif p in lgq:
                    c = 0 if any(x.kind == 'smem' for x in lgq) else cnt_after(lgq, p)
                    needl = c if needl is None else min(needl, c)
            for t in ins.waits:
                assert id(t) in issued, ('wait on token not yet issued', t.text)
                need(t)
            touched = ins.src | ins.dst
            if touched:
                for p in vmq:
                    if p.dst and (p.dst & ins.src or (p.dst & ins.dst and ins.kind != 'vmem')): need(p)
                for p in lgq:
                    if p.dst and (p.dst & ins.src or (p.dst & ins.dst and not (ins.kind == 'ds' and p.kind == 'ds'))): need(p)
            if needv is not None or needl is not None:
                w = []
                if needv is not None:
                    needv = min(needv, 63); w.append(f'vmcnt({needv})')
                if needl is not None:
                    needl = min(needl, 15); w.append(f'lgkmcnt({needl})')
                wi = Ins('s_waitcnt ' + ' '.join(w), ins.maybe)
                s._applywait(wi, vmq, lgq); out.append(wi)
            if ins.kind == 'pseudo': continue
            if ins.kind == 'wait': s._applywait(ins, vmq, lgq)
            n = s._hazard(out, ins)
            while n > 0:
                k = min(n, 16); out.append(Ins(f's_nop {k - 1}', ins.maybe)); n -= k; nnop += k
            out.append(ins); issued.add(id(ins))
            if ins.kind == 'vmem': vmq.append(ins)
            if ins.kind in ('ds', 'smem'): lgq.append(ins)
        if stats is not None:
            stats['n'] = sum(1 for x in out if x.kind != 'label'); stats['nopstates'] = nnop
        return '\n'.join(('' if x.kind == 'label' else '  ') + x.text for x in out)

    @staticmethod
    def _applywait(w, vmq, lgq):
        if w.maybe: return
        m = re.search(r'vmcnt\((\d+)\)', w.text)
        if m:
            n = int(m.group(1))
            k = len(vmq); c = 0
            while k > 0 and c < n:
                k -= 1
                if not vmq[k].maybe: c += 1
            if n > 0:
                while k > 0 and vmq[k - 1].maybe and c < n: k -= 1
            del vmq[:k]
        m = re.search(r'lgkmcnt\((\d+)\)', w.text)
        if m:
            n = int(m.group(1))
            if n == 0: del lgq[:]
            elif not any(x.kind == 'smem' for x in lgq):
                k = len(lgq); c = 0
                while k > 0 and c < n:
                    k -= 1
                    if not lgq[k].maybe: c += 1
                del lgq[:k]

    @staticmethod
    def _hazard(out, c):
        if c.kind in ('label', 'wait', 'nop', 'ctl', 'pseudo'): return 0
        need = 0; dist = 0
        cv = c.kind in ('valu', 'mfma', 'ds', 'vmem')
        for p in reversed(out):
            if dist >= 20: break
            req = 0
            if p.kind == 'mfma':
                P = p.passes
                if c.kind == 'mfma':
                    if p.dst & (c.A | c.B): req = max(req, 12 if P == 8 else 8)
                    cs = set(c.C)
                    if p.dst & cs and not (p.dst == cs and P == c.passes): req = max(req, 10 if P == 8 else 6)
                    if p.dst & c.dst and not (p.dst == cs and P == c.passes): req = max(req, 10 if P == 8 else 6)
                elif cv:
                    if p.dst & (c.src | c.dst): req = max(req, 12 if P == 8 else 8)
                    if set(p.C) & c.dst: req = max(req, 7 if P == 8 else 3)
            elif p.kind == 'valu':
                pv = set(x for x in p.dst if x[0] != 's'); ps = p.dst - pv
                if c.kind == 'mfma':
                    if pv & c.src: req = max(req, 2)
                    if ('s', 'exec') in ps: req = max(req, 4)
                if c.kind == 'valu':
                    if p.op.replace('_e32', '').replace('_e64', '') in TRANS and pv & c.src: req = max(req, 1)
                    if ('permlane' in c.op or c.dpp) and pv & c.src: req = max(req, 2)
                    if c.op.startswith(('v_readfirstlane', 'v_readlane')) and pv & c.src: req = max(req, 1)
                    if ps & c.src: req = max(req, 4 if c.op.startswith(('v_readlane', 'v_writelane')) else 2)
                    if ('s', 'exec') in ps: req = max(req, 5)
                    if 'op_sel' in p.text and not p.op.startswith('v_pk') and pv & (c.src | c.dst): req = max(req, 1)
                if p.op.startswith('v_dot') and cv and pv & (c.src | c.dst):
                    same = c.kind == 'valu' and c.op == p.op
                    if same:
                        ops = c.text.split(None, 1)[1].split(',')
                        ab = set(regs(ops[1])) | set(regs(ops[2]))
                        if pv & ab: req = max(req, 3)
                    else: req = max(req, 3)
                if c.kind == 'vmem' and ps & c.src: req = max(req, 5)
                if c.kind in ('salu', 'smem') and ps & c.src: req = max(req, 1)
            elif p.kind == 'salu':
                if ('s', 'm0') in p.dst and c.kind == 'vmem' and c.lds: req = max(req, 1)
            elif p.kind == 'vmem':
                if p.wide and p.data & c.dst: req = max(req, 2)
            need = max(need, req - dist)
            if not p.maybe or p.maybe == c.maybe: dist += p.nops
        return need
```

```python
import sys
from asm import Asm
NAME = 'interleave_layers__linear_kernel_hedgehog__glu_gated_reglu__prompt'

FX, FO, FH = 0x2000, 0x4000, 0x6000
ST = 0x40000
XB = (0x200000, 0x400000)
KVP = 0x600000
HB = 0x800000
WQKV, WO_P, WD_P, WGU = 0x1000000, 0x1180000, 0x1200000, 0x1400000
TS = 0x2000000
WS_SIZE = 0x10000000
OOB = 0x7ffffff0
XA = 0x20000; PS = 2112
KVA = 0x26400; ZA = 0x26C00; ZERO = 0x26D00; RS = 0x27100; ROLE = 0x27300
LDS_MAIN = 163840

def v(a, n=1): return f'v{a}' if n == 1 else f'v[{a}:{a+n-1}]'
def a_(a, n=1): return f'a{a}' if n == 1 else f'a[{a}:{a+n-1}]'
def s_(a, n=1): return f's{a}' if n == 1 else f's[{a}:{a+n-1}]'

def kd(name, vgpr, acc, sgpr=102):
    return f'''.section .rodata,"a"
.p2align 6
.amdhsa_kernel {name}
  .amdhsa_next_free_vgpr {vgpr}
  .amdhsa_next_free_sgpr {sgpr}
  .amdhsa_accum_offset {acc}
  .amdhsa_group_segment_fixed_size 0
  .amdhsa_kernarg_size 88
  .amdhsa_user_sgpr_count 2
  .amdhsa_user_sgpr_kernarg_segment_ptr 1
  .amdhsa_system_sgpr_workgroup_id_x 1
.end_amdhsa_kernel
.text
'''
def head(name):
    return f'.globl {name}\n.p2align 8\n.type {name},@function\n{name}:\n'

def srd(I, d, b, size):
    I(f's_mov_b32 s{d}, s{b}\ns_mov_b32 s{d+1}, s{b+1}\ns_mov_b32 s{d+2}, {hex(size)}\ns_mov_b32 s{d+3}, 0x20000')

def gen_prep(ts=False):
    k = Asm(); I = k.I
    I('s_cmp_ge_u32 s2, 256\ns_cbranch_scc1 P_END')
    if ts: I('s_memrealtime s[60:61]')
    I('s_load_dwordx4 s[36:39], s[0:1], 0\ns_load_dwordx4 s[40:43], s[0:1], 16\ns_load_dwordx2 s[44:45], s[0:1], 40')
    I('s_load_dwordx4 s[48:51], s[0:1], 48\ns_load_dwordx2 s[46:47], s[0:1], 80')
    I('v_lshrrev_b32 v1, 6, v0\nv_and_b32 v0, 63, v0\nv_readfirstlane_b32 s24, v1')
    I('v_lshlrev_b32 v1, 4, v0')
    I('s_waitcnt lgkmcnt(0)')
    srd(I, 8, 46, WS_SIZE); srd(I, 12, 36, 2048*1024); srd(I, 20, 40, 32*512)
    I('s_lshl_b32 s25, s2, 3\ns_lshl_b32 s26, s24, 1\ns_add_u32 s25, s25, s26')
    I('s_lshl_b32 s26, s25, 10')
    I('buffer_load_dwordx4 v[8:11], v1, s[12:15], s26 offen\nbuffer_load_dwordx4 v[12:15], v1, s[12:15], s26 offen offset:1024')
    I('s_mov_b32 s19, 0x20000\ns_mov_b32 s33, 16\ns_mov_b32 s34, 0\ns_mov_b32 s32, 0\ns_mov_b32 s30, 1024\ns_mov_b32 s31, 0xbb000000\ns_mov_b32 s35, 0')
    I('s_cmp_ge_u32 s2, 48\ns_cbranch_scc1 P_N1')
    I('s_mov_b32 s16, s38\ns_mov_b32 s17, s39\ns_mov_b32 s18, 0x180000\ns_movk_i32 s28, 3072')
    I('s_lshr_b32 s52, s2, 4\ns_and_b32 s35, s2, 15')
    I('s_add_u32 s53, s52, 1\ns_cmp_eq_u32 s52, 2\ns_cselect_b32 s53, 0, s53\ns_lshl_b32 s53, s53, 10\ns_lshl_b32 s27, s35, 6\ns_add_u32 s27, s27, s53')
    I(f's_mul_i32 s29, s35, 3\ns_add_u32 s29, s29, s52\ns_lshl_b32 s29, s29, 15\ns_add_u32 s29, s29, {hex(WQKV)}')
    I('s_cmp_eq_u32 s52, 1\ns_cselect_b32 s32, 1, 2\ns_branch P_GO')
    I('P_N1:\ns_cmp_ge_u32 s2, 160\ns_cbranch_scc1 P_N3')
    I(f's_mov_b32 s18, {hex(512*3584)}\ns_movk_i32 s28, 3584\ns_mov_b32 s34, 1')
    I('s_cmp_ge_u32 s2, 104\ns_cbranch_scc1 P_N2')
    I(f's_mov_b32 s16, s44\ns_mov_b32 s17, s45\ns_sub_u32 s52, s2, 48\ns_mov_b32 s53, {hex(WGU)}\ns_branch P_GU')
    I(f'P_N2:\ns_mov_b32 s16, s48\ns_mov_b32 s17, s49\ns_sub_u32 s52, s2, 104\ns_mov_b32 s53, {hex(WGU+256)}')
    I('P_GU:\ns_lshl_b32 s27, s52, 6\ns_lshl_b32 s29, s52, 16\ns_add_u32 s29, s29, s53\ns_branch P_GO')
    I('P_N3:\ns_mov_b32 s31, 0\ns_movk_i32 s28, 1024\ns_movk_i32 s30, 2048')
    I('s_cmp_ge_u32 s2, 176\ns_cbranch_scc1 P_N4')
    I('s_mov_b32 s16, s42\ns_mov_b32 s17, s43\ns_mov_b32 s18, 0x80000\ns_sub_u32 s52, s2, 160')
    I(f's_lshl_b32 s27, s52, 6\ns_lshr_b32 s53, s52, 1\ns_lshl_b32 s53, s53, 16\ns_and_b32 s52, s52, 1\ns_lshl_b32 s52, s52, 10\ns_add_u32 s29, s52, s53\ns_add_u32 s29, s29, {hex(WO_P)}\ns_branch P_GO')
    I(f'P_N4:\ns_mov_b32 s16, s50\ns_mov_b32 s17, s51\ns_mov_b32 s18, {hex(1792*1024)}\ns_mov_b32 s33, 14')
    I('s_sub_u32 s52, s2, 176\ns_cmp_ge_u32 s52, 64\ns_cselect_b32 s33, 0, s33\ns_and_b32 s52, s52, 63')
    I('s_and_b32 s53, s52, 15\ns_lshr_b32 s52, s52, 4')
    I(f's_mul_i32 s27, s52, {448*1024}\ns_lshl_b32 s54, s53, 6\ns_add_u32 s27, s27, s54')
    I(f's_lshr_b32 s54, s53, 1\ns_mul_i32 s29, s54, {224*1024}\ns_and_b32 s54, s53, 1\ns_lshl_b32 s54, s54, 10\ns_add_u32 s29, s29, s54')
    I(f's_mul_i32 s54, s52, {56*1024}\ns_add_u32 s29, s29, s54\ns_add_u32 s29, s29, {hex(WD_P)}')
    I('P_GO:')
    I('v_and_b32 v2, 31, v0\nv_lshrrev_b32 v3, 5, v0')
    I('v_and_b32 v4, 19, v2\nv_bfe_u32 v5, v2, 2, 1\nv_bfe_u32 v6, v2, 3, 1\nv_lshl_or_b32 v4, v5, 3, v4\nv_lshl_or_b32 v4, v6, 2, v4')
    I('v_mul_lo_u32 v7, v4, s28\nv_lshl_add_u32 v7, v3, 4, v7')
    I('s_lshl_b32 s52, s28, 7\ns_mul_i32 s52, s52, s24\ns_add_u32 s27, s27, s52\ns_lshl_b32 s53, s28, 5')
    for b in range(4):
        I(f'buffer_load_dwordx4 v[{32+8*b}:{35+8*b}], v7, s[16:19], s27 offen\nbuffer_load_dwordx4 v[{36+8*b}:{39+8*b}], v7, s[16:19], s27 offen offset:32')
        if b < 3: I('s_add_u32 s27, s27, s53')
    I('v_lshrrev_b32 v16, 3, v2\nv_and_b32 v17, 3, v2\nv_lshl_or_b32 v16, v16, 2, v17')
    I('v_lshlrev_b32 v17, 1, v16\nv_lshl_or_b32 v17, v3, 8, v17\nv_lshl_or_b32 v17, v5, 9, v17')
    I('s_lshl_b32 s52, s35, 10')
    for i in range(8): I(f'buffer_load_ushort v{64+i}, v17, s[20:23], s52 offen offset:{32*i}')
    I('v_lshl_or_b32 v16, v5, 4, v16\ns_cmp_eq_u32 s32, 1\ns_cselect_b64 s[54:55], -1, 0')
    I('v_cndmask_b32 v16, v4, v16, s[54:55]')
    I('v_lshlrev_b32 v18, 3, v3\nv_sub_u32 v16, v16, v18')
    I('v_and_b32 v18, 1, v16\nv_lshlrev_b32 v18, 4, v18\nv_mov_b32 v19, 0x3f80\nv_lshlrev_b32 v18, v18, v19\nv_ashrrev_i32 v16, 1, v16')
    for p in range(2):
        for r in range(4):
            I(f'v_cmp_eq_u32 vcc, {8*p+r}, v16\nv_cndmask_b32 v{24+4*p+r}, 0, v18, vcc')
    I(f's_lshr_b32 s52, s25, 5\ns_lshl_b32 s53, s52, 15\ns_and_b32 s56, s25, 31\ns_lshl_b32 s57, s56, 4\ns_add_u32 s53, s53, s57\ns_add_u32 s53, s53, {hex(XB[0])}')
    I('v_lshlrev_b32 v20, 9, v0')
    I('buffer_store_dwordx4 v[8:11], v20, s[8:11], s53 offen\nbuffer_store_dwordx4 v[12:15], v20, s[8:11], s53 offen offset:16')
    I('s_mov_b32 s58, 0x3f803f80')
    for r in range(2):
        b = 8 + 4*r; o = 72 + 2*r
        for i in range(4):
            I(f'v_dot2_f32_bf16 v{o}, v{b+i}, s58, {"0" if i == 0 else v(o)}')
        for i in range(4):
            I(f'v_dot2_f32_bf16 v{o+1}, v{b+i}, v{b+i}, {"0" if i == 0 else v(o+1)}')
    for mod in ('quad_perm:[1,0,3,2]', 'quad_perm:[2,3,0,1]', 'row_half_mirror'):
        for o in range(72, 76): I(f'v_add_f32_dpp v{o}, v{o}, v{o} {mod} row_mask:0xf bank_mask:0xf')
    I(f'v_and_b32 v21, 7, v0\nv_cmp_eq_u32 vcc, 0, v21\nv_mov_b32 v21, {hex(OOB)}\nv_cndmask_b32 v21, v21, v0, vcc')
    I(f's_lshl_b32 s52, s52, 11\ns_lshl_b32 s57, s56, 6\ns_add_u32 s52, s52, s57\ns_add_u32 s52, s52, {hex(ST)}')
    I('buffer_store_dwordx2 v[72:73], v21, s[8:11], s52 offen\nbuffer_store_dwordx2 v[74:75], v21, s[8:11], s52 offen offset:64')
    for r in range(4): I(f'v_lshl_or_b32 v{64+r}, v{65+2*r}, 16, v{64+2*r}')
    I('s_cmp_eq_u32 s32, 2\ns_cselect_b64 s[54:55], -1, 0\nv_cmp_eq_u32 vcc, 0, v5')
    for r in range(4):
        I(f'v_cndmask_b32 v68, 0, v{64+r}, vcc\nv_cndmask_b32 v69, v{64+r}, 0, vcc')
        I(f'v_cndmask_b32 v{24+r}, v{24+r}, v68, s[54:55]\nv_cndmask_b32 v{28+r}, v{28+r}, v69, s[54:55]')
    for b in range(4):
        d = 128 + 16*b
        I(f'v_mfma_f32_32x32x16_bf16 {v(d,16)}, {v(32+8*b,4)}, v[24:27], 0')
        I(f'v_mfma_f32_32x32x16_bf16 {v(d,16)}, {v(36+8*b,4)}, v[28:31], {v(d,16)}')
    I('v_pk_add_f32 v[76:77], v[128:129], v[130:131]')
    for r in range(132, 192, 2): I(f'v_pk_add_f32 v[76:77], v[76:77], {v(r,2)}')
    I('v_add_f32 v76, v76, v77\nv_lshlrev_b32 v22, 2, v0\ns_lshl_b32 s52, s24, 8\nv_add_u32 v22, s52, v22')
    t = I('ds_write_b32 v22, v76'); k.wait(t); I('s_barrier')
    I('v_lshlrev_b32 v22, 2, v2')
    for i in range(8): I(f'ds_read_b32 v{80+i}, v22 offset:{128*i}')
    for i in range(1, 8): I(f'v_add_f32 v80, v80, v{80+i}')
    I('v_mul_f32 v80, s31, v80\nv_mov_b32 v81, v80')
    I('v_and_b32 v22, 15, v2\nv_lshl_or_b32 v22, v3, 5, v22\nv_lshlrev_b32 v22, 4, v22\nv_lshrrev_b32 v23, 4, v2\nv_lshl_or_b32 v22, v23, 15, v22')
    I('s_cmp_eq_u32 s34, 1\ns_cselect_b64 s[54:55], -1, 0\nv_cndmask_b32 v22, v1, v22, s[54:55]')
    I('s_lshl_b32 s52, s30, 3\ns_mul_i32 s52, s52, s24\ns_add_u32 s29, s29, s52\ns_lshl_b32 s56, s24, 2')
    for b in range(4):
        d = 128 + 16*b
        for r in range(0, 16, 2): I(f'v_pk_add_f32 {v(d+r,2)}, {v(d+r,2)}, v[80:81]')
        for r in range(8): I(f'v_cvt_pk_bf16_f32 v{d+r}, v{d+2*r}, v{d+2*r+1}')
    for b in range(4):
        d = 128 + 16*b
        I(f's_cmp_ge_u32 s56, s33\ns_cbranch_scc1 P_FIN')
        I(f'buffer_store_dwordx4 {v(d,4)}, v22, s[8:11], s29 offen\ns_add_u32 s29, s29, s30')
        I(f'buffer_store_dwordx4 {v(d+4,4)}, v22, s[8:11], s29 offen\ns_add_u32 s29, s29, s30\ns_add_u32 s56, s56, 1')
    I('P_FIN:\ns_waitcnt vmcnt(0)')
    if ts:
        I(f's_memrealtime s[62:63]\ns_waitcnt lgkmcnt(0)\nv_mov_b32 v2, s60\nv_mov_b32 v3, s62\nv_mov_b32 v4, 0\ns_lshl_b32 s52, s2, 3\ns_add_u32 s52, s52, {hex(TS+0x100000)}')
        I('buffer_store_dwordx2 v[2:3], v4, s[8:11], s52 offen')
    I('P_END:\ns_endpgm')
    return k

WS, XS, OS, DS = 's[8:11]', 's[12:15]', 's[16:19]', 's[20:23]'
sW, sG, sRK, sR, sJ, sHB, sCG, sTAG, sE, sLIM = 24, 25, 26, 27, 28, 29, 30, 31, 32, 33
sQKV, sGU, sWO, sWD = 34, 35, 36, 37
sXIN, sXO, sXPUB, sSTIN, sSTPUB = 38, 39, 40, 41, 42
sHPUB, sHIN, sFXC, sFXP, sFOC, sFOP, sKVP, sKVC, sNAT, sM0 = 43, 44, 45, 46, 47, 48, 49, 50, 51, 52
sSELLO, sSELHI, sONES, sLOG2E, sTSB = 53, 54, 55, 56, 57
sT0 = 60
vL, vL16, vL16b, vFX, vFO, vL0, vSTL, vPUB, vPHW, vTRA, vTRB, vKVW, vZW, vKVR, vZR, vREDW, vNAT, vSTW, vRSW, vRSR = range(20)
vRSTD, vC, vT0, vT1, vT2, vT3, vT4, vT5 = range(24, 32)
vRES = 32; vTMP = 48; vACC = 64; vXB = 128; aRING = 224

P0 = dict(xf=8, hf=10)
class Main:
    def __init__(s, stop=None, ts=False, **kw):
        s.k = Asm(); s.I = s.k.I; s.stop = stop; s.ts = ts; s.nl = 0; s.nts = 0; s.tsnames = []; s.bg = []; s.bw = []; s.tok = {}; s.P = dict(P0); s.P.update(kw)
    def label(s, p):
        s.nl += 1; return f'{p}_{s.nl}'
    def stamp(s, name):
        if not s.ts: return
        r = 80 + 2*(s.nts % 10)
        s.tsnames.append(name)
        with s.k.group():
            s.I(f's_memtime s[78:79]\ns_waitcnt lgkmcnt(0)\nv_writelane_b32 v23, s78, {s.nts}')
        s.nts += 1
    class SO:
        def __init__(o, m, tmp): o.m = m; o.tmp = tmp; o.key = None
        def get(o, base, off):
            hi = off & ~4095; lo = off & 4095
            if hi == 0: return f's{base}', lo
            if o.key != (base, hi):
                o.m.I(f's_add_u32 s{o.tmp}, s{base}, {hex(hi)}'); o.key = (base, hi)
            return f's{o.tmp}', lo
    def ld(s, so, dst, voff, base, off, mod='', op='buffer_load_dwordx4', srdn=WS):
        with s.k.group():
            r, lo = so.get(base, off)
            t = s.I(f'{op} {dst}, v{voff}, {srdn}, {r} offen' + (f' offset:{lo}' if lo else '') + (' ' + mod if mod else ''))
        return t
    def dma_tile(s, so, base, off, slot):
        t = None
        for h in range(2):
            for i in range(4):
                with s.k.group():
                    if i == 0:
                        s.I(f's_add_u32 m0, s{sM0}, {hex(slot*0x8000 + h*4096)}')
                        s.I(f's_add_u32 s{so}, s{base}, {hex(off + h*4096)}')
                    t = s.I(f'buffer_load_dwordx4 v{vL16}, {WS}, s{so} offen' + (f' offset:{i*1024}' if i else '') + ' lds')
        return t
    def bg_tile(s, key, base, off, slot):
        with s.k.cap() as f: s.tok[key] = s.dma_tile(sT0+1, base, off, slot)
        s.bg += f
    def take(s, n):
        r = s.bg[:n]; s.bg = s.bg[n:]; return r
    def takew(s, n):
        r = s.bw[:n]; s.bw = s.bw[n:]; return r
    def check(s, vt, p):
        s.I(f's_add_u32 s{sT0+8}, s{sTAG}, {p}\nv_subrev_u32 v{vt}, s{sT0+8}, v{vt}\nv_cmp_lt_u32 vcc, 15, v{vt}')
    def poll(s, voff, sbase, off, p, vt=vT0):
        I = s.I; L = s.label('POLL'); D = s.label('PD')
        I(f's_mov_b32 s{sT0+9}, 0')
        I(f'{L}:')
        I(f'buffer_load_dword v{vt}, v{voff}, {WS}, s{sbase} offen' + (f' offset:{off}' if off else '') + ' sc1')
        I('s_waitcnt vmcnt(0)')
        s.check(vt, p)
        I(f's_cbranch_vccz {D}')
        with s.k.cond():
            I(f's_add_u32 s{sT0+9}, s{sT0+9}, 1\ns_cmp_lt_u32 s{sT0+9}, s{sLIM}\ns_cbranch_scc1 {L}\ns_mov_b32 s{sLIM}, 1')
        I(f'{D}:')
    def flag(s, sbase, off, p):
        with s.k.group():
            s.I(f's_add_u32 s{sT0+10}, s{sTAG}, {p}\nv_mov_b32 v{vT5}, s{sT0+10}')
            s.I(f'buffer_store_dword v{vT5}, v{vL0}, {WS}, s{sbase} offen' + (f' offset:{off}' if off else ''))
    def ldsA(s, slot, kc):
        a = slot*0x8000 + kc*1024
        return (vL16, a) if a < 0x10000 else (vL16b, a - 0x10000)
    def gemm(s, steps, fences={}, LA=6):
        I = s.I; n = len(steps); nr = 0; last = None
        blocked = sorted((f[0], g) for g, f in fences.items())
        def limit(i):
            for st, g in blocked:
                if g > i: return st
            return n
        def rd():
            nonlocal nr, last
            vr, off = s.ldsA(steps[nr][0], steps[nr][1])
            last = I(f'ds_read_b128 {a_(aRING + 4*(nr % 8), 4)}, v{vr} offset:{off}'); nr += 1
        with s.k.cap() as base:
            while nr < min(LA, limit(-1)): rd()
            for i, (slot, kc, acc, first) in enumerate(steps):
                assert nr > i
                I(f'v_mfma_f32_32x32x16_bf16 {v(acc,16)}, {a_(aRING + 4*(i % 8), 4)}, {v(vXB+4*kc,4)}, {"0" if first else v(acc,16)}')
                if i in fences:
                    assert nr == fences[i][0], (nr, i, fences[i])
                    s.k.wait(last, *fences[i][1]); I('s_barrier')
                c = 0
                while nr < min(i + 1 + LA, limit(i), n) and c < 2: rd(); c += 1
        return base, last

    def init(s):
        I = s.I; k = s.k
        I('s_cmp_ge_u32 s2, 256\ns_cbranch_scc1 M_END')
        I('s_load_dwordx2 s[4:5], s[0:1], 0\ns_load_dwordx4 s[60:63], s[0:1], 64\ns_load_dwordx2 s[6:7], s[0:1], 80')
        I(f's_getreg_b32 s{sG}, hwreg(HW_REG_XCC_ID)\ns_and_b32 s{sG}, s{sG}, 7')
        I(f'v_lshrrev_b32 v1, 6, v0\nv_and_b32 v0, 63, v0\nv_readfirstlane_b32 s{sW}, v1')
        if s.ts: I('v_mov_b32 v23, 0')
        s.stamp('start')
        if s.ts: I('s_memrealtime s[78:79]\ns_waitcnt lgkmcnt(0)\nv_writelane_b32 v23, s78, 60')
        I(f'v_lshlrev_b32 v{vL16}, 4, v0\nv_add_u32 v{vL16b}, 0x10000, v{vL16}')
        I(f'v_cmp_eq_u32 vcc, 0, v0\nv_mov_b32 v{vT0}, {hex(OOB)}\nv_cndmask_b32 v{vL0}, v{vT0}, v0, vcc')
        I(f's_mov_b32 s{sLIM}, 20000')
        I('s_waitcnt lgkmcnt(0)')
        srd(I, 20, 62, 256); srd(I, 8, 6, WS_SIZE); srd(I, 12, 4, 2048*1024); srd(I, 16, 60, 2048*1024)
        I(f's_load_dword s{sE}, s[6:7], 0')
        I(f's_cmp_lg_u32 s{sW}, 0\ns_cbranch_scc1 M_NOCEN')
        with k.cond():
            I(f's_or_b32 s64, s{sG}, 0x80\nv_mov_b32 v{vT0}, s64\nv_lshlrev_b32 v{vT1}, 2, v0')
            I(f'buffer_store_byte v{vT0}, v{vL0}, {DS}, s2 offen')
            I('s_mov_b32 s65, 0')
            I('M_CEN:')
            I(f'buffer_load_dword v48, v{vT1}, {DS}, 0 offen sc1\ns_waitcnt vmcnt(0)')
            for b in range(4): I(f'v_bfe_u32 v{49+b}, v48, {8*b}, 8')
            for b in range(4): I(f'v_cmp_eq_u32 s[{66+2*b}:{67+2*b}], s64, v{49+b}')
            I('s_nop 3')
            for b in range(4): I(f's_bcnt1_i32_b64 s{74+b}, s[{66+2*b}:{67+2*b}]')
            I('s_add_u32 s74, s74, s75\ns_add_u32 s76, s76, s77\ns_add_u32 s74, s74, s76')
            I('s_cmp_ge_u32 s74, 32\ns_cbranch_scc1 M_CEND')
            I(f's_add_u32 s65, s65, 1\ns_cmp_lt_u32 s65, s{sLIM}\ns_cbranch_scc1 M_CEN')
            I('M_CEND:')
            I(f's_mov_b32 s{sRK}, 0')
            for b in range(4):
                I(f'v_add_u32 v48, {b}, v{vT1}\nv_cmp_gt_u32 vcc, s2, v48\ns_nop 3\ns_and_b64 s[{66+2*b}:{67+2*b}], s[{66+2*b}:{67+2*b}], vcc')
                I(f's_bcnt1_i32_b64 s74, s[{66+2*b}:{67+2*b}]\ns_add_u32 s{sRK}, s{sRK}, s74')
            I(f'v_mov_b32 v48, s{sRK}\nv_mov_b32 v49, {hex(ROLE)}\nds_write_b32 v49, v48')
            I('s_waitcnt lgkmcnt(0)')
        I('M_NOCEN:')
        I(f'v_and_b32 v50, 15, v0\nv_lshrrev_b32 v51, 4, v0\nv_and_b32 v52, 31, v0\nv_lshrrev_b32 v53, 5, v0')
        I(f'v_lshlrev_b32 v{vFX}, 2, v50')
        I(f'v_bfe_u32 v54, v0, 2, 1\nv_and_b32 v55, 3, v0\nv_lshlrev_b32 v55, 2, v55\nv_lshl_or_b32 v{vFO}, v54, 7, v55')
        I(f'v_lshlrev_b32 v54, 6, v52\nv_lshl_or_b32 v{vSTL}, v53, 5, v54')
        I(f'v_lshlrev_b32 v54, 4, v50\nv_lshl_or_b32 v{vPUB}, v51, 9, v54')
        I(f's_lshl_b32 s64, s{sW}, 9\ns_add_u32 s64, s64, {hex(XA)}\ns_movk_i32 s65, {6*PS}')
        I(f'v_mul_lo_u32 v54, v53, s65\nv_lshl_add_u32 v54, v52, 4, v54\nv_add_u32 v{vPHW}, s64, v54')
        I(f's_movk_i32 s65, {PS}\nv_bfe_u32 v54, v0, 1, 1\nv_mul_lo_u32 v54, v54, s65\nv_and_b32 v55, 1, v0\nv_lshl_add_u32 v54, v55, 3, v54')
        I(f'v_lshrrev_b32 v55, 2, v50\nv_lshl_add_u32 v55, v51, 3, v55\nv_lshl_add_u32 v54, v55, 4, v54')
        I(f's_lshr_b32 s66, s{sW}, 1\ns_mul_i32 s66, s66, {6*PS}\ns_add_u32 s66, s66, {hex(XA)}\ns_and_b32 s67, s{sW}, 1\ns_mul_i32 s67, s67, {2*PS}\ns_add_u32 s67, s67, s66\ns_add_u32 s66, s66, {4*PS}')
        I(f'v_add_u32 v{vTRA}, s67, v54\nv_add_u32 v{vTRB}, s66, v54')
        I(f'v_lshlrev_b32 v54, 4, v50\nv_lshl_or_b32 v54, v53, 8, v54\nv_and_b32 v55, 1, v51\nv_lshl_or_b32 v54, v55, 3, v54')
        I(f's_lshl_b32 s64, s{sW}, 9\ns_add_u32 s64, s64, {hex(KVA)}\nv_add_u32 v{vKVW}, s64, v54')
        I(f's_lshl_b32 s64, s{sW}, 5\ns_add_u32 s64, s64, {hex(ZA)}\nv_lshlrev_b32 v54, 1, v50\nv_add_u32 v{vZW}, s64, v54')
        I(f'v_and_b32 v54, 3, v0\nv_bfe_u32 v55, v0, 2, 1\nv_lshl_or_b32 v54, v55, 3, v54\nv_bfe_u32 v55, v0, 3, 1\nv_lshl_or_b32 v54, v55, 2, v54')
        I(f'v_lshlrev_b32 v54, 4, v54\nv_lshl_or_b32 v54, v53, 10, v54\nv_add_u32 v54, {hex(KVA)}, v54')
        I(f'v_lshlrev_b32 v55, 6, v53\nv_add_u32 v55, {hex(ZA)}, v55\nv_bfe_u32 v56, v0, 4, 1\nv_cmp_eq_u32 vcc, v56, v53\nv_mov_b32 v57, {hex(ZERO)}')
        I(f'v_cndmask_b32 v{vKVR}, v57, v54, vcc\nv_cndmask_b32 v{vZR}, v57, v55, vcc')
        I(f'v_lshlrev_b32 v54, 4, v50\nv_lshl_or_b32 v54, v53, 8, v54\nv_lshl_or_b32 v54, v56, 13, v54\ns_lshl_b32 s64, s{sW}, 11\nv_add_u32 v{vREDW}, s64, v54')
        I(f'v_lshlrev_b32 v54, 10, v50\nv_lshl_or_b32 v{vNAT}, v51, 4, v54')
        I(f'v_lshlrev_b32 v54, 6, v50\nv_lshl_or_b32 v54, v53, 2, v54\nv_cmp_eq_u32 vcc, 0, v56\nv_mov_b32 v55, {hex(OOB)}\nv_cndmask_b32 v{vSTW}, v55, v54, vcc')
        I(f's_lshl_b32 s64, s{sW}, 7\ns_add_u32 s64, s64, {hex(RS)}\nv_lshlrev_b32 v54, 2, v52\nv_add_u32 v{vRSW}, s64, v54')
        I(f'v_mov_b32 v56, 0\nv_mov_b32 v57, 0\nv_mov_b32 v58, 0\nv_mov_b32 v59, 0\nv_add_u32 v54, {hex(ZERO)}, v{vL16}\nds_write_b128 v54, v[56:59]')
        I(f's_mov_b32 s{sSELLO}, 0x3f80\ns_mov_b32 s{sSELHI}, 0x3f800000\ns_mov_b32 s{sONES}, 0x3f803f80\ns_mov_b32 s{sLOG2E}, 0x3fb8aa3b')
        I(f's_lshl_b32 s{sM0}, s{sW}, 13')
        I('s_waitcnt lgkmcnt(0)\ns_barrier')
        I(f'v_mov_b32 v49, {hex(ROLE)}\nds_read_b32 v48, v49\nv_readfirstlane_b32 s{sRK}, v48')
        I(f's_and_b32 s{sRK}, s{sRK}, 31')
        I(f's_mul_i32 s{sTAG}, s{sE}, 0x9E3779B1\ns_add_u32 s{sTAG}, s{sTAG}, 0x7F4A7C15')
        I(f's_lshr_b32 s64, s{sRK}, 4\ns_lshl_b32 s{sR}, s{sG}, 1\ns_add_u32 s{sR}, s{sR}, s64\ns_and_b32 s{sJ}, s{sRK}, 15\ns_lshr_b32 s{sHB}, s{sJ}, 3\ns_and_b32 s{sCG}, s{sJ}, 7')
        I(f's_mul_i32 s64, s{sJ}, {96*1024}\ns_add_u32 s64, s64, s{sM0}\ns_add_u32 s{sQKV}, s64, {hex(WQKV)}')
        I(f's_lshl_b32 s66, s{sR}, 2\ns_add_u32 s65, s66, s{sW}')
        I(f's_lshl_b32 s64, s65, 15\ns_add_u32 s{sXIN}, s64, {hex(XB[0])}')
        I(f's_lshl_b32 s64, s65, 11\ns_add_u32 s{sSTIN}, s64, {hex(ST)}')
    def init2(s):
        I = s.I
        I(f's_mul_i32 s64, s{sJ}, {224*1024}\ns_add_u32 s64, s64, s{sM0}\ns_add_u32 s{sGU}, s64, {hex(WGU)}')
        I(f's_lshl_b32 s64, s{sCG}, 16\ns_lshl_b32 s67, s{sW}, 14\ns_add_u32 s64, s64, s67\ns_add_u32 s{sWO}, s64, {hex(WO_P)}')
        I(f's_mul_i32 s64, s{sCG}, {224*1024}\ns_mul_i32 s67, s{sW}, {56*1024}\ns_add_u32 s64, s64, s67\ns_add_u32 s{sWD}, s64, {hex(WD_P)}')
        I(f's_lshl_b32 s67, s{sHB}, 1\ns_add_u32 s66, s66, s67')
        I(f's_lshr_b32 s67, s{sW}, 1\ns_add_u32 s67, s67, s66\ns_and_b32 s68, s{sW}, 1')
        I(f's_lshl_b32 s64, s66, 15\ns_add_u32 s64, s64, s{sM0}\ns_add_u32 s{sXO}, s64, {hex(XB[0])}')
        I(f's_lshl_b32 s64, s67, 15\ns_lshl_b32 s69, s{sCG}, 12\ns_add_u32 s64, s64, s69\ns_lshl_b32 s69, s68, 8\ns_add_u32 s64, s64, s69\ns_add_u32 s{sXPUB}, s64, {hex(XB[0])}')
        I(f's_lshl_b32 s64, s67, 11\ns_lshl_b32 s69, s68, 10\ns_add_u32 s64, s64, s69\ns_lshl_b32 s69, s{sCG}, 3\ns_add_u32 s64, s64, s69\ns_add_u32 s{sSTPUB}, s64, {hex(ST)}')
        I(f's_mul_i32 s64, s65, {112*1024}\ns_mul_i32 s69, s{sJ}, {7*1024}\ns_add_u32 s64, s64, s69\ns_add_u32 s{sHPUB}, s64, {hex(HB)}')
        I(f's_mul_i32 s64, s66, {112*1024}\ns_mul_i32 s69, s{sW}, {28*1024}\ns_add_u32 s64, s64, s69\ns_add_u32 s{sHIN}, s64, {hex(HB)}')
        I(f's_lshl_b32 s64, s65, 7\ns_add_u32 s{sFXC}, s64, {hex(FX)}')
        I(f's_lshl_b32 s69, s{sJ}, 2\ns_add_u32 s64, s64, s69\ns_add_u32 s{sFOP}, s64, {hex(FO)}')
        I(f's_lshl_b32 s64, s67, 7\ns_lshl_b32 s69, s{sCG}, 3\ns_add_u32 s64, s64, s69\ns_lshl_b32 s69, s68, 2\ns_add_u32 s64, s64, s69\ns_add_u32 s{sFXP}, s64, {hex(FX)}')
        I(f's_lshl_b32 s64, s66, 7\ns_lshl_b32 s69, s{sW}, 4\ns_add_u32 s64, s64, s69\ns_add_u32 s{sFOC}, s64, {hex(FO)}')
        I(f's_lshl_b32 s64, s{sJ}, 2\ns_add_u32 s64, s64, s{sW}\ns_lshl_b32 s64, s64, 14\ns_add_u32 s{sKVC}, s64, {hex(KVP)}')
        I(f's_lshl_b32 s64, s{sR}, 10\ns_add_u32 s{sKVP}, s64, s{sKVC}')
        I(f's_lshl_b32 s64, s{sR}, 17\ns_lshl_b32 s69, s{sHB}, 16\ns_add_u32 s64, s64, s69\ns_lshl_b32 s69, s{sW}, 14\ns_add_u32 s64, s64, s69\ns_lshl_b32 s69, s{sCG}, 7\ns_add_u32 s{sNAT}, s64, s69')
        I(f's_lshl_b32 s64, s{sHB}, 8\ns_lshl_b32 s69, s{sW}, 6\ns_add_u32 s64, s64, s69\ns_add_u32 s64, s64, {hex(RS)}\nv_add_u32 v{vRSR}, s64, v{vFX}')

    def xloads(s, buf):
        so = s.SO(s, sT0)
        d = buf*0x20000; n = s.P['xf']
        with s.k.cap() as f:
            for kc in range(32): s.ld(so, v(vXB + 4*kc, 4), vL16, sXIN, buf*0x200000 + kc*1024, 'sc1')
            s.ld(so, v(vTMP, 4), vSTL, sSTIN, d, 'sc1'); s.ld(so, v(vTMP+4, 4), vSTL, sSTIN, d + 16, 'sc1')
        s.k.put(f[:n])
        return (f[n:], 0, 2*(34 - n) - 1)
    def stats(s):
        I = s.I; t = vTMP
        I(f'v_add_f32 v{t}, v{t}, v{t+2}\nv_add_f32 v{t+1}, v{t+1}, v{t+3}\nv_add_f32 v{t+4}, v{t+4}, v{t+6}\nv_add_f32 v{t+5}, v{t+5}, v{t+7}')
        I(f'v_add_f32 v{t}, v{t}, v{t+4}\nv_add_f32 v{t+1}, v{t+1}, v{t+5}')
        I(f'v_permlane32_swap_b32 v{t}, v{t+1}')
        I(f'v_add_f32 v{t}, v{t}, v{t+1}')
        I(f'v_mul_f32 v{t}, 0x3b000000, v{t}')
        I(f'v_mov_b32 v{t+1}, v{t}')
        I(f'v_permlane32_swap_b32 v{t}, v{t+1}')
        I(f'v_fma_f32 v{t+1}, -v{t}, v{t}, v{t+1}')
        I(f'v_max_f32 v{t+1}, 0, v{t+1}')
        I(f'v_add_f32 v{t+1}, 0x3727c5ac, v{t+1}')
    def phi(s, p, tA, tB, out, emit=None):
        I = s.I; mx, mn = vT0, vT2
        I(f'v_max3_f32 v{mx}, v{p}, v{p+1}, v{p+2}\nv_min3_f32 v{mn}, v{p}, v{p+1}, v{p+2}')
        for r in range(3, 15, 2): I(f'v_max3_f32 v{mx}, v{mx}, v{p+r}, v{p+r+1}\nv_min3_f32 v{mn}, v{mn}, v{p+r}, v{p+r+1}')
        I(f'v_max_f32 v{mx}, v{mx}, v{p+15}\nv_min_f32 v{mn}, v{mn}, v{p+15}')
        I(f'v_mul_f32 v{mx}, v{mx}, v{vC}\nv_mul_f32 v{mn}, v{mn}, v{vC}')
        for sg, t, m in ((0, tA, mx), (1, tB, mn)):
            for r in range(0, 16, 2):
                if sg == 0: I(f'v_pk_fma_f32 {v(t+r,2)}, {v(p+r,2)}, {v(vC-1,2)}, {v(m,2)} op_sel:[0,1,0] op_sel_hi:[1,1,0] neg_lo:[0,0,1] neg_hi:[0,0,1]')
                else: I(f'v_pk_fma_f32 {v(t+r,2)}, {v(p+r,2)}, {v(vC-1,2)}, {v(m,2)} op_sel:[0,1,0] op_sel_hi:[1,1,0] neg_lo:[1,0,0] neg_hi:[1,0,0]')
            for r in range(16): I(f'v_exp_f32 v{t+r}, v{t+r}')
            I(f'v_pk_add_f32 {v(vT4,2)}, {v(t,2)}, {v(t+2,2)}')
            for r in range(4, 16, 2): I(f'v_pk_add_f32 {v(vT4,2)}, {v(vT4,2)}, {v(t+r,2)}')
            I(f'v_add_f32 v{vT4}, v{vT4}, v{vT5}\nv_rcp_f32 v{vT4}, v{vT4}')
            for r in range(0, 16, 2): I(f'v_pk_mul_f32 {v(t+r,2)}, {v(t+r,2)}, {v(vT4,2)} op_sel_hi:[1,0]')
            for r in range(8):
                I(f'v_cvt_pk_bf16_f32 v{out+8*sg+r}, v{t+2*r}, v{t+2*r+1}')
                if emit and r % 4 == 3: emit(2*sg + r//4)

    def qkv(s, L):
        I = s.I; k = s.k
        b = 2*L; SK, SV, SQ, SF = b % 4, (b+1) % 4, (b+2) % 4, (b+3) % 4
        bA, bB = L, 1 - L
        aK, aV, aQ = vACC, vACC+16, vACC+32
        fill = []
        if L == 0:
            s.dma_tile(sT0+1, sQKV, 0, SK); tv = s.dma_tile(sT0+1, sQKV, 0x8000, SV)
            fill.append(s.xloads(bA))
            s.init2()
            k.wait(tv); I('s_barrier')
            s.bg_tile('Q', sQKV, 0x10000, SQ)
            with k.cap() as f1:
                so = s.SO(s, sT0+2)
                s.ld(so, v(vTMP+8, 4), vNAT, sNAT, 0, srdn=XS); s.ld(so, v(vTMP+12, 4), vNAT, sNAT, 64, srdn=XS)
            fill.append((f1 + s.take(4), 52, 63))
            with k.cap() as s.bw:
                so = s.SO(s, sT0+7)
                for i in range(56): s.ld(so, a_(4*i, 4), vL16, sWD, i*1024)
        else:
            s.poll(vFX, sFXC, 0, 2*L)
            s.stamp('x_ok')
            fill.append(s.xloads(bA))
        s.bg_tile(0, sGU, 0, SF)
        steps = []
        for kc in range(32): steps += [(SV, kc, aV, kc == 0), (SK, kc, aK, kc == 0)]
        base, _ = s.gemm(steps)
        k.weave(base, *fill)
        s.stamp('kv_gemm')
        with k.cap() as f:
            s.stats()
            I(f'v_rsq_f32 v{vRSTD}, v{vTMP+1}')
            I(f'v_mul_f32 v{vC}, s{sLOG2E}, v{vRSTD}')
            if L == 0:
                for i in range(8):
                    I(f'v_lshlrev_b32 v{vRES+2*i}, 16, v{vTMP+8+i}\nv_and_b32 v{vRES+2*i+1}, 0xffff0000, v{vTMP+8+i}')
            for r in range(0, 16, 2): I(f'v_pk_mul_f32 {v(aV+r,2)}, {v(aV+r,2)}, {v(vRSTD,2)} op_sel_hi:[1,0]')
            for r in range(8): I(f'v_cvt_pk_bf16_f32 v{aV+r}, v{aV+2*r}, v{aV+2*r+1}')
            I(f'ds_write_b128 v{vPHW}, {v(aV,4)} offset:{4*PS}\nds_write_b128 v{vPHW}, {v(aV+4,4)} offset:{5*PS}')
            tw = []
            s.phi(aK, vACC+32, vACC+48, vTMP, emit=lambda n: tw.append(I(f'ds_write_b128 v{vPHW}, {v(vTMP+4*n,4)} offset:{n*PS}')))
            for r in range(4): I(f'v_mov_b32 v{72+r}, s{sONES}')
        if L == 0: k.sprinkle(f, s.take(4), 0, 10)
        else: k.sprinkle(f, s.take(7), 2, 22)
        k.wait(tw[-1], s.tok['Q']); I('s_barrier')
        s.stamp('phik')
        for u in range(4):
            for p in range(2):
                I(f'ds_read_b64_tr_b16 {v(96+4*u+2*p,2)}, v{vTRA} offset:{u*512+p*64}')
            for p in range(2):
                I(f'ds_read_b64_tr_b16 {v(112+4*u+2*p,2)}, v{vTRB} offset:{u*512+p*64}')
        for u in range(4):
            I(f'v_mfma_f32_16x16x32_bf16 v[64:67], {v(96+4*u,4)}, {v(112+4*u,4)}, {"0" if u == 0 else "v[64:67]"}')
            I(f'v_mfma_f32_16x16x32_bf16 v[68:71], v[72:75], {v(96+4*u,4)}, {"0" if u == 0 else "v[68:71]"}')
        I(f'v_mov_b32 v79, s{sTAG}')
        I('v_cvt_pk_bf16_f32 v76, v64, v65\nv_cvt_pk_bf16_f32 v77, v66, v67\nv_mov_b32 v78, v68')
        so = s.SO(s, sT0)
        s.ld(so, 'v[76:79]', vL16, sKVP, L*0x100000, 'sc1', op='buffer_store_dwordx4')
        s.stamp('kvpub')
        if s.stop == f'kv{L}': return True
        s.bg_tile(1, sGU, 0x8000, SK); s.bg_tile(2, sGU, 0x10000, SV)
        with k.cap() as f2:
            so = s.SO(s, sT0+2)
            for i in range(16): s.ld(so, v(vXB + 4*i, 4), vL16, sWO, i*1024)
        base, _ = s.gemm([(SQ, kc, aQ, kc == 0) for kc in range(32)])
        k.weave(base, (f2, 0, 31))
        with k.cap() as f: s.phi(aQ, vACC, vACC+16, vTMP)
        k.sprinkle(f, s.take(6), 2, 22)
        s.stamp('phiq')
        kb = vXB + 64
        Lb = s.label('KV'); D = s.label('KVD')
        I(f's_mov_b32 s{sT0+9}, 0')
        I(f'{Lb}:')
        so = s.SO(s, sT0)
        for r in range(16): s.ld(so, v(kb + 4*r, 4), vL16, sKVC, L*0x100000 + r*1024, 'sc1')
        I(f'v_xor_b32 v{vT0}, s{sTAG}, v{kb+3}')
        for r in range(1, 16):
            I(f'v_xor_b32 v{vT1}, s{sTAG}, v{kb+4*r+3}\nv_or_b32 v{vT0}, v{vT0}, v{vT1}')
        I(f'v_cmp_ne_u32 vcc, 0, v{vT0}')
        I(f's_cbranch_vccz {D}')
        with k.cond():
            I(f's_add_u32 s{sT0+9}, s{sT0+9}, 1\ns_cmp_lt_u32 s{sT0+9}, s{sLIM}\ns_cbranch_scc1 {Lb}\ns_mov_b32 s{sLIM}, 1')
        I(f'{D}:')
        s.stamp('kv_ok')
        k.put(s.take(4 if L else 6))
        for r in range(16):
            for e in range(4):
                I(f'v_dot2_f32_bf16 v{64+e}, v{kb+4*r+e//2}, s{sSELHI if e & 1 else sSELLO}, {"0" if r == 0 else v(64+e)}')
            if r == 1: I(f'v_add_f32 v68, v{kb+2}, v{kb+6}')
            if r > 1: I(f'v_add_f32 v68, v68, v{kb+4*r+2}')
        I('v_cvt_pk_bf16_f32 v70, v64, v65\nv_cvt_pk_bf16_f32 v71, v66, v67\nv_cvt_pk_bf16_f32 v68, v68, v68')
        I(f'ds_write_b64 v{vKVW}, v[70:71]')
        t = I(f'ds_write_b16 v{vZW}, v68')
        k.wait(t); I('s_barrier')
        for n in range(4):
            I(f'ds_read_b128 {a_(aRING+8*n,4)}, v{vZR} offset:{n*16}\nds_read_b128 {a_(aRING+8*n+4,4)}, v{vKVR} offset:{n*256}')
        for n in range(4):
            I(f'v_mfma_f32_32x32x16_bf16 v[80:95], {a_(aRING+8*n,4)}, {v(vTMP+4*n,4)}, {"0" if n == 0 else "v[80:95]"}')
        for n in range(4):
            I(f'v_mfma_f32_32x32x16_bf16 v[64:79], {a_(aRING+8*n+4,4)}, {v(vTMP+4*n,4)}, {"0" if n == 0 else "v[64:79]"}')
        I('v_add_f32 v80, 0x358637bd, v80\nv_add_f32 v88, 0x358637bd, v88\nv_rcp_f32 v80, v80\nv_rcp_f32 v88, v88')
        so = s.SO(s, sT0)
        I(f's_lshl_b32 s{sT0+3}, s{sJ}, 11\ns_add_u32 s{sT0+3}, s{sT0+3}, s{sXIN}')
        for c in range(2):
            for r in range(0, 8, 2): I(f'v_pk_mul_f32 {v(64+8*c+r,2)}, {v(64+8*c+r,2)}, {v(80+8*c,2)} op_sel_hi:[1,0]')
            for r in range(4): I(f'v_cvt_pk_bf16_f32 v{96+4*c+r}, v{64+8*c+2*r}, v{64+8*c+2*r+1}')
            t = s.ld(so, v(96+4*c, 4), vL16, sT0+3, bB*0x200000 + c*1024, op='buffer_store_dwordx4')
        k.wait(t)
        s.flag(sFOP, 0, L + 1)
        s.stamp('opub')
        k.put(s.take(7 if L else 8))
        return s.stop == f'o{L}'

    def red_write(s, slot, rt2, ct):
        I = s.I; a = vACC + 32*rt2 + 16*ct; t = None
        for h in range(2):
            for r in range(4): I(f'v_cvt_pk_bf16_f32 v{a+8*h+r}, v{a+8*h+2*r}, v{a+8*h+2*r+1}')
            t = I(f'ds_write_b128 v{vT1}, {v(a+8*h,4)} offset:{rt2*16384 + (2*ct+h)*512}')
        return t
    def red_finish(s, slot, scale, L, buf, p, final, pre, after=None):
        I = s.I; k = s.k; rb = vXB + 64
        I(f's_add_u32 s{sT0+3}, s{sM0}, {hex(slot*0x8000)}\nv_add_u32 v{vT0}, s{sT0+3}, v{vL16}')
        k.wait(*pre); I('s_barrier')
        if scale: I(f'ds_read_b32 v{vT2}, v{vRSR}')
        t = None
        for c in range(2):
            for src in range(4): t = I(f'ds_read_b128 {v(rb+16*c+4*src,4)}, v{vT0} offset:{src*2048 + c*1024}')
        so = s.SO(s, sT0)
        for c in range(2):
            for src in range(4):
                for e in range(8):
                    d = (vACC if scale else vRES) + 8*c + e
                    I(f'v_dot2_f32_bf16 v{d}, v{rb+16*c+4*src+e//2}, s{sSELHI if e & 1 else sSELLO}, {"0" if scale and src == 0 else v(d)}')
            if scale:
                for e in range(0, 8, 2): I(f'v_pk_fma_f32 {v(vRES+8*c+e,2)}, {v(vACC+8*c+e,2)}, {v(vT2,2)}, {v(vRES+8*c+e,2)} op_sel_hi:[1,0,1]')
            for r in range(4): I(f'v_cvt_pk_bf16_f32 v{vTMP+4*c+r}, v{vRES+8*c+2*r}, v{vRES+8*c+2*r+1}')
            if final: s.ld(so, v(vTMP+4*c, 4), vNAT, sNAT, 64*c, op='buffer_store_dwordx4', srdn=OS)
            else: s.ld(so, v(vTMP+4*c, 4), vPUB, sXPUB, buf*0x200000 + 2048*c, op='buffer_store_dwordx4')
        if final: return
        for r in range(8):
            I(f'v_dot2_f32_bf16 v{vT2}, v{vTMP+r}, s{sONES}, {"0" if r == 0 else v(vT2)}')
            I(f'v_dot2_f32_bf16 v{vT3}, v{vTMP+r}, v{vTMP+r}, {"0" if r == 0 else v(vT3)}')
        I(f'v_permlane32_swap_b32 v{vT2}, v{vT3}\nv_add_f32 v{vT2}, v{vT2}, v{vT3}\nv_mov_b32 v{vT3}, v{vT2}')
        I(f'v_permlane16_swap_b32 v{vT2}, v{vT3}\nv_add_f32 v{vT2}, v{vT2}, v{vT3}')
        t2 = s.ld(so, v(vT2), vSTW, sSTPUB, buf*0x20000, op='buffer_store_dword')
        k.wait(t2)
        s.flag(sFXP, 0, p)
        if after: after()

    def wo(s, L):
        I = s.I; k = s.k
        b = 2*L; SQ = (b+2) % 4; bA, bB = L, 1 - L
        I(f'v_add_u32 v{vT1}, {hex(SQ*0x8000)}, v{vREDW}')
        s.poll(vFO, sFOC, 0, L + 1)
        s.stamp('o_ok')
        so = s.SO(s, sT0); ob = vXB + 64
        with k.cap() as fl:
            for rt2 in range(2):
                for kk in range(8): s.ld(so, v(ob + 32*rt2 + 4*kk, 4), vL16, sXO, bB*0x200000 + rt2*0x8000 + kk*1024, 'sc1')
        k.put(fl[:8])
        with k.cap() as base:
            for rt2 in range(2):
                for kk in range(8):
                    for ct in range(2):
                        a = vACC + 32*rt2 + 16*ct
                        I(f'v_mfma_f32_32x32x16_bf16 {v(a,16)}, {v(vXB+8*kk+4*ct,4)}, {v(ob+32*rt2+4*kk,4)}, {"0" if kk == 0 else v(a,16)}')
        with k.cap() as f1:
            s.red_write(SQ, 0, 0); s.red_write(SQ, 0, 1)
        k.weave(base, (fl[8:], 0, 15), (s.take(4), 18, 31), (f1, 19, 30))
        s.red_write(SQ, 1, 0); t = s.red_write(SQ, 1, 1)
        s.stamp('wo_gemm')
        def after():
            s.bg_tile(3, sGU, 3*0x8000, SQ)
            k.put(s.take(6))
        s.red_finish(SQ, False, L, bA, 2*L + 1, False, [t, s.tok[0], s.tok[1]], after)
        s.stamp('x1pub')
        return s.stop == f'x{2*L+1}'

    def gu_epi(s, L, t):
        I = s.I; a = vACC + 16*(t % 4)
        for r in range(8): I(f'v_max_f32 v{a+r}, 0, v{a+r}')
        for r in range(8): I(f'v_mul_f32 v{a+r}, v{a+r}, v{a+8+r}')
        for r in range(4): I(f'v_cvt_pk_bf16_f32 v{a+8+r}, v{a+2*r}, v{a+2*r+1}')
        return s.ld(s.soH, v(a+8, 4), vL16, sHPUB, t*1024, op='buffer_store_dwordx4')
    def gu(s, L):
        I = s.I; k = s.k
        b = 2*L; slot = lambda t: (b + 3 + t) % 4
        bA = L
        s.poll(vFX, sFXC, 0, 2*L + 1)
        s.stamp('x1_ok')
        fill = [s.xloads(bA)]
        fill.append((s.take(8), 54, 60))
        with k.cap() as f:
            s.stats()
            I(f'v_rcp_f32 v{vRSTD}, v{vTMP+1}')
            s.tRS = I(f'ds_write_b32 v{vRSW}, v{vRSTD}')
        fill.append((f, 110, 122))
        steps = []
        for kc in range(32): steps += [(slot(0), kc, vACC, kc == 0), (slot(1), kc, vACC+16, kc == 0)]
        for t in range(2, 7): steps += [(slot(t), kc, vACC + 16*(t % 4), kc == 0) for kc in range(32)]
        s.soH = s.SO(s, sT0+4)
        th = {}
        for t in range(2, 7):
            g0 = 32*t
            with k.cap() as f:
                if t == 2: s.gu_epi(L, 0)
                th[t-1] = s.gu_epi(L, t-1)
            fill.append((f, g0 + (1 if t == 2 else 4), g0 + (22 if t == 2 else 14)))
        for t in range(4, 7): s.bg_tile(t, sGU, t*0x8000, slot(t))
        if L == 0:
            s.bg_tile('K', sQKV, 0, slot(3)); s.bg_tile('V', sQKV, 0x8000, slot(4)); s.bg_tile('Q', sQKV, 0x10000, slot(5))
            fill.append((s.take(40), 61, 220))
            fill.append((s.takew(56), 62, 223))
        else:
            fill.append((s.take(24), 61, 156))
        fences = {}
        for t in range(2, 7): fences[32*t - 4] = (32*t, [s.tok[t]])
        base, last = s.gemm(steps, fences)
        with k.cap() as f:
            with k.group():
                k.wait(th[5])
                I(f's_add_u32 s{sT0+5}, s{sFOP}, {hex(FH - FO)}')
                s.flag(sT0+5, 0, 7*L + 6)
        fill.append((f, 32*6 + 27, 32*6 + 27))
        k.weave(base, *fill)
        k.wait(last); I('s_barrier')
        s.gu_epi(L, 6)
        s.stamp('gu')
        return s.stop == f'h{L}'

    def down(s, L):
        I = s.I; k = s.k
        b = 2*L; SR = (b + 3 + 6) % 4; bB = 1 - L
        I(f'v_add_u32 v{vT1}, {hex(SR*0x8000)}, v{vREDW}')
        I(f's_add_u32 s{sT0+6}, s{sFOC}, {hex(FH - FO)}')
        s.poll(vFO, sT0+6, 0, 7*L + 6)
        s.flag(sT0+5, 0, 7*L + 7)
        s.stamp('h_ok')
        order = [(t, jj, rt2) for t in range(7) for jj in range(4) for rt2 in range(2)]
        so = [s.SO(s, sT0), s.SO(s, sT0+2)]
        def hld(i):
            t, jj, rt2 = order[i]
            s.ld(so[rt2], v(vXB + 4*(i % 32), 4), vL16, sHIN, rt2*112*1024 + (7*jj + t)*1024, 'sc1')
        n = s.P['hf']
        for i in range(n): hld(i)
        for i, (t, jj, rt2) in enumerate(order):
            for ct in range(2):
                a = vACC + 32*rt2 + 16*ct
                I(f'v_mfma_f32_32x32x16_bf16 {v(a,16)}, {a_(8*(7*jj+t)+4*ct,4)}, {v(vXB+4*(i%32),4)}, {"0" if i < 2 else v(a,16)}')
            if i + n == 36: I(f'buffer_load_dword v{vT0}, v{vFO}, {WS}, s{sT0+6} offen sc1')
            if i + n == 48:
                D = s.label('H7')
                s.check(vT0, 7*L + 7)
                I(f's_cbranch_vccz {D}')
                with k.cond(): s.poll(vFO, sT0+6, 0, 7*L + 7)
                I(f'{D}:')
            if i + n < 56: hld(i + n)
            elif i % 3 == 0 and i < 55: k.put(s.take(1))
        for rt2 in range(2):
            for ct in range(2): t = s.red_write(SR, rt2, ct)
        s.stamp('dn_gemm')
        def after():
            k.put(s.take(8))
        s.red_finish(SR, True, L, bB, 2*L + 2, L == 1, [t, s.tok['V'], s.tRS], after)
        s.stamp('x2pub')
        return s.stop == f'x{2*L+2}'

    def gen(s):
        I = s.I
        s.init()
        for L in range(2):
            if s.qkv(L) or s.wo(L) or s.gu(L) or s.down(L): break
        I(f's_or_b32 s64, s{sR}, s{sJ}\ns_or_b32 s64, s64, s{sW}\ns_cmp_lg_u32 s64, 0\ns_cbranch_scc1 M_FIN')
        with s.k.cond():
            I(f's_add_u32 s64, s{sE}, 1\nv_mov_b32 v{vT5}, s64\nbuffer_store_dword v{vT5}, v{vL0}, {WS}, 0 offen')
        I('M_FIN:')
        if s.ts:
            s.stamp('end')
            I('s_memrealtime s[78:79]\ns_waitcnt lgkmcnt(0)\nv_writelane_b32 v23, s78, 61')
            I(f'v_writelane_b32 v23, s{sLIM}, 62\nv_writelane_b32 v23, s2, 63')
            I(f's_lshl_b32 s64, s{sR}, 4\ns_add_u32 s64, s64, s{sJ}\ns_lshl_b32 s64, s64, 2\ns_add_u32 s64, s64, s{sW}\ns_lshl_b32 s64, s64, 8\ns_add_u32 s64, s64, {hex(TS)}')
            I(f'v_lshlrev_b32 v{vT0}, 2, v0\nbuffer_store_dword v23, v{vT0}, {WS}, s64 offen')
        I('s_waitcnt vmcnt(0)\nM_END:\ns_endpgm')
        return s.k

HEADER = open('cdna_kernels/' + NAME + '.s.ref').read().split('; Override')[0] if __name__ == '__main__' else ''

def build(stop=None, ts=False, header='', **kw):
    st1 = {}; st2 = {}
    m = Main(stop, ts, **kw)
    prep = gen_prep(ts).finish(st1); main = m.gen().finish(st2)
    txt = header
    txt += f'; @launch kernel=prep_kernel grid=(256,1,1) block=(256,1,1) lds=1024\n'
    txt += f'; @launch kernel={NAME}_kernel grid=(256,1,1) block=(256,1,1) lds={LDS_MAIN}\n'
    txt += '.amdgcn_target "amdgcn-amd-amdhsa--gfx950"\n.text\n'
    txt += head('prep_kernel') + prep + '\n' + head(NAME + '_kernel') + main + '\n'
    txt += kd('prep_kernel', 192, 192) + kd(NAME + '_kernel', 512, 256)
    return txt, (st1, st2, m.tsnames)

if __name__ == '__main__':
    txt, st = build(header=HEADER)
    out = sys.argv[1] if len(sys.argv) > 1 else 'cdna_kernels/' + NAME + '.s'
    open(out, 'w').write(txt); print(st, len(txt))
```

```python
import re, contextlib

TRANS = ('v_exp_f32', 'v_log_f32', 'v_rcp_f32', 'v_rsq_f32', 'v_sqrt_f32', 'v_sin_f32', 'v_cos_f32')
RX = re.compile(r'^-?\|?([vas])(\d+)\|?$')
RR = re.compile(r'^-?\|?([vas])\[(\d+):(\d+)\]\|?$')

def regs(tok):
    tok = tok.strip()
    m = RX.match(tok)
    if m: return [(m.group(1), int(m.group(2)))]
    m = RR.match(tok)
    if m: return [(m.group(1), i) for i in range(int(m.group(2)), int(m.group(3)) + 1)]
    if tok in ('vcc', 'vcc_lo', 'vcc_hi'): return [('s', 'vcc')]
    if tok in ('exec', 'exec_lo', 'exec_hi'): return [('s', 'exec')]
    if tok == 'm0': return [('s', 'm0')]
    return []

class Ins:
    __slots__ = ('text', 'op', 'kind', 'dst', 'src', 'A', 'B', 'C', 'passes', 'maybe', 'dpp', 'wide', 'data',
                 'lds', 'waits', 'nops', 'vmidx', 'lgidx', 'srcv', 'alt')
    def __init__(s, text, maybe=False):
        s.text = text; s.maybe = maybe; s.alt = None
        s.dst = set(); s.src = set(); s.A = s.B = s.C = None; s.passes = 0; s.dpp = False; s.wide = False
        s.data = set(); s.lds = False; s.waits = []; s.nops = 1; s.vmidx = None; s.lgidx = None
        t = text.split(';')[0].strip()
        if t.endswith(':') or t.startswith('.') or t == '':
            s.op = t; s.kind = 'label'; s.nops = 0; return
        parts = t.split(None, 1)
        op = parts[0]; s.op = op
        rest = parts[1] if len(parts) > 1 else ''
        ops = []; depth = 0; cur = ''
        for ch in rest:
            if ch == '[': depth += 1
            if ch == ']': depth -= 1
            if ch == ',' and depth == 0: ops.append(cur.strip()); cur = ''
            else: cur += ch
        if cur.strip(): ops.append(cur.strip())
        mods = []
        if ops:
            w = ops[-1].split()
            ops[-1] = w[0]; mods = w[1:]
        R = [regs(o) for o in ops]
        allr = lambda l: set(x for r in l for x in r)
        if op.startswith('v_mfma'):
            s.kind = 'mfma'; s.dst = set(R[0]); s.A = set(R[1]); s.B = set(R[2]); s.C = R[3]
            s.src = s.A | s.B | set(s.C)
            s.passes = 8 if '32x32x16' in op else 4 if '16x16x32' in op else None
            assert s.passes, op
        elif op.startswith('v_'):
            s.kind = 'valu'
            s.dst = set(R[0]); s.src = allr(R[1:])
            if 'permlane' in op and 'swap' in op: s.dst = allr(R); s.src = allr(R)
            if op.startswith(('v_fmac', 'v_dot2c', 'v_pk_fmac', 'v_writelane')): s.src |= s.dst
            if op.endswith('_dpp') or any(m.startswith(('quad_perm', 'row_')) for m in mods):
                s.dpp = True; s.src |= s.dst
            if op.startswith('v_cmpx'): s.dst.add(('s', 'exec'))
        elif op.startswith('ds_'):
            s.kind = 'ds'
            if op.startswith(('ds_read', 'ds_bpermute', 'ds_permute', 'ds_swizzle')): s.dst = set(R[0]); s.src = allr(R[1:])
            else: s.src = allr(R)
        elif op.startswith('buffer_'):
            s.kind = 'vmem'
            if 'lds' in mods:
                s.lds = True; s.src = allr(R) | {('s', 'm0')}
            elif op.startswith('buffer_load'): s.dst = set(R[0]); s.src = allr(R[1:])
            else:
                s.src = allr(R); s.data = set(R[0]); s.wide = len(R[0]) >= 3
        elif op.startswith(('s_load', 's_memtime', 's_memrealtime', 's_buffer_load')):
            s.kind = 'smem'; s.dst = set(R[0]); s.src = allr(R[1:])
        elif op == 's_waitcnt': s.kind = 'wait'
        elif op == 's_nop': s.kind = 'nop'; s.nops = int(ops[0]) + 1
        elif op in ('s_barrier', 's_endpgm', 's_setprio', 's_sleep') or op.startswith(('s_cbranch', 's_branch')): s.kind = 'ctl'
        elif op == 'WAIT': s.kind = 'pseudo'; s.nops = 0
        elif op.startswith('s_'):
            s.kind = 'salu'
            if op.startswith(('s_cmp', 's_bitcmp')): s.src = allr(R)
            else: s.dst = set(R[0]); s.src = allr(R[1:])
            if 'saveexec' in op: s.dst.add(('s', 'exec'))
        else:
            raise ValueError('unknown op ' + text)
        s.srcv = set(x for x in s.src if x[0] != 's')

class Asm:
    def __init__(s):
        s.cur = []; s.maybe = False
    def I(s, text):
        r = None
        for l in text.split('\n'):
            l = l.strip()
            if not l: continue
            r = Ins(l, s.maybe); s.cur.append(r)
        return r
    def wait(s, *toks):
        w = Ins('WAIT'); w.waits = [t for t in toks if t is not None]; s.cur.append(w); return w
    def retire(s):
        w = Ins('WAIT'); w.op = 'RETIRE'; s.cur.append(w); return w
    @contextlib.contextmanager
    def cap(s):
        old = s.cur; lst = []; s.cur = lst
        try: yield lst
        finally: s.cur = old
    @contextlib.contextmanager
    def group(s):
        old = s.cur; lst = []; s.cur = lst
        try: yield lst
        finally:
            s.cur = old; s.cur.append(lst)
    @contextlib.contextmanager
    def cond(s):
        old = s.maybe; s.maybe = True
        try: yield
        finally: s.maybe = old
    def put(s, lst): s.cur.extend(lst)
    def weave(s, base, *streams):
        def isM(x): return (not isinstance(x, list)) and x.kind == 'mfma'
        ng = sum(1 for x in base if isM(x))
        slots = [[] for _ in range(ng + 1)]
        for items, g0, g1 in streams:
            g1 = min(g1, ng - 1); n = len(items)
            if g1 < g0: slots[ng].extend(items); continue
            span = g1 - g0 + 1
            for i, it in enumerate(items): slots[g0 + (i * span) // n].append(it)
        g = 0
        for x in base:
            s.cur.append(x)
            if isM(x): s.cur.extend(slots[g]); g += 1
        s.cur.extend(slots[ng])

    def sprinkle(s, base, items, first, every):
        it = list(items)
        for i, x in enumerate(base):
            s.cur.append(x)
            if it and i >= first and (i - first) % every == 0: s.cur.append(it.pop(0))
        s.cur.extend(it)

    @staticmethod
    def flat(l):
        for x in l:
            if isinstance(x, list): yield from Asm.flat(x)
            else: yield x

    def finish(s, stats=None):
        src = list(Asm.flat(s.cur)); out = []
        vmq = []; lgq = []
        issued = set()
        nnop = 0; alts = []
        def cnt_after(q, ins):
            i = q.index(ins); return sum(1 for x in q[i + 1:] if not x.maybe)
        for ins in src:
            needv = None; needl = None
            def need(p):
                nonlocal needv, needl
                if p in vmq:
                    c = cnt_after(vmq, p); needv = c if needv is None else min(needv, c)
                elif p in lgq:
                    c = 0 if any(x.kind == 'smem' for x in lgq) else cnt_after(lgq, p)
                    needl = c if needl is None else min(needl, c)
            for t in ins.waits:
                assert id(t) in issued, ('wait on token not yet issued', t.text)
                need(t)
            touched = ins.src | ins.dst
            if touched:
                for p in vmq:
                    if p.dst and (p.dst & ins.src or (p.dst & ins.dst and ins.kind != 'vmem')): need(p)
                for p in lgq:
                    if p.dst and (p.dst & ins.src or (p.dst & ins.dst and not (ins.kind == 'ds' and p.kind == 'ds'))): need(p)
            if needv is not None or needl is not None:
                w = []
                if needv is not None:
                    needv = min(needv, 63); w.append(f'vmcnt({needv})')
                if needl is not None:
                    needl = min(needl, 15); w.append(f'lgkmcnt({needl})')
                wi = Ins('s_waitcnt ' + ' '.join(w), ins.maybe)
                s._applywait(wi, vmq, lgq); out.append(wi)
            if ins.op == 'RETIRE': vmq[:] = [x for x in vmq if not x.maybe]
            if ins.kind == 'pseudo': continue
            if ins.kind == 'wait': s._applywait(ins, vmq, lgq)
            n = s._hazard(out, ins)
            while n > 0:
                k = min(n, 16); out.append(Ins(f's_nop {k - 1}', ins.maybe)); n -= k; nnop += k
            if ins.alt:
                sel, txt = ins.alt; n = len(alts)
                out.append(Ins(f's_cmp_lg_u32 {sel}, 0', ins.maybe)); out.append(Ins(f's_cbranch_scc1 ALT_{n}', ins.maybe))
                out.append(ins); out.append(Ins(f'ALTB_{n}:'))
                alts.append(f'ALT_{n}:\n  {txt}\n  s_branch ALTB_{n}')
            else: out.append(ins)
            issued.add(id(ins))
            if ins.kind == 'vmem': vmq.append(ins)
            if ins.kind in ('ds', 'smem'): lgq.append(ins)
        if stats is not None:
            stats['n'] = sum(1 for x in out if x.kind != 'label'); stats['nopstates'] = nnop
        return '\n'.join([('' if x.kind == 'label' else '  ') + x.text for x in out] + alts)

    @staticmethod
    def _applywait(w, vmq, lgq):
        if w.maybe: return
        m = re.search(r'vmcnt\((\d+)\)', w.text)
        if m:
            n = int(m.group(1))
            k = len(vmq); c = 0
            while k > 0 and c < n:
                k -= 1
                if not vmq[k].maybe: c += 1
            if n > 0:
                while k > 0 and vmq[k - 1].maybe and c < n: k -= 1
            del vmq[:k]
        m = re.search(r'lgkmcnt\((\d+)\)', w.text)
        if m:
            n = int(m.group(1))
            if n == 0: del lgq[:]
            elif not any(x.kind == 'smem' for x in lgq):
                k = len(lgq); c = 0
                while k > 0 and c < n:
                    k -= 1
                    if not lgq[k].maybe: c += 1
                del lgq[:k]

    @staticmethod
    def _hazard(out, c):
        if c.kind in ('label', 'wait', 'nop', 'ctl', 'pseudo'): return 0
        need = 0; dist = 0
        cv = c.kind in ('valu', 'mfma', 'ds', 'vmem')
        for p in reversed(out):
            if dist >= 20: break
            req = 0
            if p.kind == 'mfma':
                P = p.passes
                if c.kind == 'mfma':
                    if p.dst & (c.A | c.B): req = max(req, 12 if P == 8 else 8)
                    cs = set(c.C)
                    if p.dst & cs and not (p.dst == cs and P == c.passes): req = max(req, 10 if P == 8 else 6)
                    if p.dst & c.dst and not (p.dst == cs and P == c.passes): req = max(req, 10 if P == 8 else 6)
                elif cv:
                    if p.dst & (c.src | c.dst): req = max(req, 12 if P == 8 else 8)
                    if set(p.C) & c.dst: req = max(req, 7 if P == 8 else 3)
            elif p.kind == 'valu':
                pv = set(x for x in p.dst if x[0] != 's'); ps = p.dst - pv
                if c.kind == 'mfma':
                    if pv & c.src: req = max(req, 2)
                    if ('s', 'exec') in ps: req = max(req, 4)
                if c.kind == 'valu':
                    if p.op.replace('_e32', '').replace('_e64', '') in TRANS and pv & c.src: req = max(req, 1)
                    if ('permlane' in c.op or c.dpp) and pv & c.src: req = max(req, 2)
                    if c.op.startswith(('v_readfirstlane', 'v_readlane')) and pv & c.src: req = max(req, 1)
                    if ps & c.src: req = max(req, 4 if c.op.startswith(('v_readlane', 'v_writelane')) else 2)
                    if ('s', 'exec') in ps: req = max(req, 5)
                    if 'op_sel' in p.text and not p.op.startswith('v_pk') and pv & (c.src | c.dst): req = max(req, 1)
                if p.op.startswith('v_dot') and cv and pv & (c.src | c.dst):
                    same = c.kind == 'valu' and c.op == p.op
                    if same:
                        ops = c.text.split(None, 1)[1].split(',')
                        ab = set(regs(ops[1])) | set(regs(ops[2]))
                        if pv & ab: req = max(req, 3)
                    else: req = max(req, 3)
                if c.kind == 'vmem' and ps & c.src: req = max(req, 5)
                if c.kind in ('salu', 'smem') and ps & c.src: req = max(req, 1)
            elif p.kind == 'salu':
                if ('s', 'm0') in p.dst and c.kind == 'vmem' and c.lds: req = max(req, 1)
            elif p.kind == 'vmem':
                if p.wide and p.data & c.dst: req = max(req, 2)
            need = max(need, req - dist)
            if not p.maybe or p.maybe == c.maybe: dist += p.nops
        return need
```

```python
import sys
from asm import Asm
NAME = 'interleave_layers__linear_kernel_hedgehog__glu_gated_reglu__prompt'

FX, FO, FH = 0x2000, 0x4000, 0x6000
ST = 0x40000
XB = (0x200000, 0x400000)
KVP = 0x600000
HB = 0x800000
WQKV, WO_P, WD_P, WGU = 0x1000000, 0x1180000, 0x1200000, 0x1400000
TS = 0x2000000
WS_SIZE = 0x10000000
OOB = 0x7ffffff0
XA = 0x20000; PS = 2112
KVA = 0x26400; ZA = 0x26C00; ZERO = 0x26D00; RS = 0x27100; ROLE = 0x27300
LDS_MAIN = 163840

def v(a, n=1): return f'v{a}' if n == 1 else f'v[{a}:{a+n-1}]'
def a_(a, n=1): return f'a{a}' if n == 1 else f'a[{a}:{a+n-1}]'
def s_(a, n=1): return f's{a}' if n == 1 else f's[{a}:{a+n-1}]'

def kd(name, vgpr, acc, sgpr=102):
    return f'''.section .rodata,"a"
.p2align 6
.amdhsa_kernel {name}
  .amdhsa_next_free_vgpr {vgpr}
  .amdhsa_next_free_sgpr {sgpr}
  .amdhsa_accum_offset {acc}
  .amdhsa_group_segment_fixed_size 0
  .amdhsa_kernarg_size 88
  .amdhsa_user_sgpr_count 2
  .amdhsa_user_sgpr_kernarg_segment_ptr 1
  .amdhsa_system_sgpr_workgroup_id_x 1
.end_amdhsa_kernel
.text
'''
def head(name):
    return f'.globl {name}\n.p2align 8\n.type {name},@function\n{name}:\n'

def srd(I, d, b, size):
    I(f's_mov_b32 s{d}, s{b}\ns_mov_b32 s{d+1}, s{b+1}\ns_mov_b32 s{d+2}, {hex(size)}\ns_mov_b32 s{d+3}, 0x20000')

def gen_prep(ts=False):
    k = Asm(); I = k.I
    I('s_cmp_ge_u32 s2, 256\ns_cbranch_scc1 P_END')
    if ts: I('s_memrealtime s[60:61]')
    I('s_load_dwordx4 s[36:39], s[0:1], 0\ns_load_dwordx4 s[40:43], s[0:1], 16\ns_load_dwordx2 s[44:45], s[0:1], 40')
    I('s_load_dwordx4 s[48:51], s[0:1], 48\ns_load_dwordx2 s[46:47], s[0:1], 80')
    I('v_lshrrev_b32 v1, 6, v0\nv_and_b32 v0, 63, v0\nv_readfirstlane_b32 s24, v1')
    I('v_lshlrev_b32 v1, 4, v0')
    I('s_waitcnt lgkmcnt(0)')
    srd(I, 8, 46, WS_SIZE); srd(I, 12, 36, 2048*1024); srd(I, 20, 40, 32*512)
    I('s_lshl_b32 s25, s2, 3\ns_lshl_b32 s26, s24, 1\ns_add_u32 s25, s25, s26')
    I('s_lshl_b32 s26, s25, 10')
    I('buffer_load_dwordx4 v[8:11], v1, s[12:15], s26 offen\nbuffer_load_dwordx4 v[12:15], v1, s[12:15], s26 offen offset:1024')
    I('s_mov_b32 s19, 0x20000\ns_mov_b32 s33, 16\ns_mov_b32 s34, 0\ns_mov_b32 s32, 0\ns_mov_b32 s30, 1024\ns_mov_b32 s31, 0xbb000000\ns_mov_b32 s35, 0')
    I('s_cmp_ge_u32 s2, 48\ns_cbranch_scc1 P_N1')
    I('s_mov_b32 s16, s38\ns_mov_b32 s17, s39\ns_mov_b32 s18, 0x180000\ns_movk_i32 s28, 3072')
    I('s_lshr_b32 s52, s2, 4\ns_and_b32 s35, s2, 15')
    I('s_add_u32 s53, s52, 1\ns_cmp_eq_u32 s52, 2\ns_cselect_b32 s53, 0, s53\ns_lshl_b32 s53, s53, 10\ns_lshl_b32 s27, s35, 6\ns_add_u32 s27, s27, s53')
    I(f's_mul_i32 s29, s35, 3\ns_add_u32 s29, s29, s52\ns_lshl_b32 s29, s29, 15\ns_add_u32 s29, s29, {hex(WQKV)}')
    I('s_cmp_eq_u32 s52, 1\ns_cselect_b32 s32, 1, 2\ns_branch P_GO')
    I('P_N1:\ns_cmp_ge_u32 s2, 160\ns_cbranch_scc1 P_N3')
    I(f's_mov_b32 s18, {hex(512*3584)}\ns_movk_i32 s28, 3584\ns_mov_b32 s34, 1')
    I('s_cmp_ge_u32 s2, 104\ns_cbranch_scc1 P_N2')
    I(f's_mov_b32 s16, s44\ns_mov_b32 s17, s45\ns_sub_u32 s52, s2, 48\ns_mov_b32 s53, {hex(WGU)}\ns_branch P_GU')
    I(f'P_N2:\ns_mov_b32 s16, s48\ns_mov_b32 s17, s49\ns_sub_u32 s52, s2, 104\ns_mov_b32 s53, {hex(WGU+256)}')
    I('P_GU:\ns_lshl_b32 s27, s52, 6\ns_lshl_b32 s29, s52, 16\ns_add_u32 s29, s29, s53\ns_branch P_GO')
    I('P_N3:\ns_mov_b32 s31, 0\ns_movk_i32 s28, 1024\ns_movk_i32 s30, 2048')
    I('s_cmp_ge_u32 s2, 176\ns_cbranch_scc1 P_N4')
    I('s_mov_b32 s16, s42\ns_mov_b32 s17, s43\ns_mov_b32 s18, 0x80000\ns_sub_u32 s52, s2, 160')
    I(f's_lshl_b32 s27, s52, 6\ns_lshr_b32 s53, s52, 1\ns_lshl_b32 s53, s53, 16\ns_and_b32 s52, s52, 1\ns_lshl_b32 s52, s52, 10\ns_add_u32 s29, s52, s53\ns_add_u32 s29, s29, {hex(WO_P)}\ns_branch P_GO')
    I(f'P_N4:\ns_mov_b32 s16, s50\ns_mov_b32 s17, s51\ns_mov_b32 s18, {hex(1792*1024)}\ns_mov_b32 s33, 14')
    I('s_sub_u32 s52, s2, 176\ns_cmp_ge_u32 s52, 64\ns_cselect_b32 s33, 0, s33\ns_and_b32 s52, s52, 63')
    I('s_and_b32 s53, s52, 15\ns_lshr_b32 s52, s52, 4')
    I(f's_mul_i32 s27, s52, {448*1024}\ns_lshl_b32 s54, s53, 6\ns_add_u32 s27, s27, s54')
    I(f's_lshr_b32 s54, s53, 1\ns_mul_i32 s29, s54, {224*1024}\ns_and_b32 s54, s53, 1\ns_lshl_b32 s54, s54, 10\ns_add_u32 s29, s29, s54')
    I(f's_mul_i32 s54, s52, {56*1024}\ns_add_u32 s29, s29, s54\ns_add_u32 s29, s29, {hex(WD_P)}')
    I('P_GO:')
    I('v_and_b32 v2, 31, v0\nv_lshrrev_b32 v3, 5, v0')
    I('v_and_b32 v4, 19, v2\nv_bfe_u32 v5, v2, 2, 1\nv_bfe_u32 v6, v2, 3, 1\nv_lshl_or_b32 v4, v5, 3, v4\nv_lshl_or_b32 v4, v6, 2, v4')
    I('v_mul_lo_u32 v7, v4, s28\nv_lshl_add_u32 v7, v3, 4, v7')
    I('s_lshl_b32 s52, s28, 7\ns_mul_i32 s52, s52, s24\ns_add_u32 s27, s27, s52\ns_lshl_b32 s53, s28, 5')
    for b in range(4):
        I(f'buffer_load_dwordx4 v[{32+8*b}:{35+8*b}], v7, s[16:19], s27 offen\nbuffer_load_dwordx4 v[{36+8*b}:{39+8*b}], v7, s[16:19], s27 offen offset:32')
        if b < 3: I('s_add_u32 s27, s27, s53')
    I('v_lshrrev_b32 v16, 3, v2\nv_and_b32 v17, 3, v2\nv_lshl_or_b32 v16, v16, 2, v17')
    I('v_lshlrev_b32 v17, 1, v16\nv_lshl_or_b32 v17, v3, 8, v17\nv_lshl_or_b32 v17, v5, 9, v17')
    I('s_lshl_b32 s52, s35, 10')
    for i in range(8): I(f'buffer_load_ushort v{64+i}, v17, s[20:23], s52 offen offset:{32*i}')
    I('v_lshl_or_b32 v16, v5, 4, v16\ns_cmp_eq_u32 s32, 1\ns_cselect_b64 s[54:55], -1, 0')
    I('v_cndmask_b32 v16, v4, v16, s[54:55]')
    I('v_lshlrev_b32 v18, 3, v3\nv_sub_u32 v16, v16, v18')
    I('v_and_b32 v18, 1, v16\nv_lshlrev_b32 v18, 4, v18\nv_mov_b32 v19, 0x3f80\nv_lshlrev_b32 v18, v18, v19\nv_ashrrev_i32 v16, 1, v16')
    for p in range(2):
        for r in range(4):
            I(f'v_cmp_eq_u32 vcc, {8*p+r}, v16\nv_cndmask_b32 v{24+4*p+r}, 0, v18, vcc')
    I(f's_lshr_b32 s52, s25, 5\ns_lshl_b32 s53, s52, 15\ns_and_b32 s56, s25, 31\ns_lshl_b32 s57, s56, 4\ns_add_u32 s53, s53, s57\ns_add_u32 s53, s53, {hex(XB[0])}')
    I('v_lshlrev_b32 v20, 9, v0')
    I('buffer_store_dwordx4 v[8:11], v20, s[8:11], s53 offen\nbuffer_store_dwordx4 v[12:15], v20, s[8:11], s53 offen offset:16')
    I('s_mov_b32 s58, 0x3f803f80')
    for r in range(2):
        b = 8 + 4*r; o = 72 + 2*r
        for i in range(4):
            I(f'v_dot2_f32_bf16 v{o}, v{b+i}, s58, {"0" if i == 0 else v(o)}')
        for i in range(4):
            I(f'v_dot2_f32_bf16 v{o+1}, v{b+i}, v{b+i}, {"0" if i == 0 else v(o+1)}')
    for mod in ('quad_perm:[1,0,3,2]', 'quad_perm:[2,3,0,1]', 'row_half_mirror'):
        for o in range(72, 76): I(f'v_add_f32_dpp v{o}, v{o}, v{o} {mod} row_mask:0xf bank_mask:0xf')
    I(f'v_and_b32 v21, 7, v0\nv_cmp_eq_u32 vcc, 0, v21\nv_mov_b32 v21, {hex(OOB)}\nv_cndmask_b32 v21, v21, v0, vcc')
    I(f's_lshl_b32 s52, s52, 11\ns_lshl_b32 s57, s56, 6\ns_add_u32 s52, s52, s57\ns_add_u32 s52, s52, {hex(ST)}')
    I('buffer_store_dwordx2 v[72:73], v21, s[8:11], s52 offen\nbuffer_store_dwordx2 v[74:75], v21, s[8:11], s52 offen offset:64')
    for r in range(4): I(f'v_lshl_or_b32 v{64+r}, v{65+2*r}, 16, v{64+2*r}')
    I('s_cmp_eq_u32 s32, 2\ns_cselect_b64 s[54:55], -1, 0\nv_cmp_eq_u32 vcc, 0, v5')
    for r in range(4):
        I(f'v_cndmask_b32 v68, 0, v{64+r}, vcc\nv_cndmask_b32 v69, v{64+r}, 0, vcc')
        I(f'v_cndmask_b32 v{24+r}, v{24+r}, v68, s[54:55]\nv_cndmask_b32 v{28+r}, v{28+r}, v69, s[54:55]')
    for b in range(4):
        d = 128 + 16*b
        I(f'v_mfma_f32_32x32x16_bf16 {v(d,16)}, {v(32+8*b,4)}, v[24:27], 0')
        I(f'v_mfma_f32_32x32x16_bf16 {v(d,16)}, {v(36+8*b,4)}, v[28:31], {v(d,16)}')
    I('v_pk_add_f32 v[76:77], v[128:129], v[130:131]')
    for r in range(132, 192, 2): I(f'v_pk_add_f32 v[76:77], v[76:77], {v(r,2)}')
    I('v_add_f32 v76, v76, v77\nv_lshlrev_b32 v22, 2, v0\ns_lshl_b32 s52, s24, 8\nv_add_u32 v22, s52, v22')
    t = I('ds_write_b32 v22, v76'); k.wait(t); I('s_barrier')
    I('v_lshlrev_b32 v22, 2, v2')
    for i in range(8): I(f'ds_read_b32 v{80+i}, v22 offset:{128*i}')
    for i in range(1, 8): I(f'v_add_f32 v80, v80, v{80+i}')
    I('v_mul_f32 v80, s31, v80\nv_mov_b32 v81, v80')
    I('v_and_b32 v22, 15, v2\nv_lshl_or_b32 v22, v3, 5, v22\nv_lshlrev_b32 v22, 4, v22\nv_lshrrev_b32 v23, 4, v2\nv_lshl_or_b32 v22, v23, 15, v22')
    I('s_cmp_eq_u32 s34, 1\ns_cselect_b64 s[54:55], -1, 0\nv_cndmask_b32 v22, v1, v22, s[54:55]')
    I('s_lshl_b32 s52, s30, 3\ns_mul_i32 s52, s52, s24\ns_add_u32 s29, s29, s52\ns_lshl_b32 s56, s24, 2')
    for b in range(4):
        d = 128 + 16*b
        for r in range(0, 16, 2): I(f'v_pk_add_f32 {v(d+r,2)}, {v(d+r,2)}, v[80:81]')
        for r in range(8): I(f'v_cvt_pk_bf16_f32 v{d+r}, v{d+2*r}, v{d+2*r+1}')
    for b in range(4):
        d = 128 + 16*b
        I(f's_cmp_ge_u32 s56, s33\ns_cbranch_scc1 P_FIN')
        I(f'buffer_store_dwordx4 {v(d,4)}, v22, s[8:11], s29 offen\ns_add_u32 s29, s29, s30')
        I(f'buffer_store_dwordx4 {v(d+4,4)}, v22, s[8:11], s29 offen\ns_add_u32 s29, s29, s30\ns_add_u32 s56, s56, 1')
    I('P_FIN:\ns_waitcnt vmcnt(0)')
    if ts:
        I(f's_memrealtime s[62:63]\ns_waitcnt lgkmcnt(0)\nv_mov_b32 v2, s60\nv_mov_b32 v3, s62\nv_mov_b32 v4, 0\ns_lshl_b32 s52, s2, 3\ns_add_u32 s52, s52, {hex(TS+0x100000)}')
        I('buffer_store_dwordx2 v[2:3], v4, s[8:11], s52 offen')
    I('P_END:\ns_endpgm')
    return k

WS, XS, OS, DS = 's[8:11]', 's[12:15]', 's[16:19]', 's[20:23]'
sW, sG, sRK, sR, sJ, sHB, sCG, sTAG, sE, sLIM = 24, 25, 26, 27, 28, 29, 30, 31, 32, 33
sQKV, sGU, sWO, sWD = 34, 35, 36, 37
sXIN, sXO, sXPUB, sSTIN, sSTPUB = 38, 39, 40, 41, 42
sHPUB, sHIN, sFXC, sFXP, sFOC, sFOP, sKVP, sKVC, sNAT, sM0 = 43, 44, 45, 46, 47, 48, 49, 50, 51, 52
sSELLO, sSELHI, sONES, sLOG2E, sTSB, sSLOW, sMARK = 53, 54, 55, 56, 57, 58, 59
sT0 = 60
vL, vL16, vL16b, vFX, vFO, vL0, vSTL, vPUB, vPHW, vTRA, vTRB, vKVW, vZW, vKVR, vZR, vREDW, vNAT, vSTW, vRSW, vRSR = range(20)
vRSTD, vC, vT0, vT1, vT2, vT3, vT4, vT5 = range(24, 32)
vRES = 32; vTMP = 48; vACC = 64; vXB = 128; aRING = 224

P0 = dict(xf=8, hf=10)
class Main:
    def __init__(s, stop=None, ts=False, **kw):
        s.k = Asm(); s.I = s.k.I; s.stop = stop; s.ts = ts; s.nl = 0; s.nts = 0; s.tsnames = []; s.bg = []; s.bw = []; s.tok = {}; s.P = dict(P0); s.P.update(kw)
    def label(s, p):
        s.nl += 1; return f'{p}_{s.nl}'
    def stamp(s, name):
        if not s.ts: return
        r = 80 + 2*(s.nts % 10)
        s.tsnames.append(name)
        with s.k.group():
            s.I(f's_memtime s[78:79]\ns_waitcnt lgkmcnt(0)\nv_writelane_b32 v23, s78, {s.nts}')
        s.nts += 1
    class SO:
        def __init__(o, m, tmp): o.m = m; o.tmp = tmp; o.key = None
        def get(o, base, off):
            hi = off & ~4095; lo = off & 4095
            if hi == 0: return f's{base}', lo
            if o.key != (base, hi):
                o.m.I(f's_add_u32 s{o.tmp}, s{base}, {hex(hi)}'); o.key = (base, hi)
            return f's{o.tmp}', lo
    def ld(s, so, dst, voff, base, off, mod='', op='buffer_load_dwordx4', srdn=WS):
        with s.k.group():
            r, lo = so.get(base, off)
            t = s.I(f'{op} {dst}, v{voff}, {srdn}, {r} offen' + (f' offset:{lo}' if lo else '') + (' ' + mod if mod else ''))
        return t
    def pub(s, t):
        t.alt = (f's{sSLOW}', t.text + ' sc1'); return t
    def dma_tile(s, so, base, off, slot):
        t = None
        for h in range(2):
            for i in range(4):
                with s.k.group():
                    if i == 0:
                        s.I(f's_add_u32 m0, s{sM0}, {hex(slot*0x8000 + h*4096)}')
                        s.I(f's_add_u32 s{so}, s{base}, {hex(off + h*4096)}')
                    t = s.I(f'buffer_load_dwordx4 v{vL16}, {WS}, s{so} offen' + (f' offset:{i*1024}' if i else '') + ' lds')
        return t
    def bg_tile(s, key, base, off, slot):
        with s.k.cap() as f: s.tok[key] = s.dma_tile(sT0+1, base, off, slot)
        s.bg += f
    def take(s, n):
        r = s.bg[:n]; s.bg = s.bg[n:]; return r
    def takew(s, n):
        r = s.bw[:n]; s.bw = s.bw[n:]; return r
    def check(s, vt, p):
        s.I(f's_add_u32 s{sT0+8}, s{sTAG}, {p}\nv_subrev_u32 v{vt}, s{sT0+8}, v{vt}\nv_cmp_lt_u32 vcc, 15, v{vt}')
    def poll(s, voff, sbase, off, p, vt=vT0):
        I = s.I; L = s.label('POLL'); D = s.label('PD')
        I(f's_mov_b32 s{sT0+9}, 0')
        I(f'{L}:')
        I(f'buffer_load_dword v{vt}, v{voff}, {WS}, s{sbase} offen' + (f' offset:{off}' if off else '') + ' sc1')
        I('s_waitcnt vmcnt(0)')
        s.check(vt, p)
        I(f's_cbranch_vccz {D}')
        with s.k.cond():
            I(f's_add_u32 s{sT0+9}, s{sT0+9}, 1\ns_cmp_lt_u32 s{sT0+9}, s{sLIM}\ns_cbranch_scc1 {L}\ns_mov_b32 s{sLIM}, 1')
        I(f'{D}:')
    def flag(s, sbase, off, p):
        with s.k.group():
            s.I(f's_add_u32 s{sT0+10}, s{sTAG}, {p}\nv_mov_b32 v{vT5}, s{sT0+10}')
            s.pub(s.I(f'buffer_store_dword v{vT5}, v{vL0}, {WS}, s{sbase} offen' + (f' offset:{off}' if off else '')))
    def ldsA(s, slot, kc):
        a = slot*0x8000 + kc*1024
        return (vL16, a) if a < 0x10000 else (vL16b, a - 0x10000)
    def gemm(s, steps, fences={}, LA=6):
        I = s.I; n = len(steps); nr = 0; last = None
        blocked = sorted((f[0], g) for g, f in fences.items())
        def limit(i):
            for st, g in blocked:
                if g > i: return st
            return n
        def rd():
            nonlocal nr, last
            vr, off = s.ldsA(steps[nr][0], steps[nr][1])
            last = I(f'ds_read_b128 {a_(aRING + 4*(nr % 8), 4)}, v{vr} offset:{off}'); nr += 1
        with s.k.cap() as base:
            while nr < min(LA, limit(-1)): rd()
            for i, (slot, kc, acc, first) in enumerate(steps):
                assert nr > i
                I(f'v_mfma_f32_32x32x16_bf16 {v(acc,16)}, {a_(aRING + 4*(i % 8), 4)}, {v(vXB+4*kc,4)}, {"0" if first else v(acc,16)}')
                if i in fences:
                    assert nr == fences[i][0], (nr, i, fences[i])
                    s.k.wait(last, *fences[i][1]); I('s_barrier')
                c = 0
                while nr < min(i + 1 + LA, limit(i), n) and c < 2: rd(); c += 1
        return base, last

    def init(s):
        I = s.I; k = s.k
        I('s_cmp_ge_u32 s2, 256\ns_cbranch_scc1 M_END')
        I('s_load_dwordx2 s[4:5], s[0:1], 0\ns_load_dwordx4 s[60:63], s[0:1], 64\ns_load_dwordx2 s[6:7], s[0:1], 80')
        I(f's_getreg_b32 s{sMARK}, hwreg(HW_REG_XCC_ID)\ns_and_b32 s{sMARK}, s{sMARK}, 15\ns_or_b32 s{sMARK}, s{sMARK}, 0x80')
        I(f'v_lshrrev_b32 v1, 6, v0\nv_and_b32 v0, 63, v0\nv_readfirstlane_b32 s{sW}, v1')
        if s.ts: I('v_mov_b32 v23, 0')
        s.stamp('start')
        if s.ts: I('s_memrealtime s[78:79]\ns_waitcnt lgkmcnt(0)\nv_writelane_b32 v23, s78, 60')
        I(f'v_lshlrev_b32 v{vL16}, 4, v0\nv_add_u32 v{vL16b}, 0x10000, v{vL16}')
        I(f'v_cmp_eq_u32 vcc, 0, v0\nv_mov_b32 v{vT0}, {hex(OOB)}\nv_cndmask_b32 v{vL0}, v{vT0}, v0, vcc')
        I(f's_mov_b32 s{sLIM}, 20000')
        I('s_waitcnt lgkmcnt(0)')
        srd(I, 20, 62, 256); srd(I, 8, 6, WS_SIZE); srd(I, 12, 4, 2048*1024); srd(I, 16, 60, 2048*1024)
        I(f's_load_dword s{sE}, s[6:7], 0')
        I(f's_lshr_b32 s{sRK}, s2, 3\ns_and_b32 s{sG}, s2, 7\ns_lshl_b32 s64, s{sG}, 5\ns_add_u32 s64, s64, s{sRK}')
        I(f'v_mov_b32 v{vT0}, s{sMARK}\nbuffer_store_byte v{vT0}, v{vL0}, {DS}, s64 offen')
        I(f'v_and_b32 v50, 15, v0\nv_lshrrev_b32 v51, 4, v0\nv_and_b32 v52, 31, v0\nv_lshrrev_b32 v53, 5, v0')
        I(f'v_lshlrev_b32 v{vFX}, 2, v50')
        I(f'v_bfe_u32 v54, v0, 2, 1\nv_and_b32 v55, 3, v0\nv_lshlrev_b32 v55, 2, v55\nv_lshl_or_b32 v{vFO}, v54, 7, v55')
        I(f'v_lshlrev_b32 v54, 6, v52\nv_lshl_or_b32 v{vSTL}, v53, 5, v54')
        I(f'v_lshlrev_b32 v54, 4, v50\nv_lshl_or_b32 v{vPUB}, v51, 9, v54')
        I(f's_lshl_b32 s64, s{sW}, 9\ns_add_u32 s64, s64, {hex(XA)}\ns_movk_i32 s65, {6*PS}')
        I(f'v_mul_lo_u32 v54, v53, s65\nv_lshl_add_u32 v54, v52, 4, v54\nv_add_u32 v{vPHW}, s64, v54')
        I(f's_movk_i32 s65, {PS}\nv_bfe_u32 v54, v0, 1, 1\nv_mul_lo_u32 v54, v54, s65\nv_and_b32 v55, 1, v0\nv_lshl_add_u32 v54, v55, 3, v54')
        I(f'v_lshrrev_b32 v55, 2, v50\nv_lshl_add_u32 v55, v51, 3, v55\nv_lshl_add_u32 v54, v55, 4, v54')
        I(f's_lshr_b32 s66, s{sW}, 1\ns_mul_i32 s66, s66, {6*PS}\ns_add_u32 s66, s66, {hex(XA)}\ns_and_b32 s67, s{sW}, 1\ns_mul_i32 s67, s67, {2*PS}\ns_add_u32 s67, s67, s66\ns_add_u32 s66, s66, {4*PS}')
        I(f'v_add_u32 v{vTRA}, s67, v54\nv_add_u32 v{vTRB}, s66, v54')
        I(f'v_lshlrev_b32 v54, 4, v50\nv_lshl_or_b32 v54, v53, 8, v54\nv_and_b32 v55, 1, v51\nv_lshl_or_b32 v54, v55, 3, v54')
        I(f's_lshl_b32 s64, s{sW}, 9\ns_add_u32 s64, s64, {hex(KVA)}\nv_add_u32 v{vKVW}, s64, v54')
        I(f's_lshl_b32 s64, s{sW}, 5\ns_add_u32 s64, s64, {hex(ZA)}\nv_lshlrev_b32 v54, 1, v50\nv_add_u32 v{vZW}, s64, v54')
        I(f'v_and_b32 v54, 3, v0\nv_bfe_u32 v55, v0, 2, 1\nv_lshl_or_b32 v54, v55, 3, v54\nv_bfe_u32 v55, v0, 3, 1\nv_lshl_or_b32 v54, v55, 2, v54')
        I(f'v_lshlrev_b32 v54, 4, v54\nv_lshl_or_b32 v54, v53, 10, v54\nv_add_u32 v54, {hex(KVA)}, v54')
        I(f'v_lshlrev_b32 v55, 6, v53\nv_add_u32 v55, {hex(ZA)}, v55\nv_bfe_u32 v56, v0, 4, 1\nv_cmp_eq_u32 vcc, v56, v53\nv_mov_b32 v57, {hex(ZERO)}')
        I(f'v_cndmask_b32 v{vKVR}, v57, v54, vcc\nv_cndmask_b32 v{vZR}, v57, v55, vcc')
        I(f'v_lshlrev_b32 v54, 4, v50\nv_lshl_or_b32 v54, v53, 8, v54\nv_lshl_or_b32 v54, v56, 13, v54\ns_lshl_b32 s64, s{sW}, 11\nv_add_u32 v{vREDW}, s64, v54')
        I(f'v_lshlrev_b32 v54, 10, v50\nv_lshl_or_b32 v{vNAT}, v51, 4, v54')
        I(f'v_lshlrev_b32 v54, 6, v50\nv_lshl_or_b32 v54, v53, 2, v54\nv_cmp_eq_u32 vcc, 0, v56\nv_mov_b32 v55, {hex(OOB)}\nv_cndmask_b32 v{vSTW}, v55, v54, vcc')
        I(f's_lshl_b32 s64, s{sW}, 7\ns_add_u32 s64, s64, {hex(RS)}\nv_lshlrev_b32 v54, 2, v52\nv_add_u32 v{vRSW}, s64, v54')
        I(f'v_mov_b32 v56, 0\nv_mov_b32 v57, 0\nv_mov_b32 v58, 0\nv_mov_b32 v59, 0\nv_add_u32 v54, {hex(ZERO)}, v{vL16}\nds_write_b128 v54, v[56:59]')
        I(f's_mov_b32 s{sSELLO}, 0x3f80\ns_mov_b32 s{sSELHI}, 0x3f800000\ns_mov_b32 s{sONES}, 0x3f803f80\ns_mov_b32 s{sLOG2E}, 0x3fb8aa3b')
        I(f's_lshl_b32 s{sM0}, s{sW}, 13')
        I(f's_mul_i32 s{sTAG}, s{sE}, 0x9E3779B1\ns_add_u32 s{sTAG}, s{sTAG}, 0x7F4A7C15')
        I(f's_lshr_b32 s64, s{sRK}, 4\ns_lshl_b32 s{sR}, s{sG}, 1\ns_add_u32 s{sR}, s{sR}, s64\ns_and_b32 s{sJ}, s{sRK}, 15\ns_lshr_b32 s{sHB}, s{sJ}, 3\ns_and_b32 s{sCG}, s{sJ}, 7')
        I(f's_mul_i32 s64, s{sJ}, {96*1024}\ns_add_u32 s64, s64, s{sM0}\ns_add_u32 s{sQKV}, s64, {hex(WQKV)}')
        I(f's_lshl_b32 s66, s{sR}, 2\ns_add_u32 s65, s66, s{sW}')
        I(f's_lshl_b32 s64, s65, 15\ns_add_u32 s{sXIN}, s64, {hex(XB[0])}')
        I(f's_lshl_b32 s64, s65, 11\ns_add_u32 s{sSTIN}, s64, {hex(ST)}')
    def init2(s):
        I = s.I
        I(f's_mul_i32 s64, s{sJ}, {224*1024}\ns_add_u32 s64, s64, s{sM0}\ns_add_u32 s{sGU}, s64, {hex(WGU)}')
        I(f's_lshl_b32 s64, s{sCG}, 16\ns_lshl_b32 s67, s{sW}, 14\ns_add_u32 s64, s64, s67\ns_add_u32 s{sWO}, s64, {hex(WO_P)}')
        I(f's_mul_i32 s64, s{sCG}, {224*1024}\ns_mul_i32 s67, s{sW}, {56*1024}\ns_add_u32 s64, s64, s67\ns_add_u32 s{sWD}, s64, {hex(WD_P)}')
        I(f's_lshl_b32 s67, s{sHB}, 1\ns_add_u32 s66, s66, s67')
        I(f's_lshr_b32 s67, s{sW}, 1\ns_add_u32 s67, s67, s66\ns_and_b32 s68, s{sW}, 1')
        I(f's_lshl_b32 s64, s66, 15\ns_add_u32 s64, s64, s{sM0}\ns_add_u32 s{sXO}, s64, {hex(XB[0])}')
        I(f's_lshl_b32 s64, s67, 15\ns_lshl_b32 s69, s{sCG}, 12\ns_add_u32 s64, s64, s69\ns_lshl_b32 s69, s68, 8\ns_add_u32 s64, s64, s69\ns_add_u32 s{sXPUB}, s64, {hex(XB[0])}')
        I(f's_lshl_b32 s64, s67, 11\ns_lshl_b32 s69, s68, 10\ns_add_u32 s64, s64, s69\ns_lshl_b32 s69, s{sCG}, 3\ns_add_u32 s64, s64, s69\ns_add_u32 s{sSTPUB}, s64, {hex(ST)}')
        I(f's_mul_i32 s64, s65, {112*1024}\ns_mul_i32 s69, s{sJ}, {7*1024}\ns_add_u32 s64, s64, s69\ns_add_u32 s{sHPUB}, s64, {hex(HB)}')
        I(f's_mul_i32 s64, s66, {112*1024}\ns_mul_i32 s69, s{sW}, {28*1024}\ns_add_u32 s64, s64, s69\ns_add_u32 s{sHIN}, s64, {hex(HB)}')
        I(f's_lshl_b32 s64, s65, 7\ns_add_u32 s{sFXC}, s64, {hex(FX)}')
        I(f's_lshl_b32 s69, s{sJ}, 2\ns_add_u32 s64, s64, s69\ns_add_u32 s{sFOP}, s64, {hex(FO)}')
        I(f's_lshl_b32 s64, s67, 7\ns_lshl_b32 s69, s{sCG}, 3\ns_add_u32 s64, s64, s69\ns_lshl_b32 s69, s68, 2\ns_add_u32 s64, s64, s69\ns_add_u32 s{sFXP}, s64, {hex(FX)}')
        I(f's_lshl_b32 s64, s66, 7\ns_lshl_b32 s69, s{sW}, 4\ns_add_u32 s64, s64, s69\ns_add_u32 s{sFOC}, s64, {hex(FO)}')
        I(f's_lshl_b32 s64, s{sJ}, 2\ns_add_u32 s64, s64, s{sW}\ns_lshl_b32 s64, s64, 14\ns_add_u32 s{sKVC}, s64, {hex(KVP)}')
        I(f's_lshl_b32 s64, s{sR}, 10\ns_add_u32 s{sKVP}, s64, s{sKVC}')
        I(f's_lshl_b32 s64, s{sR}, 17\ns_lshl_b32 s69, s{sHB}, 16\ns_add_u32 s64, s64, s69\ns_lshl_b32 s69, s{sW}, 14\ns_add_u32 s64, s64, s69\ns_lshl_b32 s69, s{sCG}, 7\ns_add_u32 s{sNAT}, s64, s69')
        I(f's_lshl_b32 s64, s{sHB}, 8\ns_lshl_b32 s69, s{sW}, 6\ns_add_u32 s64, s64, s69\ns_add_u32 s64, s64, {hex(RS)}\nv_add_u32 v{vRSR}, s64, v{vFX}')

    def xloads(s, buf):
        so = s.SO(s, sT0)
        d = buf*0x20000; n = s.P['xf']
        with s.k.cap() as f:
            for kc in range(32): s.ld(so, v(vXB + 4*kc, 4), vL16, sXIN, buf*0x200000 + kc*1024, 'sc1')
            s.ld(so, v(vTMP, 4), vSTL, sSTIN, d, 'sc1'); s.ld(so, v(vTMP+4, 4), vSTL, sSTIN, d + 16, 'sc1')
        s.k.put(f[:n])
        return (f[n:], 0, 2*(34 - n) - 1)
    def stats(s):
        I = s.I; t = vTMP
        I(f'v_add_f32 v{t}, v{t}, v{t+2}\nv_add_f32 v{t+1}, v{t+1}, v{t+3}\nv_add_f32 v{t+4}, v{t+4}, v{t+6}\nv_add_f32 v{t+5}, v{t+5}, v{t+7}')
        I(f'v_add_f32 v{t}, v{t}, v{t+4}\nv_add_f32 v{t+1}, v{t+1}, v{t+5}')
        I(f'v_permlane32_swap_b32 v{t}, v{t+1}')
        I(f'v_add_f32 v{t}, v{t}, v{t+1}')
        I(f'v_mul_f32 v{t}, 0x3b000000, v{t}')
        I(f'v_mov_b32 v{t+1}, v{t}')
        I(f'v_permlane32_swap_b32 v{t}, v{t+1}')
        I(f'v_fma_f32 v{t+1}, -v{t}, v{t}, v{t+1}')
        I(f'v_max_f32 v{t+1}, 0, v{t+1}')
        I(f'v_add_f32 v{t+1}, 0x3727c5ac, v{t+1}')
    def phi(s, p, tA, tB, out, emit=None):
        I = s.I; mx, mn = vT0, vT2
        I(f'v_max3_f32 v{mx}, v{p}, v{p+1}, v{p+2}\nv_min3_f32 v{mn}, v{p}, v{p+1}, v{p+2}')
        for r in range(3, 15, 2): I(f'v_max3_f32 v{mx}, v{mx}, v{p+r}, v{p+r+1}\nv_min3_f32 v{mn}, v{mn}, v{p+r}, v{p+r+1}')
        I(f'v_max_f32 v{mx}, v{mx}, v{p+15}\nv_min_f32 v{mn}, v{mn}, v{p+15}')
        I(f'v_mul_f32 v{mx}, v{mx}, v{vC}\nv_mul_f32 v{mn}, v{mn}, v{vC}')
        for sg, t, m in ((0, tA, mx), (1, tB, mn)):
            for r in range(0, 16, 2):
                if sg == 0: I(f'v_pk_fma_f32 {v(t+r,2)}, {v(p+r,2)}, {v(vC-1,2)}, {v(m,2)} op_sel:[0,1,0] op_sel_hi:[1,1,0] neg_lo:[0,0,1] neg_hi:[0,0,1]')
                else: I(f'v_pk_fma_f32 {v(t+r,2)}, {v(p+r,2)}, {v(vC-1,2)}, {v(m,2)} op_sel:[0,1,0] op_sel_hi:[1,1,0] neg_lo:[1,0,0] neg_hi:[1,0,0]')
            for r in range(16): I(f'v_exp_f32 v{t+r}, v{t+r}')
            I(f'v_pk_add_f32 {v(vT4,2)}, {v(t,2)}, {v(t+2,2)}')
            for r in range(4, 16, 2): I(f'v_pk_add_f32 {v(vT4,2)}, {v(vT4,2)}, {v(t+r,2)}')
            I(f'v_add_f32 v{vT4}, v{vT4}, v{vT5}\nv_rcp_f32 v{vT4}, v{vT4}')
            for r in range(0, 16, 2): I(f'v_pk_mul_f32 {v(t+r,2)}, {v(t+r,2)}, {v(vT4,2)} op_sel_hi:[1,0]')
            for r in range(8):
                I(f'v_cvt_pk_bf16_f32 v{out+8*sg+r}, v{t+2*r}, v{t+2*r+1}')
                if emit and r % 4 == 3: emit(2*sg + r//4)

    def qkv(s, L):
        I = s.I; k = s.k
        b = 2*L; SK, SV, SQ, SF = b % 4, (b+1) % 4, (b+2) % 4, (b+3) % 4
        bA, bB = L, 1 - L
        aK, aV, aQ = vACC, vACC+16, vACC+32
        fill = []
        if L == 0:
            s.dma_tile(sT0+1, sQKV, 0, SK); tv = s.dma_tile(sT0+1, sQKV, 0x8000, SV)
            fill.append(s.xloads(bA))
            s.init2()
            k.wait(tv); I('s_barrier')
            s.bg_tile('Q', sQKV, 0x10000, SQ)
            with k.cap() as f1:
                so = s.SO(s, sT0+2)
                s.ld(so, v(vTMP+8, 4), vNAT, sNAT, 0, srdn=XS); s.ld(so, v(vTMP+12, 4), vNAT, sNAT, 64, srdn=XS)
            fill.append((f1 + s.take(4), 52, 63))
            with k.cap() as s.bw:
                so = s.SO(s, sT0+7)
                for i in range(56): s.ld(so, a_(4*i, 4), vL16, sWD, i*1024)
        else:
            s.poll(vFX, sFXC, 0, 2*L)
            s.stamp('x_ok')
            fill.append(s.xloads(bA))
        s.bg_tile(0, sGU, 0, SF)
        steps = []
        for kc in range(32): steps += [(SV, kc, aV, kc == 0), (SK, kc, aK, kc == 0)]
        base, _ = s.gemm(steps)
        k.weave(base, *fill)
        s.stamp('kv_gemm')
        with k.cap() as f:
            s.stats()
            I(f'v_rsq_f32 v{vRSTD}, v{vTMP+1}')
            I(f'v_mul_f32 v{vC}, s{sLOG2E}, v{vRSTD}')
            if L == 0:
                for i in range(8):
                    I(f'v_lshlrev_b32 v{vRES+2*i}, 16, v{vTMP+8+i}\nv_and_b32 v{vRES+2*i+1}, 0xffff0000, v{vTMP+8+i}')
            for r in range(0, 16, 2): I(f'v_pk_mul_f32 {v(aV+r,2)}, {v(aV+r,2)}, {v(vRSTD,2)} op_sel_hi:[1,0]')
            for r in range(8): I(f'v_cvt_pk_bf16_f32 v{aV+r}, v{aV+2*r}, v{aV+2*r+1}')
            I(f'ds_write_b128 v{vPHW}, {v(aV,4)} offset:{4*PS}\nds_write_b128 v{vPHW}, {v(aV+4,4)} offset:{5*PS}')
            tw = []
            s.phi(aK, vACC+32, vACC+48, vTMP, emit=lambda n: tw.append(I(f'ds_write_b128 v{vPHW}, {v(vTMP+4*n,4)} offset:{n*PS}')))
            for r in range(4): I(f'v_mov_b32 v{72+r}, s{sONES}')
        if L == 0: k.sprinkle(f, s.take(4), 0, 10)
        else: k.sprinkle(f, s.take(7), 2, 22)
        k.wait(tw[-1], s.tok['Q']); I('s_barrier')
        s.stamp('phik')
        for u in range(4):
            for p in range(2):
                I(f'ds_read_b64_tr_b16 {v(96+4*u+2*p,2)}, v{vTRA} offset:{u*512+p*64}')
            for p in range(2):
                I(f'ds_read_b64_tr_b16 {v(112+4*u+2*p,2)}, v{vTRB} offset:{u*512+p*64}')
        for u in range(4):
            I(f'v_mfma_f32_16x16x32_bf16 v[64:67], {v(96+4*u,4)}, {v(112+4*u,4)}, {"0" if u == 0 else "v[64:67]"}')
            I(f'v_mfma_f32_16x16x32_bf16 v[68:71], v[72:75], {v(96+4*u,4)}, {"0" if u == 0 else "v[68:71]"}')
        I(f'v_mov_b32 v79, s{sTAG}')
        I('v_cvt_pk_bf16_f32 v76, v64, v65\nv_cvt_pk_bf16_f32 v77, v66, v67\nv_mov_b32 v78, v68')
        so = s.SO(s, sT0)
        s.ld(so, 'v[76:79]', vL16, sKVP, L*0x100000, 'sc1', op='buffer_store_dwordx4')
        s.stamp('kvpub')
        if s.stop == f'kv{L}': return True
        if L == 0: I(f'v_and_b32 v22, 28, v{vFX}\ns_lshl_b32 s{sT0+3}, s{sG}, 5\nbuffer_load_dword v22, v22, {DS}, s{sT0+3} offen sc1')
        s.bg_tile(1, sGU, 0x8000, SK); s.bg_tile(2, sGU, 0x10000, SV)
        with k.cap() as f2:
            so = s.SO(s, sT0+2)
            for i in range(16): s.ld(so, v(vXB + 4*i, 4), vL16, sWO, i*1024)
        base, _ = s.gemm([(SQ, kc, aQ, kc == 0) for kc in range(32)])
        k.weave(base, (f2, 0, 31))
        with k.cap() as f: s.phi(aQ, vACC, vACC+16, vTMP)
        k.sprinkle(f, s.take(6), 2, 22)
        if L == 0:
            I(f's_mul_i32 s{sT0+3}, s{sMARK}, 0x01010101\nv_cmp_ne_u32 vcc, s{sT0+3}, v22\ns_or_b32 s{sSLOW}, vcc_lo, vcc_hi')
        s.stamp('phiq')
        kb = vXB + 64
        Lb = s.label('KV'); D = s.label('KVD')
        I(f's_mov_b32 s{sT0+9}, 0')
        I(f'{Lb}:')
        so = s.SO(s, sT0)
        for r in range(16): s.ld(so, v(kb + 4*r, 4), vL16, sKVC, L*0x100000 + r*1024, 'sc1')
        I(f'v_xor_b32 v{vT0}, s{sTAG}, v{kb+3}')
        for r in range(1, 16):
            I(f'v_xor_b32 v{vT1}, s{sTAG}, v{kb+4*r+3}\nv_or_b32 v{vT0}, v{vT0}, v{vT1}')
        I(f'v_cmp_ne_u32 vcc, 0, v{vT0}')
        I(f's_cbranch_vccz {D}')
        with k.cond():
            I(f's_add_u32 s{sT0+9}, s{sT0+9}, 1\ns_cmp_lt_u32 s{sT0+9}, s{sLIM}\ns_cbranch_scc1 {Lb}\ns_mov_b32 s{sLIM}, 1')
        I(f'{D}:')
        s.stamp('kv_ok')
        k.put(s.take(4 if L else 6))
        for r in range(16):
            for e in range(4):
                I(f'v_dot2_f32_bf16 v{64+e}, v{kb+4*r+e//2}, s{sSELHI if e & 1 else sSELLO}, {"0" if r == 0 else v(64+e)}')
            if r == 1: I(f'v_add_f32 v68, v{kb+2}, v{kb+6}')
            if r > 1: I(f'v_add_f32 v68, v68, v{kb+4*r+2}')
        I('v_cvt_pk_bf16_f32 v70, v64, v65\nv_cvt_pk_bf16_f32 v71, v66, v67\nv_cvt_pk_bf16_f32 v68, v68, v68')
        I(f'ds_write_b64 v{vKVW}, v[70:71]')
        t = I(f'ds_write_b16 v{vZW}, v68')
        k.wait(t); I('s_barrier')
        for n in range(4):
            I(f'ds_read_b128 {a_(aRING+8*n,4)}, v{vZR} offset:{n*16}\nds_read_b128 {a_(aRING+8*n+4,4)}, v{vKVR} offset:{n*256}')
        for n in range(4):
            I(f'v_mfma_f32_32x32x16_bf16 v[80:95], {a_(aRING+8*n,4)}, {v(vTMP+4*n,4)}, {"0" if n == 0 else "v[80:95]"}')
        for n in range(4):
            I(f'v_mfma_f32_32x32x16_bf16 v[64:79], {a_(aRING+8*n+4,4)}, {v(vTMP+4*n,4)}, {"0" if n == 0 else "v[64:79]"}')
        I('v_add_f32 v80, 0x358637bd, v80\nv_add_f32 v88, 0x358637bd, v88\nv_rcp_f32 v80, v80\nv_rcp_f32 v88, v88')
        so = s.SO(s, sT0)
        I(f's_lshl_b32 s{sT0+3}, s{sJ}, 11\ns_add_u32 s{sT0+3}, s{sT0+3}, s{sXIN}')
        for c in range(2):
            for r in range(0, 8, 2): I(f'v_pk_mul_f32 {v(64+8*c+r,2)}, {v(64+8*c+r,2)}, {v(80+8*c,2)} op_sel_hi:[1,0]')
            for r in range(4): I(f'v_cvt_pk_bf16_f32 v{96+4*c+r}, v{64+8*c+2*r}, v{64+8*c+2*r+1}')
            t = s.pub(s.ld(so, v(96+4*c, 4), vL16, sT0+3, bB*0x200000 + c*1024, op='buffer_store_dwordx4'))
        k.wait(t)
        s.flag(sFOP, 0, L + 1)
        s.stamp('opub')
        k.put(s.take(7 if L else 8))
        return s.stop == f'o{L}'

    def red_write(s, slot, rt2, ct):
        I = s.I; a = vACC + 32*rt2 + 16*ct; t = None
        for h in range(2):
            for r in range(4): I(f'v_cvt_pk_bf16_f32 v{a+8*h+r}, v{a+8*h+2*r}, v{a+8*h+2*r+1}')
            t = I(f'ds_write_b128 v{vT1}, {v(a+8*h,4)} offset:{rt2*16384 + (2*ct+h)*512}')
        return t
    def red_finish(s, slot, scale, L, buf, p, final, pre, after=None):
        I = s.I; k = s.k; rb = vXB + 64
        I(f's_add_u32 s{sT0+3}, s{sM0}, {hex(slot*0x8000)}\nv_add_u32 v{vT0}, s{sT0+3}, v{vL16}')
        k.wait(*pre); I('s_barrier')
        if scale: I(f'ds_read_b32 v{vT2}, v{vRSR}')
        t = None
        for c in range(2):
            for src in range(4): t = I(f'ds_read_b128 {v(rb+16*c+4*src,4)}, v{vT0} offset:{src*2048 + c*1024}')
        so = s.SO(s, sT0)
        for c in range(2):
            for src in range(4):
                for e in range(8):
                    d = (vACC if scale else vRES) + 8*c + e
                    I(f'v_dot2_f32_bf16 v{d}, v{rb+16*c+4*src+e//2}, s{sSELHI if e & 1 else sSELLO}, {"0" if scale and src == 0 else v(d)}')
            if scale:
                for e in range(0, 8, 2): I(f'v_pk_fma_f32 {v(vRES+8*c+e,2)}, {v(vACC+8*c+e,2)}, {v(vT2,2)}, {v(vRES+8*c+e,2)} op_sel_hi:[1,0,1]')
            for r in range(4): I(f'v_cvt_pk_bf16_f32 v{vTMP+4*c+r}, v{vRES+8*c+2*r}, v{vRES+8*c+2*r+1}')
            if final: s.ld(so, v(vTMP+4*c, 4), vNAT, sNAT, 64*c, op='buffer_store_dwordx4', srdn=OS)
            else: s.pub(s.ld(so, v(vTMP+4*c, 4), vPUB, sXPUB, buf*0x200000 + 2048*c, op='buffer_store_dwordx4'))
        if final: return
        for r in range(8):
            I(f'v_dot2_f32_bf16 v{vT2}, v{vTMP+r}, s{sONES}, {"0" if r == 0 else v(vT2)}')
            I(f'v_dot2_f32_bf16 v{vT3}, v{vTMP+r}, v{vTMP+r}, {"0" if r == 0 else v(vT3)}')
        I(f'v_permlane32_swap_b32 v{vT2}, v{vT3}\nv_add_f32 v{vT2}, v{vT2}, v{vT3}\nv_mov_b32 v{vT3}, v{vT2}')
        I(f'v_permlane16_swap_b32 v{vT2}, v{vT3}\nv_add_f32 v{vT2}, v{vT2}, v{vT3}')
        t2 = s.pub(s.ld(so, v(vT2), vSTW, sSTPUB, buf*0x20000, op='buffer_store_dword'))
        k.wait(t2)
        s.flag(sFXP, 0, p)
        if after: after()

    def wo(s, L):
        I = s.I; k = s.k
        b = 2*L; SQ = (b+2) % 4; bA, bB = L, 1 - L
        I(f'v_add_u32 v{vT1}, {hex(SQ*0x8000)}, v{vREDW}')
        s.poll(vFO, sFOC, 0, L + 1)
        s.stamp('o_ok')
        so = s.SO(s, sT0); ob = vXB + 64
        with k.cap() as fl:
            for rt2 in range(2):
                for kk in range(8): s.ld(so, v(ob + 32*rt2 + 4*kk, 4), vL16, sXO, bB*0x200000 + rt2*0x8000 + kk*1024, 'sc1')
        k.put(fl[:8])
        with k.cap() as base:
            for rt2 in range(2):
                for kk in range(8):
                    for ct in range(2):
                        a = vACC + 32*rt2 + 16*ct
                        I(f'v_mfma_f32_32x32x16_bf16 {v(a,16)}, {v(vXB+8*kk+4*ct,4)}, {v(ob+32*rt2+4*kk,4)}, {"0" if kk == 0 else v(a,16)}')
        with k.cap() as f1:
            s.red_write(SQ, 0, 0); s.red_write(SQ, 0, 1)
        k.weave(base, (fl[8:], 0, 15), (s.take(4), 18, 31), (f1, 19, 30))
        s.red_write(SQ, 1, 0); t = s.red_write(SQ, 1, 1)
        s.stamp('wo_gemm')
        def after():
            s.bg_tile(3, sGU, 3*0x8000, SQ)
            k.put(s.take(6))
        s.red_finish(SQ, False, L, bA, 2*L + 1, False, [t, s.tok[0], s.tok[1]], after)
        s.stamp('x1pub')
        return s.stop == f'x{2*L+1}'

    def gu_epi(s, L, t):
        I = s.I; a = vACC + 16*(t % 4)
        for r in range(8): I(f'v_max_f32 v{a+r}, 0, v{a+r}')
        for r in range(8): I(f'v_mul_f32 v{a+r}, v{a+r}, v{a+8+r}')
        for r in range(4): I(f'v_cvt_pk_bf16_f32 v{a+8+r}, v{a+2*r}, v{a+2*r+1}')
        return s.pub(s.ld(s.soH, v(a+8, 4), vL16, sHPUB, t*1024, op='buffer_store_dwordx4'))
    def gu(s, L):
        I = s.I; k = s.k
        b = 2*L; slot = lambda t: (b + 3 + t) % 4
        bA = L
        s.poll(vFX, sFXC, 0, 2*L + 1)
        s.stamp('x1_ok')
        fill = [s.xloads(bA)]
        fill.append((s.take(8), 54, 60))
        with k.cap() as f:
            s.stats()
            I(f'v_rcp_f32 v{vRSTD}, v{vTMP+1}')
            s.tRS = I(f'ds_write_b32 v{vRSW}, v{vRSTD}')
        fill.append((f, 110, 122))
        steps = []
        for kc in range(32): steps += [(slot(0), kc, vACC, kc == 0), (slot(1), kc, vACC+16, kc == 0)]
        for t in range(2, 7): steps += [(slot(t), kc, vACC + 16*(t % 4), kc == 0) for kc in range(32)]
        s.soH = s.SO(s, sT0+4)
        th = {}
        for t in range(2, 7):
            g0 = 32*t
            with k.cap() as f:
                if t == 2: s.gu_epi(L, 0)
                th[t-1] = s.gu_epi(L, t-1)
            fill.append((f, g0 + (1 if t == 2 else 4), g0 + (22 if t == 2 else 14)))
        for t in range(4, 7): s.bg_tile(t, sGU, t*0x8000, slot(t))
        if L == 0:
            s.bg_tile('K', sQKV, 0, slot(3)); s.bg_tile('V', sQKV, 0x8000, slot(4)); s.bg_tile('Q', sQKV, 0x10000, slot(5))
            fill.append((s.take(40), 61, 220))
            fill.append((s.takew(56), 62, 223))
        else:
            fill.append((s.take(24), 61, 156))
        fences = {}
        for t in range(2, 7): fences[32*t - 4] = (32*t, [s.tok[t]])
        base, last = s.gemm(steps, fences)
        with k.cap() as f:
            with k.group():
                k.wait(th[5])
                I(f's_add_u32 s{sT0+5}, s{sFOP}, {hex(FH - FO)}')
                s.flag(sT0+5, 0, 7*L + 6)
        fill.append((f, 32*6 + 27, 32*6 + 27))
        k.weave(base, *fill)
        k.wait(last); I('s_barrier')
        s.gu_epi(L, 6)
        s.stamp('gu')
        return s.stop == f'h{L}'

    def down(s, L):
        I = s.I; k = s.k
        b = 2*L; SR = (b + 3 + 6) % 4; bB = 1 - L
        I(f'v_add_u32 v{vT1}, {hex(SR*0x8000)}, v{vREDW}')
        I(f's_add_u32 s{sT0+6}, s{sFOC}, {hex(FH - FO)}')
        s.poll(vFO, sT0+6, 0, 7*L + 6)
        s.flag(sT0+5, 0, 7*L + 7)
        s.stamp('h_ok')
        order = [(t, jj, rt2) for t in range(7) for jj in range(4) for rt2 in range(2)]
        so = [s.SO(s, sT0), s.SO(s, sT0+2)]
        def hld(i):
            t, jj, rt2 = order[i]
            s.ld(so[rt2], v(vXB + 4*(i % 32), 4), vL16, sHIN, rt2*112*1024 + (7*jj + t)*1024, 'sc1')
        n = s.P['hf']
        for i in range(n): hld(i)
        for i, (t, jj, rt2) in enumerate(order):
            for ct in range(2):
                a = vACC + 32*rt2 + 16*ct
                I(f'v_mfma_f32_32x32x16_bf16 {v(a,16)}, {a_(8*(7*jj+t)+4*ct,4)}, {v(vXB+4*(i%32),4)}, {"0" if i < 2 else v(a,16)}')
            if i + n == 36: I(f'buffer_load_dword v{vT0}, v{vFO}, {WS}, s{sT0+6} offen sc1')
            if i + n == 48:
                D = s.label('H7')
                s.check(vT0, 7*L + 7)
                I(f's_cbranch_vccz {D}')
                with k.cond(): s.poll(vFO, sT0+6, 0, 7*L + 7)
                I(f'{D}:')
            if i + n < 56: hld(i + n)
            elif i % 3 == 0 and i < 55: k.put(s.take(1))
        for rt2 in range(2):
            for ct in range(2): t = s.red_write(SR, rt2, ct)
        s.stamp('dn_gemm')
        def after():
            k.put(s.take(8))
        s.red_finish(SR, True, L, bB, 2*L + 2, L == 1, [t, s.tok['V'], s.tRS], after)
        s.stamp('x2pub')
        return s.stop == f'x{2*L+2}'

    def gen(s):
        I = s.I
        s.init()
        for L in range(2):
            if s.qkv(L) or s.wo(L) or s.gu(L) or s.down(L): break
        I(f's_or_b32 s64, s{sR}, s{sJ}\ns_or_b32 s64, s64, s{sW}\ns_cmp_lg_u32 s64, 0\ns_cbranch_scc1 M_FIN')
        with s.k.cond():
            I(f's_add_u32 s64, s{sE}, 1\nv_mov_b32 v{vT5}, s64\nbuffer_store_dword v{vT5}, v{vL0}, {WS}, 0 offen')
        I('M_FIN:')
        if s.ts:
            s.stamp('end')
            I('s_memrealtime s[78:79]\ns_waitcnt lgkmcnt(0)\nv_writelane_b32 v23, s78, 61')
            I(f'v_writelane_b32 v23, s{sLIM}, 62\nv_writelane_b32 v23, s{sSLOW}, 63')
            I(f's_lshl_b32 s64, s{sR}, 4\ns_add_u32 s64, s64, s{sJ}\ns_lshl_b32 s64, s64, 2\ns_add_u32 s64, s64, s{sW}\ns_lshl_b32 s64, s64, 8\ns_add_u32 s64, s64, {hex(TS)}')
            I(f'v_lshlrev_b32 v{vT0}, 2, v0\nbuffer_store_dword v23, v{vT0}, {WS}, s64 offen')
        I('s_waitcnt vmcnt(0)\nM_END:\ns_endpgm')
        return s.k

HEADER = open('cdna_kernels/' + NAME + '.s.ref').read().split('; Override')[0] if __name__ == '__main__' else ''

def build(stop=None, ts=False, header='', **kw):
    st1 = {}; st2 = {}
    m = Main(stop, ts, **kw)
    prep = gen_prep(ts).finish(st1); main = m.gen().finish(st2)
    txt = header
    txt += f'; @launch kernel=prep_kernel grid=(256,1,1) block=(256,1,1) lds=1024\n'
    txt += f'; @launch kernel={NAME}_kernel grid=(256,1,1) block=(256,1,1) lds={LDS_MAIN}\n'
    txt += '.amdgcn_target "amdgcn-amd-amdhsa--gfx950"\n.text\n'
    txt += head('prep_kernel') + prep + '\n' + head(NAME + '_kernel') + main + '\n'
    txt += kd('prep_kernel', 192, 192) + kd(NAME + '_kernel', 512, 256)
    return txt, (st1, st2, m.tsnames)

if __name__ == '__main__':
    txt, st = build(header=HEADER)
    out = sys.argv[1] if len(sys.argv) > 1 else 'cdna_kernels/' + NAME + '.s'
    open(out, 'w').write(txt); print(st, len(txt))
```

```python
import sys
from asm import Asm
NAME = 'interleave_layers__linear_kernel_hedgehog__glu_gated_reglu__prompt'

FX, FO, FH, FU, S0 = 0x2000, 0x4000, 0x6000, 0x8000, 0x10000
ST = 0x40000
XB = (0x200000, 0x400000)
KVP = 0x600000
HB = 0x800000
WQKV, WO_P, WD_P, WGU = 0x1000000, 0x1180000, 0x1200000, 0x1400000
TS = 0x2000000
WS_SIZE = 0x10000000
OOB = 0x7ffffff0
XA = 0x20000; PS = 2112
KVA = 0x26400; ZA = 0x26C00; ZERO = 0x26D00; RS = 0x27100
SUMS = (0x27400, 0x27600, 0x27C00, 0x27E00); WPH = 0x27800
LDS_MAIN = 163840

def v(a, n=1): return f'v{a}' if n == 1 else f'v[{a}:{a+n-1}]'
def a_(a, n=1): return f'a{a}' if n == 1 else f'a[{a}:{a+n-1}]'
def s_(a, n=1): return f's{a}' if n == 1 else f's[{a}:{a+n-1}]'

def kd(name, vgpr, acc, sgpr=102):
    return f'''.section .rodata,"a"
.p2align 6
.amdhsa_kernel {name}
  .amdhsa_next_free_vgpr {vgpr}
  .amdhsa_next_free_sgpr {sgpr}
  .amdhsa_accum_offset {acc}
  .amdhsa_group_segment_fixed_size 0
  .amdhsa_kernarg_size 88
  .amdhsa_user_sgpr_count 2
  .amdhsa_user_sgpr_kernarg_segment_ptr 1
  .amdhsa_system_sgpr_workgroup_id_x 1
.end_amdhsa_kernel
.text
'''
def head(name):
    return f'.globl {name}\n.p2align 8\n.type {name},@function\n{name}:\n'

def srd(I, d, b, size):
    I(f's_mov_b32 s{d}, s{b}\ns_mov_b32 s{d+1}, s{b+1}\ns_mov_b32 s{d+2}, {hex(size)}\ns_mov_b32 s{d+3}, 0x20000')

WS, XS, OS, DS = 's[8:11]', 's[12:15]', 's[16:19]', 's[20:23]'
sW, sG, sRK, sR, sJ, sHB, sCG, sTAG, sE, sLIM = 24, 25, 26, 27, 28, 29, 30, 31, 32, 33
sQKV, sGU, sWO, sWD = 34, 35, 36, 37
sXIN, sXO, sXPUB, sSTIN, sSTPUB = 38, 39, 40, 41, 42
sHPUB, sHIN, sFXC, sFXP, sFOC, sFOP, sKVP, sKVC, sNAT, sM0 = 43, 44, 45, 46, 47, 48, 49, 50, 51, 52
sSELLO, sSELHI, sONES, sLOG2E, sTSB, sSLOW, sMARK = 53, 54, 55, 56, 57, 58, 59
sT0 = 60
QS, US, PS_ = 's[80:83]', 's[84:87]', 's[88:91]'
sPO, sWM, sXB, sXM, sUB, sUST, sUD = 92, 96, 97, 98, 99, 100, 101
sUKC, sCEN, sUMD, sFUP, sULIM = 72, 73, 74, 75, 76
vW0, vX0, vU0, vWR, vXR, vSW, vSR, vWW, vUD = 32, 34, 36, 38, 40, 44, 45, 46, 47
vFU, vMK = 20, 22
vL, vL16, vL16b, vFX, vFO, vL0, vSTL, vPUB, vPHW, vTRA, vTRB, vKVW, vZW, vKVR, vZR, vREDW, vNAT, vSTW, vRSW, vRSR = range(20)
vRSTD, vC, vT0, vT1, vT2, vT3, vT4, vT5 = range(24, 32)
vRES = 32; vTMP = 48; vACC = 64; vXB = 128; aRING = 224

P0 = dict(xf=8, hf=10, uf='nt', xnt='nt', xa=1, xb=3, xc=3, xd=0, qn=0, q0=60, qe=30, fg=31, k0=(0, 0), k1=(26, 30), w0=10, we=8,
          xg=(0, 3, 4, 7, 10, 11, 14, 17, 18, 21, 24, 25, 28, 31, 32, 34, 36, 40, 44, 48, 50, 54, 60),
          t1=(0, 4), t2=(0, 7), t3=(6, 4), t4=(10, 6), late=(1, 0))
class Main:
    def __init__(s, stop=None, ts=False, **kw):
        s.k = Asm(); s.I = s.k.I; s.stop = stop; s.ts = ts; s.nl = 0; s.nts = 0; s.tsnames = []; s.bg = []; s.bw = []; s.tok = {}; s.P = dict(P0); s.P.update(kw)
    def label(s, p):
        s.nl += 1; return f'{p}_{s.nl}'
    def stamp(s, name):
        if not s.ts: return
        r = 80 + 2*(s.nts % 10)
        s.tsnames.append(name)
        with s.k.group():
            s.I(f's_memtime s[78:79]\ns_waitcnt lgkmcnt(0)\nv_writelane_b32 v23, s78, {s.nts}')
        s.nts += 1
    class SO:
        def __init__(o, m, tmp): o.m = m; o.tmp = tmp; o.key = None
        def get(o, base, off):
            hi = off & ~4095; lo = off & 4095
            if hi == 0: return f's{base}', lo
            if o.key != (base, hi):
                o.m.I(f's_add_u32 s{o.tmp}, s{base}, {hex(hi)}'); o.key = (base, hi)
            return f's{o.tmp}', lo
    def ld(s, so, dst, voff, base, off, mod='', op='buffer_load_dwordx4', srdn=WS):
        with s.k.group():
            r, lo = so.get(base, off)
            t = s.I(f'{op} {dst}, v{voff}, {srdn}, {r} offen' + (f' offset:{lo}' if lo else '') + (' ' + mod if mod else ''))
        return t
    def pub(s, t):
        t.alt = (f's{sSLOW}', t.text + ' sc1'); return t
    def dma_tile(s, so, base, off, slot):
        t = None
        for h in range(2):
            for i in range(4):
                with s.k.group():
                    if i == 0:
                        s.I(f's_add_u32 m0, s{sM0}, {hex(slot*0x8000 + h*4096)}')
                        s.I(f's_add_u32 s{so}, s{base}, {hex(off + h*4096)}')
                    t = s.I(f'buffer_load_dwordx4 v{vL16}, {WS}, s{so} offen' + (f' offset:{i*1024}' if i else '') + ' sc1 lds')
        return t
    def bg_tile(s, key, base, off, slot):
        with s.k.cap() as f: s.tok[key] = s.dma_tile(sT0+1, base, off, slot)
        s.bg += f
    def take(s, n):
        r = s.bg[:n]; s.bg = s.bg[n:]; return r
    def takew(s, n):
        r = s.bw[:n]; s.bw = s.bw[n:]; return r
    def check(s, vt, p):
        s.I(f's_add_u32 s{sT0+8}, s{sTAG}, {p}\nv_subrev_u32 v{vt}, s{sT0+8}, v{vt}\nv_cmp_lt_u32 vcc, 15, v{vt}')
    def poll(s, voff, sbase, off, p, vt=vT0):
        I = s.I; L = s.label('POLL'); D = s.label('PD')
        I(f's_mov_b32 s{sT0+9}, 0')
        I(f'{L}:')
        I(f'buffer_load_dword v{vt}, v{voff}, {WS}, s{sbase} offen' + (f' offset:{off}' if off else '') + ' sc1')
        I('s_waitcnt vmcnt(0)')
        s.check(vt, p)
        I(f's_cbranch_vccz {D}')
        with s.k.cond():
            I(f's_add_u32 s{sT0+9}, s{sT0+9}, 1\ns_cmp_lt_u32 s{sT0+9}, s{sLIM}\ns_cbranch_scc1 {L}\ns_mov_b32 s{sLIM}, 1')
        I(f'{D}:')
    def flag(s, sbase, off, p):
        with s.k.group():
            s.I(f's_add_u32 s{sT0+10}, s{sTAG}, {p}\nv_mov_b32 v{vT5}, s{sT0+10}')
            s.pub(s.I(f'buffer_store_dword v{vT5}, v{vL0}, {WS}, s{sbase} offen' + (f' offset:{off}' if off else '')))
    def ldsA(s, slot, kc):
        a = slot*0x8000 + kc*1024
        return (vL16, a) if a < 0x10000 else (vL16b, a - 0x10000)
    def gemm(s, steps, fences={}, LA=6):
        I = s.I; n = len(steps); nr = 0; last = None
        blocked = sorted((f[0], g) for g, f in fences.items())
        def limit(i):
            for st, g in blocked:
                if g > i: return st
            return n
        def rd():
            nonlocal nr, last
            vr, off = s.ldsA(steps[nr][0], steps[nr][1])
            last = I(f'ds_read_b128 {a_(aRING + 4*(nr % 8), 4)}, v{vr} offset:{off}'); nr += 1
        with s.k.cap() as base:
            while nr < min(LA, limit(-1)): rd()
            for i, (slot, kc, acc, first) in enumerate(steps):
                assert nr > i
                I(f'v_mfma_f32_32x32x16_bf16 {v(acc,16)}, {a_(aRING + 4*(i % 8), 4)}, {v(vXB+4*kc,4)}, {"0" if first else v(acc,16)}')
                if i in fences:
                    assert nr == fences[i][0], (nr, i, fences[i])
                    s.k.wait(last, *fences[i][1]); I('s_barrier')
                c = 0
                while nr < min(i + 1 + LA, limit(i), n) and c < 2: rd(); c += 1
        return base, last

    def init0(s):
        I = s.I; k = s.k
        I('s_cmp_ge_u32 s2, 256\ns_cbranch_scc1 M_END')
        I('s_load_dwordx2 s[80:81], s[0:1], 8\ns_load_dwordx2 s[88:89], s[0:1], 16\ns_load_dwordx2 s[12:13], s[0:1], 0')
        I('s_load_dwordx2 s[8:9], s[0:1], 80\ns_load_dwordx2 s[16:17], s[0:1], 64\ns_load_dwordx2 s[20:21], s[0:1], 72')
        I('s_load_dwordx2 s[36:37], s[0:1], 24\ns_load_dwordx2 s[38:39], s[0:1], 40\ns_load_dwordx4 s[40:43], s[0:1], 48')
        if s.ts:
            I('s_memtime s[78:79]\ns_memrealtime s[4:5]'); s.tsnames.append('start'); s.nts = 1
        I(f'v_lshrrev_b32 v1, 6, v0\nv_and_b32 v0, 63, v0\nv_readfirstlane_b32 s{sW}, v1')
        for d, size in ((8, WS_SIZE), (12, 2048*1024), (16, 2048*1024), (20, 256), (80, 512*3072), (88, 32*512)):
            I(f's_mov_b32 s{d+2}, {hex(size)}\ns_mov_b32 s{d+3}, 0x20000')
        I(f's_lshr_b32 s{sRK}, s2, 3\ns_and_b32 s{sG}, s2, 7\ns_lshr_b32 s64, s{sRK}, 4\ns_lshl_b32 s{sR}, s{sG}, 1\ns_add_u32 s{sR}, s{sR}, s64')
        I(f's_and_b32 s{sJ}, s{sRK}, 15\ns_lshr_b32 s{sHB}, s{sJ}, 3\ns_and_b32 s{sCG}, s{sJ}, 7\ns_lshl_b32 s{sM0}, s{sW}, 13')
        I(f's_lshl_b32 s65, s64, 11\ns_add_u32 s{sWM}, s65, s{sM0}')
        I(f's_and_b32 s65, s{sJ}, 1\ns_lshl_b32 s65, s65, 1\ns_or_b32 s64, s64, s65\ns_lshr_b32 s65, s{sCG}, 1\ns_xor_b32 s65, s65, s{sW}\ns_lshl_b32 s65, s65, 2\ns_or_b32 s64, s64, s65')
        I(f's_lshl_b32 s65, s{sJ}, 6')
        for p in range(4): I(f's_xor_b32 s66, s64, {p}\ns_mul_i32 s66, s66, {32*3072}\ns_add_u32 s{sPO+p}, s66, s65')
        I(f'v_lshlrev_b32 v{vL16}, 4, v0\nv_lshrrev_b32 v48, 2, v0\nv_and_b32 v49, 3, v0\nv_lshrrev_b32 v51, 4, v0\nv_xor_b32 v49, v49, v51\nv_lshlrev_b32 v49, 4, v49')
        I(f'v_mul_u32_u24 v{vW0}, 3072, v48\nv_add_u32 v{vW0}, v{vW0}, v49\nv_add_u32 v{vW0+1}, {16*3072-1024}, v{vW0}')
        I(f's_lshl_b32 s64, s{sR}, 2\ns_add_u32 s64, s64, s{sW}\ns_lshl_b32 s64, s64, 15\ns_lshl_b32 s65, s{sCG}, 7\ns_or_b32 s64, s64, s65\ns_lshl_b32 s65, s{sHB}, 14\ns_or_b32 s{sXB}, s64, s65')
        I(f's_lshl_b32 s65, s{sHB}, 11\ns_or_b32 s{sXM}, s65, s{sM0}')
        I(f'v_and_b32 v50, 7, v0\nv_xor_b32 v50, v50, v51\nv_lshlrev_b32 v50, 4, v50\nv_lshrrev_b32 v52, 3, v0\nv_lshl_or_b32 v{vX0}, v52, 10, v50')
        I(f'v_xor_b32 v{vX0+1}, 64, v{vX0}\nv_add_u32 v{vX0+1}, {8192-1024}, v{vX0+1}')
        I(f's_lshl_b32 s64, s{sJ}, 10\ns_mov_b32 m0, {hex(WPH)}')
        I('s_waitcnt lgkmcnt(0)')
        s.tok['P'] = I(f'buffer_load_dwordx4 v{vL16}, {PS_}, s64 offen lds')
    def wdma(s, p, slot, col):
        with s.k.group():
            s.I(f's_xor_b32 m0, s{sWM}, {hex(slot*0x8000 + p*2048)}\ns_add_u32 s{sT0+1}, s{sPO+p}, {col}')
            s.I(f'buffer_load_dwordx4 v{vW0}, {QS}, s{sT0+1} offen lds')
            return s.I(f'buffer_load_dwordx4 v{vW0+1}, {QS}, s{sT0+1} offen offset:1024 lds')
    def udma(s, p):
        with s.k.group():
            s.I(f's_and_b32 s{sT0+1}, s{sJ}, 1\ns_lshl_b32 s{sT0+1}, s{sT0+1}, 1\ns_xor_b32 s{sT0+1}, s{sT0+1}, {p}\ns_lshl_b32 s{sT0+2}, s{sT0+1}, 11')
            s.I(f's_add_u32 s{sT0+2}, s{sT0+2}, s{sM0}\ns_add_u32 m0, s{sT0+2}, 0x18000\ns_mul_i32 s{sT0+1}, s{sT0+1}, s{sUST}\ns_add_u32 s{sT0+1}, s{sT0+1}, s{sUB}')
            s.I(f'buffer_load_dwordx4 v{vU0}, {US}, s{sT0+1} offen {s.P["uf"]} lds')
            return s.I(f'buffer_load_dwordx4 v{vU0+1}, {US}, s{sT0+1} offen offset:1024 {s.P["uf"]} lds')
    def xreg(s, c): return (3 - (c >> 1 & 1))*0x8000 + (c & 1)*4096
    def xdma(s, c, p):
        with s.k.group():
            s.I(f's_xor_b32 m0, s{sXM}, {hex(s.xreg(c) + p*2048)}\ns_xor_b32 s{sT0+1}, s{sXB}, {hex(c*128 + p*16384)}')
            s.I(f'buffer_load_dwordx4 v{vX0}, {XS}, s{sT0+1} offen {s.P["xnt"]} lds')
            return s.I(f'buffer_load_dwordx4 v{vX0+1}, {XS}, s{sT0+1} offen offset:1024 {s.P["xnt"]} lds')
    def unit(s):
        I = s.I; k = s.k
        I(f's_and_b32 s64, s{sJ}, 14\ns_add_u32 s64, s64, s{sR}\ns_and_b32 s64, s64, 15\ns_lshl_b32 s65, s64, 4\ns_add_u32 s65, s65, s{sJ}')
        I(f's_lshl_b32 s66, s65, 7\ns_lshl_b32 s67, s{sW}, 2\ns_add_u32 s66, s66, s67\ns_add_u32 s{sFUP}, s66, {hex(FU)}')
        I(f's_mov_b32 s87, 0x20000\ns_mov_b32 s{sUMD}, 0\ns_movk_i32 s{sUKC}, 1024\ns_mov_b32 s{sCEN}, 0xbb000000\ns_mov_b32 s{sULIM}, 16')
        I('s_cmp_lt_u32 s65, 192\ns_cbranch_scc1 U_N1')
        with k.cond():
            I(f's_mov_b32 s84, s80\ns_mov_b32 s85, s81\ns_mov_b32 s86, {hex(512*3072)}\ns_movk_i32 s68, 3072\ns_sub_u32 s66, s64, 12')
            I(f's_add_u32 s67, s66, 1\ns_cmp_eq_u32 s66, 2\ns_cselect_b32 s67, 0, s67\ns_lshl_b32 s67, s67, 10\ns_lshl_b32 s{sUB}, s{sJ}, 6\ns_add_u32 s{sUB}, s{sUB}, s67')
            I(f's_mul_i32 s67, s{sJ}, 3\ns_add_u32 s67, s67, s66\ns_lshl_b32 s67, s67, 15\ns_add_u32 s{sUD}, s67, {hex(WQKV)}')
            I(f's_cmp_eq_u32 s66, 1\ns_cselect_b32 s{sUMD}, 1, 2\ns_cmp_eq_u32 s66, 3\ns_cselect_b32 s86, 0, s86\ns_cselect_b32 s{sULIM}, 0, s{sULIM}\ns_branch U_GO')
            I('U_N1:\ns_cmp_ge_u32 s65, 112\ns_cbranch_scc1 U_N3')
            I(f's_mov_b32 s86, {hex(512*3584)}\ns_movk_i32 s68, 3584\ns_mov_b32 s{sUMD}, 4')
            I('s_cmp_ge_u32 s65, 56\ns_cbranch_scc1 U_N2')
            I(f's_mov_b32 s84, s38\ns_mov_b32 s85, s39\ns_mov_b32 s66, s65\ns_mov_b32 s67, {hex(WGU)}\ns_branch U_GU')
            I(f'U_N2:\ns_mov_b32 s84, s40\ns_mov_b32 s85, s41\ns_sub_u32 s66, s65, 56\ns_mov_b32 s67, {hex(WGU+256)}')
            I(f'U_GU:\ns_lshl_b32 s{sUB}, s66, 6\ns_lshl_b32 s{sUD}, s66, 16\ns_add_u32 s{sUD}, s{sUD}, s67\ns_branch U_GO')
            I(f'U_N3:\ns_mov_b32 s{sCEN}, 0\ns_movk_i32 s68, 1024\ns_movk_i32 s{sUKC}, 2048')
            I(f's_lshl_b32 s{sUB}, s{sJ}, 6\ns_lshr_b32 s66, s{sJ}, 1\ns_and_b32 s67, s{sJ}, 1\ns_lshl_b32 s67, s67, 10')
            I('s_cmp_ge_u32 s65, 128\ns_cbranch_scc1 U_N4')
            I(f's_mov_b32 s84, s36\ns_mov_b32 s85, s37\ns_mov_b32 s86, 0x80000\ns_lshl_b32 s66, s66, 16\ns_add_u32 s66, s66, s67\ns_add_u32 s{sUD}, s66, {hex(WO_P)}\ns_branch U_GO')
            I(f'U_N4:\ns_mov_b32 s84, s42\ns_mov_b32 s85, s43\ns_mov_b32 s{sULIM}, 14\ns_sub_u32 s64, s64, 8')
            I(f's_mul_i32 s69, s64, {448*1024}\ns_add_u32 s{sUB}, s{sUB}, s69\ns_add_u32 s86, s69, {448*1024}')
            I(f's_mul_i32 s66, s66, {224*1024}\ns_add_u32 s66, s66, s67\ns_mul_i32 s64, s64, {56*1024}\ns_add_u32 s66, s66, s64\ns_add_u32 s{sUD}, s66, {hex(WD_P)}')
        I('U_GO:')
        I(f's_lshl_b32 s{sUST}, s68, 5\ns_lshl_b32 s66, s68, 7\ns_mul_i32 s66, s66, s{sW}\ns_add_u32 s{sUB}, s{sUB}, s66')
        I(f's_lshl_b32 s66, s{sUKC}, 3\ns_mul_i32 s66, s66, s{sW}\ns_add_u32 s{sUD}, s{sUD}, s66')
        I(f's_lshl_b32 s66, s{sW}, 2\ns_sub_i32 s{sULIM}, s{sULIM}, s66')
        I(f'v_mul_u32_u24 v{vU0}, s68, v48\nv_add_u32 v{vU0}, v{vU0}, v49\ns_lshl_b32 s66, s68, 4\ns_sub_u32 s66, s66, 1024\nv_add_u32 v{vU0+1}, s66, v{vU0}')
    def finit(s):
        I = s.I; k = s.k
        n, hf, sw, b2, t0, t1, t2 = 50, 51, 52, 53, 54, 55, 56
        I(f'v_and_b32 v{n}, 31, v0\nv_lshrrev_b32 v{hf}, 5, v0\nv_bfe_u32 v{b2}, v0, 2, 1\nv_bfe_u32 v{t0}, v0, 3, 1')
        I(f'v_and_b32 v{sw}, 19, v{n}\nv_lshl_or_b32 v{sw}, v{b2}, 3, v{sw}\nv_lshl_or_b32 v{sw}, v{t0}, 2, v{sw}')
        I(f'v_lshl_or_b32 v{t0}, v{b2}, 1, v{t0}\nv_xor_b32 v{t0}, v{t0}, v{hf}\nv_lshlrev_b32 v{t0}, 4, v{t0}\nv_lshl_or_b32 v{t0}, v{sw}, 6, v{t0}')
        I(f'v_add_u32 v{vWR}, s{sM0}, v{t0}\nv_xor_b32 v{vWR+1}, 32, v{vWR}\nv_add_u32 v{vWW}, s{sM0}, v{vL16}')
        I(f'v_bfe_u32 v{t0}, v0, 1, 3\nv_xor_b32 v{t0}, v{t0}, v{hf}\nv_lshlrev_b32 v{t0}, 4, v{t0}\nv_lshl_or_b32 v{t0}, v{n}, 7, v{t0}')
        I(f's_add_u32 s64, s{sM0}, 0x10000\nv_add_u32 v{vXR}, s64, v{t0}')
        for q in range(1, 4): I(f'v_xor_b32 v{vXR+q}, {32*q}, v{vXR}')
        I(f'v_lshlrev_b32 v{t0}, 4, v{n}\nv_add_u32 v{vSR}, 0x20000, v{t0}\ns_lshl_b32 s64, s{sW}, 2\nv_add_u32 v{vSW}, s64, v{vSR}')
        I(f'v_and_b32 v{t0}, 15, v0\nv_lshl_or_b32 v{t0}, v{hf}, 5, v{t0}\nv_lshlrev_b32 v{t0}, 4, v{t0}\nv_bfe_u32 v{t1}, v0, 4, 1\nv_lshl_or_b32 v{t0}, v{t1}, 15, v{t0}')
        I(f's_cmp_eq_u32 s{sUMD}, 4\ns_cselect_b64 vcc, -1, 0\nv_cndmask_b32 v{vUD}, v{vL16}, v{t0}, vcc')
        I(f'v_and_b32 v{t0}, 1, v0\nv_lshlrev_b32 v{t0}, 9, v{t0}\nv_lshl_or_b32 v{t0}, v{hf}, 8, v{t0}\nv_bfe_u32 v{t2}, v0, 2, 2\nv_lshl_or_b32 v{t0}, v{t2}, 5, v{t0}')
        I(f'v_lshl_or_b32 v{t0}, v{t1}, 4, v{t0}\nv_bfe_u32 v{t2}, v0, 1, 1\nv_lshl_or_b32 v{t0}, v{t2}, 3, v{t0}\nv_add_u32 v57, {hex(WPH)}, v{t0}')
        I(f'v_lshrrev_b32 v{t0}, 3, v{n}\nv_and_b32 v{t1}, 3, v{n}\nv_lshl_or_b32 v{t0}, v{t0}, 2, v{t1}\nv_lshl_or_b32 v{t0}, v{b2}, 4, v{t0}')
        I(f'v_mov_b32 v58, 0x3f80')
        for d, cm in ((64, t0), (72, sw)):
            I(f'v_lshlrev_b32 v{t1}, 3, v{hf}\nv_sub_u32 v{t1}, v{cm}, v{t1}\nv_and_b32 v{t2}, 1, v{t1}\nv_lshlrev_b32 v{t2}, 4, v{t2}\nv_lshlrev_b32 v{t2}, v{t2}, v58\nv_ashrrev_i32 v{t1}, 1, v{t1}')
            for p in range(2):
                for r in range(4): I(f'v_cmp_eq_u32 vcc, {8*p+r}, v{t1}\nv_cndmask_b32 v{d+4*p+r}, 0, v{t2}, vcc')
        I(f'v_min_u32 v{t0}, 20, v0\ns_mul_i32 s64, s{sJ}, 7\ns_lshr_b32 s64, s64, 1\nv_lshrrev_b32 v{t1}, 2, v{t0}\nv_mul_u32_u24 v{t1}, 52, v{t1}\nv_add3_u32 v{vFU}, v{t1}, v{t0}, s64')
        I(f's_lshl_b32 s64, s{sCG}, 1\ns_add_u32 s64, s64, 48\nv_lshrrev_b32 v{t1}, 1, v{t0}\nv_mul_u32_u24 v{t1}, 14, v{t1}\nv_add3_u32 v{t1}, v{t1}, v{t0}, s64')
        I(f'v_cmp_lt_u32 vcc, 7, v{t0}\nv_cndmask_b32 v{vFU}, v{vFU}, v{t1}, vcc')
        I(f's_sub_u32 s64, s{sJ}, 96\nv_lshl_add_u32 v{t1}, v{t0}, 4, s64\nv_cmp_lt_u32 vcc, 17, v{t0}\nv_cndmask_b32 v{vFU}, v{vFU}, v{t1}, vcc')
        I(f'v_lshlrev_b32 v{vFU}, 7, v{vFU}\nv_add_u32 v{vFU}, {hex(FU)}, v{vFU}')
    def fold(s):
        I = s.I
        s.k.wait(s.tok['P'])
        I('ds_read_b64_tr_b16 v[60:61], v57\nds_read_b64_tr_b16 v[62:63], v57 offset:128')
        I('v_cmp_eq_u32 vcc, 0, v53')
        for r in range(4): I(f'v_cndmask_b32 v{80+r}, 0, v{60+r}, vcc\nv_cndmask_b32 v{84+r}, v{60+r}, 0, vcc')
        I(f's_cmp_eq_u32 s{sUMD}, 1\ns_cselect_b64 vcc, -1, 0')
        for r in range(8): I(f'v_cndmask_b32 v{72+r}, v{72+r}, v{64+r}, vcc')
        I(f's_cmp_eq_u32 s{sUMD}, 2\ns_cselect_b64 vcc, -1, 0')
        for r in range(8): I(f'v_cndmask_b32 v{72+r}, v{72+r}, v{80+r}, vcc')
        for r in range(24): I(f'v_accvgpr_write_b32 a{r}, v{64+r}')
        for r in range(4): I(f'v_accvgpr_write_b32 a{64+r}, s{sONES}')
        I(f's_mul_i32 s{sTAG}, s{sE}, 0x9E3779B1\ns_add_u32 s{sTAG}, s{sTAG}, 0x7F4A7C15')
    def wbuild(s, tok, slot, B, si, cen, unit=False):
        I = s.I; k = s.k; off = (slot & 1)*0x8000; t = None
        k.wait(tok)
        for b in range(4):
            for p in range(2): I(f'ds_read_b128 {a_(32+8*b+4*p,4)}, v{vWR+p} offset:{off + b*2048}')
        for b in range(4):
            d = 64 + 16*b
            for p in range(2): I(f'v_mfma_f32_32x32x16_bf16 {v(d,16)}, {a_(32+8*b+4*p,4)}, {a_(B+4*p,4)}, {"0" if p == 0 else v(d,16)}')
        I(f'v_pk_add_f32 {v(vT0,2)}, v[64:65], v[66:67]\nv_pk_add_f32 {v(vT2,2)}, v[68:69], v[70:71]')
        for i, r in enumerate(range(72, 128, 2)): I(f'v_pk_add_f32 {v(vT0+2*(i&1),2)}, {v(vT0+2*(i&1),2)}, {v(r,2)}')
        I(f'v_pk_add_f32 {v(vT0,2)}, {v(vT0,2)}, {v(vT2,2)}\nv_add_f32 v{vT0}, v{vT0}, v{vT1}\nv_mov_b32 v{vT1}, v{vT0}')
        I(f'v_permlane32_swap_b32 v{vT0}, v{vT1}\nv_add_f32 v{vT0}, v{vT0}, v{vT1}')
        with k.group():
            k.wait(I(f'ds_write_b32 v{vSW}, v{vT0} offset:{SUMS[si] - 0x20000}')); I('s_barrier')
            I(f'ds_read_b128 v[52:55], v{vSR} offset:{SUMS[si] - 0x20000}')
        I(f'v_pk_add_f32 v[52:53], v[52:53], v[54:55]\nv_add_f32 v52, v52, v53\nv_mul_f32 v52, {cen}, v52')
        for b in range(4):
            d = 64 + 16*b
            for h in range(2):
                for r in range(8*h, 8*h + 8, 2): I(f'v_pk_add_f32 {v(d+r,2)}, {v(d+r,2)}, v[52:53] op_sel_hi:[1,0]')
                for r in range(4): I(f'v_cvt_pk_bf16_f32 v{d+8*h+r}, v{d+8*h+2*r}, v{d+8*h+2*r+1}')
                if not unit: t = I(f'ds_write_b128 v{vWW}, {v(d+8*h,4)} offset:{off + (2*b+h)*1024}')
                else:
                    with k.group():
                        if h == 0 and b % 2 == 0: I(f's_cmp_gt_i32 s{sULIM}, {b}\ns_cselect_b32 s{sUD}, s{sUD}, 0x70000000')
                        t = I(f'buffer_store_dwordx4 {v(d+8*h,4)}, v{vUD}, {WS}, s{sUD} offen sc1')
                        I(f's_add_u32 s{sUD}, s{sUD}, s{sUKC}')
        return t
    def lbuild(s, tok, slot, B, si):
        I = s.I; k = s.k; off = (slot & 1)*0x8000
        k.wait(tok)
        for b in range(4):
            for p in range(2): I(f'ds_read_b128 {a_(32+8*b+4*p,4)}, v{vWR+p} offset:{off + b*2048}')
        def T(i):
            b, p = i >> 1, i & 1; d = 64 + 16*b
            I(f'v_mfma_f32_32x32x16_bf16 {v(d,16)}, {a_(32+8*b+4*p,4)}, {a_(B+4*p,4)}, {"0" if p == 0 else v(d,16)}')
        def C(i):
            d = 64 + 8*i
            for r in range(4): I(f'v_cvt_pk_bf16_f32 v{d+r}, v{d+2*r}, v{d+2*r+1}')
            I(f'ds_write_b128 v{vWW}, {v(d,4)} offset:{off + i*1024}')
        def S(i): I(f'v_mfma_f32_32x32x16_bf16 v[48:63], a[64:67], {v(64+8*i,4)}, {"0" if i == 0 else "v[48:63]"}')
        for i in range(16):
            (T if i < 8 else S)(i & 7)
            if 3 <= i < 11: C(i - 3)
        I('v_cvt_pk_bf16_f32 v49, v48, v48\nv_and_b32 v50, 0xffff0000, v49\nv_sub_f32 v50, v48, v50\nv_cvt_pk_bf16_f32 v49, v48, v50')
        return I(f'ds_write_b32 v{vSW}, v49 offset:{SUMS[si] - 0x20000}')
    def rowstats(s):
        I = s.I
        for r in range(2):
            for i in range(4):
                x = 96 + 4*r + i
                I(f'v_dot2_f32_bf16 v{104+r}, v{x}, s{sONES}, {"0" if i == 0 else v(104+r)}')
                I(f'v_dot2_f32_bf16 v{106+r}, v{x}, v{x}, {"0" if i == 0 else v(106+r)}')
        I('v_permlane32_swap_b32 v104, v105\nv_permlane32_swap_b32 v106, v107\nv_add_f32 v104, v104, v105\nv_add_f32 v106, v106, v107')
        I(f'v_and_b32 v108, 15, v0\nv_cmp_eq_u32 vcc, 0, v108\nv_lshrrev_b32 v108, 1, v0\nv_mov_b32 v109, {hex(OOB)}')
        I('v_permlane16_swap_b32 v104, v106\nv_cndmask_b32 v108, v109, v108, vcc\nv_add_f32 v104, v104, v106')
        I(f'v_mov_b32 v105, s{sTAG}\ns_lshl_b32 s64, s{sR}, 11\ns_lshl_b32 s65, s{sJ}, 7\ns_add_u32 s64, s64, s65\ns_lshl_b32 s65, s{sW}, 5\ns_add_u32 s64, s64, s65\ns_add_u32 s64, s64, {hex(S0)}')
        for mod in ('quad_perm:[1,0,3,2]', 'quad_perm:[2,3,0,1]', 'row_half_mirror', 'row_mirror'):
            I(f'v_add_f32_dpp v104, v104, v104 {mod} row_mask:0xf bank_mask:0xf')
        I(f'buffer_store_dwordx2 v[104:105], v108, {WS}, s64 offen sc1')
    def init(s):
        I = s.I; k = s.k
        I(f's_load_dword s{sE}, s[8:9], 0')
        I(f's_getreg_b32 s{sMARK}, hwreg(HW_REG_XCC_ID)\ns_and_b32 s{sMARK}, s{sMARK}, 15\ns_or_b32 s{sMARK}, s{sMARK}, 0x80')
        if s.ts: I('v_mov_b32 v23, 0\nv_writelane_b32 v23, s78, 0\nv_writelane_b32 v23, s4, 60')
        I(f'v_add_u32 v{vL16b}, 0x10000, v{vL16}')
        I(f'v_cmp_eq_u32 vcc, 0, v0\nv_mov_b32 v{vT0}, {hex(OOB)}\nv_cndmask_b32 v{vL0}, v{vT0}, v0, vcc')
        I(f's_mov_b32 s{sLIM}, 20000')
        I(f'v_and_b32 v50, 15, v0\nv_lshrrev_b32 v51, 4, v0\nv_and_b32 v52, 31, v0\nv_lshrrev_b32 v53, 5, v0')
        I(f'v_lshlrev_b32 v{vFX}, 2, v50')
        I(f'v_bfe_u32 v54, v0, 2, 1\nv_and_b32 v55, 3, v0\nv_lshlrev_b32 v55, 2, v55\nv_lshl_or_b32 v{vFO}, v54, 7, v55')
        I(f'v_lshlrev_b32 v54, 6, v52\nv_lshl_or_b32 v{vSTL}, v53, 5, v54')
        I(f'v_lshlrev_b32 v54, 4, v50\nv_lshl_or_b32 v{vPUB}, v51, 9, v54')
        I(f's_lshl_b32 s64, s{sW}, 9\ns_add_u32 s64, s64, {hex(XA)}\ns_movk_i32 s65, {6*PS}')
        I(f'v_mul_lo_u32 v54, v53, s65\nv_lshl_add_u32 v54, v52, 4, v54\nv_add_u32 v{vPHW}, s64, v54')
        I(f's_movk_i32 s65, {PS}\nv_bfe_u32 v54, v0, 1, 1\nv_mul_lo_u32 v54, v54, s65\nv_and_b32 v55, 1, v0\nv_lshl_add_u32 v54, v55, 3, v54')
        I(f'v_lshrrev_b32 v55, 2, v50\nv_lshl_add_u32 v55, v51, 3, v55\nv_lshl_add_u32 v54, v55, 4, v54')
        I(f's_lshr_b32 s66, s{sW}, 1\ns_mul_i32 s66, s66, {6*PS}\ns_add_u32 s66, s66, {hex(XA)}\ns_and_b32 s67, s{sW}, 1\ns_mul_i32 s67, s67, {2*PS}\ns_add_u32 s67, s67, s66\ns_add_u32 s66, s66, {4*PS}')
        I(f'v_add_u32 v{vTRA}, s67, v54\nv_add_u32 v{vTRB}, s66, v54')
        I(f'v_lshlrev_b32 v54, 4, v50\nv_lshl_or_b32 v54, v53, 8, v54\nv_and_b32 v55, 1, v51\nv_lshl_or_b32 v54, v55, 3, v54')
        I(f's_lshl_b32 s64, s{sW}, 9\ns_add_u32 s64, s64, {hex(KVA)}\nv_add_u32 v{vKVW}, s64, v54')
        I(f's_lshl_b32 s64, s{sW}, 5\ns_add_u32 s64, s64, {hex(ZA)}\nv_lshlrev_b32 v54, 1, v50\nv_add_u32 v{vZW}, s64, v54')
        I(f'v_and_b32 v54, 3, v0\nv_bfe_u32 v55, v0, 2, 1\nv_lshl_or_b32 v54, v55, 3, v54\nv_bfe_u32 v55, v0, 3, 1\nv_lshl_or_b32 v54, v55, 2, v54')
        I(f'v_lshlrev_b32 v54, 4, v54\nv_lshl_or_b32 v54, v53, 10, v54\nv_add_u32 v54, {hex(KVA)}, v54')
        I(f'v_lshlrev_b32 v55, 6, v53\nv_add_u32 v55, {hex(ZA)}, v55\nv_bfe_u32 v56, v0, 4, 1\nv_cmp_eq_u32 vcc, v56, v53\nv_mov_b32 v57, {hex(ZERO)}')
        I(f'v_cndmask_b32 v{vKVR}, v57, v54, vcc\nv_cndmask_b32 v{vZR}, v57, v55, vcc')
        I(f'v_lshlrev_b32 v54, 4, v50\nv_lshl_or_b32 v54, v53, 8, v54\nv_lshl_or_b32 v54, v56, 13, v54\ns_lshl_b32 s64, s{sW}, 11\nv_add_u32 v{vREDW}, s64, v54')
        I(f'v_lshlrev_b32 v54, 10, v50\nv_lshl_or_b32 v{vNAT}, v51, 4, v54')
        I(f'v_lshlrev_b32 v54, 6, v50\nv_lshl_or_b32 v54, v53, 2, v54\nv_cmp_eq_u32 vcc, 0, v56\nv_mov_b32 v55, {hex(OOB)}\nv_cndmask_b32 v{vSTW}, v55, v54, vcc')
        I(f's_lshl_b32 s64, s{sW}, 7\ns_add_u32 s64, s64, {hex(RS)}\nv_lshlrev_b32 v54, 2, v52\nv_add_u32 v{vRSW}, s64, v54')
        I(f'v_mov_b32 v56, 0\nv_mov_b32 v57, 0\nv_mov_b32 v58, 0\nv_mov_b32 v59, 0\nv_add_u32 v54, {hex(ZERO)}, v{vL16}\nds_write_b128 v54, v[56:59]')
        I(f's_mov_b32 s{sSELLO}, 0x3f80\ns_mov_b32 s{sSELHI}, 0x3f800000\ns_mov_b32 s{sONES}, 0x3f803f80\ns_mov_b32 s{sLOG2E}, 0x3fb8aa3b')
        I(f's_mul_i32 s64, s{sJ}, {96*1024}\ns_add_u32 s64, s64, s{sM0}\ns_add_u32 s{sQKV}, s64, {hex(WQKV)}')
        I(f's_lshl_b32 s66, s{sR}, 2\ns_add_u32 s65, s66, s{sW}')
        I(f's_lshl_b32 s64, s65, 15\ns_add_u32 s{sXIN}, s64, {hex(XB[0])}')
        I(f's_lshl_b32 s64, s65, 11\ns_add_u32 s{sSTIN}, s64, {hex(ST)}')
        I(f's_mul_i32 s64, s{sJ}, {224*1024}\ns_add_u32 s64, s64, s{sM0}\ns_add_u32 s{sGU}, s64, {hex(WGU)}')
        I(f's_lshl_b32 s64, s{sCG}, 16\ns_lshl_b32 s67, s{sW}, 14\ns_add_u32 s64, s64, s67\ns_add_u32 s{sWO}, s64, {hex(WO_P)}')
        I(f's_mul_i32 s64, s{sCG}, {224*1024}\ns_mul_i32 s67, s{sW}, {56*1024}\ns_add_u32 s64, s64, s67\ns_add_u32 s{sWD}, s64, {hex(WD_P)}')
        I(f's_lshl_b32 s67, s{sHB}, 1\ns_add_u32 s66, s66, s67')
        I(f's_lshr_b32 s67, s{sW}, 1\ns_add_u32 s67, s67, s66\ns_and_b32 s68, s{sW}, 1')
        I(f's_lshl_b32 s64, s66, 15\ns_add_u32 s64, s64, s{sM0}\ns_add_u32 s{sXO}, s64, {hex(XB[0])}')
        I(f's_lshl_b32 s64, s67, 15\ns_lshl_b32 s69, s{sCG}, 12\ns_add_u32 s64, s64, s69\ns_lshl_b32 s69, s68, 8\ns_add_u32 s64, s64, s69\ns_add_u32 s{sXPUB}, s64, {hex(XB[0])}')
        I(f's_lshl_b32 s64, s67, 11\ns_lshl_b32 s69, s68, 10\ns_add_u32 s64, s64, s69\ns_lshl_b32 s69, s{sCG}, 3\ns_add_u32 s64, s64, s69\ns_add_u32 s{sSTPUB}, s64, {hex(ST)}')
        I(f's_mul_i32 s64, s65, {112*1024}\ns_mul_i32 s69, s{sJ}, {7*1024}\ns_add_u32 s64, s64, s69\ns_add_u32 s{sHPUB}, s64, {hex(HB)}')
        I(f's_mul_i32 s64, s66, {112*1024}\ns_mul_i32 s69, s{sW}, {28*1024}\ns_add_u32 s64, s64, s69\ns_add_u32 s{sHIN}, s64, {hex(HB)}')
        I(f's_lshl_b32 s64, s65, 7\ns_add_u32 s{sFXC}, s64, {hex(FX)}')
        I(f's_lshl_b32 s69, s{sJ}, 2\ns_add_u32 s64, s64, s69\ns_add_u32 s{sFOP}, s64, {hex(FO)}')
        I(f's_lshl_b32 s64, s67, 7\ns_lshl_b32 s69, s{sCG}, 3\ns_add_u32 s64, s64, s69\ns_lshl_b32 s69, s68, 2\ns_add_u32 s64, s64, s69\ns_add_u32 s{sFXP}, s64, {hex(FX)}')
        I(f's_lshl_b32 s64, s66, 7\ns_lshl_b32 s69, s{sW}, 4\ns_add_u32 s64, s64, s69\ns_add_u32 s{sFOC}, s64, {hex(FO)}')
        I(f's_lshl_b32 s64, s{sJ}, 2\ns_add_u32 s64, s64, s{sW}\ns_lshl_b32 s64, s64, 14\ns_add_u32 s{sKVC}, s64, {hex(KVP)}')
        I(f's_lshl_b32 s64, s{sR}, 10\ns_add_u32 s{sKVP}, s64, s{sKVC}')
        I(f's_lshl_b32 s64, s{sR}, 17\ns_lshl_b32 s69, s{sHB}, 16\ns_add_u32 s64, s64, s69\ns_lshl_b32 s69, s{sW}, 14\ns_add_u32 s64, s64, s69\ns_lshl_b32 s69, s{sCG}, 7\ns_add_u32 s{sNAT}, s64, s69')
        I(f's_lshl_b32 s64, s{sHB}, 8\ns_lshl_b32 s69, s{sW}, 6\ns_add_u32 s64, s64, s69\ns_add_u32 s64, s64, {hex(RS)}\nv_add_u32 v{vRSR}, s64, v{vFX}')

    def xloads(s, buf):
        so = s.SO(s, sT0)
        d = buf*0x20000; n = s.P['xf']
        with s.k.cap() as f:
            for kc in range(32): s.ld(so, v(vXB + 4*kc, 4), vL16, sXIN, buf*0x200000 + kc*1024, 'sc1')
            s.ld(so, v(vTMP, 4), vSTL, sSTIN, d, 'sc1'); s.ld(so, v(vTMP+4, 4), vSTL, sSTIN, d + 16, 'sc1')
        s.k.put(f[:n])
        return (f[n:], 0, 2*(34 - n) - 1)
    def stats(s, own=False):
        I = s.I; t = vTMP
        I(f'v_add_f32 v{t}, v{t}, v{t+2}\nv_add_f32 v{t+1}, v{t+1}, v{t+3}')
        if not own:
            I(f'v_add_f32 v{t+4}, v{t+4}, v{t+6}\nv_add_f32 v{t+5}, v{t+5}, v{t+7}')
            I(f'v_add_f32 v{t}, v{t}, v{t+4}\nv_add_f32 v{t+1}, v{t+1}, v{t+5}')
        I(f'v_permlane32_swap_b32 v{t}, v{t+1}')
        I(f'v_add_f32 v{t}, v{t}, v{t+1}')
        I(f'v_mul_f32 v{t}, 0x3b000000, v{t}')
        I(f'v_mov_b32 v{t+1}, v{t}')
        I(f'v_permlane32_swap_b32 v{t}, v{t+1}')
        I(f'v_fma_f32 v{t+1}, -v{t}, v{t}, v{t+1}')
        I(f'v_max_f32 v{t+1}, 0, v{t+1}')
        I(f'v_add_f32 v{t+1}, 0x3727c5ac, v{t+1}')
    def phi(s, p, tA, tB, out, emit=None):
        I = s.I; mx, mn = vT0, vT2
        I(f'v_max3_f32 v{mx}, v{p}, v{p+1}, v{p+2}\nv_min3_f32 v{mn}, v{p}, v{p+1}, v{p+2}')
        for r in range(3, 15, 2): I(f'v_max3_f32 v{mx}, v{mx}, v{p+r}, v{p+r+1}\nv_min3_f32 v{mn}, v{mn}, v{p+r}, v{p+r+1}')
        I(f'v_max_f32 v{mx}, v{mx}, v{p+15}\nv_min_f32 v{mn}, v{mn}, v{p+15}')
        I(f'v_mul_f32 v{mx}, v{mx}, v{vC}\nv_mul_f32 v{mn}, v{mn}, v{vC}')
        for sg, t, m in ((0, tA, mx), (1, tB, mn)):
            for r in range(0, 16, 2):
                if sg == 0: I(f'v_pk_fma_f32 {v(t+r,2)}, {v(p+r,2)}, {v(vC-1,2)}, {v(m,2)} op_sel:[0,1,0] op_sel_hi:[1,1,0] neg_lo:[0,0,1] neg_hi:[0,0,1]')
                else: I(f'v_pk_fma_f32 {v(t+r,2)}, {v(p+r,2)}, {v(vC-1,2)}, {v(m,2)} op_sel:[0,1,0] op_sel_hi:[1,1,0] neg_lo:[1,0,0] neg_hi:[1,0,0]')
            for r in range(16): I(f'v_exp_f32 v{t+r}, v{t+r}')
            I(f'v_pk_add_f32 {v(vT4,2)}, {v(t,2)}, {v(t+2,2)}')
            for r in range(4, 16, 2): I(f'v_pk_add_f32 {v(vT4,2)}, {v(vT4,2)}, {v(t+r,2)}')
            I(f'v_add_f32 v{vT4}, v{vT4}, v{vT5}\nv_rcp_f32 v{vT4}, v{vT4}')
            for r in range(0, 16, 2): I(f'v_pk_mul_f32 {v(t+r,2)}, {v(t+r,2)}, {v(vT4,2)} op_sel_hi:[1,0]')
            for r in range(8):
                I(f'v_cvt_pk_bf16_f32 v{out+8*sg+r}, v{t+2*r}, v{t+2*r+1}')
                if emit and r % 4 == 3: emit(2*sg + r//4)

    def front(s):
        I = s.I; k = s.k; P = s.P
        s.init0()
        s.wdma(0, 0, 1024)
        I(f's_lshl_b32 s64, s{sR}, 17\ns_lshl_b32 s65, s{sJ}, 13\ns_add_u32 s64, s64, s65\ns_lshl_b32 s65, s{sW}, 11\ns_add_u32 s64, s64, s65')
        I(f'buffer_load_dwordx4 v[96:99], v{vL16}, {XS}, s64 offen {P["xnt"]}\nbuffer_load_dwordx4 v[100:103], v{vL16}, {XS}, s64 offen offset:1024 {P["xnt"]}')
        s.wdma(0, 1, 2048)
        s.unit(); s.init(); s.finit()
        s.wdma(1, 0, 1024); s.wdma(2, 0, 1024)
        s.fold()
        tk = s.wdma(3, 0, 1024)
        s.wdma(1, 1, 2048)
        s.rowstats()
        for p in range(2, 4): tv = s.wdma(p, 1, 2048)
        I(f's_lshl_b32 s64, s{sG}, 5\ns_add_u32 s64, s64, s{sRK}\nv_mov_b32 v{vT0}, s{sMARK}\nbuffer_store_byte v{vT0}, v{vL0}, {DS}, s64 offen')
        tx = {}; tr = {}
        def X(i):
            with k.group():
                if i >= 8 and i % 2 == 0: k.wait(tr[i//2 - 4])
                tx[i] = s.xdma(i//2, i % 2)
        def RD(c):
            with k.group():
                k.wait(tx[2*c+1])
                for q in range(4): tr[c] = I(f'ds_read_b128 {v(vXB+16*c+4*q,4)}, v{vXR+q} offset:{s.xreg(c) - 0x10000}')
        def U(p):
            with k.group():
                if p == 0: k.wait(tr[5])
                s.tok['U'] = s.udma(p)
        def QT():
            with k.group(): I(f'v_and_b32 v21, 31, v0\nv_mul_u32_u24 v21, 3072, v21\nbuffer_load_dword v21, v21, {QS}, s{sPO} offen')
        def SL():
            with k.group():
                I(f's_lshl_b32 s{sT0+3}, s{sR}, 11\ns_lshl_b32 s{sT0+4}, s{sW}, 9\ns_add_u32 s{sT0+3}, s{sT0+3}, s{sT0+4}\ns_add_u32 s{sT0+3}, s{sT0+3}, {hex(S0)}')
                I(f'v_and_b32 v{vT4}, 0x1f0, v{vL16}\nbuffer_load_dwordx4 v[52:55], v{vT4}, {WS}, s{sT0+3} offen sc1')
        with k.cap() as xs:
            for i in range(16):
                X(i)
                if i >= 5 and i % 2 == 1: RD((i - 5)//2)
            SL(); U(0); RD(6); U(1); RD(7); QT(); U(2); U(3)
        s.trx = tr[7]
        xa, xb, xc, xd = P['xa'], P['xb'], P['xc'], P['xd']
        k.put(xs[:xa]); xs = xs[xa:]
        s.stamp('issued')
        with k.cap() as f: s.lbuild(tk, 0, 16, 0)
        k.weave(f, (xs[:xb], 0, 15)); xs = xs[xb:]
        s.stamp('kbuild')
        with k.cap() as f: t = s.lbuild(tv, 1, 0, 1)
        k.weave(f, (xs[:xc], 0, 15)); xs = xs[xc:]
        k.wait(t); I('s_barrier')
        s.stamp('vbuild')
        k.put(xs[:xd]); xs = xs[xd:]
        gaps = P['xg']
        fill = [([it], g, g) for it, g in zip(xs, gaps[-len(xs):])]
        assert len(xs) <= len(gaps)
        with k.cap() as f:
            I(f'ds_read_b128 a[28:31], v{vSR} offset:{SUMS[0] - 0x20000}\nds_read_b128 a[32:35], v{vSR} offset:{SUMS[1] - 0x20000}')
            Lb = s.label('S0'); D = s.label('S0D')
            with k.group():
                I(f's_mov_b32 s{sT0+9}, 0\n{Lb}:')
                I(f'v_xor_b32 v53, s{sTAG}, v53\nv_xor_b32 v55, s{sTAG}, v55\nv_or_b32 v53, v53, v55\nv_cmp_ne_u32 vcc, 0, v53\ns_cbranch_vccz {D}')
                with k.cond():
                    I(f'buffer_load_dwordx4 v[52:55], v{vT4}, {WS}, s{sT0+3} offen sc1\ns_waitcnt vmcnt(0)')
                    I(f's_add_u32 s{sT0+9}, s{sT0+9}, 1\ns_cmp_lt_u32 s{sT0+9}, s{sLIM}\ns_cbranch_scc1 {Lb}\ns_mov_b32 s{sLIM}, 1')
                I(f'{D}:'); k.retire()
            I('v_mul_f32 v52, 0xbb000000, v52\nv_mul_f32 v54, 0x3b000000, v54')
            I('v_cvt_pk_bf16_f32 v53, v52, v52\nv_fma_f32 v54, -v52, v52, v54\nv_and_b32 v55, 0xffff0000, v53\nv_max_f32 v54, 0, v54')
            I(f'v_sub_f32 v55, v52, v55\nv_add_f32 v54, 0x3727c5ac, v54\nv_cvt_pk_bf16_f32 v55, v55, v55\nv_rsq_f32 v{vRSTD}, v54')
            with k.group(): I('v_cmp_gt_u32 vcc, 32, v0\nv_cndmask_b32 v53, v55, v53, vcc')
            I(f'v_mul_f32 v{vC}, s{sLOG2E}, v{vRSTD}')
            for r in range(4): I(f'v_accvgpr_write_b32 a{24+r}, v53')
        fill.append((f, 54, 62))
        return fill

    def qkv(s, L):
        I = s.I; k = s.k; P = s.P
        b = 2*L; SK, SV, SQ, SF = b % 4, (b+1) % 4, (b+2) % 4, (b+3) % 4
        bA, bB = L, 1 - L
        aK, aV, aQ = vACC, vACC+16, vACC+32
        if L == 0:
            fill = s.front()
            with k.cap() as s.bw:
                so = s.SO(s, sT0+7)
                for i in range(56): s.ld(so, a_(4*i, 4), vL16, sWD, i*1024, 'sc1')
        else:
            s.poll(vFX, sFXC, 0, 2*L)
            s.stamp('x_ok')
            fill = [s.xloads(bA)]
        s.bg_tile(0, sGU, 0, SF)
        steps = []
        for kc in range(32): steps += [(SV, kc, aV, kc == 0), (SK, kc, aK, kc == 0)]
        base, _ = s.gemm(steps)
        k.weave(base, *fill)
        if L == 0:
            I(f'v_mfma_f32_32x32x16_bf16 {v(aV,16)}, a[32:35], a[24:27], {v(aV,16)}\nv_mfma_f32_32x32x16_bf16 {v(aK,16)}, a[28:31], a[24:27], {v(aK,16)}')
        s.stamp('kv_gemm')
        with k.cap() as f:
            if L:
                s.stats()
                I(f'v_rsq_f32 v{vRSTD}, v{vTMP+1}')
                I(f'v_mul_f32 v{vC}, s{sLOG2E}, v{vRSTD}')
            for r in range(0, 16, 2): I(f'v_pk_mul_f32 {v(aV+r,2)}, {v(aV+r,2)}, {v(vRSTD,2)} op_sel_hi:[1,0]')
            for r in range(8): I(f'v_cvt_pk_bf16_f32 v{aV+r}, v{aV+2*r}, v{aV+2*r+1}')
            I(f'ds_write_b128 v{vPHW}, {v(aV,4)} offset:{4*PS}\nds_write_b128 v{vPHW}, {v(aV+4,4)} offset:{5*PS}')
            tw = []
            s.phi(aK, vACC+32, vACC+48, vTMP, emit=lambda n: tw.append(I(f'ds_write_b128 v{vPHW}, {v(vTMP+4*n,4)} offset:{n*PS}')))
            for r in range(4): I(f'v_mov_b32 v{72+r}, s{sONES}')
        if L == 0:
            with k.cap() as qs:
                for p in range(4): tq = s.wdma(p, SQ, 0)
            k.wait(s.trx)
            k.sprinkle(f, qs[:P['qn']], P['q0'], P['qe']); qs = qs[P['qn']:]
            k.wait(tw[-1])
        else:
            k.sprinkle(f, s.take(7), 2, 22)
            k.wait(tw[-1], s.tok['Q'])
        I('s_barrier')
        s.stamp('phik')
        for u in range(4):
            for p in range(2):
                I(f'ds_read_b64_tr_b16 {v(96+4*u+2*p,2)}, v{vTRA} offset:{u*512+p*64}')
            for p in range(2):
                I(f'ds_read_b64_tr_b16 {v(112+4*u+2*p,2)}, v{vTRB} offset:{u*512+p*64}')
        for u in range(4):
            I(f'v_mfma_f32_16x16x32_bf16 v[64:67], {v(96+4*u,4)}, {v(112+4*u,4)}, {"0" if u == 0 else "v[64:67]"}')
            I(f'v_mfma_f32_16x16x32_bf16 v[68:71], v[72:75], {v(96+4*u,4)}, {"0" if u == 0 else "v[68:71]"}')
        I(f'v_mov_b32 v115, s{sTAG}')
        I('v_cvt_pk_bf16_f32 v112, v64, v65\nv_cvt_pk_bf16_f32 v113, v66, v67\nv_mov_b32 v114, v68')
        so = s.SO(s, sT0)
        s.ld(so, 'v[112:115]', vL16, sKVP, L*0x100000, 'sc1', op='buffer_store_dwordx4')
        s.stamp('kvpub')
        wob, kb = vXB + 64, vXB
        nk = 16 - L; kr = lambda r: kb + 4*r if r < nk else 112
        s.wob = wob
        with k.cap() as fw:
            so = s.SO(s, sT0+2)
            for i in range(16): s.ld(so, v(wob + 4*i, 4), vL16, sWO, i*1024, 'sc1')
        def kvld(r):
            with k.group(): I(f's_xor_b32 s{sT0}, s{sKVP}, {hex(L*0x100000 + (15 - r)*1024)}\nbuffer_load_dwordx4 {v(kb+4*r,4)}, v{vL16}, {WS}, s{sT0} offen sc1')
        with k.cap() as fk:
            for r in range(nk): kvld(r)
        s.bg_tile(1, sGU, 0x8000, SK); s.bg_tile(2, sGU, 0x10000, SV)
        if L == 0:
            k.put(qs)
            I(f'v_add_u32 v{vWR}, 0x10000, v{vWR}\nv_add_u32 v{vWR+1}, 0x10000, v{vWR+1}\nv_add_u32 v{vWW}, 0x10000, v{vWW}')
            tu = s.wbuild(s.tok['U'], SF, 8, 2, f's{sCEN}', unit=True)
            s.stamp('ubuild')
            t = s.lbuild(tq, SQ, 16, 3)
            k.wait(t); I('s_barrier')
            s.stamp('qbuild')
            with k.cap() as ff:
                with k.group():
                    k.wait(tu)
                    I(f'v_mov_b32 v{vT5}, s{sTAG}\nbuffer_store_dword v{vT5}, v{vL0}, {WS}, s{sFUP} offen sc1')
            if s.stop == 'kv0':
                k.put(ff); return True
            with k.cap() as f1:
                so = s.SO(s, sT0+2)
                s.ld(so, v(vRES, 4), vNAT, sNAT, 0, srdn=XS); s.ld(so, v(vRES+4, 4), vNAT, sNAT, 64, srdn=XS)
                with k.group(): I(f'v_and_b32 v{vMK}, 28, v{vFX}\ns_lshl_b32 s{sT0+3}, s{sG}, 5\nbuffer_load_dword v{vMK}, v{vMK}, {DS}, s{sT0+3} offen sc1')
                I(f'ds_read_b128 a[28:31], v{vSR} offset:{SUMS[3] - 0x20000}')
            fill = [(fk, P['k0'][0], P['k1'][0]), (ff, P['fg'], P['fg']), (f1, 27, 30)]
        else: fill = [(fk, P['k0'][1], P['k1'][1])]
        base, _ = s.gemm([(SQ, kc, aQ, kc == 0) for kc in range(32)])
        k.weave(base, *fill)
        if L == 0: I(f'v_mfma_f32_32x32x16_bf16 {v(aQ,16)}, a[28:31], a[24:27], {v(aQ,16)}')
        s.stamp('q_gemm')
        with k.cap() as f: s.phi(aQ, vACC, vACC+16, vTMP)
        if L == 0:
            k.put(f)
            I(f's_mul_i32 s{sT0+3}, s{sMARK}, 0x01010101\nv_cmp_ne_u32 vcc, s{sT0+3}, v{vMK}\ns_or_b32 s{sSLOW}, vcc_lo, vcc_hi')
        else: k.sprinkle(f, fw, P['w0'], P['we'])
        s.stamp('phiq')
        MK = [4, 6, 72, 74, 76] + list(range(80, 102, 2))
        Lb = s.label('KV'); D = s.label('KVD')
        I(f's_mov_b32 s{sT0+9}, 0')
        I(f'{Lb}:')
        for r in range(16):
            if r < nk: I(f'v_cmp_ne_u32 {s_(MK[r],2)}, s{sTAG}, v{kr(r)+3}')
            for e in range(4):
                I(f'v_dot2_f32_bf16 v{64+e}, v{kr(r)+e//2}, s{sSELHI if e & 1 else sSELLO}, {"0" if r == 0 else v(64+e)}')
            if r == 1: I(f'v_add_f32 v68, v{kb+2}, v{kb+6}\ns_or_b64 vcc, {s_(MK[0],2)}, {s_(MK[1],2)}')
            if r > 1: I(f'v_add_f32 v68, v68, v{kr(r)+2}')
            if 1 < r < nk: I(f's_or_b64 vcc, vcc, {s_(MK[r],2)}')
        I(f's_cbranch_scc0 {D}')
        with k.cond():
            for r in range(nk):
                I(f's_mov_b64 exec, {s_(MK[r],2)}'); kvld(r)
            I('s_mov_b64 exec, -1\ns_waitcnt vmcnt(0)')
            I(f's_add_u32 s{sT0+9}, s{sT0+9}, 1\ns_cmp_lt_u32 s{sT0+9}, s{sLIM}\ns_cbranch_scc1 {Lb}\ns_mov_b32 s{sLIM}, 1')
        I(f'{D}:')
        k.retire()
        s.stamp('kv_ok')
        if L == 0: I(f'buffer_load_dwordx4 v[112:115], v{vFU}, {WS}, 0 offen sc1')
        else: k.put(s.take(P['t1'][L]))
        I('v_cvt_pk_bf16_f32 v70, v64, v65\nv_cvt_pk_bf16_f32 v71, v66, v67\nv_cvt_pk_bf16_f32 v68, v68, v68')
        I(f'ds_write_b64 v{vKVW}, v[70:71]')
        t = I(f'ds_write_b16 v{vZW}, v68')
        k.wait(t); I('s_barrier')
        for n in range(4):
            I(f'ds_read_b128 {a_(aRING+8*n,4)}, v{vZR} offset:{n*16}\nds_read_b128 {a_(aRING+8*n+4,4)}, v{vKVR} offset:{n*256}')
        for n in range(4):
            I(f'v_mfma_f32_32x32x16_bf16 v[80:95], {a_(aRING+8*n,4)}, {v(vTMP+4*n,4)}, {"0" if n == 0 else "v[80:95]"}')
        for n in range(4):
            I(f'v_mfma_f32_32x32x16_bf16 v[64:79], {a_(aRING+8*n+4,4)}, {v(vTMP+4*n,4)}, {"0" if n == 0 else "v[64:79]"}')
        I('v_add_f32 v80, 0x358637bd, v80\nv_add_f32 v88, 0x358637bd, v88\nv_rcp_f32 v80, v80\nv_rcp_f32 v88, v88')
        so = s.SO(s, sT0)
        I(f's_lshl_b32 s{sT0+3}, s{sJ}, 11\ns_add_u32 s{sT0+3}, s{sT0+3}, s{sXIN}')
        for c in range(2):
            for r in range(0, 8, 2): I(f'v_pk_mul_f32 {v(64+8*c+r,2)}, {v(64+8*c+r,2)}, {v(80+8*c,2)} op_sel_hi:[1,0]')
            for r in range(4): I(f'v_cvt_pk_bf16_f32 v{96+4*c+r}, v{64+8*c+2*r}, v{64+8*c+2*r+1}')
            t = s.pub(s.ld(so, v(96+4*c, 4), vL16, sT0+3, bB*0x200000 + c*1024, op='buffer_store_dwordx4'))
        k.wait(t)
        s.flag(sFOP, 0, L + 1)
        s.stamp('opub')
        if L == 0:
            Lb = s.label('FU'); D = s.label('FUD')
            I(f's_mov_b32 s{sT0+9}, 0')
            I(f'{Lb}:')
            for r in range(4): I(f'v_xor_b32 v{112+r}, s{sTAG}, v{112+r}')
            I('v_or3_b32 v112, v112, v113, v114\nv_or_b32 v112, v112, v115\nv_cmp_ne_u32 vcc, 0, v112')
            I(f's_cbranch_vccz {D}')
            with k.cond():
                I(f'buffer_load_dwordx4 v[112:115], v{vFU}, {WS}, 0 offen sc1\ns_waitcnt vmcnt(0)')
                I(f's_add_u32 s{sT0+9}, s{sT0+9}, 1\ns_cmp_lt_u32 s{sT0+9}, s{sLIM}\ns_cbranch_scc1 {Lb}\ns_mov_b32 s{sLIM}, 1')
            I(f'{D}:')
            k.retire()
            s.stamp('fu_ok')
            k.put(fw)
        k.put(s.take(P['t2'][L]))
        return s.stop == f'o{L}'

    def red_write(s, slot, rt2, ct):
        I = s.I; a = vACC + 32*rt2 + 16*ct; t = None
        for h in range(2):
            for r in range(4): I(f'v_cvt_pk_bf16_f32 v{a+8*h+r}, v{a+8*h+2*r}, v{a+8*h+2*r+1}')
            t = I(f'ds_write_b128 v{vT1}, {v(a+8*h,4)} offset:{rt2*16384 + (2*ct+h)*512}')
        return t
    def red_finish(s, slot, scale, L, buf, p, final, pre, after=None):
        I = s.I; k = s.k; rb = vXB + 64
        I(f's_add_u32 s{sT0+3}, s{sM0}, {hex(slot*0x8000)}\nv_add_u32 v{vT0}, s{sT0+3}, v{vL16}')
        k.wait(*pre); I('s_barrier')
        if scale: I(f'ds_read_b32 v{vT2}, v{vRSR}')
        t = None
        for c in range(2):
            for src in range(4): t = I(f'ds_read_b128 {v(rb+16*c+4*src,4)}, v{vT0} offset:{src*2048 + c*1024}')
        so = s.SO(s, sT0)
        for c in range(2):
            for src in range(4):
                for e in range(8):
                    d = (vACC if scale else vRES) + 8*c + e
                    I(f'v_dot2_f32_bf16 v{d}, v{rb+16*c+4*src+e//2}, s{sSELHI if e & 1 else sSELLO}, {"0" if scale and src == 0 else v(d)}')
            if scale:
                for e in range(0, 8, 2): I(f'v_pk_fma_f32 {v(vRES+8*c+e,2)}, {v(vACC+8*c+e,2)}, {v(vT2,2)}, {v(vRES+8*c+e,2)} op_sel_hi:[1,0,1]')
            for r in range(4): I(f'v_cvt_pk_bf16_f32 v{vTMP+4*c+r}, v{vRES+8*c+2*r}, v{vRES+8*c+2*r+1}')
            if final: s.ld(so, v(vTMP+4*c, 4), vNAT, sNAT, 64*c, op='buffer_store_dwordx4', srdn=OS)
            else: s.pub(s.ld(so, v(vTMP+4*c, 4), vPUB, sXPUB, buf*0x200000 + 2048*c, op='buffer_store_dwordx4'))
        if final: return
        for r in range(8):
            I(f'v_dot2_f32_bf16 v{vT2}, v{vTMP+r}, s{sONES}, {"0" if r == 0 else v(vT2)}')
            I(f'v_dot2_f32_bf16 v{vT3}, v{vTMP+r}, v{vTMP+r}, {"0" if r == 0 else v(vT3)}')
        I(f'v_permlane32_swap_b32 v{vT2}, v{vT3}\nv_add_f32 v{vT2}, v{vT2}, v{vT3}\nv_mov_b32 v{vT3}, v{vT2}')
        I(f'v_permlane16_swap_b32 v{vT2}, v{vT3}\nv_add_f32 v{vT2}, v{vT2}, v{vT3}')
        t2 = s.pub(s.ld(so, v(vT2), vSTW, sSTPUB, buf*0x20000, op='buffer_store_dword'))
        k.wait(t2)
        s.flag(sFXP, 0, p)
        if after: after()

    def wo(s, L):
        I = s.I; k = s.k
        b = 2*L; SQ = (b+2) % 4; bA, bB = L, 1 - L
        I(f'v_add_u32 v{vT1}, {hex(SQ*0x8000)}, v{vREDW}')
        if L == 0:
            for i in range(7, -1, -1): I(f'v_and_b32 v{vRES+2*i+1}, 0xffff0000, v{vRES+i}\nv_lshlrev_b32 v{vRES+2*i}, 16, v{vRES+i}')
        s.poll(vFO, sFOC, 0, L + 1)
        s.stamp('o_ok')
        so = s.SO(s, sT0); wob = s.wob; ob = 2*vXB + 64 - wob
        with k.cap() as fl:
            for rt2 in range(2):
                for kk in range(8): s.ld(so, v(ob + 32*rt2 + 4*kk, 4), vL16, sXO, bB*0x200000 + rt2*0x8000 + kk*1024, 'sc1')
        k.put(fl[:8])
        with k.cap() as base:
            for rt2 in range(2):
                for kk in range(8):
                    for ct in range(2):
                        a = vACC + 32*rt2 + 16*ct
                        I(f'v_mfma_f32_32x32x16_bf16 {v(a,16)}, {v(wob+8*kk+4*ct,4)}, {v(ob+32*rt2+4*kk,4)}, {"0" if kk == 0 else v(a,16)}')
        with k.cap() as f1:
            s.red_write(SQ, 0, 0); s.red_write(SQ, 0, 1)
        k.weave(base, (fl[8:], 0, 15), (s.take(s.P['t3'][L]), 18, 31), (f1, 19, 30))
        s.red_write(SQ, 1, 0); t = s.red_write(SQ, 1, 1)
        s.stamp('wo_gemm')
        def after():
            s.bg_tile(3, sGU, 3*0x8000, SQ)
            k.put(s.take(s.P['t4'][L]))
        s.red_finish(SQ, False, L, bA, 2*L + 1, False, [t] + ([] if s.P['late'][L] else [s.tok[0], s.tok[1]]), after)
        s.stamp('x1pub')
        return s.stop == f'x{2*L+1}'

    def gu_epi(s, L, t):
        I = s.I; a = vACC + 16*(t % 4)
        for r in range(8): I(f'v_max_f32 v{a+r}, 0, v{a+r}')
        for r in range(8): I(f'v_mul_f32 v{a+r}, v{a+r}, v{a+8+r}')
        for r in range(4): I(f'v_cvt_pk_bf16_f32 v{a+8+r}, v{a+2*r}, v{a+2*r+1}')
        return s.pub(s.ld(s.soH, v(a+8, 4), vL16, sHPUB, t*1024, op='buffer_store_dwordx4'))
    def gu(s, L):
        I = s.I; k = s.k
        b = 2*L; slot = lambda t: (b + 3 + t) % 4
        bA = L
        s.poll(vFX, sFXC, 0, 2*L + 1)
        s.stamp('x1_ok')
        fill = [s.xloads(bA)]
        if s.P['late'][L]: k.wait(s.tok[0], s.tok[1]); I('s_barrier')
        fill.append((s.take(99), 40, 60))
        with k.cap() as f:
            s.stats()
            I(f'v_rcp_f32 v{vRSTD}, v{vTMP+1}')
            s.tRS = I(f'ds_write_b32 v{vRSW}, v{vRSTD}')
        fill.append((f, 110, 122))
        steps = []
        for kc in range(32): steps += [(slot(0), kc, vACC, kc == 0), (slot(1), kc, vACC+16, kc == 0)]
        for t in range(2, 7): steps += [(slot(t), kc, vACC + 16*(t % 4), kc == 0) for kc in range(32)]
        s.soH = s.SO(s, sT0+4)
        th = {}
        for t in range(2, 7):
            g0 = 32*t
            with k.cap() as f:
                if t == 2: s.gu_epi(L, 0)
                th[t-1] = s.gu_epi(L, t-1)
            fill.append((f, g0 + (1 if t == 2 else 4), g0 + (22 if t == 2 else 14)))
        for t in range(4, 7): s.bg_tile(t, sGU, t*0x8000, slot(t))
        if L == 0:
            s.bg_tile('K', sQKV, 0, slot(3)); s.bg_tile('V', sQKV, 0x8000, slot(4)); s.bg_tile('Q', sQKV, 0x10000, slot(5))
            fill.append((s.take(40), 61, 220))
            fill.append((s.takew(56), 62, 223))
        else:
            fill.append((s.take(24), 61, 156))
        fences = {}
        for t in range(2, 7): fences[32*t - 4] = (32*t, [s.tok[t]])
        base, last = s.gemm(steps, fences)
        with k.cap() as f:
            with k.group():
                k.wait(th[5])
                I(f's_add_u32 s{sT0+5}, s{sFOP}, {hex(FH - FO)}')
                s.flag(sT0+5, 0, 7*L + 6)
        fill.append((f, 32*6 + 27, 32*6 + 27))
        k.weave(base, *fill)
        k.wait(last); I('s_barrier')
        s.gu_epi(L, 6)
        s.stamp('gu')
        return s.stop == f'h{L}'

    def down(s, L):
        I = s.I; k = s.k
        b = 2*L; SR = (b + 3 + 6) % 4; bB = 1 - L
        I(f'v_add_u32 v{vT1}, {hex(SR*0x8000)}, v{vREDW}')
        I(f's_add_u32 s{sT0+6}, s{sFOC}, {hex(FH - FO)}')
        s.poll(vFO, sT0+6, 0, 7*L + 6)
        s.flag(sT0+5, 0, 7*L + 7)
        s.stamp('h_ok')
        order = [(t, jj, rt2) for t in range(7) for jj in range(4) for rt2 in range(2)]
        so = [s.SO(s, sT0), s.SO(s, sT0+2)]
        def hld(i):
            t, jj, rt2 = order[i]
            s.ld(so[rt2], v(vXB + 4*(i % 32), 4), vL16, sHIN, rt2*112*1024 + (7*jj + t)*1024, 'sc1')
        n = s.P['hf']
        for i in range(n): hld(i)
        for i, (t, jj, rt2) in enumerate(order):
            for ct in range(2):
                a = vACC + 32*rt2 + 16*ct
                I(f'v_mfma_f32_32x32x16_bf16 {v(a,16)}, {a_(8*(7*jj+t)+4*ct,4)}, {v(vXB+4*(i%32),4)}, {"0" if i < 2 else v(a,16)}')
            if i + n == 36: I(f'buffer_load_dword v{vT0}, v{vFO}, {WS}, s{sT0+6} offen sc1')
            if i + n == 48:
                D = s.label('H7')
                s.check(vT0, 7*L + 7)
                I(f's_cbranch_vccz {D}')
                with k.cond(): s.poll(vFO, sT0+6, 0, 7*L + 7)
                I(f'{D}:')
            if i + n < 56: hld(i + n)
            elif i % 3 == 0 and i < 55: k.put(s.take(1))
        for rt2 in range(2):
            for ct in range(2): t = s.red_write(SR, rt2, ct)
        s.stamp('dn_gemm')
        def after():
            k.put(s.take(8))
        s.red_finish(SR, True, L, bB, 2*L + 2, L == 1, [t, s.tok['V'], s.tRS], after)
        s.stamp('x2pub')
        return s.stop == f'x{2*L+2}'

    def gen(s):
        I = s.I
        for L in range(2):
            if s.qkv(L) or s.wo(L) or s.gu(L) or s.down(L): break
        I(f's_or_b32 s64, s{sR}, s{sJ}\ns_or_b32 s64, s64, s{sW}\ns_cmp_lg_u32 s64, 0\ns_cbranch_scc1 M_FIN')
        with s.k.cond():
            I(f's_add_u32 s64, s{sE}, 1\nv_mov_b32 v{vT5}, s64\nbuffer_store_dword v{vT5}, v{vL0}, {WS}, 0 offen')
        I('M_FIN:')
        if s.ts:
            s.stamp('end')
            I('s_memrealtime s[78:79]\ns_waitcnt lgkmcnt(0)\nv_writelane_b32 v23, s78, 61')
            I(f'v_writelane_b32 v23, s{sLIM}, 62\nv_writelane_b32 v23, s{sSLOW}, 63')
            I(f's_lshl_b32 s64, s{sR}, 4\ns_add_u32 s64, s64, s{sJ}\ns_lshl_b32 s64, s64, 2\ns_add_u32 s64, s64, s{sW}\ns_lshl_b32 s64, s64, 8\ns_add_u32 s64, s64, {hex(TS)}')
            I(f'v_lshlrev_b32 v{vT0}, 2, v0\nbuffer_store_dword v23, v{vT0}, {WS}, s64 offen')
        I('s_waitcnt vmcnt(0)\nM_END:\ns_endpgm')
        return s.k

HEADER = open('cdna_kernels/' + NAME + '.s.ref').read().split('; Override')[0] if __name__ == '__main__' else ''

def build(stop=None, ts=False, header='', **kw):
    st = {}
    m = Main(stop, ts, **kw)
    main = m.gen().finish(st)
    txt = header
    txt += f'; @launch grid=(256,1,1) block=(256,1,1) lds={LDS_MAIN}\n'
    txt += '.amdgcn_target "amdgcn-amd-amdhsa--gfx950"\n.text\n'
    txt += head(NAME + '_kernel') + main + '\n'
    txt += kd(NAME + '_kernel', 512, 256)
    return txt, (st, m.tsnames)

if __name__ == '__main__':
    txt, st = build(header=HEADER)
    out = sys.argv[1] if len(sys.argv) > 1 else 'cdna_kernels/' + NAME + '.s'
    open(out, 'w').write(txt); print(st, len(txt))
```

```python
import re, contextlib

TRANS = ('v_exp_f32', 'v_log_f32', 'v_rcp_f32', 'v_rsq_f32', 'v_sqrt_f32', 'v_sin_f32', 'v_cos_f32')
RX = re.compile(r'^-?\|?([vas])(\d+)\|?$')
RR = re.compile(r'^-?\|?([vas])\[(\d+):(\d+)\]\|?$')

def regs(tok):
    tok = tok.strip()
    m = RX.match(tok)
    if m: return [(m.group(1), int(m.group(2)))]
    m = RR.match(tok)
    if m: return [(m.group(1), i) for i in range(int(m.group(2)), int(m.group(3)) + 1)]
    if tok in ('vcc', 'vcc_lo', 'vcc_hi'): return [('s', 'vcc')]
    if tok in ('exec', 'exec_lo', 'exec_hi'): return [('s', 'exec')]
    if tok == 'm0': return [('s', 'm0')]
    return []

class Ins:
    __slots__ = ('text', 'op', 'kind', 'dst', 'src', 'A', 'B', 'C', 'passes', 'maybe', 'dpp', 'wide', 'data',
                 'lds', 'waits', 'nops', 'vmidx', 'lgidx', 'srcv', 'alt')
    def __init__(s, text, maybe=False):
        s.text = text; s.maybe = maybe; s.alt = None
        s.dst = set(); s.src = set(); s.A = s.B = s.C = None; s.passes = 0; s.dpp = False; s.wide = False
        s.data = set(); s.lds = False; s.waits = []; s.nops = 1; s.vmidx = None; s.lgidx = None
        t = text.split(';')[0].strip()
        if t.endswith(':') or t.startswith('.') or t == '':
            s.op = t; s.kind = 'label'; s.nops = 0; return
        parts = t.split(None, 1)
        op = parts[0]; s.op = op
        rest = parts[1] if len(parts) > 1 else ''
        ops = []; depth = 0; cur = ''
        for ch in rest:
            if ch == '[': depth += 1
            if ch == ']': depth -= 1
            if ch == ',' and depth == 0: ops.append(cur.strip()); cur = ''
            else: cur += ch
        if cur.strip(): ops.append(cur.strip())
        mods = []
        if ops:
            w = ops[-1].split()
            ops[-1] = w[0]; mods = w[1:]
        R = [regs(o) for o in ops]
        allr = lambda l: set(x for r in l for x in r)
        if op.startswith('v_mfma'):
            s.kind = 'mfma'; s.dst = set(R[0]); s.A = set(R[1]); s.B = set(R[2]); s.C = R[3]
            s.src = s.A | s.B | set(s.C)
            s.passes = 8 if '32x32x16' in op else 4 if '16x16x32' in op else None
            assert s.passes, op
        elif op.startswith('v_'):
            s.kind = 'valu'
            s.dst = set(R[0]); s.src = allr(R[1:])
            if 'permlane' in op and 'swap' in op: s.dst = allr(R); s.src = allr(R)
            if op.startswith(('v_fmac', 'v_dot2c', 'v_pk_fmac', 'v_writelane')): s.src |= s.dst
            if op.endswith('_dpp') or any(m.startswith(('quad_perm', 'row_')) for m in mods):
                s.dpp = True; s.src |= s.dst
            if op.startswith('v_cmpx'): s.dst.add(('s', 'exec'))
        elif op.startswith('ds_'):
            s.kind = 'ds'
            if op.startswith(('ds_read', 'ds_bpermute', 'ds_permute', 'ds_swizzle')): s.dst = set(R[0]); s.src = allr(R[1:])
            else: s.src = allr(R)
        elif op.startswith('buffer_'):
            s.kind = 'vmem'
            if op == 'buffer_wbl2': pass
            elif 'lds' in mods:
                s.lds = True; s.src = allr(R) | {('s', 'm0')}
            elif op.startswith('buffer_load'): s.dst = set(R[0]); s.src = allr(R[1:])
            else:
                s.src = allr(R); s.data = set(R[0]); s.wide = len(R[0]) >= 3
        elif op.startswith('global_load'):
            s.kind = 'vmem'; s.dst = set(R[0]); s.src = allr(R[1:])
        elif op.startswith(('s_load', 's_memtime', 's_memrealtime', 's_buffer_load')):
            s.kind = 'smem'; s.dst = set(R[0]); s.src = allr(R[1:])
        elif op == 's_waitcnt': s.kind = 'wait'
        elif op == 's_nop': s.kind = 'nop'; s.nops = int(ops[0]) + 1
        elif op in ('s_barrier', 's_endpgm', 's_setprio', 's_sleep') or op.startswith(('s_cbranch', 's_branch')): s.kind = 'ctl'
        elif op == 'WAIT': s.kind = 'pseudo'; s.nops = 0
        elif op.startswith('s_'):
            s.kind = 'salu'
            if op.startswith(('s_cmp', 's_bitcmp')): s.src = allr(R)
            else: s.dst = set(R[0]); s.src = allr(R[1:])
            if 'saveexec' in op: s.dst.add(('s', 'exec'))
        else:
            raise ValueError('unknown op ' + text)
        s.srcv = set(x for x in s.src if x[0] != 's')

class Asm:
    def __init__(s):
        s.cur = []; s.maybe = False
    def I(s, text):
        r = None
        for l in text.split('\n'):
            l = l.strip()
            if not l: continue
            r = Ins(l, s.maybe); s.cur.append(r)
        return r
    def wait(s, *toks):
        w = Ins('WAIT'); w.waits = [t for t in toks if t is not None]; s.cur.append(w); return w
    def retire(s):
        w = Ins('WAIT'); w.op = 'RETIRE'; s.cur.append(w); return w
    @contextlib.contextmanager
    def cap(s):
        old = s.cur; lst = []; s.cur = lst
        try: yield lst
        finally: s.cur = old
    @contextlib.contextmanager
    def group(s):
        old = s.cur; lst = []; s.cur = lst
        try: yield lst
        finally:
            s.cur = old; s.cur.append(lst)
    @contextlib.contextmanager
    def cond(s):
        old = s.maybe; s.maybe = True
        try: yield
        finally: s.maybe = old
    def put(s, lst): s.cur.extend(lst)
    def weave(s, base, *streams):
        def isM(x): return (not isinstance(x, list)) and x.kind == 'mfma'
        ng = sum(1 for x in base if isM(x))
        slots = [[] for _ in range(ng + 1)]
        for items, g0, g1 in streams:
            g1 = min(g1, ng - 1); n = len(items)
            if g1 < g0: slots[ng].extend(items); continue
            span = g1 - g0 + 1
            for i, it in enumerate(items): slots[g0 + (i * span) // n].append(it)
        g = 0
        for x in base:
            s.cur.append(x)
            if isM(x): s.cur.extend(slots[g]); g += 1
        s.cur.extend(slots[ng])

    def sprinkle(s, base, items, first, every):
        it = list(items)
        for i, x in enumerate(base):
            s.cur.append(x)
            if it and i >= first and (i - first) % every == 0: s.cur.append(it.pop(0))
        s.cur.extend(it)

    @staticmethod
    def flat(l):
        for x in l:
            if isinstance(x, list): yield from Asm.flat(x)
            else: yield x

    def finish(s, stats=None):
        src = list(Asm.flat(s.cur)); out = []
        vmq = []; lgq = []
        issued = set()
        nnop = 0; alts = []
        def cnt_after(q, ins):
            i = q.index(ins); return sum(1 for x in q[i + 1:] if not x.maybe)
        for ins in src:
            needv = None; needl = None
            def need(p):
                nonlocal needv, needl
                if p in vmq:
                    c = cnt_after(vmq, p); needv = c if needv is None else min(needv, c)
                elif p in lgq:
                    c = 0 if any(x.kind == 'smem' for x in lgq) else cnt_after(lgq, p)
                    needl = c if needl is None else min(needl, c)
            for t in ins.waits:
                assert id(t) in issued, ('wait on token not yet issued', t.text)
                need(t)
            touched = ins.src | ins.dst
            if touched:
                for p in vmq:
                    if p.dst and (p.dst & ins.src or (p.dst & ins.dst and ins.kind != 'vmem')): need(p)
                for p in lgq:
                    if p.dst and (p.dst & ins.src or (p.dst & ins.dst and not (ins.kind == 'ds' and p.kind == 'ds'))): need(p)
            if needv is not None or needl is not None:
                w = []
                if needv is not None:
                    needv = min(needv, 63); w.append(f'vmcnt({needv})')
                if needl is not None:
                    needl = min(needl, 15); w.append(f'lgkmcnt({needl})')
                wi = Ins('s_waitcnt ' + ' '.join(w), ins.maybe)
                s._applywait(wi, vmq, lgq); out.append(wi)
            if ins.op == 'RETIRE': vmq[:] = [x for x in vmq if not x.maybe]
            if ins.kind == 'pseudo': continue
            if ins.kind == 'wait': s._applywait(ins, vmq, lgq)
            n = s._hazard(out, ins)
            while n > 0:
                k = min(n, 16); out.append(Ins(f's_nop {k - 1}', ins.maybe)); n -= k; nnop += k
            if ins.alt:
                sel, txt = ins.alt; n = len(alts)
                out.append(Ins(f's_cmp_lg_u32 {sel}, 0', ins.maybe)); out.append(Ins(f's_cbranch_scc1 ALT_{n}', ins.maybe))
                out.append(ins); out.append(Ins(f'ALTB_{n}:'))
                alts.append(f'ALT_{n}:\n  {txt}\n  s_branch ALTB_{n}')
            else: out.append(ins)
            issued.add(id(ins))
            if ins.kind == 'vmem': vmq.append(ins)
            if ins.kind in ('ds', 'smem'): lgq.append(ins)
        if stats is not None:
            stats['n'] = sum(1 for x in out if x.kind != 'label'); stats['nopstates'] = nnop
        return '\n'.join([('' if x.kind == 'label' else '  ') + x.text for x in out] + alts)

    @staticmethod
    def _applywait(w, vmq, lgq):
        if w.maybe: return
        m = re.search(r'vmcnt\((\d+)\)', w.text)
        if m:
            n = int(m.group(1))
            k = len(vmq); c = 0
            while k > 0 and c < n:
                k -= 1
                if not vmq[k].maybe: c += 1
            if n > 0:
                while k > 0 and vmq[k - 1].maybe and c < n: k -= 1
            del vmq[:k]
        m = re.search(r'lgkmcnt\((\d+)\)', w.text)
        if m:
            n = int(m.group(1))
            if n == 0: del lgq[:]
            elif not any(x.kind == 'smem' for x in lgq):
                k = len(lgq); c = 0
                while k > 0 and c < n:
                    k -= 1
                    if not lgq[k].maybe: c += 1
                del lgq[:k]

    @staticmethod
    def _hazard(out, c):
        if c.kind in ('label', 'wait', 'nop', 'ctl', 'pseudo'): return 0
        need = 0; dist = 0
        cv = c.kind in ('valu', 'mfma', 'ds', 'vmem')
        for p in reversed(out):
            if dist >= 20: break
            req = 0
            if p.kind == 'mfma':
                P = p.passes
                if c.kind == 'mfma':
                    if p.dst & (c.A | c.B): req = max(req, 12 if P == 8 else 8)
                    cs = set(c.C)
                    if p.dst & cs and not (p.dst == cs and P == c.passes): req = max(req, 10 if P == 8 else 6)
                    if p.dst & c.dst and not (p.dst == cs and P == c.passes): req = max(req, 10 if P == 8 else 6)
                elif cv:
                    if p.dst & (c.src | c.dst): req = max(req, 12 if P == 8 else 8)
                    if set(p.C) & c.dst: req = max(req, 7 if P == 8 else 3)
            elif p.kind == 'valu':
                pv = set(x for x in p.dst if x[0] != 's'); ps = p.dst - pv
                if c.kind == 'mfma':
                    if pv & c.src: req = max(req, 2)
                    if ('s', 'exec') in ps: req = max(req, 4)
                if c.kind == 'valu':
                    if p.op.replace('_e32', '').replace('_e64', '') in TRANS and pv & c.src: req = max(req, 1)
                    if ('permlane' in c.op or c.dpp) and pv & c.src: req = max(req, 2)
                    if c.op.startswith(('v_readfirstlane', 'v_readlane')) and pv & c.src: req = max(req, 1)
                    if ps & c.src: req = max(req, 4 if c.op.startswith(('v_readlane', 'v_writelane')) else 2)
                    if ('s', 'exec') in ps: req = max(req, 5)
                    if 'op_sel' in p.text and not p.op.startswith('v_pk') and pv & (c.src | c.dst): req = max(req, 1)
                if p.op.startswith('v_dot') and cv and pv & (c.src | c.dst):
                    same = c.kind == 'valu' and c.op == p.op
                    if same:
                        ops = c.text.split(None, 1)[1].split(',')
                        ab = set(regs(ops[1])) | set(regs(ops[2]))
                        if pv & ab: req = max(req, 3)
                    else: req = max(req, 3)
                if c.kind == 'vmem' and ps & c.src: req = max(req, 5)
                if c.kind in ('salu', 'smem') and ps & c.src: req = max(req, 1)
            elif p.kind == 'salu':
                if ('s', 'm0') in p.dst and c.kind == 'vmem' and c.lds: req = max(req, 1)
            elif p.kind == 'vmem':
                if p.wide and p.data & c.dst: req = max(req, 2)
            need = max(need, req - dist)
            if not p.maybe or p.maybe == c.maybe: dist += p.nops
        return need
```

```python
import sys, contextlib
from asm import Asm, Ins
NAME = 'interleave_layers__linear_kernel_hedgehog__glu_gated_reglu__prompt'

FX, FO, FH, FU, S0 = 0x2000, 0x4000, 0x6000, 0x30000, 0x10000
CS = 0x20000
ST = 0x40000
XB = (0x200000, 0x400000)
KVP = 0x600000
HB = 0x800000
WQKV, WO_P, WD_P, WGU = 0x1000000, 0x1180000, 0x1200000, 0x1400000
TS = 0x2000000
WS_SIZE = 0x10000000
OOB = 0x7ffffff0
XA = 0x20000; PS = 2112
KVA = 0x26400; ZA = 0x26C00; ZERO = 0x26D00; RS = 0x27100
SUMS = (0x27400, 0x27600, 0x27C00, 0x27E00); WPH = 0x27800
LDS_MAIN = 163840

def v(a, n=1): return f'v{a}' if n == 1 else f'v[{a}:{a+n-1}]'
def a_(a, n=1): return f'a{a}' if n == 1 else f'a[{a}:{a+n-1}]'
def s_(a, n=1): return f's{a}' if n == 1 else f's[{a}:{a+n-1}]'

def kd(name, vgpr, acc, sgpr=102):
    return f'''.section .rodata,"a"
.p2align 6
.amdhsa_kernel {name}
  .amdhsa_next_free_vgpr {vgpr}
  .amdhsa_next_free_sgpr {sgpr}
  .amdhsa_accum_offset {acc}
  .amdhsa_group_segment_fixed_size 0
  .amdhsa_kernarg_size 88
  .amdhsa_user_sgpr_count 2
  .amdhsa_user_sgpr_kernarg_segment_ptr 1
  .amdhsa_system_sgpr_workgroup_id_x 1
.end_amdhsa_kernel
.text
'''
def head(name):
    return f'.globl {name}\n.p2align 8\n.type {name},@function\n{name}:\n'

def srd(I, d, b, size):
    I(f's_mov_b32 s{d}, s{b}\ns_mov_b32 s{d+1}, s{b+1}\ns_mov_b32 s{d+2}, {hex(size)}\ns_mov_b32 s{d+3}, 0x20000')

WS, XS, OS, DS = 's[8:11]', 's[12:15]', 's[16:19]', 's[20:23]'
sW, sG, sRK, sR, sJ, sHB, sCG, sTAG, sE, sLIM = 24, 25, 26, 27, 28, 29, 30, 31, 32, 33
sQKV, sGU, sWO, sWD = 34, 35, 36, 37
sXIN, sXO, sXPUB, sSTIN, sSTPUB = 38, 39, 40, 41, 42
sHPUB, sHIN, sFXC, sFXP, sFOC, sFOP, sKVP, sKVC, sNAT, sM0 = 43, 44, 45, 46, 47, 48, 49, 50, 51, 52
sSELLO, sSELHI, sONES, sLOG2E, sOM, sSLOW, sMARK = 53, 54, 55, 56, 57, 58, 59
sT0 = 60
QS, US, PS_, DS2, CSRD = 's[80:83]', 's[84:87]', 's[88:91]', 's[72:75]', 's[4:7]'
sPO, sWM, sXB, sXM, sUB, sUST, sUD = 92, 96, 97, 98, 99, 100, 101
sUKC, sUCS, sUB2, sUD2 = 76, 77, 88, 89
vW0, vX0, vU0, vWR, vXR, vSW, vSR, vWW = 32, 34, 36, 38, 40, 44, 45, 46
vUR, vUD = 40, 42
vMU, vMK = 20, 22
vROW = 240
vL, vL16, vL16b, vFX, vFO, vL0, vSTL, vPUB, vPHW, vTRA, vTRB, vKVW, vZW, vKVR, vZR, vREDW, vNAT, vSTW, vRSW, vRSR = range(20)
vRSTD, vC, vT0, vT1, vT2, vT3, vT4, vT5 = range(24, 32)
vRES = 32; vTMP = 48; vACC = 64; vXB = 128; aRING = 224

P0 = dict(xf=8, hf=10, uf='nt', xnt='nt', rnt='nt', ct=1, k0=20, kn=6,
          sp=(0, 0, 1), xa=6, xe=8, tp=('', 20, 30), xb=4, xc=4, xd=1, xr=3.0, ug=0, kq=((2, 8), (2, 8)), fg=110, fup=1, sl=12, oq=((0, 6), (0, 12)), ot=(0, 0), on=(4, 4), oe=35, og=(4, 0), tw=('Xf', ''), twp=(1, 1),
          t1=(0, 6), t2=(8, 8), t3=(6, 6), t4=(10, 8), late=(1, 1),
          tk=('', 'xf'), tkg=(59, 60), hm='sc1', tg=((('XSf', 190),), (('f', 190),)), to=('xs', ''))
class Main:
    def __init__(s, stop=None, ts=False, **kw):
        s.k = Asm(); s.I = s.k.I; s.stop = stop; s.ts = ts; s.nl = 0; s.nts = 0; s.tsnames = []; s.bg = []; s.m0dirty = False; s.bw = []; s.tok = {}; s.P = dict(P0); s.P.update(kw)
    def label(s, p):
        s.nl += 1; return f'{p}_{s.nl}'
    def stamp(s, name):
        if not s.ts: return
        r = 80 + 2*(s.nts % 10)
        s.tsnames.append(name)
        with s.k.group():
            s.I(f's_mem{"real" if s.P.get("gstat") else ""}time s[78:79]\ns_waitcnt lgkmcnt(0)\nv_writelane_b32 v23, s78, {s.nts}')
        s.nts += 1
    class SO:
        def __init__(o, m, tmp): o.m = m; o.tmp = tmp; o.key = None
        def get(o, base, off):
            hi = off & ~4095; lo = off & 4095
            if hi == 0: return f's{base}', lo
            if o.key != (base, hi):
                o.m.I(f's_add_u32 s{o.tmp}, s{base}, {hex(hi)}'); o.key = (base, hi)
            return f's{o.tmp}', lo
    def ld(s, so, dst, voff, base, off, mod='', op='buffer_load_dwordx4', srdn=WS):
        with s.k.group():
            r, lo = so.get(base, off)
            t = s.I(f'{op} {dst}, v{voff}, {srdn}, {r} offen' + (f' offset:{lo}' if lo else '') + (' ' + mod if mod else ''))
        return t
    def pub(s, t):
        t.alt = (f's{sSLOW}', t.text + ' sc1'); return t
    def dma_tile(s, so, base, off, slot):
        t = None
        for h in range(2):
            for i in range(4):
                with s.k.group():
                    if i == 0:
                        s.I(f's_add_u32 m0, s{sM0}, {hex(slot*0x8000 + h*4096)}')
                        s.I(f's_add_u32 s{so}, s{base}, {hex(off + h*4096)}')
                    t = s.I(f'buffer_load_dwordx4 v{vL16}, {WS}, s{so} offen' + (f' offset:{i*1024}' if i else '') + ' sc1 lds')
        return t
    def bg_tile(s, key, base, off, slot):
        with s.k.cap() as f: s.tok[key] = s.dma_tile(sT0+1, base, off, slot)
        s.bg += f
    def take(s, n):
        r = s.bg[:n]; s.bg = s.bg[n:]
        if r and len(r[0]) == 1 and s.m0dirty: r[0] = [Ins(x.text) for x in s.setup] + r[0]
        if r: s.m0dirty = False
        for g in r:
            if len(g) == 3: s.setup = g[:2]
        return r
    def takew(s, n):
        r = s.bw[:n]; s.bw = s.bw[n:]; return r
    def check(s, vt, p):
        s.I(f's_add_u32 s{sT0+8}, s{sTAG}, {p}\nv_subrev_u32 v{vt}, s{sT0+8}, v{vt}\nv_cmp_lt_u32 vcc, 15, v{vt}')
    def poll(s, voff, sbase, off, p, vt=vT0):
        I = s.I; L = s.label('POLL'); D = s.label('PD')
        I(f's_mov_b32 s{sT0+9}, 0')
        I(f'{L}:')
        I(f'buffer_load_dword v{vt}, v{voff}, {WS}, s{sbase} offen' + (f' offset:{off}' if off else '') + ' sc1')
        I('s_waitcnt vmcnt(0)')
        s.check(vt, p)
        I(f's_cbranch_vccz {D}')
        with s.k.cond():
            I(f's_add_u32 s{sT0+9}, s{sT0+9}, 1\ns_cmp_lt_u32 s{sT0+9}, s{sLIM}\ns_cbranch_scc1 {L}\ns_mov_b32 s{sLIM}, 1')
        I(f'{D}:')
    def flag(s, sbase, off, p):
        with s.k.group():
            s.I(f's_add_u32 s{sT0+10}, s{sTAG}, {p}\nv_mov_b32 v{vT5}, s{sT0+10}')
            s.pub(s.I(f'buffer_store_dword v{vT5}, v{vL0}, {WS}, s{sbase} offen' + (f' offset:{off}' if off else '')))
    def tX(s, buf, t=vT3):
        with s.k.group():
            s.I(f's_lshl_b32 s{sT0+11}, s{sJ}, 11\ns_add_u32 s{sT0+11}, s{sT0+11}, s{sXIN}' + (f'\ns_add_u32 s{sT0+11}, s{sT0+11}, 0x200000' if buf else ''))
            s.I(f'v_lshlrev_b32 v{t}, 5, v{vFX}\nbuffer_load_dword v21, v{t}, {WS}, s{sT0+11} offen sc1')
    def tS(s, buf, t=vT3):
        with s.k.group():
            if buf: s.I(f's_add_u32 s{sT0+11}, s{sSTIN}, 0x20000')
            s.I(f'v_lshlrev_b32 v{t}, 5, v{vFX}\nbuffer_load_dword v21, v{t}, {WS}, s{sT0+11 if buf else sSTIN} offen sc1')
    def tF(s, t=vT3):
        with s.k.group():
            s.I(f'v_and_b32 v{t}, 3, v0\nv_lshlrev_b32 v{t}, 13, v{t}\nbuffer_load_dword v21, v{t}, {WS}, s{sFXC} offen sc1')
    def tH(s, t=vT3):
        with s.k.group():
            s.I(f'v_min_u32 v{t}, 55, v0\nv_lshlrev_b32 v{t}, 7, v{t}\nbuffer_load_dword v21, v{t}, {WS}, s{sHPUB} offen sc1')
    def touches(s, names, t=vT3):
        with s.k.cap() as f:
            for n in names:
                {'x': lambda: s.tX(0, t), 'X': lambda: s.tX(1, t), 's': lambda: s.tS(0, t), 'S': lambda: s.tS(1, t), 'f': lambda: s.tF(t), 'h': lambda: s.tH(t)}[n]()
        return f
    def ldsA(s, slot, kc):
        a = slot*0x8000 + kc*1024
        return (vL16, a) if a < 0x10000 else (vL16b, a - 0x10000)
    def gemm(s, steps, fences={}, LA=6):
        I = s.I; n = len(steps); nr = 0; last = None
        blocked = sorted((f[0], g) for g, f in fences.items())
        def limit(i):
            for st, g in blocked:
                if g > i: return st
            return n
        def rd():
            nonlocal nr, last
            vr, off = s.ldsA(steps[nr][0], steps[nr][1])
            last = I(f'ds_read_b128 {a_(aRING + 4*(nr % 8), 4)}, v{vr} offset:{off}'); nr += 1
        with s.k.cap() as base:
            while nr < min(LA, limit(-1)): rd()
            for i, (slot, kc, acc, first) in enumerate(steps):
                assert nr > i
                I(f'v_mfma_f32_32x32x16_bf16 {v(acc,16)}, {a_(aRING + 4*(i % 8), 4)}, {v(vXB+4*kc,4)}, {"0" if first else v(acc,16)}')
                if i in fences:
                    assert nr == fences[i][0], (nr, i, fences[i])
                    s.k.wait(last, *fences[i][1]); I('s_barrier')
                c = 0
                while nr < min(i + 1 + LA, limit(i), n) and c < 2: rd(); c += 1
        return base, last

    def init0(s):
        I = s.I; k = s.k
        I('s_cmp_ge_u32 s2, 256\ns_cbranch_scc1 M_END')
        I('s_load_dwordx2 s[80:81], s[0:1], 8\ns_load_dwordx2 s[88:89], s[0:1], 16\ns_load_dwordx2 s[12:13], s[0:1], 0')
        if s.ts:
            I('s_memtime s[78:79]\ns_memrealtime s[70:71]'); s.tsnames.append('start'); s.nts = 1
        I(f's_lshr_b32 s{sRK}, s2, 3')
        if s.P['ct']:
            I(f's_getpc_b64 s[4:5]\nPC0:\nv_lshrrev_b32 v2, 4, v0\nv_lshl_add_u32 v2, s{sRK}, 4, v2\nv_lshlrev_b32 v2, 7, v2\nv_min_u32 v2, CODE_END-PC0-4, v2')
            I(f'v_mov_b32 v3, s5\nv_add_co_u32 v2, vcc, s4, v2\nv_addc_co_u32 v3, vcc, 0, v3, vcc\nglobal_load_dword v21, v[2:3], off')
        I(f'v_lshrrev_b32 v1, 6, v0\nv_and_b32 v0, 63, v0\nv_readfirstlane_b32 s{sW}, v1')
        I(f's_mov_b32 s82, {hex(512*3072)}\ns_mov_b32 s83, 0x20000\ns_lshr_b32 s64, s{sRK}, 4')
        I(f's_and_b32 s{sJ}, s{sRK}, 15\ns_and_b32 s{sCG}, s{sJ}, 7\ns_lshl_b32 s{sM0}, s{sW}, 13')
        I(f's_lshl_b32 s65, s64, 11\ns_add_u32 s{sWM}, s65, s{sM0}')
        I(f's_lshl_b32 s65, s{sCG}, 1\ns_lshl_b32 s66, s{sW}, 2\ns_xor_b32 s65, s65, s66\ns_or_b32 s67, s64, s65')
        I(f's_lshl_b32 s65, s{sJ}, 6\ns_mul_i32 s66, s67, {32*3072}\ns_add_u32 s{sPO}, s66, s65')
        I(f'v_lshrrev_b32 v48, 2, v0\nv_and_b32 v49, 3, v0\nv_lshrrev_b32 v51, 4, v0\nv_xor_b32 v49, v49, v51\nv_lshlrev_b32 v49, 4, v49')
        I(f'v_mul_u32_u24 v{vW0}, 3072, v48\nv_add_u32 v{vW0}, v{vW0}, v49\nv_add_u32 v{vW0+1}, {16*3072-1024}, v{vW0}')
        I('s_waitcnt lgkmcnt(0)')
        s.wdma(0, 0, 1024)
        I('s_load_dwordx2 s[8:9], s[0:1], 80\ns_load_dwordx2 s[16:17], s[0:1], 64\ns_load_dwordx2 s[20:21], s[0:1], 72')
        I('s_load_dwordx4 s[40:43], s[0:1], 40\ns_load_dwordx2 s[72:73], s[0:1], 56')
        I(f's_mov_b32 s90, {hex(32*512)}\ns_mov_b32 s91, 0x20000\nv_lshlrev_b32 v{vL16}, 4, v0\ns_lshl_b32 s66, s{sJ}, 10\ns_mov_b32 m0, {hex(WPH)}')
        s.tok['P'] = I(f'buffer_load_dwordx4 v{vL16}, {PS_}, s66 offen lds')
        s.wdma(0, 1, 2048)
        I(f's_and_b32 s{sG}, s2, 7\ns_lshl_b32 s{sR}, s{sG}, 1\ns_add_u32 s{sR}, s{sR}, s64\ns_mov_b32 s14, {hex(2048*1024)}\ns_mov_b32 s15, 0x20000')
        I(f's_lshl_b32 s64, s{sR}, 17\ns_lshl_b32 s66, s{sJ}, 13\ns_add_u32 s64, s64, s66\ns_lshl_b32 s66, s{sW}, 11\ns_add_u32 s64, s64, s66')
        I(f'buffer_load_dwordx4 {v(vROW,4)}, v{vL16}, {XS}, s64 offen {s.P["rnt"]}\nbuffer_load_dwordx4 {v(vROW+4,4)}, v{vL16}, {XS}, s64 offen offset:1024 {s.P["rnt"]}')
        if s.ts: I('v_mov_b32 v23, 0\nv_writelane_b32 v23, s78, 0\nv_writelane_b32 v23, s70, 60')
        s.stamp('r1')
        if s.P.get('lat'):
            for n in (7, 6, 5, 4, 3, 2, 0): I(f's_waitcnt vmcnt({n})'); s.stamp(f'vm{n}')
        for p in range(1, 4): I(f's_xor_b32 s66, s67, {p}\ns_mul_i32 s66, s66, {32*3072}\ns_add_u32 s{sPO+p}, s66, s65')
        for d, size in ((8, WS_SIZE), (16, 2048*1024), (20, 256)):
            I(f's_mov_b32 s{d+2}, {hex(size)}\ns_mov_b32 s{d+3}, 0x20000')
        I(f's_lshr_b32 s{sHB}, s{sJ}, 3')
        I(f's_lshl_b32 s64, s{sR}, 2\ns_add_u32 s64, s64, s{sW}\ns_lshl_b32 s64, s64, 15\ns_lshl_b32 s65, s{sCG}, 7\ns_or_b32 s64, s64, s65\ns_lshl_b32 s65, s{sHB}, 14\ns_or_b32 s{sXB}, s64, s65')
        I(f's_lshl_b32 s65, s{sHB}, 11\ns_or_b32 s{sXM}, s65, s{sM0}')
        I(f'v_and_b32 v50, 7, v0\nv_lshlrev_b32 v53, 4, v50\nv_xor_b32 v50, v50, v51\nv_lshlrev_b32 v50, 4, v50\nv_lshrrev_b32 v52, 3, v0\nv_lshl_or_b32 v{vX0}, v52, 10, v50')
        I(f'v_xor_b32 v{vX0+1}, 64, v{vX0}\nv_add_u32 v{vX0+1}, {8192-1024}, v{vX0+1}')
    def wdma(s, p, slot, col):
        with s.k.group():
            s.I(f's_xor_b32 m0, s{sWM}, {hex(slot*0x8000 + p*2048)}\ns_add_u32 s{sT0+1}, s{sPO+p}, {col}')
            s.I(f'buffer_load_dwordx4 v{vW0}, {QS}, s{sT0+1} offen lds')
            return s.I(f'buffer_load_dwordx4 v{vW0+1}, {QS}, s{sT0+1} offen offset:1024 lds')
    def udma(s, i):
        with s.k.group():
            s.I(f's_add_u32 m0, s{sM0}, {hex(0x18000 + i*1024)}')
            if i < 4:
                t = s.I(f'buffer_load_dwordx4 v{vU0}, {US}, s{sUB} offen {s.P["uf"]} lds')
                if i < 3: s.I(f's_add_u32 s{sUB}, s{sUB}, {8*3584}')
            else:
                t = s.I(f'buffer_load_dwordx4 v{vU0+1}, {DS2}, s{sUB2} offen {s.P["uf"]} lds')
                if i < 5: s.I(f's_add_u32 s{sUB2}, s{sUB2}, 8192')
            return t
    def xreg(s, c): return (2 + (c >> 1 & 1))*0x8000 + (c & 1)*4096
    def xdma(s, c, p):
        with s.k.group():
            s.I(f's_xor_b32 m0, s{sXM}, {hex(s.xreg(c) + p*2048)}\ns_xor_b32 s{sT0+1}, s{sXB}, {hex(c*128 + p*16384)}')
            s.I(f'buffer_load_dwordx4 v{vX0}, {XS}, s{sT0+1} offen {s.P["xnt"]} lds')
            return s.I(f'buffer_load_dwordx4 v{vX0+1}, {XS}, s{sT0+1} offen offset:1024 {s.P["xnt"]} lds')
    def unit(s):
        I = s.I; k = s.k
        I(f's_lshr_b32 s64, s2, 6\ns_and_b32 s65, s2, 63\ns_and_b32 s66, s2, 7')
        I(f's_lshr_b32 s67, s{sW}, 1\ns_lshl_b32 s67, s67, 2\ns_and_b32 s68, s{sW}, 1\ns_or_b32 s67, s67, s68\ns_lshl_b32 s67, s67, 8')
        I(f's_mov_b32 s87, 0x20000\ns_mov_b32 s75, 0x20000')
        with k.group(): I(f's_cmp_lt_u32 s65, 56\ns_cselect_b32 s74, {hex(1792*1024)}, 0\ns_cselect_b32 s68, 0, 0x70000000')
        I(f's_mov_b32 s86, s74\ns_mul_i32 s70, s64, 7\ns_lshr_b32 s71, s65, 3\ns_add_u32 s70, s70, s71')
        I(f's_lshl_b32 s{sUB2}, s70, 16\ns_lshl_b32 s71, s{sW}, 14\ns_add_u32 s{sUB2}, s{sUB2}, s71\ns_lshl_b32 s71, s66, 7\ns_add_u32 s{sUB2}, s{sUB2}, s71')
        I(f's_mul_i32 s{sUD2}, s66, {224*1024}\ns_lshl_b32 s70, s70, 13\ns_add_u32 s{sUD2}, s{sUD2}, s70\ns_add_u32 s67, s67, s68\ns_add_u32 s{sUD2}, s{sUD2}, s67\ns_add_u32 s{sUD2}, s{sUD2}, {hex(WD_P)}')
        with k.group(): I(f's_cmp_ge_u32 s65, 28\ns_cselect_b32 s84, s42, s40\ns_cselect_b32 s85, s43, s41\ns_cselect_b32 s70, 28, 0\ns_cselect_b32 s71, 1, 0')
        I(f's_sub_u32 s65, s65, s70\ns_lshl_b32 s{sUB}, s65, 7\ns_lshl_b32 s65, s65, 2\ns_add_u32 s65, s65, s{sW}')
        I(f's_lshl_b32 s69, s64, 2\ns_add_u32 s69, s69, s{sW}\ns_mul_i32 s69, s69, {32*3584}\ns_add_u32 s{sUB}, s{sUB}, s69')
        I(f's_lshl_b32 s{sUD}, s65, 15\ns_lshl_b32 s70, s64, 13\ns_add_u32 s{sUD}, s{sUD}, s70\ns_lshl_b32 s70, s71, 8\ns_add_u32 s70, s70, s68\ns_add_u32 s{sUD}, s{sUD}, s70\ns_add_u32 s{sUD}, s{sUD}, {hex(WGU)}')
        I(f's_mul_i32 s64, s64, 112\ns_add_u32 s64, s64, s65\ns_lshl_b32 s64, s64, 1\ns_add_u32 s64, s64, s71\ns_lshl_b32 s64, s64, 6\ns_add_u32 s64, s64, s68\ns_add_u32 s{sUCS}, s64, {hex(CS)}')
        I(f'v_mul_u32_u24 v{vU0}, 3584, v52\nv_add_u32 v{vU0}, v{vU0}, v53\nv_lshl_or_b32 v{vU0+1}, v52, 10, v53')
    def uaddr(s):
        I = s.I; t0, t1 = vT2, vT4
        I(f'v_bfe_u32 v{t0}, v0, 2, 2\nv_lshrrev_b32 v{t1}, 5, v0\nv_lshl_or_b32 v{t0}, v{t1}, 3, v{t0}\nv_lshlrev_b32 v{vUR}, 7, v{t0}')
        I(f'v_lshlrev_b32 v{vUD}, 2, v{vFX}\nv_lshl_or_b32 v{vUD}, v{t1}, 9, v{vUD}')
        I(f'v_and_b32 v{t0}, 1, v0\nv_lshl_or_b32 v{vUR}, v{t0}, 4, v{vUR}\nv_bfe_u32 v{t0}, v0, 1, 1\nv_lshl_or_b32 v{vUR}, v{t0}, 3, v{vUR}')
        with s.k.group(): I(f's_lshl_b32 s{sT0+3}, s{sW}, 5\ns_add_u32 s{sT0+3}, s{sT0+3}, 0x18000\nv_add_u32 v{vUR}, s{sT0+3}, v{vUR}')
        I(f'v_bfe_u32 v{t0}, v0, 4, 1\nv_lshl_or_b32 v{vUR+1}, v{t0}, 13, v{vUR}\nv_lshl_or_b32 v{vUR}, v{t0}, 11, v{vUR}')
        I(f'v_lshl_or_b32 v{vUD+1}, v{t0}, 11, v{vUD}\nv_lshl_or_b32 v{vUD}, v{t0}, 10, v{vUD}')
    def uproc(s):
        I = s.I; k = s.k; d = 64
        for n, r in (('a', sUD), ('b', sUD2), ('c', sUCS)):
            if n in s.P.get('nou', ''): I(f's_mov_b32 s{r}, 0x70000000')
        with k.group():
            k.wait(s.tok['U'])
            if s.P.get('xs'): s.stamp('u_ok')
            I('s_barrier')
        for q in range(6):
            for r in range(2):
                if q < 4: I(f'ds_read_b64_tr_b16 {v(d+4*q+2*r,2)}, v{vUR} offset:{q*8192 + r*512}')
                else: I(f'ds_read_b64_tr_b16 {v(d+4*q+2*r,2)}, v{vUR+1} offset:{(q-4)*16384 + 4096 + r*512}')
        for q in range(6):
            with k.group():
                if q < 4:
                    I(f'v_mfma_f32_16x16x32_bf16 {v(d+24,4)}, a[64:67], {v(d+4*q,4)}, {"0" if q == 0 else v(d+24,4)}')
                    I(f'buffer_store_dwordx4 {v(d+4*q,4)}, v{vUD}, {WS}, s{sUD} offen' + (' offset:2048' if q & 1 else '') + ' sc1')
                    if q == 1: I(f's_add_u32 s{sUD}, s{sUD}, 4096')
                else:
                    I(f'buffer_store_dwordx4 {v(d+4*q,4)}, v{vUD+1}, {WS}, s{sUD2} offen sc1')
                    if q < 5: I(f's_add_u32 s{sUD2}, s{sUD2}, 4096')
        return I(f'buffer_store_dword v{d+24}, v{vFX}, {WS}, s{sUCS} offen sc1')
    def export(s, q, d):
        I = s.I
        with s.k.group():
            I(f's_lshl_b32 s{sT0+6}, s{sR}, 1\ns_and_b32 s{sT0+7}, s{sW}, 1\ns_or_b32 s{sT0+6}, s{sT0+6}, s{sT0+7}')
            if q: I(f's_or_b32 s{sT0+6}, s{sT0+6}, 64')
            else: I(f's_lshr_b32 s{sT0+7}, s{sW}, 1\ns_lshl_b32 s{sT0+7}, s{sT0+7}, 5\ns_or_b32 s{sT0+6}, s{sT0+6}, s{sT0+7}')
            I(f's_lshl_b32 s{sT0+6}, s{sT0+6}, 10\nv_add_u32 v{d}, s{sT0+6}, v{vL16}\nds_read_b128 {v(d,4)}, v{d}')
        with s.k.group():
            I(f's_lshl_b32 s{sT0+7}, s{sCG}, 12\ns_xor_b32 s{sT0+6}, s{sT0+6}, s{sT0+7}\ns_add_u32 s{sT0+6}, s{sT0+6}, s{sQKV}\ns_sub_u32 s{sT0+6}, s{sT0+6}, s{sM0}')
        with s.k.group():
            I(f'buffer_store_dwordx4 {v(d,4)}, v{vL16}, {WS}, s{sT0+6} offen sc1')
    def meanop(s, d, m, t):
        I = s.I
        I(f'v_cvt_pk_bf16_f32 v{d}, -v{m}, -v{m}\nv_and_b32 v{t}, 0xffff0000, v{d}\nv_sub_f32 v{t}, -v{m}, v{t}\nv_cvt_pk_bf16_f32 v{t}, v{t}, v{t}')
        with s.k.group(): I(f'v_cmp_gt_u32 vcc, 32, v0\nv_cndmask_b32 v{d}, v{t}, v{d}, vcc')
    def finit(s):
        I = s.I; k = s.k
        n, hf, sw, b2, t0, t1, t2 = 50, 51, 52, 53, 54, 55, 56
        I(f'v_and_b32 v{n}, 31, v0\nv_lshrrev_b32 v{hf}, 5, v0\nv_bfe_u32 v{b2}, v0, 2, 1\nv_bfe_u32 v{t0}, v0, 3, 1')
        I(f'v_and_b32 v{sw}, 19, v{n}\nv_lshl_or_b32 v{sw}, v{b2}, 3, v{sw}\nv_lshl_or_b32 v{sw}, v{t0}, 2, v{sw}')
        I(f'v_lshl_or_b32 v{t0}, v{b2}, 1, v{t0}\nv_xor_b32 v{t0}, v{t0}, v{hf}\nv_lshlrev_b32 v{t0}, 4, v{t0}\nv_lshl_or_b32 v{t0}, v{sw}, 6, v{t0}')
        I(f'v_add_u32 v{vWR}, s{sM0}, v{t0}\nv_xor_b32 v{vWR+1}, 32, v{vWR}\nv_add_u32 v{vWW}, s{sM0}, v{vL16}')
        I(f'v_bfe_u32 v{t0}, v0, 1, 3\nv_xor_b32 v{t0}, v{t0}, v{hf}\nv_lshlrev_b32 v{t0}, 4, v{t0}\nv_lshl_or_b32 v{t0}, v{n}, 7, v{t0}')
        I(f's_add_u32 s64, s{sM0}, 0x10000\nv_add_u32 v{vXR}, s64, v{t0}')
        for q in range(1, 4): I(f'v_xor_b32 v{vXR+q}, {32*q}, v{vXR}')
        I(f'v_lshlrev_b32 v{t0}, 4, v{n}\nv_add_u32 v{vSR}, 0x20000, v{t0}\ns_lshl_b32 s64, s{sW}, 2\nv_add_u32 v{vSW}, s64, v{vSR}')
        I(f'v_bfe_u32 v{t1}, v0, 4, 1')
        I(f'v_and_b32 v{t0}, 1, v0\nv_lshlrev_b32 v{t0}, 9, v{t0}\nv_lshl_or_b32 v{t0}, v{hf}, 8, v{t0}\nv_bfe_u32 v{t2}, v0, 2, 2\nv_lshl_or_b32 v{t0}, v{t2}, 5, v{t0}')
        I(f'v_lshl_or_b32 v{t0}, v{t1}, 4, v{t0}\nv_bfe_u32 v{t2}, v0, 1, 1\nv_lshl_or_b32 v{t0}, v{t2}, 3, v{t0}\nv_add_u32 v57, {hex(WPH)}, v{t0}')
        I(f'v_lshrrev_b32 v{t0}, 3, v{n}\nv_and_b32 v{t1}, 3, v{n}\nv_lshl_or_b32 v{t0}, v{t0}, 2, v{t1}\nv_lshl_or_b32 v{t0}, v{b2}, 4, v{t0}')
        I(f'v_mov_b32 v58, 0x3f80')
        for d, cm in ((64, t0),):
            I(f'v_lshlrev_b32 v{t1}, 3, v{hf}\nv_sub_u32 v{t1}, v{cm}, v{t1}\nv_and_b32 v{t2}, 1, v{t1}\nv_lshlrev_b32 v{t2}, 4, v{t2}\nv_lshlrev_b32 v{t2}, v{t2}, v58\nv_ashrrev_i32 v{t1}, 1, v{t1}')
            for p in range(2):
                for r in range(4): I(f'v_cmp_eq_u32 vcc, {8*p+r}, v{t1}\nv_cndmask_b32 v{d+4*p+r}, 0, v{t2}, vcc')
        for r in range(8): I(f'v_accvgpr_write_b32 a{r}, v{64+r}')
        for r in range(4): I(f'v_accvgpr_write_b32 a{64+r}, s{sONES}')
        I(f's_mul_i32 s{sTAG}, s{sE}, 0x9E3779B1\ns_add_u32 s{sTAG}, s{sTAG}, 0x7F4A7C15')
    def fold(s):
        I = s.I
        s.k.wait(s.tok['P'])
        I('ds_read_b64_tr_b16 v[60:61], v57\nds_read_b64_tr_b16 v[62:63], v57 offset:128')
        I('v_cmp_eq_u32 vcc, 0, v53')
        for r in range(4): I(f'v_cndmask_b32 v{80+r}, 0, v{60+r}, vcc\nv_cndmask_b32 v{84+r}, v{60+r}, 0, vcc')
        for r in range(8): I(f'v_accvgpr_write_b32 a{16+r}, v{80+r}')
    def lbuild(s, tok, slot, B, si):
        I = s.I; k = s.k; off = (slot & 1)*0x8000
        k.wait(tok)
        for b in range(4):
            for p in range(2): I(f'ds_read_b128 {a_(32+8*b+4*p,4)}, v{vWR+p} offset:{off + b*2048}')
        def T(i):
            b, p = i >> 1, i & 1; d = 64 + 16*b
            I(f'v_mfma_f32_32x32x16_bf16 {v(d,16)}, {a_(32+8*b+4*p,4)}, {a_(B+4*p,4)}, {"0" if p == 0 else v(d,16)}')
        def C(i):
            d = 64 + 8*i
            for r in range(4): I(f'v_cvt_pk_bf16_f32 v{d+r}, v{d+2*r}, v{d+2*r+1}')
            I(f'ds_write_b128 v{vWW}, {v(d,4)} offset:{off + i*1024}')
        def S(i): I(f'v_mfma_f32_32x32x16_bf16 v[48:63], a[64:67], {v(64+8*i,4)}, {"0" if i == 0 else "v[48:63]"}')
        for i in range(16):
            (T if i < 8 else S)(i & 7)
            if 3 <= i < 11: C(i - 3)
        I('v_cvt_pk_bf16_f32 v49, v48, v48\nv_and_b32 v50, 0xffff0000, v49\nv_sub_f32 v50, v48, v50\nv_cvt_pk_bf16_f32 v49, v48, v50')
        return I(f'ds_write_b32 v{vSW}, v49 offset:{SUMS[si] - 0x20000}')
    def rowstats(s):
        I = s.I
        for r in range(2):
            for i in range(4):
                x = vROW + 4*r + i
                I(f'v_dot2_f32_bf16 v{248+r}, v{x}, s{sONES}, {"0" if i == 0 else v(248+r)}')
                I(f'v_dot2_f32_bf16 v{250+r}, v{x}, v{x}, {"0" if i == 0 else v(250+r)}')
        I('v_permlane32_swap_b32 v248, v249\nv_permlane32_swap_b32 v250, v251\nv_add_f32 v248, v248, v249\nv_add_f32 v250, v250, v251')
        I(f'v_and_b32 v252, 15, v0\nv_cmp_eq_u32 vcc, 0, v252\nv_lshrrev_b32 v252, 1, v0\nv_mov_b32 v253, {hex(OOB)}')
        I('v_permlane16_swap_b32 v248, v250\nv_cndmask_b32 v252, v253, v252, vcc\nv_add_f32 v248, v248, v250')
        I(f'v_mov_b32 v249, s{sTAG}\ns_lshl_b32 s64, s{sR}, 11\ns_lshl_b32 s65, s{sJ}, 7\ns_add_u32 s64, s64, s65\ns_lshl_b32 s65, s{sW}, 5\ns_add_u32 s64, s64, s65\ns_add_u32 s64, s64, {hex(S0)}')
        for mod in ('quad_perm:[1,0,3,2]', 'quad_perm:[2,3,0,1]', 'row_half_mirror', 'row_mirror'):
            I(f'v_add_f32_dpp v248, v248, v248 {mod} row_mask:0xf bank_mask:0xf')
        I(f'buffer_store_dwordx2 v[248:249], v252, {WS}, s64 offen sc1')
    def init(s):
        I = s.I; k = s.k
        I(f's_load_dword s{sE}, s[8:9], 0')
        I(f's_getreg_b32 s{sMARK}, hwreg(HW_REG_XCC_ID)\ns_and_b32 s{sMARK}, s{sMARK}, 15\ns_or_b32 s{sMARK}, s{sMARK}, 0x80')
        I(f'v_add_u32 v{vL16b}, 0x10000, v{vL16}')
        I(f'v_cmp_eq_u32 vcc, 0, v0\nv_mov_b32 v{vT0}, {hex(OOB)}\nv_cndmask_b32 v{vL0}, v{vT0}, v0, vcc')
        I(f's_mov_b32 s{sLIM}, 20000')
        I(f'v_and_b32 v50, 15, v0\nv_lshrrev_b32 v51, 4, v0\nv_and_b32 v52, 31, v0\nv_lshrrev_b32 v53, 5, v0')
        I(f'v_lshlrev_b32 v{vFX}, 2, v50')
        I(f'v_bfe_u32 v54, v0, 2, 1\nv_and_b32 v55, 3, v0\nv_lshlrev_b32 v55, 2, v55\nv_lshl_or_b32 v{vFO}, v54, 7, v55')
        I(f'v_lshlrev_b32 v54, 6, v52\nv_lshl_or_b32 v{vSTL}, v53, 5, v54')
        I(f'v_lshlrev_b32 v54, 4, v50\nv_lshl_or_b32 v{vPUB}, v51, 9, v54')
        I(f's_lshl_b32 s64, s{sW}, 9\ns_add_u32 s64, s64, {hex(XA)}\ns_movk_i32 s65, {6*PS}')
        I(f'v_mul_lo_u32 v54, v53, s65\nv_lshl_add_u32 v54, v52, 4, v54\nv_add_u32 v{vPHW}, s64, v54')
        I(f's_movk_i32 s65, {PS}\nv_bfe_u32 v54, v0, 1, 1\nv_mul_lo_u32 v54, v54, s65\nv_and_b32 v55, 1, v0\nv_lshl_add_u32 v54, v55, 3, v54')
        I(f'v_lshrrev_b32 v55, 2, v50\nv_lshl_add_u32 v55, v51, 3, v55\nv_lshl_add_u32 v54, v55, 4, v54')
        I(f's_lshr_b32 s66, s{sW}, 1\ns_mul_i32 s66, s66, {6*PS}\ns_add_u32 s66, s66, {hex(XA)}\ns_and_b32 s67, s{sW}, 1\ns_mul_i32 s67, s67, {2*PS}\ns_add_u32 s67, s67, s66\ns_add_u32 s66, s66, {4*PS}')
        I(f'v_add_u32 v{vTRA}, s67, v54\nv_add_u32 v{vTRB}, s66, v54')
        I(f'v_lshlrev_b32 v54, 4, v50\nv_lshl_or_b32 v54, v53, 8, v54\nv_and_b32 v55, 1, v51\nv_lshl_or_b32 v54, v55, 3, v54')
        I(f's_lshl_b32 s64, s{sW}, 9\ns_add_u32 s64, s64, {hex(KVA)}\nv_add_u32 v{vKVW}, s64, v54')
        I(f's_lshl_b32 s64, s{sW}, 5\ns_add_u32 s64, s64, {hex(ZA)}\nv_lshlrev_b32 v54, 1, v50\nv_add_u32 v{vZW}, s64, v54')
        I(f'v_and_b32 v54, 3, v0\nv_bfe_u32 v55, v0, 2, 1\nv_lshl_or_b32 v54, v55, 3, v54\nv_bfe_u32 v55, v0, 3, 1\nv_lshl_or_b32 v54, v55, 2, v54')
        I(f'v_lshlrev_b32 v54, 4, v54\nv_lshl_or_b32 v54, v53, 10, v54\nv_add_u32 v54, {hex(KVA)}, v54')
        I(f'v_lshlrev_b32 v55, 6, v53\nv_add_u32 v55, {hex(ZA)}, v55\nv_bfe_u32 v56, v0, 4, 1\nv_cmp_eq_u32 vcc, v56, v53\nv_mov_b32 v57, {hex(ZERO)}')
        I(f'v_cndmask_b32 v{vKVR}, v57, v54, vcc\nv_cndmask_b32 v{vZR}, v57, v55, vcc')
        I(f'v_lshlrev_b32 v54, 4, v50\nv_lshl_or_b32 v54, v53, 8, v54\nv_lshl_or_b32 v54, v56, 13, v54\ns_lshl_b32 s64, s{sW}, 11\nv_add_u32 v{vREDW}, s64, v54')
        I(f'v_lshlrev_b32 v54, 10, v50\nv_lshl_or_b32 v{vNAT}, v51, 4, v54')
        I(f'v_lshlrev_b32 v54, 6, v50\nv_lshl_or_b32 v54, v53, 2, v54\nv_cmp_eq_u32 vcc, 0, v56\nv_mov_b32 v55, {hex(OOB)}\nv_cndmask_b32 v{vSTW}, v55, v54, vcc')
        I(f's_lshl_b32 s64, s{sW}, 7\ns_add_u32 s64, s64, {hex(RS)}\nv_lshlrev_b32 v54, 2, v52\nv_add_u32 v{vRSW}, s64, v54')
        I(f'v_mov_b32 v56, 0\nv_mov_b32 v57, 0\nv_mov_b32 v58, 0\nv_mov_b32 v59, 0\nv_add_u32 v54, {hex(ZERO)}, v{vL16}\nds_write_b128 v54, v[56:59]')
        I(f's_mov_b32 s{sSELLO}, 0x3f80\ns_mov_b32 s{sSELHI}, 0x3f800000\ns_mov_b32 s{sONES}, 0x3f803f80\ns_mov_b32 s{sLOG2E}, 0x3fb8aa3b')
        I(f's_mul_i32 s64, s{sJ}, {96*1024}\ns_add_u32 s64, s64, s{sM0}\ns_add_u32 s{sQKV}, s64, {hex(WQKV)}')
        I(f's_lshl_b32 s66, s{sR}, 2\ns_add_u32 s65, s66, s{sW}')
        I(f's_lshl_b32 s64, s65, 15\ns_add_u32 s{sXIN}, s64, {hex(XB[0])}')
        I(f's_lshl_b32 s64, s65, 11\ns_add_u32 s{sSTIN}, s64, {hex(ST)}')
        I(f's_mul_i32 s64, s{sJ}, {224*1024}\ns_add_u32 s64, s64, s{sM0}\ns_add_u32 s{sGU}, s64, {hex(WGU)}')
        I(f's_lshr_b32 s67, s{sRK}, 3\ns_lshl_b32 s64, s{sW}, 2\ns_or_b32 s64, s64, s67\ns_lshl_b32 s64, s64, 8\ns_or_b32 s64, s64, s{sCG}\ns_lshl_b32 s{sWO}, s64, 7')
        I(f's_lshl_b32 s67, s{sHB}, 12\ns_or_b32 s{sOM}, s67, s{sM0}')
        I(f's_mul_i32 s64, s{sCG}, {224*1024}\ns_mul_i32 s67, s{sW}, {56*1024}\ns_add_u32 s64, s64, s67\ns_add_u32 s{sWD}, s64, {hex(WD_P)}')
        I(f's_lshl_b32 s67, s{sHB}, 1\ns_add_u32 s66, s66, s67')
        I(f's_lshr_b32 s67, s{sW}, 1\ns_add_u32 s67, s67, s66\ns_and_b32 s68, s{sW}, 1')
        I(f's_lshl_b32 s64, s66, 15\ns_add_u32 s64, s64, s{sM0}\ns_add_u32 s{sXO}, s64, {hex(XB[0])}')
        I(f's_lshl_b32 s64, s67, 15\ns_lshl_b32 s69, s{sCG}, 12\ns_add_u32 s64, s64, s69\ns_lshl_b32 s69, s68, 8\ns_add_u32 s64, s64, s69\ns_add_u32 s{sXPUB}, s64, {hex(XB[0])}')
        I(f's_lshl_b32 s64, s67, 11\ns_lshl_b32 s69, s68, 10\ns_add_u32 s64, s64, s69\ns_lshl_b32 s69, s{sCG}, 3\ns_add_u32 s64, s64, s69\ns_add_u32 s{sSTPUB}, s64, {hex(ST)}')
        I(f's_mul_i32 s64, s65, {112*1024}\ns_mul_i32 s69, s{sJ}, {7*1024}\ns_add_u32 s64, s64, s69\ns_add_u32 s{sHPUB}, s64, {hex(HB)}')
        I(f's_mul_i32 s64, s66, {112*1024}\ns_mul_i32 s69, s{sW}, {28*1024}\ns_add_u32 s64, s64, s69\ns_add_u32 s{sHIN}, s64, {hex(HB)}')
        I(f's_lshl_b32 s64, s65, 7\ns_add_u32 s{sFXC}, s64, {hex(FX)}')
        I(f's_lshl_b32 s69, s{sJ}, 2\ns_add_u32 s64, s64, s69\ns_add_u32 s{sFOP}, s64, {hex(FO)}')
        I(f's_lshl_b32 s64, s67, 7\ns_lshl_b32 s69, s{sCG}, 3\ns_add_u32 s64, s64, s69\ns_lshl_b32 s69, s68, 2\ns_add_u32 s64, s64, s69\ns_add_u32 s{sFXP}, s64, {hex(FX)}')
        I(f's_lshl_b32 s64, s66, 7\ns_lshl_b32 s69, s{sW}, 4\ns_add_u32 s64, s64, s69\ns_add_u32 s{sFOC}, s64, {hex(FO)}')
        I(f's_lshl_b32 s64, s{sJ}, 2\ns_add_u32 s64, s64, s{sW}\ns_lshl_b32 s64, s64, 14\ns_add_u32 s{sKVC}, s64, {hex(KVP)}')
        I(f's_lshl_b32 s64, s{sR}, 10\ns_add_u32 s{sKVP}, s64, s{sKVC}')
        I(f's_lshl_b32 s64, s{sR}, 17\ns_lshl_b32 s69, s{sHB}, 16\ns_add_u32 s64, s64, s69\ns_lshl_b32 s69, s{sW}, 14\ns_add_u32 s64, s64, s69\ns_lshl_b32 s69, s{sCG}, 7\ns_add_u32 s{sNAT}, s64, s69')
        I(f's_lshl_b32 s64, s{sHB}, 8\ns_lshl_b32 s69, s{sW}, 6\ns_add_u32 s64, s64, s69\ns_add_u32 s64, s64, {hex(RS)}\nv_add_u32 v{vRSR}, s64, v{vFX}')

    def xloads(s, buf):
        so = s.SO(s, sT0)
        d = buf*0x20000; n = s.P['xf']
        with s.k.cap() as f:
            for kc in range(33):
                if kc == s.P['sl']: s.ld(so, v(vTMP, 4), vSTL, sSTIN, d, 'sc1'); s.ld(so, v(vTMP+4, 4), vSTL, sSTIN, d + 16, 'sc1')
                if kc < 32: s.ld(so, v(vXB + 4*kc, 4), vL16, sXIN, buf*0x200000 + kc*1024, 'sc1')
        s.k.put(f[:n])
        return (f[n:], 0, 2*(32 - n) - 1)
    def stats(s, own=False):
        I = s.I; t = vTMP
        I(f'v_add_f32 v{t}, v{t}, v{t+2}\nv_add_f32 v{t+1}, v{t+1}, v{t+3}')
        if not own:
            I(f'v_add_f32 v{t+4}, v{t+4}, v{t+6}\nv_add_f32 v{t+5}, v{t+5}, v{t+7}')
            I(f'v_add_f32 v{t}, v{t}, v{t+4}\nv_add_f32 v{t+1}, v{t+1}, v{t+5}')
        I(f'v_permlane32_swap_b32 v{t}, v{t+1}')
        I(f'v_add_f32 v{t}, v{t}, v{t+1}')
        I(f'v_mul_f32 v{t}, 0x3b000000, v{t}')
        I(f'v_mov_b32 v{t+1}, v{t}')
        I(f'v_permlane32_swap_b32 v{t}, v{t+1}')
        I(f'v_fma_f32 v{t+1}, -v{t}, v{t}, v{t+1}')
        I(f'v_max_f32 v{t+1}, 0, v{t+1}')
        I(f'v_add_f32 v{t+1}, 0x3727c5ac, v{t+1}')
    def phi(s, p, tA, tB, out, emit=None):
        I = s.I; mx, mn = vT0, vT2
        I(f'v_max3_f32 v{mx}, v{p}, v{p+1}, v{p+2}\nv_min3_f32 v{mn}, v{p}, v{p+1}, v{p+2}')
        for r in range(3, 15, 2): I(f'v_max3_f32 v{mx}, v{mx}, v{p+r}, v{p+r+1}\nv_min3_f32 v{mn}, v{mn}, v{p+r}, v{p+r+1}')
        I(f'v_max_f32 v{mx}, v{mx}, v{p+15}\nv_min_f32 v{mn}, v{mn}, v{p+15}')
        I(f'v_mul_f32 v{mx}, v{mx}, v{vC}\nv_mul_f32 v{mn}, v{mn}, v{vC}')
        for sg, t, m in ((0, tA, mx), (1, tB, mn)):
            for r in range(0, 16, 2):
                if sg == 0: I(f'v_pk_fma_f32 {v(t+r,2)}, {v(p+r,2)}, {v(vC-1,2)}, {v(m,2)} op_sel:[0,1,0] op_sel_hi:[1,1,0] neg_lo:[0,0,1] neg_hi:[0,0,1]')
                else: I(f'v_pk_fma_f32 {v(t+r,2)}, {v(p+r,2)}, {v(vC-1,2)}, {v(m,2)} op_sel:[0,1,0] op_sel_hi:[1,1,0] neg_lo:[1,0,0] neg_hi:[1,0,0]')
            for r in range(16): I(f'v_exp_f32 v{t+r}, v{t+r}')
            I(f'v_pk_add_f32 {v(vT4,2)}, {v(t,2)}, {v(t+2,2)}')
            for r in range(4, 16, 2): I(f'v_pk_add_f32 {v(vT4,2)}, {v(vT4,2)}, {v(t+r,2)}')
            I(f'v_add_f32 v{vT4}, v{vT4}, v{vT5}\nv_rcp_f32 v{vT4}, v{vT4}')
            for r in range(0, 16, 2): I(f'v_pk_mul_f32 {v(t+r,2)}, {v(t+r,2)}, {v(vT4,2)} op_sel_hi:[1,0]')
            for r in range(8):
                I(f'v_cvt_pk_bf16_f32 v{out+8*sg+r}, v{t+2*r}, v{t+2*r+1}')
                if emit and r % 4 == 3: emit(2*sg + r//4)

    def front(s):
        I = s.I; k = s.k; P = s.P
        s.init0()
        tx = {}; tr = {}; dl = {}
        def X(i):
            with k.group():
                if i >= 8 and i % 2 == 0: k.wait(tr[i//2 - 4])
                tx[i] = s.xdma(i//2, i % 2)
        def RD(c):
            with k.group() as g:
                k.wait(tx[2*c+1])
                for q in range(4): tr[c] = I(f'ds_read_b128 {v(vXB+16*c+4*q,4)}, v{vXR+q} offset:{s.xreg(c) - 0x10000}')
            dl[id(g)] = 8*c - 3
        def SL():
            with k.group() as g:
                I(f's_lshl_b32 s{sT0+3}, s{sR}, 11\ns_lshl_b32 s{sT0+4}, s{sW}, 9\ns_add_u32 s{sT0+3}, s{sT0+3}, s{sT0+4}\ns_add_u32 s{sT0+3}, s{sT0+3}, {hex(S0)}')
                I(f'v_and_b32 v{vT4}, 0x1f0, v{vL16}\nbuffer_load_dwordx4 v[52:55], v{vT4}, {WS}, s{sT0+3} offen sc1')
            dl[id(g)] = 40; s.gSL = g
        def Q(p):
            with k.group():
                if p == 0: k.wait(tr[5])
                s.tok['Q0'] = s.wdma(p, 2, 0)
        def U(i):
            with k.group():
                if i == 0: k.wait(tr[7])
                s.tok['U'] = s.udma(i)
        with k.cap() as xs:
            for p in range(1, 4): tk = s.wdma(p, 0, 1024)
            for p in range(1, 4): tv = s.wdma(p, 1, 2048)
            for i in range(16):
                X(i)
                if i >= 5 and i % 2 == 1: RD((i - 5)//2)
            SL(); Q(0); RD(6); Q(1); RD(7); Q(2); Q(3)
            for i in range(6): U(i)
        with k.cap() as pre:
            s.unit()
            if P.get('tlb'):
                n, sh = P['tlb']
                I(f'v_min_u32 v54, {n - 1}, v0\nv_lshlrev_b32 v54, {sh}, v54\ns_lshl_b32 s64, s2, 7\nbuffer_load_dword v21, v54, {WS}, s64 offen offset:1024')
            s.init(); s.finit()
        n, f0, ev = P['sp']
        k.sprinkle(pre, xs[:n], f0, ev); xs = xs[n:]
        s.stamp('init')
        xa, xb, xc, xd = P['xa'], P['xb'], P['xc'], P['xd']
        with k.cap() as f:
            s.fold(); s.rowstats()
            I(f's_lshl_b32 s64, s{sG}, 5\ns_add_u32 s64, s64, s{sRK}\nv_mov_b32 v{vT0}, s{sMARK}\nbuffer_store_byte v{vT0}, v{vL0}, {DS}, s64 offen')
        k.sprinkle(f, xs[:xa], 0, P['xe']); xs = xs[xa:]
        s.stamp('issued')
        with k.cap() as f: s.lbuild(tk, 0, 16, 0)
        k.weave(f, (xs[:xb], 0, 15)); xs = xs[xb:]
        s.stamp('kbuild')
        with k.cap() as f: t = s.lbuild(tv, 1, 0, 1)
        k.weave(f, (xs[:xc], 0, 15)); xs = xs[xc:]
        k.wait(t); I('s_barrier')
        s.stamp('vbuild')
        while any(dl.get(id(x), 99) < 0 for x in xs[xd:]): xd += 1
        k.put(xs[:xd]); xs = xs[xd:]
        assert any(x is s.gSL for x in xs)
        gaps = [min(63, int(i*P['xr'])) for i in range(len(xs))]
        for i in range(len(xs) - 1, -1, -1):
            gaps[i] = min(gaps[i], dl.get(id(xs[i]), 63), max(gaps[i+1] - 1, 0) if i + 1 < len(xs) else 63)
        s.gaps = gaps
        fill = [([it], g, g) for it, g in zip(xs, gaps)]
        with k.cap() as f: s.export(0, 96)
        fill.append((f, 2, 12))
        with k.cap() as f:
            I(f'ds_read_b128 a[28:31], v{vSR} offset:{SUMS[0] - 0x20000}\nds_read_b128 a[32:35], v{vSR} offset:{SUMS[1] - 0x20000}')
            Lb = s.label('S0'); D = s.label('S0D')
            with k.group():
                I(f's_mov_b32 s{sT0+9}, 0\n{Lb}:')
                I(f'v_xor_b32 v53, s{sTAG}, v53\nv_xor_b32 v55, s{sTAG}, v55\nv_or_b32 v53, v53, v55\nv_cmp_ne_u32 vcc, 0, v53\ns_cbranch_vccz {D}')
                with k.cond():
                    I(f'buffer_load_dwordx4 v[52:55], v{vT4}, {WS}, s{sT0+3} offen sc1\ns_waitcnt vmcnt(0)')
                    I(f's_add_u32 s{sT0+9}, s{sT0+9}, 1\ns_cmp_lt_u32 s{sT0+9}, s{sLIM}\ns_cbranch_scc1 {Lb}\ns_mov_b32 s{sLIM}, 1')
                I(f'{D}:'); k.retire()
            I('v_mul_f32 v52, 0xbb000000, v52\nv_mul_f32 v54, 0x3b000000, v54')
            I('v_cvt_pk_bf16_f32 v53, v52, v52\nv_fma_f32 v54, -v52, v52, v54\nv_and_b32 v55, 0xffff0000, v53\nv_max_f32 v54, 0, v54')
            I(f'v_sub_f32 v55, v52, v55\nv_add_f32 v54, 0x3727c5ac, v54\nv_cvt_pk_bf16_f32 v55, v55, v55\nv_rsq_f32 v{vRSTD}, v54')
            with k.group(): I('v_cmp_gt_u32 vcc, 32, v0\nv_cndmask_b32 v53, v55, v53, vcc')
            I(f'v_mul_f32 v{vC}, s{sLOG2E}, v{vRSTD}')
            for r in range(4): I(f'v_accvgpr_write_b32 a{24+r}, v53')
        fill.append((f, 54, 62))
        return fill

    def qkv(s, L):
        I = s.I; k = s.k; P = s.P
        b = 2*L; SK, SV, SQ, SF = b % 4, (b+1) % 4, (b+2) % 4, (b+3) % 4
        bA, bB = L, 1 - L
        aK, aV, aQ = vACC, vACC+16, vACC+32
        def wosrd(): I('s_load_dwordx2 s[84:85], s[0:1], 24\ns_mov_b32 s86, 0x80000\ns_mov_b32 s87, 0x20000')
        if L == 0:
            fill = s.front()
            with k.cap() as s.bw:
                so = s.SO(s, sT0+7)
                for i in range(56): s.ld(so, a_(4*i, 4), vL16, sWD, i*1024, 'sc1')
        else:
            wosrd()
            s.poll(vFX, sFXC, 0, 2*L)
            s.stamp('x_ok')
            fill = [s.xloads(bA)]
            with k.cap() as f:
                I(f'v_and_b32 v{vT4}, 0x1f0, v{vL16}\nv_add_u32 v{vT4}, 0x20000, v{vT4}')
                I(f'ds_read_b128 v[96:99], v{vT4} offset:{SUMS[0] - 0x20000}\nds_read_b128 v[100:103], v{vT4} offset:{SUMS[1] - 0x20000}')
                s.stats(); s.meanop(vMU, vTMP, vTMP+2)
                for r in range(4): I(f'v_mov_b32 v{104+r}, v{vMU}')
                I(f'v_rsq_f32 v{vRSTD}, v{vTMP+1}')
                I(f'v_mul_f32 v{vC}, s{sLOG2E}, v{vRSTD}')
            fill.append((f, 44, 60))
        fill.append((s.touches(P['tk'][L]), P['tkg'][L], 63))
        s.bg_tile(0, sGU, 0, SF)
        steps = []
        for kc in range(32): steps += [(SV, kc, aV, kc == 0), (SK, kc, aK, kc == 0)]
        base, _ = s.gemm(steps)
        k.weave(base, *fill)
        if L == 0:
            I(f'v_mfma_f32_32x32x16_bf16 {v(aV,16)}, a[32:35], a[24:27], {v(aV,16)}\nv_mfma_f32_32x32x16_bf16 {v(aK,16)}, a[28:31], a[24:27], {v(aK,16)}')
        else:
            I(f'v_mfma_f32_32x32x16_bf16 {v(aV,16)}, v[100:103], v[104:107], {v(aV,16)}\nv_mfma_f32_32x32x16_bf16 {v(aK,16)}, v[96:99], v[104:107], {v(aK,16)}')
        s.stamp('kv_gemm')
        if L == 0: wosrd()
        wob, kb = vXB + 64, vXB; SO = L
        with k.cap() as fo:
            for p in range(8):
                with k.group():
                    if p == 0: I(f'v_lshrrev_b32 v{vT1}, 3, v0\nv_and_b32 v{vT3}, 0x70, v1\nv_lshl_or_b32 v{vT1}, v{vT1}, 10, v{vT3}\nv_add_u32 v{vT3}, 7168, v{vT1}')
                    I(f's_xor_b32 m0, s{sOM}, {hex((SO + (p >> 2))*0x8000 + (p & 3)*2048)}\ns_xor_b32 s{sT0+1}, s{sWO}, {hex(p << 14)}')
                    I(f'buffer_load_dwordx4 v{vT1}, {US}, s{sT0+1} offen lds')
                    two = I(f'buffer_load_dwordx4 v{vT3}, {US}, s{sT0+1} offen offset:1024 lds')
                    if p == P['twp'][L]: k.put(s.touches(P['tw'][L], vMK if L else 47))
        with k.cap() as fx:
            I('v_bfe_u32 v126, v0, 2, 2\nv_lshrrev_b32 v125, 5, v0\nv_lshl_or_b32 v126, v125, 3, v126\nv_bfe_u32 v125, v0, 4, 1\nv_lshl_or_b32 v126, v126, 2, v125')
            I('v_and_b32 v125, 1, v0\nv_lshl_or_b32 v126, v126, 1, v125\nv_bfe_u32 v125, v0, 1, 1\nv_lshl_or_b32 v126, v126, 1, v125')
            with k.group(): I(f's_and_b32 s{sT0+3}, s{sR}, 1\ns_lshl_b32 s{sT0+3}, s{sT0+3}, 15\ns_or_b32 s{sT0+3}, s{sT0+3}, s{sM0}\nv_lshl_add_u32 v125, v126, 3, s{sT0+3}')
            I('v_xor_b32 v126, 0x8000, v125')
        def otr():
            k.wait(two)
            for kk in range(8):
                for ct in range(2):
                    for r in range(2): t = I(f'ds_read_b64_tr_b16 {v(wob+8*kk+4*ct+2*r,2)}, v{125 + (kk >> 2)} offset:{SO*0x8000 + (kk & 3)*2048 + ct*64 + r*512}')
            return t
        on = P['on'][L]
        with k.cap() as f:
            for r in range(0, 16, 2): I(f'v_pk_mul_f32 {v(aV+r,2)}, {v(aV+r,2)}, {v(vRSTD,2)} op_sel_hi:[1,0]')
            for r in range(8): I(f'v_cvt_pk_bf16_f32 v{aV+r}, v{aV+2*r}, v{aV+2*r+1}')
            I(f'ds_write_b128 v{vPHW}, {v(aV,4)} offset:{4*PS}\nds_write_b128 v{vPHW}, {v(aV+4,4)} offset:{5*PS}')
            tw = []
            s.phi(aK, vACC+32, vACC+48, vTMP, emit=lambda n: tw.append(I(f'ds_write_b128 v{vPHW}, {v(vTMP+4*n,4)} offset:{n*PS}')))
            for r in range(4): I(f'v_mov_b32 v{72+r}, s{sONES}')
        if L == 0:
            k.sprinkle(f, s.touches(P['tp'][0], 47), *P['tp'][1:])
            k.wait(tw[-1])
        else:
            k.sprinkle(f, fo[:on], 2, P['oe']); fo = fo[on:]
            k.wait(tw[-1], s.tok['Q'])
        I('s_barrier')
        s.stamp('phik')
        for u in range(4):
            for p in range(2):
                I(f'ds_read_b64_tr_b16 {v(96+4*u+2*p,2)}, v{vTRA} offset:{u*512+p*64}')
            for p in range(2):
                I(f'ds_read_b64_tr_b16 {v(112+4*u+2*p,2)}, v{vTRB} offset:{u*512+p*64}')
        for u in range(4):
            I(f'v_mfma_f32_16x16x32_bf16 v[64:67], {v(96+4*u,4)}, {v(112+4*u,4)}, {"0" if u == 0 else "v[64:67]"}')
            I(f'v_mfma_f32_16x16x32_bf16 v[68:71], v[72:75], {v(96+4*u,4)}, {"0" if u == 0 else "v[68:71]"}')
        I(f'v_mov_b32 v115, s{sTAG}')
        I('v_cvt_pk_bf16_f32 v112, v64, v65\nv_cvt_pk_bf16_f32 v113, v66, v67\nv_mov_b32 v114, v68')
        so = s.SO(s, sT0)
        s.ld(so, 'v[112:115]', vL16, sKVP, L*0x100000, 'sc1', op='buffer_store_dwordx4')
        s.stamp('kvpub')
        nk = 16 - L; kr = lambda r: kb + 4*r if r < nk else 112
        s.wob = wob
        def kvld(r):
            with k.group(): I(f's_xor_b32 s{sT0}, s{sKVP}, {hex(L*0x100000 + (15 - r)*1024)}\nbuffer_load_dwordx4 {v(kb+4*r,4)}, v{vL16}, {WS}, s{sT0} offen sc1')
        with k.cap() as fk:
            for r in range(nk): kvld(r)
        s.bg_tile(1, sGU, 0x8000, SK); s.bg_tile(2, sGU, 0x10000, SV)
        assert len(s.bg) == 24
        if L and P['ot'][L]: s.bg = s.bg[16:] + s.bg[:16]
        if L == 0:
            I(f'v_add_u32 v{vWR}, 0x10000, v{vWR}\nv_add_u32 v{vWR+1}, 0x10000, v{vWR+1}\nv_add_u32 v{vWW}, 0x10000, v{vWW}')
            with k.cap() as fa: s.uaddr()
            with k.cap() as f: t = s.lbuild(s.tok['Q0'], SQ, 16, 3)
            k.weave(f, (fa[:8], 0, 2), (fa[8:], 11, 15), (fo[:on], 0, 15)); fo = fo[on:]
            k.wait(t); I('s_barrier')
            s.stamp('qbuild')
            with k.cap() as fe: s.export(1, 116)
            with k.cap() as fu: tu = s.uproc()
            with k.cap() as ff:
                with k.group():
                    if P.get('xs'): s.stamp('ff0')
                    k.wait(tu)
                    if P.get('xs'): s.stamp('ff1')
                    I(f's_barrier\ns_lshl_b32 s{sT0+3}, s2, 8\ns_lshl_b32 s{sT0+4}, s{sW}, 28\ns_add_u32 s{sT0+3}, s{sT0+3}, s{sT0+4}\ns_add_u32 s{sT0+3}, s{sT0+3}, {hex(FU)}')
                    I(f'v_mov_b32 v116, s{sTAG}\nv_lshlrev_b32 v117, 2, v0\nbuffer_store_dword v116, v117, {WS}, s{sT0+3} offen sc1')
            with k.cap() as fy:
                I(f'v_and_b32 v122, 7, v0\nv_min_u32 v127, 2, v122\nv_bfe_u32 v121, v0, 3, 1\nv_mad_u32_u24 v127, v121, 28, v127')
                with k.group(): I(f's_mul_i32 s{sT0+3}, s{sJ}, 7\ns_lshr_b32 s{sT0+3}, s{sT0+3}, 2\nv_add_u32 v127, s{sT0+3}, v127')
                with k.group(): I(f'v_lshl_add_u32 v121, v122, 3, s{sCG}\nv_cmp_lt_u32 vcc, 15, v0\nv_cndmask_b32 v127, v127, v121, vcc')
                with k.group(): I(f's_lshl_b32 s{sT0+3}, s{sW}, 6\nv_add_u32 v127, s{sT0+3}, v127')
                I(f'v_and_b32 v121, 1, v0\nv_bfe_u32 v122, v0, 1, 1\nv_lshl_or_b32 v121, v121, 7, v122')
                with k.group(): I(f's_lshl_b32 s{sT0+3}, s{sJ}, 2\ns_add_u32 s{sT0+3}, s{sT0+3}, s{sW}\ns_lshl_b32 s{sT0+3}, s{sT0+3}, 1\nv_add_u32 v121, s{sT0+3}, v121')
                with k.group(): I(f'v_cmp_lt_u32 vcc, 31, v0\nv_cndmask_b32 v127, v127, v121, vcc')
                I(f'v_lshlrev_b32 v127, 8, v127')
            if s.stop == 'kv0':
                k.put(fe); k.put(fu); k.put(ff); return True
            with k.cap() as f1:
                so = s.SO(s, sT0+2)
                s.ld(so, v(vRES, 4), vNAT, sNAT, 0, srdn=XS); s.ld(so, v(vRES+4, 4), vNAT, sNAT, 64, srdn=XS)
                with k.group(): I(f'v_and_b32 v{vMK}, 28, v{vFX}\ns_lshl_b32 s{sT0+3}, s{sG}, 5\nbuffer_load_dword v{vMK}, v{vMK}, {DS}, s{sT0+3} offen sc1')
                I(f'ds_read_b128 a[28:31], v{vSR} offset:{SUMS[3] - 0x20000}')
            fill = [(fe, 0, 5), (fu, P['ug'], P['ug'] + 19), (f1, 27, 30), (fx + fy, 6, 30), (fo[:P['og'][0]], P['og'][1], 26)]; fo = fo[P['og'][0]:]
        else:
            with k.cap() as f1:
                I(f'v_and_b32 v{vT4}, 0x1f0, v{vL16}\nv_add_u32 v{vT4}, 0x20000, v{vT4}\nds_read_b128 v[64:67], v{vT4} offset:{SUMS[3] - 0x20000}')
                for r in range(4): I(f'v_mov_b32 v{68+r}, v{vMU}')
            fill = [(fo, *P['oq'][1]), (fk[:P['kn']], P['k0'], 31), (f1 + fx, 10, 28)]
        base, _ = s.gemm([(SQ, kc, aQ, kc == 0) for kc in range(32)])
        k.weave(base, *fill)
        if L == 0: I(f'v_mfma_f32_32x32x16_bf16 {v(aQ,16)}, a[28:31], a[24:27], {v(aQ,16)}')
        else: I(f'v_mfma_f32_32x32x16_bf16 {v(aQ,16)}, v[64:67], v[68:71], {v(aQ,16)}')
        s.stamp('q_gemm')
        with k.cap() as f: s.phi(aQ, vACC, vACC+16, vTMP)
        if L == 0:
            with k.cap() as f2: k.sprinkle(f, ff, P['fg'], 1)
            with k.cap() as f3: k.sprinkle(f2, fo, *P['oq'][0])
            k.sprinkle(f3, fk, *P['kq'][0])
            I(f's_mul_i32 s{sT0+3}, s{sMARK}, 0x01010101\nv_cmp_ne_u32 vcc, s{sT0+3}, v{vMK}\ns_or_b32 s{sSLOW}, vcc_lo, vcc_hi')
        else: k.sprinkle(f, fk[P['kn']:], *P['kq'][1])
        s.stamp('phiq')
        def fuld(): return I(f's_mov_b32 s{sT0+4}, {hex(FU)}\nbuffer_load_dword v112, v127, {WS}, s{sT0+4} offen sc1')
        if L == 0 and P['fup'] == 0: fuld()
        if P['ot'][L] == 0: tot = otr()
        MK = [4, 6, 72, 74, 76] + list(range(80, 102, 2))
        Lb = s.label('KV'); D = s.label('KVD')
        I(f's_mov_b32 s{sT0+9}, 0')
        I(f'{Lb}:')
        for r in range(16):
            if r < nk: I(f'v_cmp_ne_u32 {s_(MK[r],2)}, s{sTAG}, v{kr(r)+3}')
            for e in range(4):
                I(f'v_dot2_f32_bf16 v{64+e}, v{kr(r)+e//2}, s{sSELHI if e & 1 else sSELLO}, {"0" if r == 0 else v(64+e)}')
            if r == 1: I(f'v_add_f32 v68, v{kb+2}, v{kb+6}\ns_or_b64 vcc, {s_(MK[0],2)}, {s_(MK[1],2)}')
            if r > 1: I(f'v_add_f32 v68, v68, v{kr(r)+2}')
            if 1 < r < nk: I(f's_or_b64 vcc, vcc, {s_(MK[r],2)}')
        I(f's_cbranch_scc0 {D}')
        with k.cond():
            for r in range(nk):
                I(f's_mov_b64 exec, {s_(MK[r],2)}'); kvld(r)
            I('s_mov_b64 exec, -1\ns_waitcnt vmcnt(0)')
            I(f's_add_u32 s{sT0+9}, s{sT0+9}, 1\ns_cmp_lt_u32 s{sT0+9}, s{sLIM}\ns_cbranch_scc1 {Lb}\ns_mov_b32 s{sLIM}, 1')
        I(f'{D}:')
        k.retire()
        s.stamp('kv_ok')
        if L == 0 and P['fup']: fuld()
        if L:
            if P['ot'][L] == 0: k.wait(tot)
            k.put(s.take(P['t1'][L] if P['ot'][L] == 0 else min(8, P['t1'][L])))
        I('v_cvt_pk_bf16_f32 v70, v64, v65\nv_cvt_pk_bf16_f32 v71, v66, v67\nv_cvt_pk_bf16_f32 v68, v68, v68')
        I(f'ds_write_b64 v{vKVW}, v[70:71]')
        t = I(f'ds_write_b16 v{vZW}, v68')
        k.wait(t); I('s_barrier')
        for n in range(4):
            I(f'ds_read_b128 {a_(aRING+8*n,4)}, v{vZR} offset:{n*16}\nds_read_b128 {a_(aRING+8*n+4,4)}, v{vKVR} offset:{n*256}')
        for n in range(4):
            I(f'v_mfma_f32_32x32x16_bf16 v[80:95], {a_(aRING+8*n,4)}, {v(vTMP+4*n,4)}, {"0" if n == 0 else "v[80:95]"}')
        for n in range(4):
            I(f'v_mfma_f32_32x32x16_bf16 v[64:79], {a_(aRING+8*n+4,4)}, {v(vTMP+4*n,4)}, {"0" if n == 0 else "v[64:79]"}')
        I('v_add_f32 v80, 0x358637bd, v80\nv_add_f32 v88, 0x358637bd, v88\nv_rcp_f32 v80, v80\nv_rcp_f32 v88, v88')
        so = s.SO(s, sT0)
        I(f's_lshl_b32 s{sT0+3}, s{sJ}, 11\ns_add_u32 s{sT0+3}, s{sT0+3}, s{sXIN}')
        for c in range(2):
            for r in range(0, 8, 2): I(f'v_pk_mul_f32 {v(64+8*c+r,2)}, {v(64+8*c+r,2)}, {v(80+8*c,2)} op_sel_hi:[1,0]')
            for r in range(4): I(f'v_cvt_pk_bf16_f32 v{96+4*c+r}, v{64+8*c+2*r}, v{64+8*c+2*r+1}')
            t = s.pub(s.ld(so, v(96+4*c, 4), vL16, sT0+3, bB*0x200000 + c*1024, op='buffer_store_dwordx4'))
        k.wait(t)
        s.flag(sFOP, 0, L + 1)
        s.stamp('opub')
        if L == 0:
            Lb = s.label('FU'); D = s.label('FUD')
            I(f's_mov_b32 s{sT0+9}, 0\n{Lb}:\nv_cmp_ne_u32 vcc, s{sTAG}, v112\ns_cbranch_vccz {D}')
            with k.cond():
                fuld(); I('s_waitcnt vmcnt(0)')
                I(f's_add_u32 s{sT0+9}, s{sT0+9}, 1\ns_cmp_lt_u32 s{sT0+9}, s{sLIM}\ns_cbranch_scc1 {Lb}\ns_mov_b32 s{sLIM}, 1')
            I(f'{D}:')
            k.retire()
            s.stamp('fu_ok')
            n = min(8, P['t2'][0]); k.put(s.take(n))
        else: n = 0
        if P['ot'][L]: tot = otr()
        k.wait(tot)
        k.put(s.take(P['t2'][L] - n))
        k.put(s.touches(P['to'][L]))
        return s.stop == f'o{L}'

    def red_write(s, slot, rt2, ct):
        I = s.I; a = vACC + 32*rt2 + 16*ct; t = None
        for h in range(2):
            for r in range(4): I(f'v_cvt_pk_bf16_f32 v{a+8*h+r}, v{a+8*h+2*r}, v{a+8*h+2*r+1}')
            t = I(f'ds_write_b128 v{vT1}, {v(a+8*h,4)} offset:{rt2*16384 + (2*ct+h)*512}')
        return t
    def red_finish(s, slot, scale, L, buf, p, final, pre, after=None):
        I = s.I; k = s.k; rb = vXB + 64
        I(f's_add_u32 s{sT0+3}, s{sM0}, {hex(slot*0x8000)}\nv_add_u32 v{vT0}, s{sT0+3}, v{vL16}')
        k.wait(*pre); I('s_barrier')
        if scale: I(f'ds_read_b32 v{vT2}, v{vRSR}')
        t = None
        for c in range(2):
            for src in range(4): t = I(f'ds_read_b128 {v(rb+16*c+4*src,4)}, v{vT0} offset:{src*2048 + c*1024}')
        so = s.SO(s, sT0)
        for c in range(2):
            for src in range(4):
                for e in range(8):
                    d = (vACC if scale else vRES) + 8*c + e
                    I(f'v_dot2_f32_bf16 v{d}, v{rb+16*c+4*src+e//2}, s{sSELHI if e & 1 else sSELLO}, {"0" if scale and src == 0 else v(d)}')
            if scale:
                for e in range(0, 8, 2): I(f'v_pk_fma_f32 {v(vRES+8*c+e,2)}, {v(vACC+8*c+e,2)}, {v(vT2,2)}, {v(vRES+8*c+e,2)} op_sel_hi:[1,0,1]')
            for r in range(4): I(f'v_cvt_pk_bf16_f32 v{vTMP+4*c+r}, v{vRES+8*c+2*r}, v{vRES+8*c+2*r+1}')
            if final: s.ld(so, v(vTMP+4*c, 4), vNAT, sNAT, 64*c, op='buffer_store_dwordx4', srdn=OS)
            else: s.pub(s.ld(so, v(vTMP+4*c, 4), vPUB, sXPUB, buf*0x200000 + 2048*c, op='buffer_store_dwordx4'))
        if final: return
        for r in range(8):
            I(f'v_dot2_f32_bf16 v{vT2}, v{vTMP+r}, s{sONES}, {"0" if r == 0 else v(vT2)}')
            I(f'v_dot2_f32_bf16 v{vT3}, v{vTMP+r}, v{vTMP+r}, {"0" if r == 0 else v(vT3)}')
        I(f'v_permlane32_swap_b32 v{vT2}, v{vT3}\nv_add_f32 v{vT2}, v{vT2}, v{vT3}\nv_mov_b32 v{vT3}, v{vT2}')
        I(f'v_permlane16_swap_b32 v{vT2}, v{vT3}\nv_add_f32 v{vT2}, v{vT2}, v{vT3}')
        t2 = s.pub(s.ld(so, v(vT2), vSTW, sSTPUB, buf*0x20000, op='buffer_store_dword'))
        k.wait(t2)
        s.flag(sFXP, 0, p)
        if after: after()

    def wo(s, L):
        I = s.I; k = s.k
        b = 2*L; SQ = (b+2) % 4; bA, bB = L, 1 - L
        I(f'v_add_u32 v{vT1}, {hex(SQ*0x8000)}, v{vREDW}')
        if L == 0:
            for i in range(7, -1, -1): I(f'v_and_b32 v{vRES+2*i+1}, 0xffff0000, v{vRES+i}\nv_lshlrev_b32 v{vRES+2*i}, 16, v{vRES+i}')
        s.poll(vFO, sFOC, 0, L + 1)
        s.stamp('o_ok')
        so = s.SO(s, sT0); wob = s.wob; ob = 2*vXB + 64 - wob
        with k.cap() as fl:
            for rt2 in range(2):
                for kk in range(8): s.ld(so, v(ob + 32*rt2 + 4*kk, 4), vL16, sXO, bB*0x200000 + rt2*0x8000 + kk*1024, 'sc1')
        k.put(fl[:8])
        with k.cap() as base:
            for rt2 in range(2):
                for kk in range(8):
                    for ct in range(2):
                        a = vACC + 32*rt2 + 16*ct
                        I(f'v_mfma_f32_32x32x16_bf16 {v(a,16)}, {v(wob+8*kk+4*ct,4)}, {v(ob+32*rt2+4*kk,4)}, {"0" if kk == 0 else v(a,16)}')
        with k.cap() as f1:
            s.red_write(SQ, 0, 0); s.red_write(SQ, 0, 1)
        k.weave(base, (fl[8:], 0, 15), (s.take(s.P['t3'][L]), 18, 31), (f1, 19, 30))
        s.red_write(SQ, 1, 0); t = s.red_write(SQ, 1, 1)
        s.stamp('wo_gemm')
        def after():
            if L == 0:
                I(f's_mul_i32 s{sT0+3}, s{sJ}, 896\ns_lshl_b32 s{sT0+4}, s{sW}, 8\ns_add_u32 s{sT0+3}, s{sT0+3}, s{sT0+4}\nv_lshlrev_b32 v{vT2}, 2, v0')
                for q in range(4):
                    I(f's_add_u32 s{sT0+3}, s{sT0+3}, {hex(CS if q == 0 else 14336)}\nbuffer_load_dword v{56+q}, v{vT2}, {WS}, s{sT0+3} offen sc1')
            s.bg_tile(3, sGU, 3*0x8000, SQ)
            k.put(s.take(s.P['t4'][L]))
        s.red_finish(SQ, False, L, bA, 2*L + 1, False, [t] + ([] if s.P['late'][L] else [s.tok[0], s.tok[1]]), after)
        s.stamp('x1pub')
        return s.stop == f'x{2*L+1}'

    def gu_epi(s, L, t):
        I = s.I; a = vACC + 16*(t % 4)
        for r in range(8): I(f'v_max_f32 v{a+r}, 0, v{a+r}')
        for r in range(8): I(f'v_mul_f32 v{a+r}, v{a+r}, v{a+8+r}')
        for r in range(4): I(f'v_cvt_pk_bf16_f32 v{a+8+r}, v{a+2*r}, v{a+2*r+1}')
        if s.P['hm']: return s.ld(s.soH, v(a+8, 4), vL16, sHPUB, t*1024, s.P['hm'], op='buffer_store_dwordx4')
        return s.pub(s.ld(s.soH, v(a+8, 4), vL16, sHPUB, t*1024, op='buffer_store_dwordx4'))
    def gu(s, L):
        I = s.I; k = s.k
        b = 2*L; slot = lambda t: (b + 3 + t) % 4
        bA = L
        s.poll(vFX, sFXC, 0, 2*L + 1)
        s.stamp('x1_ok')
        fill = [s.xloads(bA)]
        if s.P['late'][L]: k.wait(s.tok[0], s.tok[1]); I('s_barrier')
        fill.append((s.take(99), 40, 60))
        for names, g in s.P['tg'][L]: fill.append((s.touches(names), g, g + len(names) - 1))
        tcs = []
        if L == 0:
            with k.cap() as f:
                I(f'v_add_f32 v56, v56, v57\nv_add_f32 v58, v58, v59\nv_add_f32 v56, v56, v58')
                I('v_cvt_pk_bf16_f32 v57, v56, v56\nv_and_b32 v57, 0xffff0000, v57\nv_sub_f32 v57, v56, v57\nv_cvt_pk_bf16_f32 v57, v56, v57')
                with k.group(): I(f's_lshl_b32 s{sT0+3}, s{sW}, 8\ns_add_u32 s{sT0+3}, s{sT0+3}, {hex(WPH)}\nv_add_u32 v{vT2}, s{sT0+3}, v{vT2}')
                tcs.append(I(f'ds_write_b32 v{vT2}, v57'))
            fill.append((f, 24, 36))
        with k.cap() as f:
            s.stats(); s.meanop(60, vTMP, vTMP+2)
            I(f'v_rcp_f32 v{vRSTD}, v{vTMP+1}')
            I(f'v_mov_b32 v61, 0\nv_mov_b32 v62, 0\nv_mov_b32 v63, 0\nv_and_b32 v{vT2}, 31, v0\nv_lshlrev_b32 v{vT2}, 2, v{vT2}\nv_add_u32 v{vT2}, {hex(WPH)}, v{vT2}')
            s.tRS = I(f'ds_write_b32 v{vRSW}, v{vRSTD}')
        fill.append((f, 37, 59))
        for t in range(7):
            a = vACC + 16*(t % 4); r = 56 + 2*(t == 1)
            with k.cap() as f:
                if t < 2: I(f'ds_read2_b32 {v(r,2)}, v{vT2} offset0:{32*t} offset1:{32*t}')
                else: I(f'ds_read_b32 v{r}, v{vT2} offset:{128*t}')
                with k.group(): I(f'v_mfma_f32_32x32x16_bf16 {v(a,16)}, {v(r,4)}, v[60:63], {v(a,16)}')
            g = 64 + t if t < 2 else 32*t + 24
            fill.append(([f[0]], 61 if t < 2 else g - 4, 61 if t < 2 else g - 4)); fill.append(([f[1]], g, g))
        steps = []
        for kc in range(32): steps += [(slot(0), kc, vACC, kc == 0), (slot(1), kc, vACC+16, kc == 0)]
        for t in range(2, 7): steps += [(slot(t), kc, vACC + 16*(t % 4), kc == 0) for kc in range(32)]
        s.soH = s.SO(s, sT0+4)
        th = {}
        for t in range(2, 7):
            g0 = 32*t
            with k.cap() as f:
                if t == 2: s.gu_epi(L, 0)
                th[t-1] = s.gu_epi(L, t-1)
            fill.append((f, g0 + 4, g0 + (23 if t == 2 else 14)))
        for t in range(4, 7): s.bg_tile(t, sGU, t*0x8000, slot(t))
        if L == 0:
            s.bg_tile('K', sQKV, 0, slot(3)); s.bg_tile('V', sQKV, 0x8000, slot(4)); s.bg_tile('Q', sQKV, 0x10000, slot(5))
            fill.append((s.take(40), 61, 220))
            fill.append((s.takew(56), 62, 223))
        else:
            fill.append((s.take(24), 61, 156))
        fences = {}
        for t in range(2, 7): fences[32*t - 4] = (32*t, [s.tok[t]] + (tcs if t == 2 else []))
        base, last = s.gemm(steps, fences)
        with k.cap() as f:
            with k.group():
                k.wait(th[5])
                I(f's_add_u32 s{sT0+5}, s{sFOP}, {hex(FH - FO)}')
                s.flag(sT0+5, 0, 7*L + 6)
        fill.append((f, 32*6 + 27, 32*6 + 27))
        k.weave(base, *fill)
        k.wait(last); I('s_barrier')
        s.gu_epi(L, 6)
        s.stamp('gu')
        return s.stop == f'h{L}'

    def down(s, L):
        I = s.I; k = s.k
        b = 2*L; SR = (b + 3 + 6) % 4; bB = 1 - L
        I(f'v_add_u32 v{vT1}, {hex(SR*0x8000)}, v{vREDW}')
        I(f's_add_u32 s{sT0+6}, s{sFOC}, {hex(FH - FO)}')
        s.poll(vFO, sT0+6, 0, 7*L + 6)
        s.flag(sT0+5, 0, 7*L + 7)
        s.stamp('h_ok')
        order = [(t, jj, rt2) for t in range(7) for jj in range(4) for rt2 in range(2)]
        so = [s.SO(s, sT0), s.SO(s, sT0+2)]
        def hld(i):
            t, jj, rt2 = order[i]
            s.ld(so[rt2], v(vXB + 4*(i % 32), 4), vL16, sHIN, rt2*112*1024 + (7*jj + t)*1024, 'sc1')
        n = s.P['hf']
        for i in range(n): hld(i)
        for i, (t, jj, rt2) in enumerate(order):
            for ct in range(2):
                a = vACC + 32*rt2 + 16*ct
                I(f'v_mfma_f32_32x32x16_bf16 {v(a,16)}, {a_(8*(7*jj+t)+4*ct,4)}, {v(vXB+4*(i%32),4)}, {"0" if i < 2 else v(a,16)}')
            if i + n == 36: I(f'buffer_load_dword v{vT0}, v{vFO}, {WS}, s{sT0+6} offen sc1')
            if i + n == 48:
                D = s.label('H7')
                s.check(vT0, 7*L + 7)
                I(f's_cbranch_vccz {D}')
                with k.cond(): s.poll(vFO, sT0+6, 0, 7*L + 7)
                I(f'{D}:')
            if i + n < 56: hld(i + n)
            elif i % 3 == 0 and i < 55: k.put(s.take(1))
        for rt2 in range(2):
            for ct in range(2): t = s.red_write(SR, rt2, ct)
        s.stamp('dn_gemm')
        def after():
            k.put(s.take(8))
        s.red_finish(SR, True, L, bB, 2*L + 2, L == 1, [t, s.tok['V'], s.tRS], after)
        s.stamp('x2pub')
        return s.stop == f'x{2*L+2}'

    def gen(s):
        I = s.I
        for L in range(2):
            if s.qkv(L) or s.wo(L) or s.gu(L) or s.down(L): break
        I(f's_or_b32 s64, s{sR}, s{sJ}\ns_or_b32 s64, s64, s{sW}\ns_cmp_lg_u32 s64, 0\ns_cbranch_scc1 M_FIN')
        with s.k.cond():
            I(f's_add_u32 s64, s{sE}, 1\nv_mov_b32 v{vT5}, s64\nbuffer_store_dword v{vT5}, v{vL0}, {WS}, 0 offen')
        I('M_FIN:')
        if s.ts:
            s.stamp('end')
            I('s_memrealtime s[78:79]\ns_waitcnt lgkmcnt(0)\nv_writelane_b32 v23, s78, 61')
            I(f'v_writelane_b32 v23, s{sLIM}, 62\nv_writelane_b32 v23, s{sSLOW}, 63')
            I(f's_lshl_b32 s64, s{sR}, 4\ns_add_u32 s64, s64, s{sJ}\ns_lshl_b32 s64, s64, 2\ns_add_u32 s64, s64, s{sW}\ns_lshl_b32 s64, s64, 8\ns_add_u32 s64, s64, {hex(TS)}')
            I(f'v_lshlrev_b32 v{vT0}, 2, v0\nbuffer_store_dword v23, v{vT0}, {WS}, s64 offen sc1')
        if s.P.get('wb'): I('s_waitcnt vmcnt(0)\nbuffer_wbl2 sc1\ns_waitcnt vmcnt(0)')
        if s.P.get('dbg'):
            I(f's_cmp_lg_u32 s2, {s.P.get("dwg", 0)}\ns_cbranch_scc1 DB_END\ns_cmp_lg_u32 s{sW}, 0\ns_cbranch_scc1 DB_END')
            with s.k.cond():
                I('v_readlane_b32 s65, v23, 0\nv_mov_b32 v24, 0')
                for n, i in enumerate(s.P['dbg']): I(f'v_readlane_b32 s66, v23, {i}\ns_sub_u32 s66, s66, s65\nv_writelane_b32 v24, s66, {n}')
                I(f'v_lshlrev_b32 v25, 2, v0\nbuffer_store_dword v24, v25, {DS}, 0 offen')
            I('DB_END:')
        dg = s.P.get('diag')
        if dg is not None:
            I(f's_cmp_lg_u32 s2, {s.P.get("dwg", 0)}\ns_cbranch_scc1 DG_END\ns_cmp_lg_u32 s{sW}, 0\ns_cbranch_scc1 DG_END')
            with s.k.cond():
                I('v_readlane_b32 s64, v23, 60\ns_add_u32 s64, s64, 10000')
                if dg == 'rt': I('v_readlane_b32 s65, v23, 60\nv_readlane_b32 s66, v23, 61\ns_sub_u32 s66, s66, s65\ns_lshl_b32 s66, s66, 2\ns_add_u32 s64, s64, s66')
                elif dg:
                    i = [n for n, nm in enumerate(s.tsnames) if nm == dg[0]][dg[1]]
                    I(f'v_readlane_b32 s65, v23, 0\nv_readlane_b32 s66, v23, {i}\ns_sub_u32 s66, s66, s65\ns_lshr_b32 s66, s66, 2\ns_min_u32 s66, s66, 100000\ns_add_u32 s64, s64, s66')
                gs = s.P.get('gstat')
                if gs:
                    i = 60 if gs[0] == 'start' else [n for n, nm in enumerate(s.tsnames) if nm == gs[0]][gs[1]]
                    I('s_sub_u32 s68, s64, 2500\ns_mov_b32 s67, 0\nDG_W:\ns_memrealtime s[78:79]\ns_waitcnt lgkmcnt(0)\ns_sub_u32 s66, s78, s68\ns_cmp_lt_u32 s66, 0x80000000\ns_cbranch_scc1 DG_W2')
                    I('s_add_u32 s67, s67, 1\ns_cmp_lt_u32 s67, 200000\ns_cbranch_scc1 DG_W\nDG_W2:')
                    I(f'v_lshlrev_b32 v25, 10, v0\nv_readlane_b32 s65, v23, 60')
                    for q in range(4):
                        I(f's_mov_b32 s66, {hex(TS + q*65536)}\nbuffer_load_dword v{32+q}, v25, {WS}, s66 offen offset:240 sc1\nbuffer_load_dword v{36+q}, v25, {WS}, s66 offen offset:{4*i} sc1')
                    I('s_waitcnt vmcnt(0)')
                    for q in range(8): I(f'v_subrev_u32 v{32+q}, s65, v{32+q}')
                    op = {'max': 'max_i32', 'min': 'min_i32', 'mean': 'add_u32'}[gs[2]]
                    for q in range(1, 4): I(f'v_min_i32 v32, v32, v{32+q}\nv_{op} v36, v36, v{36+q}')
                    I('v_readlane_b32 s68, v32, 0\nv_readlane_b32 s69, v36, 0\ns_mov_b32 s67, 1\nDG_R:\ns_nop 4\nv_readlane_b32 s70, v32, s67\nv_readlane_b32 s71, v36, s67\ns_nop 4')
                    I(f's_min_i32 s68, s68, s70\ns_{op} s69, s69, s71\ns_add_u32 s67, s67, 1\ns_cmp_lt_u32 s67, 64\ns_cbranch_scc1 DG_R')
                    if gs[2] == 'mean': I('s_ashr_i32 s69, s69, 8')
                    I('s_sub_u32 s69, s69, s68\ns_lshl_b32 s69, s69, 2\ns_min_u32 s69, s69, 100000\ns_add_u32 s64, s64, s69')
                I('s_mov_b32 s67, 0\nDG_L:\ns_memrealtime s[78:79]\ns_waitcnt lgkmcnt(0)\ns_sub_u32 s66, s78, s64\ns_cmp_lt_u32 s66, 0x80000000\ns_cbranch_scc1 DG_END')
                I('s_add_u32 s67, s67, 1\ns_cmp_lt_u32 s67, 200000\ns_cbranch_scc1 DG_L')
            I('DG_END:')
        I('s_waitcnt vmcnt(0)\nM_END:\ns_endpgm')
        return s.k

HEADER = open('cdna_kernels/' + NAME + '.s.ref').read().split('; Override')[0] if __name__ == '__main__' else ''

def build(stop=None, ts=False, header='', **kw):
    st = {}
    m = Main(stop, ts, **kw)
    main = m.gen().finish(st)
    txt = header
    ls = kw.get('lst', 0)
    if ls == 2: txt += '; @launch kernel=pre_kernel grid=(256,1,1) block=(64,1,1) lds=0\n'
    txt += f'; @launch {"kernel=" + NAME + "_kernel " if ls else ""}grid=(256,1,1) block=(256,1,1) lds={LDS_MAIN}\n'
    if ls == 3: txt += '; @launch kernel=pre_kernel grid=(256,1,1) block=(64,1,1) lds=0\n'
    txt += '.amdgcn_target "amdgcn-amd-amdhsa--gfx950"\n.text\n'
    if ls > 1: txt += head('pre_kernel') + 's_endpgm\n' + kd('pre_kernel', 8, 8, 16)
    txt += head(NAME + '_kernel') + main + '\nCODE_END:\n'
    txt += kd(NAME + '_kernel', 512, 256)
    return txt, (st, m.tsnames)

if __name__ == '__main__':
    txt, st = build(header=HEADER)
    out = sys.argv[1] if len(sys.argv) > 1 else 'cdna_kernels/' + NAME + '.s'
    open(out, 'w').write(txt); print(st, len(txt))
```

```python
import sys, contextlib
from asm import Asm, Ins
NAME = 'interleave_layers__linear_kernel_hedgehog__glu_gated_reglu__prompt'

FX, FO, FH, FU, S0 = 0x2000, 0x4000, 0x6000, 0x30000, 0x10000
CS = 0x20000
ST = 0x40000
XB = (0x200000, 0x400000)
KVP = 0x600000
KVZ = 0x680000
HB = 0x800000
WQKV, WO_P, WD_P, WGU = 0x1000000, 0x1180000, 0x1200000, 0x1400000
TS = 0x2000000
WS_SIZE = 0x10000000
OOB = 0x7ffffff0
XA = 0x20000; PS = 2112
KVA = 0x26400; ZA = 0x26C00; ZERO = 0x26D00; RS = 0x27100
SUMS = (0x27400, 0x27600, 0x27C00, 0x27E00); WPH = 0x27800
LDS_MAIN = 163840

def v(a, n=1): return f'v{a}' if n == 1 else f'v[{a}:{a+n-1}]'
def a_(a, n=1): return f'a{a}' if n == 1 else f'a[{a}:{a+n-1}]'
def s_(a, n=1): return f's{a}' if n == 1 else f's[{a}:{a+n-1}]'

def kd(name, vgpr, acc, sgpr=102):
    return f'''.section .rodata,"a"
.p2align 6
.amdhsa_kernel {name}
  .amdhsa_next_free_vgpr {vgpr}
  .amdhsa_next_free_sgpr {sgpr}
  .amdhsa_accum_offset {acc}
  .amdhsa_group_segment_fixed_size 0
  .amdhsa_kernarg_size 88
  .amdhsa_user_sgpr_count 2
  .amdhsa_user_sgpr_kernarg_segment_ptr 1
  .amdhsa_system_sgpr_workgroup_id_x 1
.end_amdhsa_kernel
.text
'''
def head(name):
    return f'.globl {name}\n.p2align 8\n.type {name},@function\n{name}:\n'

def srd(I, d, b, size):
    I(f's_mov_b32 s{d}, s{b}\ns_mov_b32 s{d+1}, s{b+1}\ns_mov_b32 s{d+2}, {hex(size)}\ns_mov_b32 s{d+3}, 0x20000')

WS, XS, OS, DS = 's[8:11]', 's[12:15]', 's[16:19]', 's[20:23]'
sW, sG, sRK, sR, sJ, sHB, sCG, sTAG, sE, sLIM = 24, 25, 26, 27, 28, 29, 30, 31, 32, 33
sQKV, sGU, sWO, sWD = 34, 35, 36, 37
sXIN, sXO, sXPUB, sSTIN, sSTPUB = 38, 39, 40, 41, 42
sHPUB, sHIN, sFXC, sFXP, sFOC, sFOP, sKVP, sKVC, sNAT, sM0 = 43, 44, 45, 46, 47, 48, 49, 50, 51, 52
sSELLO, sSELHI, sONES, sLOG2E, sOM, sSLOW, sMARK = 53, 54, 55, 56, 57, 58, 59
sT0 = 60
QS, US, PS_, DS2, CSRD = 's[80:83]', 's[84:87]', 's[88:91]', 's[72:75]', 's[4:7]'
sPO, sWM, sXB, sXM, sUB, sUST, sUD = 92, 96, 97, 98, 99, 100, 101
sUKC, sUCS, sUB2, sUD2 = 76, 77, 88, 89
vW0, vX0, vU0, vWR, vXR, vSW, vSR, vWW = 32, 34, 36, 38, 40, 44, 45, 46
vUR, vUD = 40, 42
vMU, vMK = 20, 22
vROW = 240
vL, vL16, vL16b, vFX, vFO, vL0, vSTL, vPUB, vPHW, vTRA, vTRB, vKVW, vZW, vKVR, vZR, vREDW, vNAT, vSTW, vRSW, vRSR = range(20)
vRSTD, vC, vT0, vT1, vT2, vT3, vT4, vT5 = range(24, 32)
vRES = 32; vTMP = 48; vACC = 64; vXB = 128; aRING = 224

P0 = dict(xf=8, hf=10, uf='nt', xnt='nt', rnt='nt', ct=1, k0=20, kn=3, ko=range(9),
          sp=(0, 0, 1), xa=6, xe=8, tp=('', 20, 30), xb=4, xc=4, xd=1, xr=3.0, ug=0, kq=((2, 14), (2, 12)), fg=110, fup=1, sl=12, oq=((0, 6), (0, 12)), ot=(0, 0), on=(4, 4), oe=35, og=(4, 0), tw=('Xf', ''), twp=(1, 1),
          t1=(0, 6), t2=(8, 8), t3=(6, 6), t4=(10, 8), late=(1, 1),
          he=((10, 201, 223), (10, 201, 223)), hg=((175, 188, 200, 219), (175, 188, 200, 219)), hp=((22, 38), (22, 38)), ht=((), ()), tk=('', 'xf'), tkg=(59, 60), hm=('sc1', 'sc1'), om='', nt=('', ''), tg=((('XSf', 190),), (('f', 190),)), to=('xs', ''))
class Main:
    def __init__(s, stop=None, ts=False, **kw):
        s.k = Asm(); s.I = s.k.I; s.stop = stop; s.ts = ts; s.nl = 0; s.nts = 0; s.tsnames = []; s.bg = []; s.m0dirty = False; s.bw = []; s.tok = {}; s.P = dict(P0); s.P.update(kw)
    def md(s, key, d='sc1'): return d + (' nt' if str(key) in s.P['nt'][s.L] else '')
    def label(s, p):
        s.nl += 1; return f'{p}_{s.nl}'
    def stamp(s, name):
        if not s.ts: return
        r = 80 + 2*(s.nts % 10)
        s.tsnames.append(name)
        with s.k.group():
            s.I(f's_mem{"real" if s.P.get("gstat") else ""}time s[78:79]\ns_waitcnt lgkmcnt(0)\nv_writelane_b32 v23, s78, {s.nts}')
        s.nts += 1
    class SO:
        def __init__(o, m, tmp): o.m = m; o.tmp = tmp; o.key = None
        def get(o, base, off):
            hi = off & ~4095; lo = off & 4095
            if hi == 0: return f's{base}', lo
            if o.key != (base, hi):
                o.m.I(f's_add_u32 s{o.tmp}, s{base}, {hex(hi)}'); o.key = (base, hi)
            return f's{o.tmp}', lo
    def ld(s, so, dst, voff, base, off, mod='', op='buffer_load_dwordx4', srdn=WS):
        with s.k.group():
            r, lo = so.get(base, off)
            t = s.I(f'{op} {dst}, v{voff}, {srdn}, {r} offen' + (f' offset:{lo}' if lo else '') + (' ' + mod if mod else ''))
        return t
    def pub(s, t):
        t.alt = (f's{sSLOW}', t.text + ' sc1'); return t
    def dma_tile(s, so, base, off, slot, mod):
        t = None
        for h in range(2):
            for i in range(4):
                with s.k.group():
                    if i == 0:
                        s.I(f's_add_u32 m0, s{sM0}, {hex(slot*0x8000 + h*4096)}')
                        s.I(f's_add_u32 s{so}, s{base}, {hex(off + h*4096)}')
                    t = s.I(f'buffer_load_dwordx4 v{vL16}, {WS}, s{so} offen' + (f' offset:{i*1024}' if i else '') + f' {mod} lds')
        return t
    def bg_tile(s, key, base, off, slot):
        with s.k.cap() as f: s.tok[key] = s.dma_tile(sT0+1, base, off, slot, s.md(key))
        s.bg += f
    def take(s, n):
        r = s.bg[:n]; s.bg = s.bg[n:]
        if r and len(r[0]) == 1 and s.m0dirty: r[0] = [Ins(x.text) for x in s.setup] + r[0]
        if r: s.m0dirty = False
        for g in r:
            if len(g) == 3: s.setup = g[:2]
        return r
    def takew(s, n):
        r = s.bw[:n]; s.bw = s.bw[n:]; return r
    def check(s, vt, p):
        s.I(f's_add_u32 s{sT0+8}, s{sTAG}, {p}\nv_subrev_u32 v{vt}, s{sT0+8}, v{vt}\nv_cmp_lt_u32 vcc, 15, v{vt}')
    def poll(s, voff, sbase, off, p, vt=vT0):
        I = s.I; L = s.label('POLL'); D = s.label('PD')
        I(f's_mov_b32 s{sT0+9}, 0')
        I(f'{L}:')
        I(f'buffer_load_dword v{vt}, v{voff}, {WS}, s{sbase} offen' + (f' offset:{off}' if off else '') + ' sc1')
        I('s_waitcnt vmcnt(0)')
        s.check(vt, p)
        I(f's_cbranch_vccz {D}')
        with s.k.cond():
            I(f's_add_u32 s{sT0+9}, s{sT0+9}, 1\ns_cmp_lt_u32 s{sT0+9}, s{sLIM}\ns_cbranch_scc1 {L}\ns_mov_b32 s{sLIM}, 1')
        I(f'{D}:')
    def flag(s, sbase, off, p):
        with s.k.group():
            s.I(f's_add_u32 s{sT0+10}, s{sTAG}, {p}\nv_mov_b32 v{vT5}, s{sT0+10}')
            s.pub(s.I(f'buffer_store_dword v{vT5}, v{vL0}, {WS}, s{sbase} offen' + (f' offset:{off}' if off else '')))
    def tX(s, buf, t=vT3):
        with s.k.group():
            s.I(f's_lshl_b32 s{sT0+11}, s{sJ}, 11\ns_add_u32 s{sT0+11}, s{sT0+11}, s{sXIN}' + (f'\ns_add_u32 s{sT0+11}, s{sT0+11}, 0x200000' if buf else ''))
            s.I(f'v_lshlrev_b32 v{t}, 5, v{vFX}\nbuffer_load_dword v21, v{t}, {WS}, s{sT0+11} offen sc1')
    def tS(s, buf, t=vT3):
        with s.k.group():
            if buf: s.I(f's_add_u32 s{sT0+11}, s{sSTIN}, 0x20000')
            s.I(f'v_lshlrev_b32 v{t}, 5, v{vFX}\nbuffer_load_dword v21, v{t}, {WS}, s{sT0+11 if buf else sSTIN} offen sc1')
    def tF(s, t=vT3):
        with s.k.group():
            s.I(f'v_and_b32 v{t}, 3, v0\nv_lshlrev_b32 v{t}, 13, v{t}\nbuffer_load_dword v21, v{t}, {WS}, s{sFXC} offen sc1')
    def tH(s, t=vT3):
        with s.k.group():
            s.I(f'v_min_u32 v{t}, 55, v0\nv_lshlrev_b32 v{t}, 7, v{t}\nbuffer_load_dword v21, v{t}, {WS}, s{sHPUB} offen sc1')
    def touches(s, names, t=vT3):
        with s.k.cap() as f:
            for n in names:
                {'x': lambda: s.tX(0, t), 'X': lambda: s.tX(1, t), 's': lambda: s.tS(0, t), 'S': lambda: s.tS(1, t), 'f': lambda: s.tF(t), 'h': lambda: s.tH(t)}[n]()
        return f
    def ldsA(s, slot, kc):
        a = slot*0x8000 + kc*1024
        return (vL16, a) if a < 0x10000 else (vL16b, a - 0x10000)
    def gemm(s, steps, fences={}, LA=6):
        I = s.I; n = len(steps); nr = 0; last = None
        blocked = sorted((f[0], g) for g, f in fences.items())
        def limit(i):
            for st, g in blocked:
                if g > i: return st
            return n
        def rd():
            nonlocal nr, last
            vr, off = s.ldsA(steps[nr][0], steps[nr][1])
            last = I(f'ds_read_b128 {a_(aRING + 4*(nr % 8), 4)}, v{vr} offset:{off}'); nr += 1
        with s.k.cap() as base:
            while nr < min(LA, limit(-1)): rd()
            for i, (slot, kc, acc, first) in enumerate(steps):
                assert nr > i
                I(f'v_mfma_f32_32x32x16_bf16 {v(acc,16)}, {a_(aRING + 4*(i % 8), 4)}, {v(vXB+4*kc,4)}, {"0" if first else v(acc,16)}')
                if i in fences:
                    assert nr == fences[i][0], (nr, i, fences[i])
                    s.k.wait(last, *fences[i][1]); I('s_barrier')
                c = 0
                while nr < min(i + 1 + LA, limit(i), n) and c < 2: rd(); c += 1
        return base, last

    def init0(s):
        I = s.I; k = s.k
        I('s_cmp_ge_u32 s2, 256\ns_cbranch_scc1 M_END')
        I('s_load_dwordx2 s[80:81], s[0:1], 8\ns_load_dwordx2 s[88:89], s[0:1], 16\ns_load_dwordx2 s[12:13], s[0:1], 0')
        if s.ts:
            I('s_memtime s[78:79]\ns_memrealtime s[70:71]'); s.tsnames.append('start'); s.nts = 1
        I(f's_lshr_b32 s{sRK}, s2, 3')
        if s.P['ct']:
            I(f's_getpc_b64 s[4:5]\nPC0:\nv_lshrrev_b32 v2, 4, v0\nv_lshl_add_u32 v2, s{sRK}, 4, v2\nv_lshlrev_b32 v2, 7, v2\nv_min_u32 v2, CODE_END-PC0-4, v2')
            I(f'v_mov_b32 v3, s5\nv_add_co_u32 v2, vcc, s4, v2\nv_addc_co_u32 v3, vcc, 0, v3, vcc\nglobal_load_dword v21, v[2:3], off')
        I(f'v_lshrrev_b32 v1, 6, v0\nv_and_b32 v0, 63, v0\nv_readfirstlane_b32 s{sW}, v1')
        I(f's_mov_b32 s82, {hex(512*3072)}\ns_mov_b32 s83, 0x20000\ns_lshr_b32 s64, s{sRK}, 4')
        I(f's_and_b32 s{sJ}, s{sRK}, 15\ns_and_b32 s{sCG}, s{sJ}, 7\ns_lshl_b32 s{sM0}, s{sW}, 13')
        I(f's_lshl_b32 s65, s64, 11\ns_add_u32 s{sWM}, s65, s{sM0}')
        I(f's_lshl_b32 s65, s{sCG}, 1\ns_lshl_b32 s66, s{sW}, 2\ns_xor_b32 s65, s65, s66\ns_or_b32 s67, s64, s65')
        I(f's_lshl_b32 s65, s{sJ}, 6\ns_mul_i32 s66, s67, {32*3072}\ns_add_u32 s{sPO}, s66, s65')
        I(f'v_lshrrev_b32 v48, 2, v0\nv_and_b32 v49, 3, v0\nv_lshrrev_b32 v51, 4, v0\nv_xor_b32 v49, v49, v51\nv_lshlrev_b32 v49, 4, v49')
        I(f'v_mul_u32_u24 v{vW0}, 3072, v48\nv_add_u32 v{vW0}, v{vW0}, v49\nv_add_u32 v{vW0+1}, {16*3072-1024}, v{vW0}')
        I('s_waitcnt lgkmcnt(0)')
        s.wdma(0, 0, 1024)
        I('s_load_dwordx2 s[8:9], s[0:1], 80\ns_load_dwordx2 s[16:17], s[0:1], 64\ns_load_dwordx2 s[20:21], s[0:1], 72')
        I('s_load_dwordx4 s[40:43], s[0:1], 40\ns_load_dwordx2 s[72:73], s[0:1], 56')
        I(f's_mov_b32 s90, {hex(32*512)}\ns_mov_b32 s91, 0x20000\nv_lshlrev_b32 v{vL16}, 4, v0\ns_lshl_b32 s66, s{sJ}, 10\ns_mov_b32 m0, {hex(WPH)}')
        s.tok['P'] = I(f'buffer_load_dwordx4 v{vL16}, {PS_}, s66 offen lds')
        s.wdma(0, 1, 2048)
        I(f's_and_b32 s{sG}, s2, 7\ns_lshl_b32 s{sR}, s{sG}, 1\ns_add_u32 s{sR}, s{sR}, s64\ns_mov_b32 s14, {hex(2048*1024)}\ns_mov_b32 s15, 0x20000')
        I(f's_lshl_b32 s64, s{sR}, 17\ns_lshl_b32 s66, s{sJ}, 13\ns_add_u32 s64, s64, s66\ns_lshl_b32 s66, s{sW}, 11\ns_add_u32 s64, s64, s66')
        I(f'buffer_load_dwordx4 {v(vROW,4)}, v{vL16}, {XS}, s64 offen {s.P["rnt"]}\nbuffer_load_dwordx4 {v(vROW+4,4)}, v{vL16}, {XS}, s64 offen offset:1024 {s.P["rnt"]}')
        if s.ts: I('v_mov_b32 v23, 0\nv_writelane_b32 v23, s78, 0\nv_writelane_b32 v23, s70, 60')
        s.stamp('r1')
        if s.P.get('lat'):
            for n in (7, 6, 5, 4, 3, 2, 0): I(f's_waitcnt vmcnt({n})'); s.stamp(f'vm{n}')
        for p in range(1, 4): I(f's_xor_b32 s66, s67, {p}\ns_mul_i32 s66, s66, {32*3072}\ns_add_u32 s{sPO+p}, s66, s65')
        for d, size in ((8, WS_SIZE), (16, 2048*1024), (20, 256)):
            I(f's_mov_b32 s{d+2}, {hex(size)}\ns_mov_b32 s{d+3}, 0x20000')
        I(f's_lshr_b32 s{sHB}, s{sJ}, 3')
        I(f's_lshl_b32 s64, s{sR}, 2\ns_add_u32 s64, s64, s{sW}\ns_lshl_b32 s64, s64, 15\ns_lshl_b32 s65, s{sCG}, 7\ns_or_b32 s64, s64, s65\ns_lshl_b32 s65, s{sHB}, 14\ns_or_b32 s{sXB}, s64, s65')
        I(f's_lshl_b32 s65, s{sHB}, 11\ns_or_b32 s{sXM}, s65, s{sM0}')
        I(f'v_and_b32 v50, 7, v0\nv_lshlrev_b32 v53, 4, v50\nv_xor_b32 v50, v50, v51\nv_lshlrev_b32 v50, 4, v50\nv_lshrrev_b32 v52, 3, v0\nv_lshl_or_b32 v{vX0}, v52, 10, v50')
        I(f'v_xor_b32 v{vX0+1}, 64, v{vX0}\nv_add_u32 v{vX0+1}, {8192-1024}, v{vX0+1}')
    def wdma(s, p, slot, col):
        with s.k.group():
            s.I(f's_xor_b32 m0, s{sWM}, {hex(slot*0x8000 + p*2048)}\ns_add_u32 s{sT0+1}, s{sPO+p}, {col}')
            s.I(f'buffer_load_dwordx4 v{vW0}, {QS}, s{sT0+1} offen lds')
            return s.I(f'buffer_load_dwordx4 v{vW0+1}, {QS}, s{sT0+1} offen offset:1024 lds')
    def udma(s, i):
        with s.k.group():
            s.I(f's_add_u32 m0, s{sM0}, {hex(0x18000 + i*1024)}')
            if i < 4:
                t = s.I(f'buffer_load_dwordx4 v{vU0}, {US}, s{sUB} offen {s.P["uf"]} lds')
                if i < 3: s.I(f's_add_u32 s{sUB}, s{sUB}, {8*3584}')
            else:
                t = s.I(f'buffer_load_dwordx4 v{vU0+1}, {DS2}, s{sUB2} offen {s.P["uf"]} lds')
                if i < 5: s.I(f's_add_u32 s{sUB2}, s{sUB2}, 8192')
            return t
    def xreg(s, c): return (2 + (c >> 1 & 1))*0x8000 + (c & 1)*4096
    def xdma(s, c, p):
        with s.k.group():
            s.I(f's_xor_b32 m0, s{sXM}, {hex(s.xreg(c) + p*2048)}\ns_xor_b32 s{sT0+1}, s{sXB}, {hex(c*128 + p*16384)}')
            s.I(f'buffer_load_dwordx4 v{vX0}, {XS}, s{sT0+1} offen {s.P["xnt"]} lds')
            return s.I(f'buffer_load_dwordx4 v{vX0+1}, {XS}, s{sT0+1} offen offset:1024 {s.P["xnt"]} lds')
    def unit(s):
        I = s.I; k = s.k
        I(f's_lshr_b32 s64, s2, 6\ns_and_b32 s65, s2, 63\ns_and_b32 s66, s2, 7')
        I(f's_lshr_b32 s67, s{sW}, 1\ns_lshl_b32 s67, s67, 2\ns_and_b32 s68, s{sW}, 1\ns_or_b32 s67, s67, s68\ns_lshl_b32 s67, s67, 8')
        I(f's_mov_b32 s87, 0x20000\ns_mov_b32 s75, 0x20000')
        with k.group(): I(f's_cmp_lt_u32 s65, 56\ns_cselect_b32 s74, {hex(1792*1024)}, 0\ns_cselect_b32 s68, 0, 0x70000000')
        I(f's_mov_b32 s86, s74\ns_mul_i32 s70, s64, 7\ns_lshr_b32 s71, s65, 3\ns_add_u32 s70, s70, s71')
        I(f's_lshl_b32 s{sUB2}, s70, 16\ns_lshl_b32 s71, s{sW}, 14\ns_add_u32 s{sUB2}, s{sUB2}, s71\ns_lshl_b32 s71, s66, 7\ns_add_u32 s{sUB2}, s{sUB2}, s71')
        I(f's_mul_i32 s{sUD2}, s66, {224*1024}\ns_lshl_b32 s70, s70, 13\ns_add_u32 s{sUD2}, s{sUD2}, s70\ns_add_u32 s67, s67, s68\ns_add_u32 s{sUD2}, s{sUD2}, s67\ns_add_u32 s{sUD2}, s{sUD2}, {hex(WD_P)}')
        with k.group(): I(f's_cmp_ge_u32 s65, 28\ns_cselect_b32 s84, s42, s40\ns_cselect_b32 s85, s43, s41\ns_cselect_b32 s70, 28, 0\ns_cselect_b32 s71, 1, 0')
        I(f's_sub_u32 s65, s65, s70\ns_lshl_b32 s{sUB}, s65, 7\ns_lshl_b32 s65, s65, 2\ns_add_u32 s65, s65, s{sW}')
        I(f's_lshl_b32 s69, s64, 2\ns_add_u32 s69, s69, s{sW}\ns_mul_i32 s69, s69, {32*3584}\ns_add_u32 s{sUB}, s{sUB}, s69')
        I(f's_lshl_b32 s{sUD}, s65, 15\ns_lshl_b32 s70, s64, 13\ns_add_u32 s{sUD}, s{sUD}, s70\ns_lshl_b32 s70, s71, 8\ns_add_u32 s70, s70, s68\ns_add_u32 s{sUD}, s{sUD}, s70\ns_add_u32 s{sUD}, s{sUD}, {hex(WGU)}')
        I(f's_mul_i32 s64, s64, 112\ns_add_u32 s64, s64, s65\ns_lshl_b32 s64, s64, 1\ns_add_u32 s64, s64, s71\ns_lshl_b32 s64, s64, 6\ns_add_u32 s64, s64, s68\ns_add_u32 s{sUCS}, s64, {hex(CS)}')
        I(f'v_mul_u32_u24 v{vU0}, 3584, v52\nv_add_u32 v{vU0}, v{vU0}, v53\nv_lshl_or_b32 v{vU0+1}, v52, 10, v53')
    def uaddr(s):
        I = s.I; t0, t1 = vT2, vT4
        I(f'v_bfe_u32 v{t0}, v0, 2, 2\nv_lshrrev_b32 v{t1}, 5, v0\nv_lshl_or_b32 v{t0}, v{t1}, 3, v{t0}\nv_lshlrev_b32 v{vUR}, 7, v{t0}')
        I(f'v_lshlrev_b32 v{vUD}, 2, v{vFX}\nv_lshl_or_b32 v{vUD}, v{t1}, 9, v{vUD}')
        I(f'v_and_b32 v{t0}, 1, v0\nv_lshl_or_b32 v{vUR}, v{t0}, 4, v{vUR}\nv_bfe_u32 v{t0}, v0, 1, 1\nv_lshl_or_b32 v{vUR}, v{t0}, 3, v{vUR}')
        with s.k.group(): I(f's_lshl_b32 s{sT0+3}, s{sW}, 5\ns_add_u32 s{sT0+3}, s{sT0+3}, 0x18000\nv_add_u32 v{vUR}, s{sT0+3}, v{vUR}')
        I(f'v_bfe_u32 v{t0}, v0, 4, 1\nv_lshl_or_b32 v{vUR+1}, v{t0}, 13, v{vUR}\nv_lshl_or_b32 v{vUR}, v{t0}, 11, v{vUR}')
        I(f'v_lshl_or_b32 v{vUD+1}, v{t0}, 11, v{vUD}\nv_lshl_or_b32 v{vUD}, v{t0}, 10, v{vUD}')
    def uproc(s):
        I = s.I; k = s.k; d = 64
        for n, r in (('a', sUD), ('b', sUD2), ('c', sUCS)):
            if n in s.P.get('nou', ''): I(f's_mov_b32 s{r}, 0x70000000')
        with k.group():
            k.wait(s.tok['U'])
            if s.P.get('xs'): s.stamp('u_ok')
            I('s_barrier')
        for q in range(6):
            for r in range(2):
                if q < 4: I(f'ds_read_b64_tr_b16 {v(d+4*q+2*r,2)}, v{vUR} offset:{q*8192 + r*512}')
                else: I(f'ds_read_b64_tr_b16 {v(d+4*q+2*r,2)}, v{vUR+1} offset:{(q-4)*16384 + 4096 + r*512}')
        for q in range(6):
            with k.group():
                if q < 4:
                    I(f'v_mfma_f32_16x16x32_bf16 {v(d+24,4)}, a[64:67], {v(d+4*q,4)}, {"0" if q == 0 else v(d+24,4)}')
                    I(f'buffer_store_dwordx4 {v(d+4*q,4)}, v{vUD}, {WS}, s{sUD} offen' + (' offset:2048' if q & 1 else '') + ' sc1')
                    if q == 1: I(f's_add_u32 s{sUD}, s{sUD}, 4096')
                else:
                    I(f'buffer_store_dwordx4 {v(d+4*q,4)}, v{vUD+1}, {WS}, s{sUD2} offen sc1')
                    if q < 5: I(f's_add_u32 s{sUD2}, s{sUD2}, 4096')
        return I(f'buffer_store_dword v{d+24}, v{vFX}, {WS}, s{sUCS} offen sc1')
    def export(s, q, d):
        I = s.I
        with s.k.group():
            I(f's_lshl_b32 s{sT0+6}, s{sR}, 1\ns_and_b32 s{sT0+7}, s{sW}, 1\ns_or_b32 s{sT0+6}, s{sT0+6}, s{sT0+7}')
            if q: I(f's_or_b32 s{sT0+6}, s{sT0+6}, 64')
            else: I(f's_lshr_b32 s{sT0+7}, s{sW}, 1\ns_lshl_b32 s{sT0+7}, s{sT0+7}, 5\ns_or_b32 s{sT0+6}, s{sT0+6}, s{sT0+7}')
            I(f's_lshl_b32 s{sT0+6}, s{sT0+6}, 10\nv_add_u32 v{d}, s{sT0+6}, v{vL16}\nds_read_b128 {v(d,4)}, v{d}')
        with s.k.group():
            I(f's_lshl_b32 s{sT0+7}, s{sCG}, 12\ns_xor_b32 s{sT0+6}, s{sT0+6}, s{sT0+7}\ns_add_u32 s{sT0+6}, s{sT0+6}, s{sQKV}\ns_sub_u32 s{sT0+6}, s{sT0+6}, s{sM0}')
        with s.k.group():
            I(f'buffer_store_dwordx4 {v(d,4)}, v{vL16}, {WS}, s{sT0+6} offen sc1')
    def meanop(s, d, m, t):
        I = s.I
        I(f'v_cvt_pk_bf16_f32 v{d}, -v{m}, -v{m}\nv_and_b32 v{t}, 0xffff0000, v{d}\nv_sub_f32 v{t}, -v{m}, v{t}\nv_cvt_pk_bf16_f32 v{t}, v{t}, v{t}')
        with s.k.group(): I(f'v_cmp_gt_u32 vcc, 32, v0\nv_cndmask_b32 v{d}, v{t}, v{d}, vcc')
    def finit(s):
        I = s.I; k = s.k
        n, hf, sw, b2, t0, t1, t2 = 50, 51, 52, 53, 54, 55, 56
        I(f'v_and_b32 v{n}, 31, v0\nv_lshrrev_b32 v{hf}, 5, v0\nv_bfe_u32 v{b2}, v0, 2, 1\nv_bfe_u32 v{t0}, v0, 3, 1')
        I(f'v_and_b32 v{sw}, 19, v{n}\nv_lshl_or_b32 v{sw}, v{b2}, 3, v{sw}\nv_lshl_or_b32 v{sw}, v{t0}, 2, v{sw}')
        I(f'v_lshl_or_b32 v{t0}, v{b2}, 1, v{t0}\nv_xor_b32 v{t0}, v{t0}, v{hf}\nv_lshlrev_b32 v{t0}, 4, v{t0}\nv_lshl_or_b32 v{t0}, v{sw}, 6, v{t0}')
        I(f'v_add_u32 v{vWR}, s{sM0}, v{t0}\nv_xor_b32 v{vWR+1}, 32, v{vWR}\nv_add_u32 v{vWW}, s{sM0}, v{vL16}')
        I(f'v_bfe_u32 v{t0}, v0, 1, 3\nv_xor_b32 v{t0}, v{t0}, v{hf}\nv_lshlrev_b32 v{t0}, 4, v{t0}\nv_lshl_or_b32 v{t0}, v{n}, 7, v{t0}')
        I(f's_add_u32 s64, s{sM0}, 0x10000\nv_add_u32 v{vXR}, s64, v{t0}')
        for q in range(1, 4): I(f'v_xor_b32 v{vXR+q}, {32*q}, v{vXR}')
        I(f'v_lshlrev_b32 v{t0}, 4, v{n}\nv_add_u32 v{vSR}, 0x20000, v{t0}\ns_lshl_b32 s64, s{sW}, 2\nv_add_u32 v{vSW}, s64, v{vSR}')
        I(f'v_bfe_u32 v{t1}, v0, 4, 1')
        I(f'v_and_b32 v{t0}, 1, v0\nv_lshlrev_b32 v{t0}, 9, v{t0}\nv_lshl_or_b32 v{t0}, v{hf}, 8, v{t0}\nv_bfe_u32 v{t2}, v0, 2, 2\nv_lshl_or_b32 v{t0}, v{t2}, 5, v{t0}')
        I(f'v_lshl_or_b32 v{t0}, v{t1}, 4, v{t0}\nv_bfe_u32 v{t2}, v0, 1, 1\nv_lshl_or_b32 v{t0}, v{t2}, 3, v{t0}\nv_add_u32 v57, {hex(WPH)}, v{t0}')
        I(f'v_lshrrev_b32 v{t0}, 3, v{n}\nv_and_b32 v{t1}, 3, v{n}\nv_lshl_or_b32 v{t0}, v{t0}, 2, v{t1}\nv_lshl_or_b32 v{t0}, v{b2}, 4, v{t0}')
        I(f'v_mov_b32 v58, 0x3f80')
        for d, cm in ((64, t0),):
            I(f'v_lshlrev_b32 v{t1}, 3, v{hf}\nv_sub_u32 v{t1}, v{cm}, v{t1}\nv_and_b32 v{t2}, 1, v{t1}\nv_lshlrev_b32 v{t2}, 4, v{t2}\nv_lshlrev_b32 v{t2}, v{t2}, v58\nv_ashrrev_i32 v{t1}, 1, v{t1}')
            for p in range(2):
                for r in range(4): I(f'v_cmp_eq_u32 vcc, {8*p+r}, v{t1}\nv_cndmask_b32 v{d+4*p+r}, 0, v{t2}, vcc')
        for r in range(8): I(f'v_accvgpr_write_b32 a{r}, v{64+r}')
        for r in range(4): I(f'v_accvgpr_write_b32 a{64+r}, s{sONES}')
        I(f's_mul_i32 s{sTAG}, s{sE}, 0x9E3779B1\ns_add_u32 s{sTAG}, s{sTAG}, 0x7F4A7C15')
    def fold(s):
        I = s.I
        s.k.wait(s.tok['P'])
        I('ds_read_b64_tr_b16 v[60:61], v57\nds_read_b64_tr_b16 v[62:63], v57 offset:128')
        I('v_cmp_eq_u32 vcc, 0, v53')
        for r in range(4): I(f'v_cndmask_b32 v{80+r}, 0, v{60+r}, vcc\nv_cndmask_b32 v{84+r}, v{60+r}, 0, vcc')
        for r in range(8): I(f'v_accvgpr_write_b32 a{16+r}, v{80+r}')
    def lbuild(s, tok, slot, B, si):
        I = s.I; k = s.k; off = (slot & 1)*0x8000
        k.wait(tok)
        for b in range(4):
            for p in range(2): I(f'ds_read_b128 {a_(32+8*b+4*p,4)}, v{vWR+p} offset:{off + b*2048}')
        def T(i):
            b, p = i >> 1, i & 1; d = 64 + 16*b
            I(f'v_mfma_f32_32x32x16_bf16 {v(d,16)}, {a_(32+8*b+4*p,4)}, {a_(B+4*p,4)}, {"0" if p == 0 else v(d,16)}')
        def C(i):
            d = 64 + 8*i
            for r in range(4): I(f'v_cvt_pk_bf16_f32 v{d+r}, v{d+2*r}, v{d+2*r+1}')
            I(f'ds_write_b128 v{vWW}, {v(d,4)} offset:{off + i*1024}')
        def S(i): I(f'v_mfma_f32_32x32x16_bf16 v[48:63], a[64:67], {v(64+8*i,4)}, {"0" if i == 0 else "v[48:63]"}')
        for i in range(16):
            (T if i < 8 else S)(i & 7)
            if 3 <= i < 11: C(i - 3)
        I('v_cvt_pk_bf16_f32 v49, v48, v48\nv_and_b32 v50, 0xffff0000, v49\nv_sub_f32 v50, v48, v50\nv_cvt_pk_bf16_f32 v49, v48, v50')
        return I(f'ds_write_b32 v{vSW}, v49 offset:{SUMS[si] - 0x20000}')
    def rowstats(s):
        I = s.I
        for r in range(2):
            for i in range(4):
                x = vROW + 4*r + i
                I(f'v_dot2_f32_bf16 v{248+r}, v{x}, s{sONES}, {"0" if i == 0 else v(248+r)}')
                I(f'v_dot2_f32_bf16 v{250+r}, v{x}, v{x}, {"0" if i == 0 else v(250+r)}')
        I('v_permlane32_swap_b32 v248, v249\nv_permlane32_swap_b32 v250, v251\nv_add_f32 v248, v248, v249\nv_add_f32 v250, v250, v251')
        I(f'v_and_b32 v252, 15, v0\nv_cmp_eq_u32 vcc, 0, v252\nv_lshrrev_b32 v252, 1, v0\nv_mov_b32 v253, {hex(OOB)}')
        I('v_permlane16_swap_b32 v248, v250\nv_cndmask_b32 v252, v253, v252, vcc\nv_add_f32 v248, v248, v250')
        I(f'v_mov_b32 v249, s{sTAG}\ns_lshl_b32 s64, s{sR}, 11\ns_lshl_b32 s65, s{sJ}, 7\ns_add_u32 s64, s64, s65\ns_lshl_b32 s65, s{sW}, 5\ns_add_u32 s64, s64, s65\ns_add_u32 s64, s64, {hex(S0)}')
        for mod in ('quad_perm:[1,0,3,2]', 'quad_perm:[2,3,0,1]', 'row_half_mirror', 'row_mirror'):
            I(f'v_add_f32_dpp v248, v248, v248 {mod} row_mask:0xf bank_mask:0xf')
        s.k.wait(s.tok['C'])
        I(f'buffer_store_dwordx2 v[248:249], v252, {WS}, s64 offen sc1')
    def init(s):
        I = s.I; k = s.k
        I(f's_load_dword s{sE}, s[8:9], 0')
        I(f's_lshl_b32 s64, s{sJ}, 2\ns_add_u32 s64, s64, s{sW}\ns_lshl_b32 s64, s64, 4\ns_add_u32 s{sKVP}, s64, s{sR}')
        I(f's_lshl_b32 s64, s{sKVP}, 9\ns_add_u32 s64, s64, {hex(KVP)}\ns_and_b32 s{sKVC}, s64, 0xfffff800\ns_lshl_b32 s65, s{sKVP}, 6\ns_add_u32 s65, s65, {hex(KVZ)}')
        for r in range(4): I(f'v_mov_b32 v{96+r}, -1')
        I(f'v_lshlrev_b32 v100, 11, v{vL16}\nv_or_b32 v100, v100, v{vL16}\nv_and_b32 v100, 0x1001f0, v100\nbuffer_store_dwordx4 v[96:99], v100, {WS}, s64 offen sc1')
        I(f'v_lshlrev_b32 v101, 16, v0\nv_lshl_or_b32 v101, v0, 2, v101\nv_and_b32 v101, 0x10003c, v101')
        s.tok['C'] = I(f'buffer_store_dword v96, v101, {WS}, s65 offen sc1')
        I(f's_getreg_b32 s{sMARK}, hwreg(HW_REG_XCC_ID)\ns_and_b32 s{sMARK}, s{sMARK}, 15\ns_or_b32 s{sMARK}, s{sMARK}, 0x80')
        I(f'v_add_u32 v{vL16b}, 0x10000, v{vL16}')
        I(f'v_cmp_eq_u32 vcc, 0, v0\nv_mov_b32 v{vT0}, {hex(OOB)}\nv_cndmask_b32 v{vL0}, v{vT0}, v0, vcc')
        I(f's_mov_b32 s{sLIM}, 20000')
        I(f'v_and_b32 v50, 15, v0\nv_lshrrev_b32 v51, 4, v0\nv_and_b32 v52, 31, v0\nv_lshrrev_b32 v53, 5, v0')
        I(f'v_lshlrev_b32 v{vFX}, 2, v50')
        I(f'v_bfe_u32 v54, v0, 2, 1\nv_and_b32 v55, 3, v0\nv_lshlrev_b32 v55, 2, v55\nv_lshl_or_b32 v{vFO}, v54, 7, v55')
        I(f'v_lshlrev_b32 v54, 6, v52\nv_lshl_or_b32 v{vSTL}, v53, 5, v54')
        I(f'v_lshlrev_b32 v54, 4, v50\nv_lshl_or_b32 v{vPUB}, v51, 9, v54')
        I(f's_lshl_b32 s64, s{sW}, 9\ns_add_u32 s64, s64, {hex(XA)}\ns_movk_i32 s65, {6*PS}')
        I(f'v_mul_lo_u32 v54, v53, s65\nv_lshl_add_u32 v54, v52, 4, v54\nv_add_u32 v{vPHW}, s64, v54')
        I(f's_movk_i32 s65, {PS}\nv_bfe_u32 v54, v0, 1, 1\nv_mul_lo_u32 v54, v54, s65\nv_and_b32 v55, 1, v0\nv_lshl_add_u32 v54, v55, 3, v54')
        I(f'v_lshrrev_b32 v55, 2, v50\nv_lshl_add_u32 v55, v51, 3, v55\nv_lshl_add_u32 v54, v55, 4, v54')
        I(f's_lshr_b32 s66, s{sW}, 1\ns_mul_i32 s66, s66, {6*PS}\ns_add_u32 s66, s66, {hex(XA)}\ns_and_b32 s67, s{sW}, 1\ns_mul_i32 s67, s67, {2*PS}\ns_add_u32 s67, s67, s66\ns_add_u32 s66, s66, {4*PS}')
        I(f'v_add_u32 v{vTRA}, s67, v54\nv_add_u32 v{vTRB}, s66, v54')
        I(f'v_lshlrev_b32 v54, 4, v50\nv_lshl_or_b32 v54, v53, 8, v54\nv_and_b32 v55, 1, v51\nv_lshl_or_b32 v54, v55, 3, v54')
        I(f's_lshl_b32 s64, s{sW}, 9\ns_add_u32 s64, s64, {hex(KVA)}\nv_add_u32 v{vKVW}, s64, v54')
        I(f's_lshl_b32 s64, s{sW}, 5\ns_add_u32 s64, s64, {hex(ZA)}\nv_and_b32 v54, 3, v0\nv_lshl_or_b32 v54, v54, 1, v55\nv_lshl_or_b32 v54, v54, 1, v53\nv_lshl_add_u32 v{vZW}, v54, 1, s64')
        I(f'v_and_b32 v54, 3, v0\nv_bfe_u32 v55, v0, 2, 1\nv_lshl_or_b32 v54, v55, 3, v54\nv_bfe_u32 v55, v0, 3, 1\nv_lshl_or_b32 v54, v55, 2, v54')
        I(f'v_lshlrev_b32 v54, 4, v54\nv_lshl_or_b32 v54, v53, 10, v54\nv_add_u32 v54, {hex(KVA)}, v54')
        I(f'v_lshlrev_b32 v55, 6, v53\nv_add_u32 v55, {hex(ZA)}, v55\nv_bfe_u32 v56, v0, 4, 1\nv_cmp_eq_u32 vcc, v56, v53\nv_mov_b32 v57, {hex(ZERO)}')
        I(f'v_cndmask_b32 v{vKVR}, v57, v54, vcc\nv_cndmask_b32 v{vZR}, v57, v55, vcc')
        I(f'v_lshlrev_b32 v54, 4, v50\nv_lshl_or_b32 v54, v53, 8, v54\nv_lshl_or_b32 v54, v56, 13, v54\ns_lshl_b32 s64, s{sW}, 11\nv_add_u32 v{vREDW}, s64, v54')
        I(f'v_lshlrev_b32 v54, 10, v50\nv_lshl_or_b32 v{vNAT}, v51, 4, v54')
        I(f'v_lshlrev_b32 v54, 6, v50\nv_lshl_or_b32 v54, v53, 2, v54\nv_cmp_eq_u32 vcc, 0, v56\nv_mov_b32 v55, {hex(OOB)}\nv_cndmask_b32 v{vSTW}, v55, v54, vcc')
        I(f's_lshl_b32 s64, s{sW}, 7\ns_add_u32 s64, s64, {hex(RS)}\nv_lshlrev_b32 v54, 2, v52\nv_add_u32 v{vRSW}, s64, v54')
        I(f'v_mov_b32 v56, 0\nv_mov_b32 v57, 0\nv_mov_b32 v58, 0\nv_mov_b32 v59, 0\nv_add_u32 v54, {hex(ZERO)}, v{vL16}\nds_write_b128 v54, v[56:59]')
        I(f's_mov_b32 s{sSELLO}, 0x3f80\ns_mov_b32 s{sSELHI}, 0x3f800000\ns_mov_b32 s{sONES}, 0x3f803f80\ns_mov_b32 s{sLOG2E}, 0x3fb8aa3b')
        I(f's_mul_i32 s64, s{sJ}, {96*1024}\ns_add_u32 s64, s64, s{sM0}\ns_add_u32 s{sQKV}, s64, {hex(WQKV)}')
        I(f's_lshl_b32 s66, s{sR}, 2\ns_add_u32 s65, s66, s{sW}')
        I(f's_lshl_b32 s64, s65, 15\ns_add_u32 s{sXIN}, s64, {hex(XB[0])}')
        I(f's_lshl_b32 s64, s65, 11\ns_add_u32 s{sSTIN}, s64, {hex(ST)}')
        I(f's_mul_i32 s64, s{sJ}, {224*1024}\ns_add_u32 s64, s64, s{sM0}\ns_add_u32 s{sGU}, s64, {hex(WGU)}')
        I(f's_lshr_b32 s67, s{sRK}, 3\ns_lshl_b32 s64, s{sW}, 2\ns_or_b32 s64, s64, s67\ns_lshl_b32 s64, s64, 8\ns_or_b32 s64, s64, s{sCG}\ns_lshl_b32 s{sWO}, s64, 7')
        I(f's_lshl_b32 s67, s{sHB}, 12\ns_or_b32 s{sOM}, s67, s{sM0}')
        I(f's_mul_i32 s64, s{sCG}, {224*1024}\ns_mul_i32 s67, s{sW}, {56*1024}\ns_add_u32 s64, s64, s67\ns_add_u32 s{sWD}, s64, {hex(WD_P)}')
        I(f's_lshl_b32 s67, s{sHB}, 1\ns_add_u32 s66, s66, s67')
        I(f's_lshr_b32 s67, s{sW}, 1\ns_add_u32 s67, s67, s66\ns_and_b32 s68, s{sW}, 1')
        I(f's_lshl_b32 s64, s66, 15\ns_add_u32 s64, s64, s{sM0}\ns_add_u32 s{sXO}, s64, {hex(XB[0])}')
        I(f's_lshl_b32 s64, s67, 15\ns_lshl_b32 s69, s{sCG}, 12\ns_add_u32 s64, s64, s69\ns_lshl_b32 s69, s68, 8\ns_add_u32 s64, s64, s69\ns_add_u32 s{sXPUB}, s64, {hex(XB[0])}')
        I(f's_lshl_b32 s64, s67, 11\ns_lshl_b32 s69, s68, 10\ns_add_u32 s64, s64, s69\ns_lshl_b32 s69, s{sCG}, 3\ns_add_u32 s64, s64, s69\ns_add_u32 s{sSTPUB}, s64, {hex(ST)}')
        I(f's_mul_i32 s64, s65, {112*1024}\ns_mul_i32 s69, s{sJ}, {7*1024}\ns_add_u32 s64, s64, s69\ns_add_u32 s{sHPUB}, s64, {hex(HB)}')
        I(f's_mul_i32 s64, s66, {112*1024}\ns_mul_i32 s69, s{sW}, {28*1024}\ns_add_u32 s64, s64, s69\ns_add_u32 s{sHIN}, s64, {hex(HB)}')
        I(f's_lshl_b32 s64, s65, 7\ns_add_u32 s{sFXC}, s64, {hex(FX)}')
        I(f's_lshl_b32 s69, s{sJ}, 2\ns_add_u32 s64, s64, s69\ns_add_u32 s{sFOP}, s64, {hex(FO)}')
        I(f's_lshl_b32 s64, s67, 7\ns_lshl_b32 s69, s{sCG}, 3\ns_add_u32 s64, s64, s69\ns_lshl_b32 s69, s68, 2\ns_add_u32 s64, s64, s69\ns_add_u32 s{sFXP}, s64, {hex(FX)}')
        I(f's_lshl_b32 s64, s66, 7\ns_lshl_b32 s69, s{sW}, 4\ns_add_u32 s64, s64, s69\ns_add_u32 s{sFOC}, s64, {hex(FO)}')
        I(f's_lshl_b32 s64, s{sR}, 17\ns_lshl_b32 s69, s{sHB}, 16\ns_add_u32 s64, s64, s69\ns_lshl_b32 s69, s{sW}, 14\ns_add_u32 s64, s64, s69\ns_lshl_b32 s69, s{sCG}, 7\ns_add_u32 s{sNAT}, s64, s69')
        I(f's_lshl_b32 s64, s{sHB}, 8\ns_lshl_b32 s69, s{sW}, 6\ns_add_u32 s64, s64, s69\ns_add_u32 s64, s64, {hex(RS)}\nv_add_u32 v{vRSR}, s64, v{vFX}')

    def xloads(s, buf):
        so = s.SO(s, sT0)
        d = buf*0x20000; n = s.P['xf']
        with s.k.cap() as f:
            for kc in range(33):
                if kc == s.P['sl']: s.ld(so, v(vTMP, 4), vSTL, sSTIN, d, 'sc1'); s.ld(so, v(vTMP+4, 4), vSTL, sSTIN, d + 16, 'sc1')
                if kc < 32: s.ld(so, v(vXB + 4*kc, 4), vL16, sXIN, buf*0x200000 + kc*1024, 'sc1')
        s.k.put(f[:n])
        return (f[n:], 0, 2*(32 - n) - 1)
    def stats(s, own=False):
        I = s.I; t = vTMP
        I(f'v_add_f32 v{t}, v{t}, v{t+2}\nv_add_f32 v{t+1}, v{t+1}, v{t+3}')
        if not own:
            I(f'v_add_f32 v{t+4}, v{t+4}, v{t+6}\nv_add_f32 v{t+5}, v{t+5}, v{t+7}')
            I(f'v_add_f32 v{t}, v{t}, v{t+4}\nv_add_f32 v{t+1}, v{t+1}, v{t+5}')
        I(f'v_permlane32_swap_b32 v{t}, v{t+1}')
        I(f'v_add_f32 v{t}, v{t}, v{t+1}')
        I(f'v_mul_f32 v{t}, 0x3b000000, v{t}')
        I(f'v_mov_b32 v{t+1}, v{t}')
        I(f'v_permlane32_swap_b32 v{t}, v{t+1}')
        I(f'v_fma_f32 v{t+1}, -v{t}, v{t}, v{t+1}')
        I(f'v_max_f32 v{t+1}, 0, v{t+1}')
        I(f'v_add_f32 v{t+1}, 0x3727c5ac, v{t+1}')
    def phi(s, p, tA, tB, out, emit=None):
        I = s.I; mx, mn = vT0, vT2
        I(f'v_max3_f32 v{mx}, v{p}, v{p+1}, v{p+2}\nv_min3_f32 v{mn}, v{p}, v{p+1}, v{p+2}')
        for r in range(3, 15, 2): I(f'v_max3_f32 v{mx}, v{mx}, v{p+r}, v{p+r+1}\nv_min3_f32 v{mn}, v{mn}, v{p+r}, v{p+r+1}')
        I(f'v_max_f32 v{mx}, v{mx}, v{p+15}\nv_min_f32 v{mn}, v{mn}, v{p+15}')
        I(f'v_mul_f32 v{mx}, v{mx}, v{vC}\nv_mul_f32 v{mn}, v{mn}, v{vC}')
        for sg, t, m in ((0, tA, mx), (1, tB, mn)):
            for r in range(0, 16, 2):
                if sg == 0: I(f'v_pk_fma_f32 {v(t+r,2)}, {v(p+r,2)}, {v(vC-1,2)}, {v(m,2)} op_sel:[0,1,0] op_sel_hi:[1,1,0] neg_lo:[0,0,1] neg_hi:[0,0,1]')
                else: I(f'v_pk_fma_f32 {v(t+r,2)}, {v(p+r,2)}, {v(vC-1,2)}, {v(m,2)} op_sel:[0,1,0] op_sel_hi:[1,1,0] neg_lo:[1,0,0] neg_hi:[1,0,0]')
            for r in range(16): I(f'v_exp_f32 v{t+r}, v{t+r}')
            I(f'v_pk_add_f32 {v(vT4,2)}, {v(t,2)}, {v(t+2,2)}')
            for r in range(4, 16, 2): I(f'v_pk_add_f32 {v(vT4,2)}, {v(vT4,2)}, {v(t+r,2)}')
            I(f'v_add_f32 v{vT4}, v{vT4}, v{vT5}\nv_rcp_f32 v{vT4}, v{vT4}')
            for r in range(0, 16, 2): I(f'v_pk_mul_f32 {v(t+r,2)}, {v(t+r,2)}, {v(vT4,2)} op_sel_hi:[1,0]')
            for r in range(8):
                I(f'v_cvt_pk_bf16_f32 v{out+8*sg+r}, v{t+2*r}, v{t+2*r+1}')
                if emit and r % 4 == 3: emit(2*sg + r//4)

    def front(s):
        I = s.I; k = s.k; P = s.P
        s.init0()
        tx = {}; tr = {}; dl = {}
        def X(i):
            with k.group():
                if i >= 8 and i % 2 == 0: k.wait(tr[i//2 - 4])
                tx[i] = s.xdma(i//2, i % 2)
        def RD(c):
            with k.group() as g:
                k.wait(tx[2*c+1])
                for q in range(4): tr[c] = I(f'ds_read_b128 {v(vXB+16*c+4*q,4)}, v{vXR+q} offset:{s.xreg(c) - 0x10000}')
            dl[id(g)] = 8*c - 3
        def SL():
            with k.group() as g:
                I(f's_lshl_b32 s{sT0+3}, s{sR}, 11\ns_lshl_b32 s{sT0+4}, s{sW}, 9\ns_add_u32 s{sT0+3}, s{sT0+3}, s{sT0+4}\ns_add_u32 s{sT0+3}, s{sT0+3}, {hex(S0)}')
                I(f'v_and_b32 v{vT4}, 0x1f0, v{vL16}\nbuffer_load_dwordx4 v[52:55], v{vT4}, {WS}, s{sT0+3} offen sc1')
                I(f's_lshl_b32 s{sT0+5}, s{sJ}, 7\ns_add_u32 s{sT0+5}, s{sT0+5}, s{sM0}\ns_add_u32 s{sT0+5}, s{sT0+5}, {hex(S0)}')
                I(f'v_lshlrev_b32 v57, 9, v0\nv_lshl_or_b32 v57, v0, 5, v57\nv_and_b32 v57, 0x1860, v57\nbuffer_load_dword v56, v57, {WS}, s{sT0+5} offen offset:4 sc1')
            dl[id(g)] = 40; s.gSL = g
        def Q(p):
            with k.group():
                if p == 0: k.wait(tr[5])
                s.tok['Q0'] = s.wdma(p, 2, 0)
        def U(i):
            with k.group():
                if i == 0: k.wait(tr[7])
                s.tok['U'] = s.udma(i)
        with k.cap() as xs:
            for p in range(1, 4): tk = s.wdma(p, 0, 1024)
            for p in range(1, 4): tv = s.wdma(p, 1, 2048)
            for i in range(16):
                X(i)
                if i >= 5 and i % 2 == 1: RD((i - 5)//2)
            SL(); Q(0); RD(6); Q(1); RD(7); Q(2); Q(3)
            for i in range(6): U(i)
        with k.cap() as pre:
            s.unit()
            if P.get('tlb'):
                n, sh = P['tlb']
                I(f'v_min_u32 v54, {n - 1}, v0\nv_lshlrev_b32 v54, {sh}, v54\ns_lshl_b32 s64, s2, 7\nbuffer_load_dword v21, v54, {WS}, s64 offen offset:1024')
            s.init(); s.finit()
        n, f0, ev = P['sp']
        k.sprinkle(pre, xs[:n], f0, ev); xs = xs[n:]
        s.stamp('init')
        xa, xb, xc, xd = P['xa'], P['xb'], P['xc'], P['xd']
        with k.cap() as f:
            s.fold(); s.rowstats()
            I(f's_lshl_b32 s64, s{sG}, 5\ns_add_u32 s64, s64, s{sRK}\nv_mov_b32 v{vT0}, s{sMARK}\nbuffer_store_byte v{vT0}, v{vL0}, {DS}, s64 offen')
        k.sprinkle(f, xs[:xa], 0, P['xe']); xs = xs[xa:]
        s.stamp('issued')
        with k.cap() as f: s.lbuild(tk, 0, 16, 0)
        k.weave(f, (xs[:xb], 0, 15)); xs = xs[xb:]
        s.stamp('kbuild')
        with k.cap() as f: t = s.lbuild(tv, 1, 0, 1)
        k.weave(f, (xs[:xc], 0, 15)); xs = xs[xc:]
        k.wait(t); I('s_barrier')
        s.stamp('vbuild')
        while any(dl.get(id(x), 99) < 0 for x in xs[xd:]): xd += 1
        k.put(xs[:xd]); xs = xs[xd:]
        assert any(x is s.gSL for x in xs)
        gaps = [min(63, int(i*P['xr'])) for i in range(len(xs))]
        for i in range(len(xs) - 1, -1, -1):
            gaps[i] = min(gaps[i], dl.get(id(xs[i]), 63), max(gaps[i+1] - 1, 0) if i + 1 < len(xs) else 63)
        s.gaps = gaps
        fill = [([it], g, g) for it, g in zip(xs, gaps)]
        with k.cap() as f: s.export(0, 96)
        fill.append((f, 2, 12))
        with k.cap() as f:
            I(f'ds_read_b128 a[28:31], v{vSR} offset:{SUMS[0] - 0x20000}\nds_read_b128 a[32:35], v{vSR} offset:{SUMS[1] - 0x20000}')
            Lb = s.label('S0'); D = s.label('S0D')
            with k.group():
                I(f's_mov_b32 s{sT0+9}, 0\n{Lb}:')
                I(f'v_xor_b32 v53, s{sTAG}, v53\nv_xor_b32 v55, s{sTAG}, v55\nv_xor_b32 v56, s{sTAG}, v56\nv_or3_b32 v53, v53, v55, v56\nv_cmp_ne_u32 vcc, 0, v53\ns_cbranch_vccz {D}')
                with k.cond():
                    I(f'buffer_load_dwordx4 v[52:55], v{vT4}, {WS}, s{sT0+3} offen sc1\nbuffer_load_dword v56, v57, {WS}, s{sT0+5} offen offset:4 sc1\ns_waitcnt vmcnt(0)')
                    I(f's_add_u32 s{sT0+9}, s{sT0+9}, 1\ns_cmp_lt_u32 s{sT0+9}, s{sLIM}\ns_cbranch_scc1 {Lb}\ns_mov_b32 s{sLIM}, 1')
                I(f'{D}:'); k.retire()
            I('v_mul_f32 v52, 0xbb000000, v52\nv_mul_f32 v54, 0x3b000000, v54')
            I('v_cvt_pk_bf16_f32 v53, v52, v52\nv_fma_f32 v54, -v52, v52, v54\nv_and_b32 v55, 0xffff0000, v53\nv_max_f32 v54, 0, v54')
            I(f'v_sub_f32 v55, v52, v55\nv_add_f32 v54, 0x3727c5ac, v54\nv_cvt_pk_bf16_f32 v55, v55, v55\nv_rsq_f32 v{vRSTD}, v54')
            with k.group(): I('v_cmp_gt_u32 vcc, 32, v0\nv_cndmask_b32 v53, v55, v53, vcc')
            I(f'v_mul_f32 v{vC}, s{sLOG2E}, v{vRSTD}')
            for r in range(4): I(f'v_accvgpr_write_b32 a{24+r}, v53')
        fill.append((f, 54, 62))
        return fill

    def qkv(s, L):
        I = s.I; k = s.k; P = s.P
        b = 2*L; SK, SV, SQ, SF = b % 4, (b+1) % 4, (b+2) % 4, (b+3) % 4
        bA, bB = L, 1 - L
        aK, aV, aQ = vACC, vACC+16, vACC+32
        def wosrd(): I('s_load_dwordx2 s[84:85], s[0:1], 24\ns_mov_b32 s86, 0x80000\ns_mov_b32 s87, 0x20000')
        if L == 0:
            fill = s.front()
            with k.cap() as s.bw:
                so = s.SO(s, sT0+7)
                for i in range(56): s.ld(so, a_(4*i, 4), vL16, sWD, i*1024, s.md('d'))
        else:
            wosrd()
            s.poll(vFX, sFXC, 0, 2*L)
            s.stamp('x_ok')
            fill = [s.xloads(bA)]
            with k.cap() as f:
                I(f'v_and_b32 v{vT4}, 0x1f0, v{vL16}\nv_add_u32 v{vT4}, 0x20000, v{vT4}')
                I(f'ds_read_b128 v[96:99], v{vT4} offset:{SUMS[0] - 0x20000}\nds_read_b128 v[100:103], v{vT4} offset:{SUMS[1] - 0x20000}')
                s.stats(); s.meanop(vMU, vTMP, vTMP+2)
                for r in range(4): I(f'v_mov_b32 v{104+r}, v{vMU}')
                I(f'v_rsq_f32 v{vRSTD}, v{vTMP+1}')
                I(f'v_mul_f32 v{vC}, s{sLOG2E}, v{vRSTD}')
            fill.append((f, 44, 60))
        fill.append((s.touches(P['tk'][L]), P['tkg'][L], 63))
        s.bg_tile(0, sGU, 0, SF)
        steps = []
        for kc in range(32): steps += [(SV, kc, aV, kc == 0), (SK, kc, aK, kc == 0)]
        base, _ = s.gemm(steps)
        k.weave(base, *fill)
        if L == 0:
            I(f'v_mfma_f32_32x32x16_bf16 {v(aV,16)}, a[32:35], a[24:27], {v(aV,16)}\nv_mfma_f32_32x32x16_bf16 {v(aK,16)}, a[28:31], a[24:27], {v(aK,16)}')
        else:
            I(f'v_mfma_f32_32x32x16_bf16 {v(aV,16)}, v[100:103], v[104:107], {v(aV,16)}\nv_mfma_f32_32x32x16_bf16 {v(aK,16)}, v[96:99], v[104:107], {v(aK,16)}')
        s.stamp('kv_gemm')
        if L == 0: wosrd()
        wob, kb = vXB + 64, vXB; SO = L
        with k.cap() as fo:
            for p in range(8):
                with k.group():
                    if p == 0: I(f'v_lshrrev_b32 v{vT1}, 3, v0\nv_and_b32 v{vT3}, 0x70, v1\nv_lshl_or_b32 v{vT1}, v{vT1}, 10, v{vT3}\nv_add_u32 v{vT3}, 7168, v{vT1}')
                    I(f's_xor_b32 m0, s{sOM}, {hex((SO + (p >> 2))*0x8000 + (p & 3)*2048)}\ns_xor_b32 s{sT0+1}, s{sWO}, {hex(p << 14)}')
                    I(f'buffer_load_dwordx4 v{vT1}, {US}, s{sT0+1} offen {s.md("w", "")} lds')
                    two = I(f'buffer_load_dwordx4 v{vT3}, {US}, s{sT0+1} offen offset:1024 {s.md("w", "")} lds')
                    if p == P['twp'][L]: k.put(s.touches(P['tw'][L], vMK if L else 47))
        with k.cap() as fx:
            I('v_bfe_u32 v126, v0, 2, 2\nv_lshrrev_b32 v125, 5, v0\nv_lshl_or_b32 v126, v125, 3, v126\nv_bfe_u32 v125, v0, 4, 1\nv_lshl_or_b32 v126, v126, 2, v125')
            I('v_and_b32 v125, 1, v0\nv_lshl_or_b32 v126, v126, 1, v125\nv_bfe_u32 v125, v0, 1, 1\nv_lshl_or_b32 v126, v126, 1, v125')
            with k.group(): I(f's_and_b32 s{sT0+3}, s{sR}, 1\ns_lshl_b32 s{sT0+3}, s{sT0+3}, 15\ns_or_b32 s{sT0+3}, s{sT0+3}, s{sM0}\nv_lshl_add_u32 v125, v126, 3, s{sT0+3}')
            I('v_xor_b32 v126, 0x8000, v125')
        def otr():
            k.wait(two)
            for kk in range(8):
                for ct in range(2):
                    for r in range(2): t = I(f'ds_read_b64_tr_b16 {v(wob+8*kk+4*ct+2*r,2)}, v{125 + (kk >> 2)} offset:{SO*0x8000 + (kk & 3)*2048 + ct*64 + r*512}')
            return t
        on = P['on'][L]
        with k.cap() as f:
            for r in range(0, 16, 2): I(f'v_pk_mul_f32 {v(aV+r,2)}, {v(aV+r,2)}, {v(vRSTD,2)} op_sel_hi:[1,0]')
            for r in range(8): I(f'v_cvt_pk_bf16_f32 v{aV+r}, v{aV+2*r}, v{aV+2*r+1}')
            I(f'ds_write_b128 v{vPHW}, {v(aV,4)} offset:{4*PS}\nds_write_b128 v{vPHW}, {v(aV+4,4)} offset:{5*PS}')
            tw = []
            s.phi(aK, vACC+32, vACC+48, vTMP, emit=lambda n: tw.append(I(f'ds_write_b128 v{vPHW}, {v(vTMP+4*n,4)} offset:{n*PS}')))
            for r in range(4): I(f'v_mov_b32 v{72+r}, s{sONES}')
        if L == 0:
            k.sprinkle(f, s.touches(P['tp'][0], 47), *P['tp'][1:])
            k.wait(tw[-1])
        else:
            k.sprinkle(f, fo[:on], 2, P['oe']); fo = fo[on:]
            k.wait(tw[-1], s.tok['Q'])
        I('s_barrier')
        s.stamp('phik')
        for u in range(4):
            for p in range(2):
                I(f'ds_read_b64_tr_b16 {v(96+4*u+2*p,2)}, v{vTRA} offset:{u*512+p*64}')
            for p in range(2):
                I(f'ds_read_b64_tr_b16 {v(112+4*u+2*p,2)}, v{vTRB} offset:{u*512+p*64}')
        for u in range(4):
            I(f'v_mfma_f32_16x16x32_bf16 v[64:67], {v(96+4*u,4)}, {v(112+4*u,4)}, {"0" if u == 0 else "v[64:67]"}')
            I(f'v_mfma_f32_16x16x32_bf16 v[68:71], v[72:75], {v(96+4*u,4)}, {"0" if u == 0 else "v[68:71]"}')
        I(f's_sub_u32 s{sT0}, s{sKVP}, s{sW}\ns_lshl_b32 s{sT0}, s{sT0}, 9\ns_add_u32 s{sT0}, s{sT0}, {hex(KVP - KVA + L*0x100000)}')
        I(f's_lshl_b32 s{sT0+3}, s{sKVP}, 6\ns_add_u32 s{sT0+3}, s{sT0+3}, {hex(KVZ + L*0x100000)}')
        I('v_cvt_pk_bf16_f32 v112, v64, v65\nv_cvt_pk_bf16_f32 v113, v66, v67\nv_mov_b32 v114, v68')
        I(f'buffer_store_dwordx2 v[112:113], v{vKVW}, {WS}, s{sT0} offen sc1\nbuffer_store_dword v114, v{vFX}, {WS}, s{sT0+3} offen sc1')
        s.stamp('kvpub')
        s.wob = wob; zb = kb + 32; sel = kb + 40
        def kvld(r):
            with k.group():
                if r < 8: I(f's_xor_b32 s{sT0}, s{sKVC}, {hex(L*0x100000 + (3 - r//2)*2048)}\nbuffer_load_dwordx4 {v(kb+4*r,4)}, v{vPUB}, {WS}, s{sT0} offen offset:{256*(r & 1)} {s.md("k")}')
                else: I(f's_lshr_b32 s{sT0}, s{sKVP}, 4\ns_lshl_b32 s{sT0}, s{sT0}, 10\ns_add_u32 s{sT0}, s{sT0}, {hex(KVZ + L*0x100000)}\nbuffer_load_dwordx4 {v(zb,4)}, v{vL16}, {WS}, s{sT0} offen {s.md("k")}')
        with k.cap() as fk:
            for r in P['ko']: kvld(r)
        with k.cap() as fs:
            I(f'v_and_b32 v{sel+8}, 1, v0\nv_lshlrev_b32 v{sel+8}, 4, v{sel+8}\nv_lshlrev_b32 v{sel+8}, v{sel+8}, s{sSELLO}\nv_bfe_u32 v{sel+9}, v0, 1, 3')
            for r in range(8):
                with k.group(): I(f'v_cmp_eq_u32 vcc, {r}, v{sel+9}\nv_cndmask_b32 v{sel+r}, 0, v{sel+8}, vcc')
        s.bg_tile(1, sGU, 0x8000, SK); s.bg_tile(2, sGU, 0x10000, SV)
        assert len(s.bg) == 24
        if L and P['ot'][L]: s.bg = s.bg[16:] + s.bg[:16]
        if L == 0:
            I(f'v_add_u32 v{vWR}, 0x10000, v{vWR}\nv_add_u32 v{vWR+1}, 0x10000, v{vWR+1}\nv_add_u32 v{vWW}, 0x10000, v{vWW}')
            with k.cap() as fa: s.uaddr()
            with k.cap() as f: t = s.lbuild(s.tok['Q0'], SQ, 16, 3)
            k.weave(f, (fa[:8], 0, 2), (fa[8:], 11, 15), (fo[:on], 0, 15)); fo = fo[on:]
            k.wait(t); I('s_barrier')
            s.stamp('qbuild')
            with k.cap() as fe: s.export(1, 116)
            with k.cap() as fu: tu = s.uproc()
            with k.cap() as ff:
                with k.group():
                    if P.get('xs'): s.stamp('ff0')
                    k.wait(tu)
                    if P.get('xs'): s.stamp('ff1')
                    I(f's_barrier\ns_lshl_b32 s{sT0+3}, s2, 8\ns_lshl_b32 s{sT0+4}, s{sW}, 28\ns_add_u32 s{sT0+3}, s{sT0+3}, s{sT0+4}\ns_add_u32 s{sT0+3}, s{sT0+3}, {hex(FU)}')
                    I(f'v_mov_b32 v116, s{sTAG}\nv_lshlrev_b32 v117, 2, v0\nbuffer_store_dword v116, v117, {WS}, s{sT0+3} offen sc1')
            with k.cap() as fy:
                I(f'v_and_b32 v122, 7, v0\nv_min_u32 v127, 2, v122\nv_bfe_u32 v121, v0, 3, 1\nv_mad_u32_u24 v127, v121, 28, v127')
                with k.group(): I(f's_mul_i32 s{sT0+3}, s{sJ}, 7\ns_lshr_b32 s{sT0+3}, s{sT0+3}, 2\nv_add_u32 v127, s{sT0+3}, v127')
                with k.group(): I(f'v_lshl_add_u32 v121, v122, 3, s{sCG}\nv_cmp_lt_u32 vcc, 15, v0\nv_cndmask_b32 v127, v127, v121, vcc')
                with k.group(): I(f's_lshl_b32 s{sT0+3}, s{sW}, 6\nv_add_u32 v127, s{sT0+3}, v127')
                I(f'v_and_b32 v121, 1, v0\nv_bfe_u32 v122, v0, 1, 1\nv_lshl_or_b32 v121, v121, 7, v122')
                with k.group(): I(f's_lshl_b32 s{sT0+3}, s{sJ}, 2\ns_add_u32 s{sT0+3}, s{sT0+3}, s{sW}\ns_lshl_b32 s{sT0+3}, s{sT0+3}, 1\nv_add_u32 v121, s{sT0+3}, v121')
                with k.group(): I(f'v_cmp_lt_u32 vcc, 31, v0\nv_cndmask_b32 v127, v127, v121, vcc')
                I(f'v_lshlrev_b32 v127, 8, v127')
            if s.stop == 'kv0':
                k.put(fe); k.put(fu); k.put(ff); return True
            with k.cap() as f1:
                so = s.SO(s, sT0+2)
                s.ld(so, v(vRES, 4), vNAT, sNAT, 0, srdn=XS); s.ld(so, v(vRES+4, 4), vNAT, sNAT, 64, srdn=XS)
                with k.group(): I(f'v_and_b32 v{vMK}, 28, v{vFX}\ns_lshl_b32 s{sT0+3}, s{sG}, 5\nbuffer_load_dword v{vMK}, v{vMK}, {DS}, s{sT0+3} offen sc1')
                I(f'ds_read_b128 a[28:31], v{vSR} offset:{SUMS[3] - 0x20000}')
            fill = [(fe, 0, 5), (fu, P['ug'], P['ug'] + 19), (f1, 27, 30), (fx + fy, 6, 30), (fs, 14, 30), (fo[:P['og'][0]], P['og'][1], 26)]; fo = fo[P['og'][0]:]
        else:
            with k.cap() as f1:
                I(f'v_and_b32 v{vT4}, 0x1f0, v{vL16}\nv_add_u32 v{vT4}, 0x20000, v{vT4}\nds_read_b128 v[64:67], v{vT4} offset:{SUMS[3] - 0x20000}')
                for r in range(4): I(f'v_mov_b32 v{68+r}, v{vMU}')
            fill = [(fo, *P['oq'][1]), (fk[:P['kn']], P['k0'], 31), (f1 + fx, 10, 28), (fs, 14, 30)]
        base, _ = s.gemm([(SQ, kc, aQ, kc == 0) for kc in range(32)])
        k.weave(base, *fill)
        if L == 0: I(f'v_mfma_f32_32x32x16_bf16 {v(aQ,16)}, a[28:31], a[24:27], {v(aQ,16)}')
        else: I(f'v_mfma_f32_32x32x16_bf16 {v(aQ,16)}, v[64:67], v[68:71], {v(aQ,16)}')
        s.stamp('q_gemm')
        with k.cap() as f: s.phi(aQ, vACC, vACC+16, vTMP)
        if L == 0:
            with k.cap() as f2: k.sprinkle(f, ff, P['fg'], 1)
            with k.cap() as f3: k.sprinkle(f2, fo, *P['oq'][0])
            k.sprinkle(f3, fk, *P['kq'][0])
            I(f's_mul_i32 s{sT0+3}, s{sMARK}, 0x01010101\nv_cmp_ne_u32 vcc, s{sT0+3}, v{vMK}\ns_or_b32 s{sSLOW}, vcc_lo, vcc_hi')
        else: k.sprinkle(f, fk[P['kn']:], *P['kq'][1])
        s.stamp('phiq')
        def fuld(): return I(f's_mov_b32 s{sT0+4}, {hex(FU)}\nbuffer_load_dword v112, v127, {WS}, s{sT0+4} offen sc1')
        if L == 0 and P['fup'] == 0: fuld()
        if P['ot'][L] == 0: tot = otr()
        MK = [76] + list(range(88, 102, 2))
        Lb = s.label('KV'); D = s.label('KVD')
        I(f's_mov_b32 s{sT0+9}, 0')
        I(f'{Lb}:')
        first = True
        for r in P['ko']:
            if r < 8:
                I(f'v_mfma_f32_16x16x32_bf16 v[64:67], {v(sel+4*(r & 1),4)}, {v(kb+4*r,4)}, {"0" if first else "v[64:67]"}'); first = False
            else:
                I(f'v_permlane32_swap_b32 v{zb}, v{zb+1}\nv_permlane32_swap_b32 v{zb+2}, v{zb+3}\nv_add_f32 v68, v{zb}, v{zb+1}\nv_add_f32 v69, v{zb+2}, v{zb+3}')
                I('v_permlane16_swap_b32 v68, v69\nv_add_f32 v68, v68, v69')
                for n in (4, 8): I(f'v_add_f32_dpp v68, v68, v68 row_ror:{n} row_mask:0xf bank_mask:0xf')
        I(f'v_add_f32 v69, v68, v64\nv_cmp_u_f32 vcc, v69, v66\ns_cbranch_vccz {D}')
        with k.cond():
            kvld(8)
            for r in range(8):
                I(f'v_max3_u32 v69, v{kb+4*r}, v{kb+4*r+1}, v{kb+4*r+2}\nv_max_u32 v69, v69, v{kb+4*r+3}\nv_cmp_eq_u32 {s_(MK[r],2)}, -1, v69')
            for r in range(8):
                I(f's_mov_b64 exec, {s_(MK[r],2)}'); kvld(r)
            I('s_mov_b64 exec, -1\ns_waitcnt vmcnt(0)')
            I(f's_add_u32 s{sT0+9}, s{sT0+9}, 1\ns_cmp_lt_u32 s{sT0+9}, s{sLIM}\ns_cbranch_scc1 {Lb}\ns_mov_b32 s{sLIM}, 1')
        I(f'{D}:')
        k.retire()
        s.stamp('kv_ok')
        if L == 0 and P['fup']: fuld()
        if L:
            if P['ot'][L] == 0: k.wait(tot)
            k.put(s.take(P['t1'][L] if P['ot'][L] == 0 else min(8, P['t1'][L])))
        I('v_cvt_pk_bf16_f32 v70, v64, v65\nv_cvt_pk_bf16_f32 v71, v66, v67\nv_cvt_pk_bf16_f32 v68, v68, v68')
        I(f'ds_write_b64 v{vKVW}, v[70:71]')
        t = I(f'ds_write_b16 v{vZW}, v68')
        k.wait(t); I('s_barrier')
        for n in range(4):
            I(f'ds_read_b128 {a_(aRING+8*n,4)}, v{vZR} offset:{n*16}\nds_read_b128 {a_(aRING+8*n+4,4)}, v{vKVR} offset:{n*256}')
        for n in range(4):
            I(f'v_mfma_f32_32x32x16_bf16 v[80:95], {a_(aRING+8*n,4)}, {v(vTMP+4*n,4)}, {"0" if n == 0 else "v[80:95]"}')
        for n in range(4):
            I(f'v_mfma_f32_32x32x16_bf16 v[64:79], {a_(aRING+8*n+4,4)}, {v(vTMP+4*n,4)}, {"0" if n == 0 else "v[64:79]"}')
        I('v_add_f32 v80, 0x358637bd, v80\nv_add_f32 v88, 0x358637bd, v88\nv_rcp_f32 v80, v80\nv_rcp_f32 v88, v88')
        so = s.SO(s, sT0)
        I(f's_lshl_b32 s{sT0+3}, s{sJ}, 11\ns_add_u32 s{sT0+3}, s{sT0+3}, s{sXIN}')
        for c in range(2):
            for r in range(0, 8, 2): I(f'v_pk_mul_f32 {v(64+8*c+r,2)}, {v(64+8*c+r,2)}, {v(80+8*c,2)} op_sel_hi:[1,0]')
            for r in range(4): I(f'v_cvt_pk_bf16_f32 v{96+4*c+r}, v{64+8*c+2*r}, v{64+8*c+2*r+1}')
            t = s.pub(s.ld(so, v(96+4*c, 4), vL16, sT0+3, bB*0x200000 + c*1024, op='buffer_store_dwordx4'))
        k.wait(t)
        s.flag(sFOP, 0, L + 1)
        s.stamp('opub')
        if L == 0:
            Lb = s.label('FU'); D = s.label('FUD')
            I(f's_mov_b32 s{sT0+9}, 0\n{Lb}:\nv_cmp_ne_u32 vcc, s{sTAG}, v112\ns_cbranch_vccz {D}')
            with k.cond():
                fuld(); I('s_waitcnt vmcnt(0)')
                I(f's_add_u32 s{sT0+9}, s{sT0+9}, 1\ns_cmp_lt_u32 s{sT0+9}, s{sLIM}\ns_cbranch_scc1 {Lb}\ns_mov_b32 s{sLIM}, 1')
            I(f'{D}:')
            k.retire()
            s.stamp('fu_ok')
            n = min(8, P['t2'][0]); k.put(s.take(n))
        else: n = 0
        if P['ot'][L]: tot = otr()
        k.wait(tot)
        k.put(s.take(P['t2'][L] - n))
        k.put(s.touches(P['to'][L]))
        return s.stop == f'o{L}'

    def red_write(s, slot, rt2, ct):
        I = s.I; a = vACC + 32*rt2 + 16*ct; t = None
        for h in range(2):
            for r in range(4): I(f'v_cvt_pk_bf16_f32 v{a+8*h+r}, v{a+8*h+2*r}, v{a+8*h+2*r+1}')
            t = I(f'ds_write_b128 v{vT1}, {v(a+8*h,4)} offset:{rt2*16384 + (2*ct+h)*512}')
        return t
    def red_finish(s, slot, scale, L, buf, p, final, pre, after=None):
        I = s.I; k = s.k; rb = vXB + 64
        I(f's_add_u32 s{sT0+3}, s{sM0}, {hex(slot*0x8000)}\nv_add_u32 v{vT0}, s{sT0+3}, v{vL16}')
        k.wait(*pre); I('s_barrier')
        if scale: I(f'ds_read_b32 v{vT2}, v{vRSR}')
        t = None
        for c in range(2):
            for src in range(4): t = I(f'ds_read_b128 {v(rb+16*c+4*src,4)}, v{vT0} offset:{src*2048 + c*1024}')
        so = s.SO(s, sT0)
        for c in range(2):
            for src in range(4):
                for e in range(8):
                    d = (vACC if scale else vRES) + 8*c + e
                    I(f'v_dot2_f32_bf16 v{d}, v{rb+16*c+4*src+e//2}, s{sSELHI if e & 1 else sSELLO}, {"0" if scale and src == 0 else v(d)}')
            if scale:
                for e in range(0, 8, 2): I(f'v_pk_fma_f32 {v(vRES+8*c+e,2)}, {v(vACC+8*c+e,2)}, {v(vT2,2)}, {v(vRES+8*c+e,2)} op_sel_hi:[1,0,1]')
            for r in range(4): I(f'v_cvt_pk_bf16_f32 v{vTMP+4*c+r}, v{vRES+8*c+2*r}, v{vRES+8*c+2*r+1}')
            if final: s.ld(so, v(vTMP+4*c, 4), vNAT, sNAT, 64*c, s.P['om'], op='buffer_store_dwordx4', srdn=OS)
            else: s.pub(s.ld(so, v(vTMP+4*c, 4), vPUB, sXPUB, buf*0x200000 + 2048*c, op='buffer_store_dwordx4'))
        if final: return
        for r in range(8):
            I(f'v_dot2_f32_bf16 v{vT2}, v{vTMP+r}, s{sONES}, {"0" if r == 0 else v(vT2)}')
            I(f'v_dot2_f32_bf16 v{vT3}, v{vTMP+r}, v{vTMP+r}, {"0" if r == 0 else v(vT3)}')
        I(f'v_permlane32_swap_b32 v{vT2}, v{vT3}\nv_add_f32 v{vT2}, v{vT2}, v{vT3}\nv_mov_b32 v{vT3}, v{vT2}')
        I(f'v_permlane16_swap_b32 v{vT2}, v{vT3}\nv_add_f32 v{vT2}, v{vT2}, v{vT3}')
        t2 = s.pub(s.ld(so, v(vT2), vSTW, sSTPUB, buf*0x20000, op='buffer_store_dword'))
        k.wait(t2)
        s.flag(sFXP, 0, p)
        if after: after()

    def wo(s, L):
        I = s.I; k = s.k
        b = 2*L; SQ = (b+2) % 4; bA, bB = L, 1 - L
        I(f'v_add_u32 v{vT1}, {hex(SQ*0x8000)}, v{vREDW}')
        if L == 0:
            for i in range(7, -1, -1): I(f'v_and_b32 v{vRES+2*i+1}, 0xffff0000, v{vRES+i}\nv_lshlrev_b32 v{vRES+2*i}, 16, v{vRES+i}')
        s.poll(vFO, sFOC, 0, L + 1)
        s.stamp('o_ok')
        so = s.SO(s, sT0); wob = s.wob; ob = 2*vXB + 64 - wob
        with k.cap() as fl:
            for rt2 in range(2):
                for kk in range(8): s.ld(so, v(ob + 32*rt2 + 4*kk, 4), vL16, sXO, bB*0x200000 + rt2*0x8000 + kk*1024, 'sc1')
        k.put(fl[:8])
        with k.cap() as base:
            for rt2 in range(2):
                for kk in range(8):
                    for ct in range(2):
                        a = vACC + 32*rt2 + 16*ct
                        I(f'v_mfma_f32_32x32x16_bf16 {v(a,16)}, {v(wob+8*kk+4*ct,4)}, {v(ob+32*rt2+4*kk,4)}, {"0" if kk == 0 else v(a,16)}')
        with k.cap() as f1:
            s.red_write(SQ, 0, 0); s.red_write(SQ, 0, 1)
        k.weave(base, (fl[8:], 0, 15), (s.take(s.P['t3'][L]), 18, 31), (f1, 19, 30))
        s.red_write(SQ, 1, 0); t = s.red_write(SQ, 1, 1)
        s.stamp('wo_gemm')
        def after():
            if L == 0:
                I(f's_mul_i32 s{sT0+3}, s{sJ}, 896\ns_lshl_b32 s{sT0+4}, s{sW}, 8\ns_add_u32 s{sT0+3}, s{sT0+3}, s{sT0+4}\nv_lshlrev_b32 v{vT2}, 2, v0')
                for q in range(4):
                    I(f's_add_u32 s{sT0+3}, s{sT0+3}, {hex(CS if q == 0 else 14336)}\nbuffer_load_dword v{56+q}, v{vT2}, {WS}, s{sT0+3} offen sc1')
            s.bg_tile(3, sGU, 3*0x8000, SQ)
            k.put(s.take(s.P['t4'][L]))
        s.red_finish(SQ, False, L, bA, 2*L + 1, False, [t] + ([] if s.P['late'][L] else [s.tok[0], s.tok[1]]), after)
        s.stamp('x1pub')
        return s.stop == f'x{2*L+1}'

    def gu_epi(s, L, t):
        I = s.I; a = vACC + 16*(t % 4)
        for r in range(8): I(f'v_max_f32 v{a+r}, 0, v{a+r}')
        for r in range(8): I(f'v_mul_f32 v{a+r}, v{a+r}, v{a+8+r}')
        for r in range(4): I(f'v_cvt_pk_bf16_f32 v{a+8+r}, v{a+2*r}, v{a+2*r+1}')
        if s.P['hm'][L]: return s.ld(s.soH, v(a+8, 4), vL16, sHPUB, t*1024, s.P['hm'][L], op='buffer_store_dwordx4')
        return s.pub(s.ld(s.soH, v(a+8, 4), vL16, sHPUB, t*1024, op='buffer_store_dwordx4'))
    def gu(s, L):
        I = s.I; k = s.k
        b = 2*L; slot = lambda t: (b + 3 + t) % 4
        bA = L
        s.poll(vFX, sFXC, 0, 2*L + 1)
        s.stamp('x1_ok')
        fill = [s.xloads(bA)]
        if s.P['late'][L]: k.wait(s.tok[0], s.tok[1]); I('s_barrier')
        fill.append((s.take(99), 40, 60))
        for names, g in s.P['tg'][L]: fill.append((s.touches(names), g, g + len(names) - 1))
        tcs = []
        if L == 0:
            with k.cap() as f:
                I(f'v_add_f32 v56, v56, v57\nv_add_f32 v58, v58, v59\nv_add_f32 v56, v56, v58')
                I('v_cvt_pk_bf16_f32 v57, v56, v56\nv_and_b32 v57, 0xffff0000, v57\nv_sub_f32 v57, v56, v57\nv_cvt_pk_bf16_f32 v57, v56, v57')
                with k.group(): I(f's_lshl_b32 s{sT0+3}, s{sW}, 8\ns_add_u32 s{sT0+3}, s{sT0+3}, {hex(WPH)}\nv_add_u32 v{vT2}, s{sT0+3}, v{vT2}')
                tcs.append(I(f'ds_write_b32 v{vT2}, v57'))
            fill.append((f, 24, 36))
        with k.cap() as f:
            s.stats(); s.meanop(60, vTMP, vTMP+2)
            I(f'v_rcp_f32 v{vRSTD}, v{vTMP+1}')
            I(f'v_mov_b32 v61, 0\nv_mov_b32 v62, 0\nv_mov_b32 v63, 0\nv_and_b32 v{vT2}, 31, v0\nv_lshlrev_b32 v{vT2}, 2, v{vT2}\nv_add_u32 v{vT2}, {hex(WPH)}, v{vT2}')
            s.tRS = I(f'ds_write_b32 v{vRSW}, v{vRSTD}')
        fill.append((f, 37, 59))
        for t in range(7):
            a = vACC + 16*(t % 4); r = 56 + 2*(t == 1)
            with k.cap() as f:
                if t < 2: I(f'ds_read2_b32 {v(r,2)}, v{vT2} offset0:{32*t} offset1:{32*t}')
                else: I(f'ds_read_b32 v{r}, v{vT2} offset:{128*t}')
                with k.group(): I(f'v_mfma_f32_32x32x16_bf16 {v(a,16)}, {v(r,4)}, v[60:63], {v(a,16)}')
            g = 64 + t if t < 2 else 32*t + 24
            fill.append(([f[0]], 61 if t < 2 else g - 4, 61 if t < 2 else g - 4)); fill.append(([f[1]], g, g))
        steps = []
        for kc in range(32): steps += [(slot(0), kc, vACC, kc == 0), (slot(1), kc, vACC+16, kc == 0)]
        for t in range(2, 7): steps += [(slot(t), kc, vACC + 16*(t % 4), kc == 0) for kc in range(32)]
        s.soH = s.SO(s, sT0+4)
        th = {}
        for t in range(2, 7):
            g0 = 32*t
            with k.cap() as f:
                if t == 2: s.gu_epi(L, 0)
                th[t-1] = s.gu_epi(L, t-1)
            fill.append((f, g0 + 4, g0 + (23 if t == 2 else 14)))
        for t in range(4, 7): s.bg_tile(t, sGU, t*0x8000, slot(t))
        if L == 0:
            s.bg_tile('K', sQKV, 0, slot(3)); s.bg_tile('V', sQKV, 0x8000, slot(4)); s.bg_tile('Q', sQKV, 0x10000, slot(5))
            fill.append((s.take(40), 61, 220))
            fill.append((s.takew(56), 62, 223))
        else:
            fill.append((s.take(24), 61, 156))
        fences = {}
        for t in range(2, 7): fences[32*t - 4] = (32*t, [s.tok[t]] + (tcs if t == 2 else []))
        base, last = s.gemm(steps, fences)
        ne, e0, e1 = s.P['he'][L]; g4, gp, gc, g6 = s.P['hg'][L]
        s.hso = [s.SO(s, sT0), s.SO(s, sT0+2)]
        with k.cap() as f:
            with k.group():
                I(f's_add_u32 s{sT0+5}, s{sFOP}, {hex(FH - FO)}\ns_add_u32 s{sT0+6}, s{sFOC}, {hex(FH - FO)}')
                if ne: k.wait(th[3]); s.flag(sT0+5, 0, 7*L + 4)
            with k.group(): k.wait(th[5]); s.flag(sT0+5, 0, 7*L + 6)
            if ne:
                s.hpoll(); s.hcheck(7*L + 4)
                for i in range(ne): s.hld(i)
        for g, t0, t1 in s.P['ht'][L]:
            if g < 224:
                with k.cap() as ft: s.htouch(th[t1], t0, t1)
                fill.append((ft, g, g))
        fill.append((f[:1], g4, g4))
        if ne:
            assert all(e0 + (i*(e1 - e0 + 1))//ne >= 192 + i for i in range(ne)) and e0 >= gc > gp > g4
            fill += [(f[2:3], gp, gp), (f[3:4], gc, gc), (f[4:], e0, e1)]
        if g6 < 224: fill.append((f[1:2], g6, g6))
        k.weave(base, *fill)
        k.wait(last); I('s_barrier')
        s.th6 = s.gu_epi(L, 6)
        if g6 >= 224: k.put(f[1:2])
        s.stamp('gu')
        return s.stop == f'h{L}'

    horder = [(t, jj, rt2) for t in range(7) for jj in range(4) for rt2 in range(2)]
    def hld(s, i):
        t, jj, rt2 = s.horder[i]
        s.ld(s.hso[rt2], v(vXB + 4*(i % 32), 4), vL16, sHIN, rt2*112*1024 + (7*jj + t)*1024, s.md('h'))
    def htouch(s, tok, t0, t1):
        with s.k.group():
            s.k.wait(tok)
            s.I(f'v_min_u32 v{vT3}, {8*(t1 - t0) + 7}, v0\nv_add_lshl_u32 v{vT3}, v{vT3}, {8*t0}, 7\nbuffer_load_dword v21, v{vT3}, {WS}, s{sHPUB} offen sc1')
    def hpoll(s): s.I(f'buffer_load_dword v{vT0}, v{vFO}, {WS}, s{sT0+6} offen sc1')
    def hcheck(s, p):
        D = s.label('HC')
        with s.k.group():
            s.check(vT0, p)
            s.I(f's_cbranch_vccz {D}')
            with s.k.cond(): s.poll(vFO, sT0+6, 0, p)
            s.I(f'{D}:')
    def down(s, L):
        I = s.I; k = s.k
        b = 2*L; SR = (b + 3 + 6) % 4; bB = 1 - L
        I(f'v_add_u32 v{vT1}, {hex(SR*0x8000)}, v{vREDW}')
        ne = s.P['he'][L][0]; p6, p7 = s.P['hp'][L]
        if not ne:
            s.poll(vFO, sT0+6, 0, 7*L + 6)
            s.flag(sT0+5, 0, 7*L + 7)
            s.stamp('h_ok')
        n = max(s.P['hf'], ne); hld = s.hld
        assert ne + n <= 48 and 32 < p7 < 48 and (not ne or n <= p6 < 32)
        for i in range(ne, n): hld(i)
        for i, (t, jj, rt2) in enumerate(s.horder):
            for ct in range(2):
                a = vACC + 32*rt2 + 16*ct
                I(f'v_mfma_f32_32x32x16_bf16 {v(a,16)}, {a_(8*(7*jj+t)+4*ct,4)}, {v(vXB+4*(i%32),4)}, {"0" if i < 2 else v(a,16)}')
            if ne and i == ne:
                k.wait(s.th6); s.flag(sT0+5, 0, 7*L + 7)
                for g, t0, t1 in s.P['ht'][L]:
                    if g >= 224: s.htouch(s.th6, t0, t1)
            if i + n == p7 or ne and i + n == p6: s.hpoll()
            if ne and i + n == 32: s.hcheck(7*L + 6)
            if i + n == 48: s.hcheck(7*L + 7)
            if i + n < 56: hld(i + n)
            elif i % 3 == 0 and i < 55: k.put(s.take(1))
        for rt2 in range(2):
            for ct in range(2): t = s.red_write(SR, rt2, ct)
        s.stamp('dn_gemm')
        def after():
            k.put(s.take(8))
        s.red_finish(SR, True, L, bB, 2*L + 2, L == 1, [t, s.tok['V'], s.tRS], after)
        s.stamp('x2pub')
        return s.stop == f'x{2*L+2}'

    def gen(s):
        I = s.I
        for L in range(2):
            s.L = L
            if s.qkv(L) or s.wo(L) or s.gu(L) or s.down(L): break
        I(f's_or_b32 s64, s{sR}, s{sJ}\ns_or_b32 s64, s64, s{sW}\ns_cmp_lg_u32 s64, 0\ns_cbranch_scc1 M_FIN')
        with s.k.cond():
            I(f's_add_u32 s64, s{sE}, 1\nv_mov_b32 v{vT5}, s64\nbuffer_store_dword v{vT5}, v{vL0}, {WS}, 0 offen')
        I('M_FIN:')
        if s.ts:
            s.stamp('end')
            I('s_memrealtime s[78:79]\ns_waitcnt lgkmcnt(0)\nv_writelane_b32 v23, s78, 61')
            I(f'v_writelane_b32 v23, s{sLIM}, 62\nv_writelane_b32 v23, s{sSLOW}, 63')
            I(f's_lshl_b32 s64, s{sR}, 4\ns_add_u32 s64, s64, s{sJ}\ns_lshl_b32 s64, s64, 2\ns_add_u32 s64, s64, s{sW}\ns_lshl_b32 s64, s64, 8\ns_add_u32 s64, s64, {hex(TS)}')
            I(f'v_lshlrev_b32 v{vT0}, 2, v0\nbuffer_store_dword v23, v{vT0}, {WS}, s64 offen sc1')
        if s.P.get('wb'): I('s_waitcnt vmcnt(0)\nbuffer_wbl2 sc1\ns_waitcnt vmcnt(0)')
        if s.P.get('dbg'):
            I(f's_cmp_lg_u32 s2, {s.P.get("dwg", 0)}\ns_cbranch_scc1 DB_END\ns_cmp_lg_u32 s{sW}, 0\ns_cbranch_scc1 DB_END')
            with s.k.cond():
                I('v_readlane_b32 s65, v23, 0\nv_mov_b32 v24, 0')
                for n, i in enumerate(s.P['dbg']): I(f'v_readlane_b32 s66, v23, {i}\ns_sub_u32 s66, s66, s65\nv_writelane_b32 v24, s66, {n}')
                I(f'v_lshlrev_b32 v25, 2, v0\nbuffer_store_dword v24, v25, {DS}, 0 offen')
            I('DB_END:')
        dg = s.P.get('diag')
        if dg is not None:
            I(f's_cmp_lg_u32 s2, {s.P.get("dwg", 0)}\ns_cbranch_scc1 DG_END\ns_cmp_lg_u32 s{sW}, 0\ns_cbranch_scc1 DG_END')
            with s.k.cond():
                I('v_readlane_b32 s64, v23, 60\ns_add_u32 s64, s64, 10000')
                if dg == 'rt': I('v_readlane_b32 s65, v23, 60\nv_readlane_b32 s66, v23, 61\ns_sub_u32 s66, s66, s65\ns_lshl_b32 s66, s66, 2\ns_add_u32 s64, s64, s66')
                elif dg:
                    i = [n for n, nm in enumerate(s.tsnames) if nm == dg[0]][dg[1]]
                    I(f'v_readlane_b32 s65, v23, 0\nv_readlane_b32 s66, v23, {i}\ns_sub_u32 s66, s66, s65\ns_lshr_b32 s66, s66, 2\ns_min_u32 s66, s66, 100000\ns_add_u32 s64, s64, s66')
                gs = s.P.get('gstat')
                if gs:
                    i = 60 if gs[0] == 'start' else [n for n, nm in enumerate(s.tsnames) if nm == gs[0]][gs[1]]
                    I('s_sub_u32 s68, s64, 2500\ns_mov_b32 s67, 0\nDG_W:\ns_memrealtime s[78:79]\ns_waitcnt lgkmcnt(0)\ns_sub_u32 s66, s78, s68\ns_cmp_lt_u32 s66, 0x80000000\ns_cbranch_scc1 DG_W2')
                    I('s_add_u32 s67, s67, 1\ns_cmp_lt_u32 s67, 200000\ns_cbranch_scc1 DG_W\nDG_W2:')
                    I(f'v_lshlrev_b32 v25, 10, v0\nv_readlane_b32 s65, v23, 60')
                    for q in range(4):
                        I(f's_mov_b32 s66, {hex(TS + q*65536)}\nbuffer_load_dword v{32+q}, v25, {WS}, s66 offen offset:240 sc1\nbuffer_load_dword v{36+q}, v25, {WS}, s66 offen offset:{4*i} sc1')
                    I('s_waitcnt vmcnt(0)')
                    for q in range(8): I(f'v_subrev_u32 v{32+q}, s65, v{32+q}')
                    op = {'max': 'max_i32', 'min': 'min_i32', 'mean': 'add_u32'}[gs[2]]
                    for q in range(1, 4): I(f'v_min_i32 v32, v32, v{32+q}\nv_{op} v36, v36, v{36+q}')
                    I('v_readlane_b32 s68, v32, 0\nv_readlane_b32 s69, v36, 0\ns_mov_b32 s67, 1\nDG_R:\ns_nop 4\nv_readlane_b32 s70, v32, s67\nv_readlane_b32 s71, v36, s67\ns_nop 4')
                    I(f's_min_i32 s68, s68, s70\ns_{op} s69, s69, s71\ns_add_u32 s67, s67, 1\ns_cmp_lt_u32 s67, 64\ns_cbranch_scc1 DG_R')
                    if gs[2] == 'mean': I('s_ashr_i32 s69, s69, 8')
                    I('s_sub_u32 s69, s69, s68\ns_lshl_b32 s69, s69, 2\ns_min_u32 s69, s69, 100000\ns_add_u32 s64, s64, s69')
                I('s_mov_b32 s67, 0\nDG_L:\ns_memrealtime s[78:79]\ns_waitcnt lgkmcnt(0)\ns_sub_u32 s66, s78, s64\ns_cmp_lt_u32 s66, 0x80000000\ns_cbranch_scc1 DG_END')
                I('s_add_u32 s67, s67, 1\ns_cmp_lt_u32 s67, 200000\ns_cbranch_scc1 DG_L')
            I('DG_END:')
        I('s_waitcnt vmcnt(0)\nM_END:\ns_endpgm')
        return s.k

HEADER = open('cdna_kernels/' + NAME + '.s.ref').read().split('; Override')[0] if __name__ == '__main__' else ''

def build(stop=None, ts=False, header='', **kw):
    st = {}
    m = Main(stop, ts, **kw)
    main = m.gen().finish(st)
    txt = header
    ls = kw.get('lst', 0)
    if ls == 2: txt += '; @launch kernel=pre_kernel grid=(256,1,1) block=(64,1,1) lds=0\n'
    txt += f'; @launch {"kernel=" + NAME + "_kernel " if ls else ""}grid=(256,1,1) block=(256,1,1) lds={LDS_MAIN}\n'
    if ls == 3: txt += '; @launch kernel=pre_kernel grid=(256,1,1) block=(64,1,1) lds=0\n'
    txt += '.amdgcn_target "amdgcn-amd-amdhsa--gfx950"\n.text\n'
    if ls > 1: txt += head('pre_kernel') + 's_endpgm\n' + kd('pre_kernel', 8, 8, 16)
    txt += head(NAME + '_kernel') + main + '\nCODE_END:\n'
    txt += kd(NAME + '_kernel', 512, 256)
    return txt, (st, m.tsnames)

if __name__ == '__main__':
    txt, st = build(header=HEADER)
    out = sys.argv[1] if len(sys.argv) > 1 else 'cdna_kernels/' + NAME + '.s'
    open(out, 'w').write(txt); print(st, len(txt))
```

```python
import sys, gen5 as gen
H = open('cdna_kernels/' + gen.NAME + '.s.ref').read().split('; Override')[0]
for i, a in enumerate(sys.argv[1:]):
    txt, st = gen.build(header=H, **eval('dict(' + a + ')'))
    open(f'c{i}.s', 'w').write(txt); print(i, a, st[0])
```

```python
import sys, contextlib
from asm import Asm, Ins
NAME = 'interleave_layers__linear_kernel_hedgehog__glu_gated_reglu__prompt'

FX, FO, FH, FU, S0 = 0x2000, 0x4000, 0x6000, 0x30000, 0x10000
CS = 0x20000
ST = 0x40000
XB = (0x200000, 0x400000)
KVP = 0x600000
KVZ = 0x680000
HB = 0x800000
WQKV, WO_P, WD_P, WGU = 0x1000000, 0x1180000, 0x1200000, 0x1400000
TS = 0x2000000
WS_SIZE = 0x10000000
OOB = 0x7ffffff0
XA = 0x20000; PS = 2112
KVA = 0x26400; ZA = 0x26C00; ZERO = 0x26D00; RS = 0x27100
SUMS = (0x27400, 0x27600, 0x27C00, 0x27E00); WPH = 0x27800
LDS_MAIN = 163840

def v(a, n=1): return f'v{a}' if n == 1 else f'v[{a}:{a+n-1}]'
def a_(a, n=1): return f'a{a}' if n == 1 else f'a[{a}:{a+n-1}]'
def s_(a, n=1): return f's{a}' if n == 1 else f's[{a}:{a+n-1}]'

def kd(name, vgpr, acc, sgpr=102):
    return f'''.section .rodata,"a"
.p2align 6
.amdhsa_kernel {name}
  .amdhsa_next_free_vgpr {vgpr}
  .amdhsa_next_free_sgpr {sgpr}
  .amdhsa_accum_offset {acc}
  .amdhsa_group_segment_fixed_size 0
  .amdhsa_kernarg_size 88
  .amdhsa_user_sgpr_count 2
  .amdhsa_user_sgpr_kernarg_segment_ptr 1
  .amdhsa_system_sgpr_workgroup_id_x 1
.end_amdhsa_kernel
.text
'''
def head(name):
    return f'.globl {name}\n.p2align 8\n.type {name},@function\n{name}:\n'

def srd(I, d, b, size):
    I(f's_mov_b32 s{d}, s{b}\ns_mov_b32 s{d+1}, s{b+1}\ns_mov_b32 s{d+2}, {hex(size)}\ns_mov_b32 s{d+3}, 0x20000')

WS, XS, OS, DS = 's[8:11]', 's[12:15]', 's[16:19]', 's[20:23]'
sW, sG, sRK, sR, sJ, sHB, sCG, sTAG, sE, sLIM = 24, 25, 26, 27, 28, 29, 30, 31, 32, 33
sQKV, sGU, sWO, sWD = 34, 35, 36, 37
sXIN, sXO, sXPUB, sSTIN, sSTPUB = 38, 39, 40, 41, 42
sHPUB, sHIN, sFXC, sFXP, sFOC, sFOP, sKVP, sKVC, sNAT, sM0 = 43, 44, 45, 46, 47, 48, 49, 50, 51, 52
sSELLO, sSELHI, sONES, sLOG2E, sOM, sSLOW, sMARK = 53, 54, 55, 56, 57, 58, 59
sT0 = 60
QS, US, PS_, DS2, CSRD = 's[80:83]', 's[84:87]', 's[88:91]', 's[72:75]', 's[4:7]'
sPO, sWM, sXB, sXM, sUB, sUST, sUD = 92, 96, 97, 98, 99, 100, 101
sHQ, sWQ = 72, 80
sUKC, sUCS, sUB2, sUD2 = 76, 77, 88, 89
vW0, vX0, vU0, vWR, vXR, vSW, vSR, vWW = 32, 34, 36, 38, 40, 44, 45, 46
vUR, vUD = 40, 42
vMU, vMK = 20, 22
vROW = 240
vL, vL16, vL16b, vFX, vFO, vL0, vSTL, vPUB, vPHW, vTRA, vTRB, vKVW, vZW, vKVR, vZR, vREDW, vNAT, vSTW, vRSW, vRSR = range(20)
vRSTD, vC, vT0, vT1, vT2, vT3, vT4, vT5 = range(24, 32)
vRES = 32; vTMP = 48; vACC = 64; vXB = 128; aKP = 224
def aWD(jj, t, ct): return 4*((12*jj + 2*t if t < 6 else 48 + 2*jj) + ct)

P0 = dict(xf=8, hf=10, uf='nt', xnt='nt', rnt='nt', ct=1, k0=20, kn=3, ko=range(9),
          sp=(0, 0, 1), xa=6, xe=8, tp=('', 20, 30), xb=4, xc=4, xd=1, xr=3.0, ug=0, kq=((2, 12), (2, 12)), fg=110, fup=1, sl=12, oq=((0, 6), (0, 12)), ot=(0, 0), on=(4, 0), oe=35, og=(4, 9), tw=('Xf', ''), twp=(1, 1),
          t1=(0, 6), t2=(8, 4), t3=(0, 6), t4=(8, 4), late=(1, 1), w2=0, w3=6, w4=2, n1=(2, 2), ub=7, wa=0, kf=(0, 0), ta=0, tb=(0, 0, 24), op=0, wd=(10, 5), kw=(8, 4), kp=(2, 16),
          wl=((8, 44, 60), (11, 64, 92), (7, 108, 124), (7, 140, 156), (7, 172, 188)), dl=(14, 31),
          he=((10, 201, 223), (10, 201, 223)), hg=((175, 188, 200, 219), (175, 188, 200, 219)), hp=((22, 38), (22, 38)), ht=((), ()), ws=0, tk=('', 'xf'), tkg=(59, 60), hm=('sc1', 'sc1'), om='', nt=('', ''), tg=((('XSf', 190),), (('f', 190),)), to=('xs', ''))
ORD = ((0, 1, 2, 3, 4, 5, 6), (5, 0, 1, 2, 3, 4, 6))
WOX = (0x18000, 0x8000)
class Main:
    def __init__(s, stop=None, ts=False, **kw):
        s.k = Asm(); s.I = s.k.I; s.stop = stop; s.ts = ts; s.nl = 0; s.nts = 0; s.tsnames = []; s.bg = []; s.m0dirty = False; s.bw = []; s.tok = {}; s.P = dict(P0); s.P.update(kw)
    def md(s, key, d='sc1'): return d + (' nt' if str(key) in s.P['nt'][s.L] else '')
    def label(s, p):
        s.nl += 1; return f'{p}_{s.nl}'
    def stamp(s, name):
        if not s.ts: return
        r = 80 + 2*(s.nts % 10)
        s.tsnames.append(name)
        with s.k.group():
            s.I(f's_mem{"real" if s.P.get("gstat") else ""}time s[78:79]\ns_waitcnt lgkmcnt(0)\nv_writelane_b32 v23, s78, {s.nts}')
        s.nts += 1
    class SO:
        def __init__(o, m, tmp): o.m = m; o.tmp = tmp; o.key = None
        def get(o, base, off):
            hi = off & ~4095; lo = off & 4095
            if hi == 0: return f's{base}', lo
            if o.key != (base, hi):
                o.m.I(f's_add_u32 s{o.tmp}, s{base}, {hex(hi)}'); o.key = (base, hi)
            return f's{o.tmp}', lo
    def ld(s, so, dst, voff, base, off, mod='', op='buffer_load_dwordx4', srdn=WS):
        with s.k.group():
            r, lo = so.get(base, off)
            t = s.I(f'{op} {dst}, v{voff}, {srdn}, {r} offen' + (f' offset:{lo}' if lo else '') + (' ' + mod if mod else ''))
        return t
    def pub(s, t):
        t.alt = (f's{sSLOW}', t.text + ' sc1'); return t
    def dma_tile(s, so, base, off, slot, mod):
        t = None
        for h in range(2):
            for i in range(4):
                with s.k.group():
                    if i == 0:
                        s.I(f's_add_u32 m0, s{sM0}, {hex(slot*0x8000 + h*4096)}')
                        s.I(f's_add_u32 s{so}, s{base}, {hex(off + h*4096)}')
                    t = s.I(f'buffer_load_dwordx4 v{vL16}, {WS}, s{so} offen' + (f' offset:{i*1024}' if i else '') + f' {mod} lds')
        return t
    def bg_tile(s, key, base, off, slot):
        with s.k.cap() as f: s.tok[key] = s.dma_tile(sT0+1, base, off, slot, s.md(key))
        if (s.L, key) in s.P.get('st', ()): s.tok[key] = None; return
        s.bg += f
    def take(s, n):
        r = s.bg[:n]; s.bg = s.bg[n:]
        if r and len(r[0]) == 1 and s.m0dirty: r[0] = [Ins(x.text) for x in s.setup] + r[0]
        if r: s.m0dirty = False
        for g in r:
            if len(g) == 3: s.setup = g[:2]
        return r
    def takew(s, n):
        r = s.bw[:n]; s.bw = s.bw[n:]; return r
    def check(s, vt, p):
        s.I(f's_add_u32 s{sT0+8}, s{sTAG}, {p}\nv_subrev_u32 v{vt}, s{sT0+8}, v{vt}\nv_cmp_lt_u32 vcc, 15, v{vt}')
    def poll(s, voff, sbase, off, p, vt=vT0):
        I = s.I; L = s.label('POLL'); D = s.label('PD')
        I(f's_mov_b32 s{sT0+9}, 0')
        I(f'{L}:')
        I(f'buffer_load_dword v{vt}, v{voff}, {WS}, s{sbase} offen' + (f' offset:{off}' if off else '') + ' sc1')
        I('s_waitcnt vmcnt(0)')
        s.check(vt, p)
        I(f's_cbranch_vccz {D}')
        with s.k.cond():
            I(f's_add_u32 s{sT0+9}, s{sT0+9}, 1\ns_cmp_lt_u32 s{sT0+9}, s{sLIM}\ns_cbranch_scc1 {L}\ns_mov_b32 s{sLIM}, 1')
        I(f'{D}:')
    def flag(s, sbase, off, p):
        with s.k.group():
            s.I(f's_add_u32 s{sT0+10}, s{sTAG}, {p}\nv_mov_b32 v{vT5}, s{sT0+10}')
            s.pub(s.I(f'buffer_store_dword v{vT5}, v{vL0}, {WS}, s{sbase} offen' + (f' offset:{off}' if off else '')))
    def tX(s, buf, t=vT3):
        with s.k.group():
            s.I(f's_lshl_b32 s{sT0+11}, s{sJ}, 11\ns_add_u32 s{sT0+11}, s{sT0+11}, s{sXIN}' + (f'\ns_add_u32 s{sT0+11}, s{sT0+11}, 0x200000' if buf else ''))
            s.I(f'v_lshlrev_b32 v{t}, 5, v{vFX}\nbuffer_load_dword v21, v{t}, {WS}, s{sT0+11} offen sc1')
    def tS(s, buf, t=vT3):
        with s.k.group():
            if buf: s.I(f's_add_u32 s{sT0+11}, s{sSTIN}, 0x20000')
            s.I(f'v_lshlrev_b32 v{t}, 5, v{vFX}\nbuffer_load_dword v21, v{t}, {WS}, s{sT0+11 if buf else sSTIN} offen sc1')
    def tF(s, t=vT3):
        with s.k.group():
            s.I(f'v_and_b32 v{t}, 3, v0\nv_lshlrev_b32 v{t}, 13, v{t}\nbuffer_load_dword v21, v{t}, {WS}, s{sFXC} offen sc1')
    def tH(s, t=vT3):
        with s.k.group():
            s.I(f'v_min_u32 v{t}, 55, v0\nv_lshlrev_b32 v{t}, 7, v{t}\nbuffer_load_dword v21, v{t}, {WS}, s{sHPUB} offen sc1')
    def touches(s, names, t=vT3):
        with s.k.cap() as f:
            for n in names:
                {'x': lambda: s.tX(0, t), 'X': lambda: s.tX(1, t), 's': lambda: s.tS(0, t), 'S': lambda: s.tS(1, t), 'f': lambda: s.tF(t), 'h': lambda: s.tH(t)}[n]()
        return f
    def ldsA(s, slot, kc):
        a = slot*0x8000 + kc*1024
        return (vL16, a) if a < 0x10000 else (vL16b, a - 0x10000)
    def gemm(s, steps, fences={}, LA=6):
        I = s.I; n = len(steps); nr = 0; last = None; aRING = s.ring
        blocked = sorted((f[0], g) for g, f in fences.items())
        def limit(i):
            for st, g in blocked:
                if g > i: return st
            return n
        def rd():
            nonlocal nr, last
            vr, off = s.ldsA(steps[nr][0], steps[nr][1])
            last = I(f'ds_read_b128 {a_(aRING + 4*(nr % 8), 4)}, v{vr} offset:{off}'); nr += 1
        with s.k.cap() as base:
            while nr < min(LA, limit(-1)): rd()
            for i, (slot, kc, acc, first) in enumerate(steps):
                assert nr > i
                I(f'v_mfma_f32_32x32x16_bf16 {v(acc,16)}, {a_(aRING + 4*(i % 8), 4)}, {v(vXB+4*kc,4)}, {"0" if first else v(acc,16)}')
                if i in fences:
                    assert nr == fences[i][0], (nr, i, fences[i])
                    s.k.wait(last, *fences[i][1]); I('s_barrier')
                c = 0
                while nr < min(i + 1 + LA, limit(i), n) and c < 2: rd(); c += 1
        return base, last

    def init0(s):
        I = s.I; k = s.k
        I('s_cmp_ge_u32 s2, 256\ns_cbranch_scc1 M_END')
        I('s_load_dwordx2 s[80:81], s[0:1], 8\ns_load_dwordx2 s[88:89], s[0:1], 16\ns_load_dwordx2 s[12:13], s[0:1], 0')
        if s.ts:
            I('s_memtime s[78:79]\ns_memrealtime s[70:71]'); s.tsnames.append('start'); s.nts = 1
        I(f's_lshr_b32 s{sRK}, s2, 3')
        if s.P['ct']:
            I(f's_getpc_b64 s[4:5]\nPC0:\nv_lshrrev_b32 v2, 4, v0\nv_lshl_add_u32 v2, s{sRK}, 4, v2\nv_lshlrev_b32 v2, 7, v2\nv_min_u32 v2, CODE_END-PC0-4, v2')
            I(f'v_mov_b32 v3, s5\nv_add_co_u32 v2, vcc, s4, v2\nv_addc_co_u32 v3, vcc, 0, v3, vcc\nglobal_load_dword v21, v[2:3], off')
        I(f'v_lshrrev_b32 v1, 6, v0\nv_and_b32 v0, 63, v0\nv_readfirstlane_b32 s{sW}, v1')
        I(f's_mov_b32 s82, {hex(512*3072)}\ns_mov_b32 s83, 0x20000\ns_lshr_b32 s64, s{sRK}, 4')
        I(f's_and_b32 s{sJ}, s{sRK}, 15\ns_and_b32 s{sCG}, s{sJ}, 7\ns_lshl_b32 s{sM0}, s{sW}, 13')
        I(f's_lshl_b32 s65, s64, 11\ns_add_u32 s{sWM}, s65, s{sM0}')
        I(f's_lshl_b32 s65, s{sCG}, 1\ns_lshl_b32 s66, s{sW}, 2\ns_xor_b32 s65, s65, s66\ns_or_b32 s67, s64, s65')
        I(f's_lshl_b32 s65, s{sJ}, 6\ns_mul_i32 s66, s67, {32*3072}\ns_add_u32 s{sPO}, s66, s65')
        I(f'v_lshrrev_b32 v48, 2, v0\nv_and_b32 v49, 3, v0\nv_lshrrev_b32 v51, 4, v0\nv_xor_b32 v49, v49, v51\nv_lshlrev_b32 v49, 4, v49')
        I(f'v_mul_u32_u24 v{vW0}, 3072, v48\nv_add_u32 v{vW0}, v{vW0}, v49\nv_add_u32 v{vW0+1}, {16*3072-1024}, v{vW0}')
        I('s_waitcnt lgkmcnt(0)')
        s.wdma(0, 0, 1024)
        I('s_load_dwordx2 s[8:9], s[0:1], 80\ns_load_dwordx2 s[16:17], s[0:1], 64\ns_load_dwordx2 s[20:21], s[0:1], 72')
        I('s_load_dwordx4 s[40:43], s[0:1], 40\ns_load_dwordx2 s[72:73], s[0:1], 56')
        I(f's_mov_b32 s90, {hex(32*512)}\ns_mov_b32 s91, 0x20000\nv_lshlrev_b32 v{vL16}, 4, v0\ns_lshl_b32 s66, s{sJ}, 10\ns_mov_b32 m0, {hex(WPH)}')
        s.tok['P'] = I(f'buffer_load_dwordx4 v{vL16}, {PS_}, s66 offen lds')
        s.wdma(0, 1, 2048)
        I(f's_and_b32 s{sG}, s2, 7\ns_lshl_b32 s{sR}, s{sG}, 1\ns_add_u32 s{sR}, s{sR}, s64\ns_mov_b32 s14, {hex(2048*1024)}\ns_mov_b32 s15, 0x20000')
        I(f's_lshl_b32 s64, s{sR}, 17\ns_lshl_b32 s66, s{sJ}, 13\ns_add_u32 s64, s64, s66\ns_lshl_b32 s66, s{sW}, 11\ns_add_u32 s64, s64, s66')
        I(f'buffer_load_dwordx4 {v(vROW,4)}, v{vL16}, {XS}, s64 offen {s.P["rnt"]}\nbuffer_load_dwordx4 {v(vROW+4,4)}, v{vL16}, {XS}, s64 offen offset:1024 {s.P["rnt"]}')
        if s.ts: I('v_mov_b32 v23, 0\nv_writelane_b32 v23, s78, 0\nv_writelane_b32 v23, s70, 60')
        s.stamp('r1')
        if s.P.get('lat'):
            for n in (7, 6, 5, 4, 3, 2, 0): I(f's_waitcnt vmcnt({n})'); s.stamp(f'vm{n}')
        for p in range(1, 4): I(f's_xor_b32 s66, s67, {p}\ns_mul_i32 s66, s66, {32*3072}\ns_add_u32 s{sPO+p}, s66, s65')
        for d, size in ((8, WS_SIZE), (16, 2048*1024), (20, 256)):
            I(f's_mov_b32 s{d+2}, {hex(size)}\ns_mov_b32 s{d+3}, 0x20000')
        I(f's_lshr_b32 s{sHB}, s{sJ}, 3')
        I(f's_lshl_b32 s64, s{sR}, 2\ns_add_u32 s64, s64, s{sW}\ns_lshl_b32 s64, s64, 15\ns_lshl_b32 s65, s{sCG}, 7\ns_or_b32 s64, s64, s65\ns_lshl_b32 s65, s{sHB}, 14\ns_or_b32 s{sXB}, s64, s65')
        I(f's_lshl_b32 s65, s{sHB}, 11\ns_or_b32 s{sXM}, s65, s{sM0}')
        I(f'v_and_b32 v50, 7, v0\nv_lshlrev_b32 v53, 4, v50\nv_xor_b32 v50, v50, v51\nv_lshlrev_b32 v50, 4, v50\nv_lshrrev_b32 v52, 3, v0\nv_lshl_or_b32 v{vX0}, v52, 10, v50')
        I(f'v_xor_b32 v{vX0+1}, 64, v{vX0}\nv_add_u32 v{vX0+1}, {8192-1024}, v{vX0+1}')
    def wdma(s, p, slot, col):
        with s.k.group():
            s.I(f's_xor_b32 m0, s{sWM}, {hex(slot*0x8000 + p*2048)}\ns_add_u32 s{sT0+1}, s{sPO+p}, {col}')
            s.I(f'buffer_load_dwordx4 v{vW0}, {QS}, s{sT0+1} offen lds')
            return s.I(f'buffer_load_dwordx4 v{vW0+1}, {QS}, s{sT0+1} offen offset:1024 lds')
    def udma(s, i):
        with s.k.group():
            s.I(f's_add_u32 m0, s{sM0}, {hex(0x18000 + i*1024)}')
            if i < 4:
                t = s.I(f'buffer_load_dwordx4 v{vU0}, {US}, s{sUB} offen {s.P["uf"]} lds')
                if i < 3: s.I(f's_add_u32 s{sUB}, s{sUB}, {8*3584}')
            else:
                t = s.I(f'buffer_load_dwordx4 v{vU0+1}, {DS2}, s{sUB2} offen {s.P["uf"]} lds')
                if i < 5: s.I(f's_add_u32 s{sUB2}, s{sUB2}, 8192')
            return t
    def xreg(s, c): return (2 + (c >> 1 & 1))*0x8000 + (c & 1)*4096
    def xdma(s, c, p):
        with s.k.group():
            s.I(f's_xor_b32 m0, s{sXM}, {hex(s.xreg(c) + p*2048)}\ns_xor_b32 s{sT0+1}, s{sXB}, {hex(c*128 + p*16384)}')
            s.I(f'buffer_load_dwordx4 v{vX0}, {XS}, s{sT0+1} offen {s.P["xnt"]} lds')
            return s.I(f'buffer_load_dwordx4 v{vX0+1}, {XS}, s{sT0+1} offen offset:1024 {s.P["xnt"]} lds')
    def unit(s):
        I = s.I; k = s.k
        I(f's_lshr_b32 s64, s2, 6\ns_and_b32 s65, s2, 63\ns_and_b32 s66, s2, 7')
        I(f's_lshr_b32 s67, s{sW}, 1\ns_lshl_b32 s67, s67, 2\ns_and_b32 s68, s{sW}, 1\ns_or_b32 s67, s67, s68\ns_lshl_b32 s67, s67, 8')
        I(f's_mov_b32 s87, 0x20000\ns_mov_b32 s75, 0x20000')
        with k.group(): I(f's_cmp_lt_u32 s65, 56\ns_cselect_b32 s74, {hex(1792*1024)}, 0\ns_cselect_b32 s68, 0, 0x70000000')
        I(f's_mov_b32 s86, s74\ns_mul_i32 s70, s64, 7\ns_lshr_b32 s71, s65, 3\ns_add_u32 s70, s70, s71')
        I(f's_lshl_b32 s{sUB2}, s70, 16\ns_lshl_b32 s71, s{sW}, 14\ns_add_u32 s{sUB2}, s{sUB2}, s71\ns_lshl_b32 s71, s66, 7\ns_add_u32 s{sUB2}, s{sUB2}, s71')
        I(f's_mul_i32 s{sUD2}, s66, {224*1024}\ns_lshl_b32 s70, s70, 13\ns_add_u32 s{sUD2}, s{sUD2}, s70\ns_add_u32 s67, s67, s68\ns_add_u32 s{sUD2}, s{sUD2}, s67\ns_add_u32 s{sUD2}, s{sUD2}, {hex(WD_P)}')
        with k.group(): I(f's_cmp_ge_u32 s65, 28\ns_cselect_b32 s84, s42, s40\ns_cselect_b32 s85, s43, s41\ns_cselect_b32 s70, 28, 0\ns_cselect_b32 s71, 1, 0')
        I(f's_sub_u32 s65, s65, s70\ns_lshl_b32 s{sUB}, s65, 7\ns_lshl_b32 s65, s65, 2\ns_add_u32 s65, s65, s{sW}')
        I(f's_lshl_b32 s69, s64, 2\ns_add_u32 s69, s69, s{sW}\ns_mul_i32 s69, s69, {32*3584}\ns_add_u32 s{sUB}, s{sUB}, s69')
        I(f's_lshl_b32 s{sUD}, s65, 15\ns_lshl_b32 s70, s64, 13\ns_add_u32 s{sUD}, s{sUD}, s70\ns_lshl_b32 s70, s71, 8\ns_add_u32 s70, s70, s68\ns_add_u32 s{sUD}, s{sUD}, s70\ns_add_u32 s{sUD}, s{sUD}, {hex(WGU)}')
        I(f's_mul_i32 s64, s64, 112\ns_add_u32 s64, s64, s65\ns_lshl_b32 s64, s64, 1\ns_add_u32 s64, s64, s71\ns_lshl_b32 s64, s64, 6\ns_add_u32 s64, s64, s68\ns_add_u32 s{sUCS}, s64, {hex(CS)}')
        I(f'v_mul_u32_u24 v{vU0}, 3584, v52\nv_add_u32 v{vU0}, v{vU0}, v53\nv_lshl_or_b32 v{vU0+1}, v52, 10, v53')
    def uaddr(s):
        I = s.I; t0, t1 = vT2, vT4
        I(f'v_bfe_u32 v{t0}, v0, 2, 2\nv_lshrrev_b32 v{t1}, 5, v0\nv_lshl_or_b32 v{t0}, v{t1}, 3, v{t0}\nv_lshlrev_b32 v{vUR}, 7, v{t0}')
        I(f'v_lshlrev_b32 v{vUD}, 2, v{vFX}\nv_lshl_or_b32 v{vUD}, v{t1}, 9, v{vUD}')
        I(f'v_and_b32 v{t0}, 1, v0\nv_lshl_or_b32 v{vUR}, v{t0}, 4, v{vUR}\nv_bfe_u32 v{t0}, v0, 1, 1\nv_lshl_or_b32 v{vUR}, v{t0}, 3, v{vUR}')
        with s.k.group(): I(f's_lshl_b32 s{sT0+3}, s{sW}, 5\ns_add_u32 s{sT0+3}, s{sT0+3}, 0x18000\nv_add_u32 v{vUR}, s{sT0+3}, v{vUR}')
        I(f'v_bfe_u32 v{t0}, v0, 4, 1\nv_lshl_or_b32 v{vUR+1}, v{t0}, 13, v{vUR}\nv_lshl_or_b32 v{vUR}, v{t0}, 11, v{vUR}')
        I(f'v_lshl_or_b32 v{vUD+1}, v{t0}, 11, v{vUD}\nv_lshl_or_b32 v{vUD}, v{t0}, 10, v{vUD}')
    def uproc(s):
        I = s.I; k = s.k; d = 64
        for n, r in (('a', sUD), ('b', sUD2), ('c', sUCS)):
            if n in s.P.get('nou', ''): I(f's_mov_b32 s{r}, 0x70000000')
        with k.group():
            k.wait(s.tok['U'])
            if s.P.get('xs'): s.stamp('u_ok')
            I('s_barrier')
        for q in range(6):
            with k.group():
                for r in range(2):
                    if q < 4: t = I(f'ds_read_b64_tr_b16 {v(d+4*q+2*r,2)}, v{vUR} offset:{q*8192 + r*512}')
                    else: t = I(f'ds_read_b64_tr_b16 {v(d+4*q+2*r,2)}, v{vUR+1} offset:{(q-4)*16384 + 4096 + r*512}')
        with k.group(): k.wait(t); I('s_barrier')
        for q in range(6):
            with k.group():
                if q < 4:
                    I(f'v_mfma_f32_16x16x32_bf16 {v(d+24,4)}, a[64:67], {v(d+4*q,4)}, {"0" if q == 0 else v(d+24,4)}')
                    I(f'buffer_store_dwordx4 {v(d+4*q,4)}, v{vUD}, {WS}, s{sUD} offen' + (' offset:2048' if q & 1 else '') + ' sc1')
                    if q == 1: I(f's_add_u32 s{sUD}, s{sUD}, 4096')
                else:
                    I(f'buffer_store_dwordx4 {v(d+4*q,4)}, v{vUD+1}, {WS}, s{sUD2} offen sc1')
                    if q < 5: I(f's_add_u32 s{sUD2}, s{sUD2}, 4096')
        return I(f'buffer_store_dword v{d+24}, v{vFX}, {WS}, s{sUCS} offen sc1')
    def meanop(s, d, m, t):
        I = s.I
        I(f'v_cvt_pk_bf16_f32 v{d}, -v{m}, -v{m}\nv_and_b32 v{t}, 0xffff0000, v{d}\nv_sub_f32 v{t}, -v{m}, v{t}\nv_cvt_pk_bf16_f32 v{t}, v{t}, v{t}')
        with s.k.group(): I(f'v_cmp_gt_u32 vcc, 32, v0\nv_cndmask_b32 v{d}, v{t}, v{d}, vcc')
    def finit(s):
        I = s.I; k = s.k
        n, hf, sw, b2, t0, t1, t2 = 50, 51, 52, 53, 54, 55, 56
        I(f'v_and_b32 v{n}, 31, v0\nv_lshrrev_b32 v{hf}, 5, v0\nv_bfe_u32 v{b2}, v0, 2, 1\nv_bfe_u32 v{t0}, v0, 3, 1')
        I(f'v_and_b32 v{sw}, 19, v{n}\nv_lshl_or_b32 v{sw}, v{b2}, 3, v{sw}\nv_lshl_or_b32 v{sw}, v{t0}, 2, v{sw}')
        I(f'v_lshl_or_b32 v{t0}, v{b2}, 1, v{t0}\nv_xor_b32 v{t0}, v{t0}, v{hf}\nv_lshlrev_b32 v{t0}, 4, v{t0}\nv_lshl_or_b32 v{t0}, v{sw}, 6, v{t0}')
        I(f'v_add_u32 v{vWR}, s{sM0}, v{t0}\nv_xor_b32 v{vWR+1}, 32, v{vWR}\nv_add_u32 v{vWW}, s{sM0}, v{vL16}')
        I(f'v_bfe_u32 v{t0}, v0, 1, 3\nv_xor_b32 v{t0}, v{t0}, v{hf}\nv_lshlrev_b32 v{t0}, 4, v{t0}\nv_lshl_or_b32 v{t0}, v{n}, 7, v{t0}')
        I(f's_add_u32 s64, s{sM0}, 0x10000\nv_add_u32 v{vXR}, s64, v{t0}')
        for q in range(1, 4): I(f'v_xor_b32 v{vXR+q}, {32*q}, v{vXR}')
        I(f'v_lshlrev_b32 v{t0}, 4, v{n}\nv_add_u32 v{vSR}, 0x20000, v{t0}\ns_lshl_b32 s64, s{sW}, 2\nv_add_u32 v{vSW}, s64, v{vSR}')
        I(f'v_bfe_u32 v{t1}, v0, 4, 1')
        I(f'v_and_b32 v{t0}, 1, v0\nv_lshlrev_b32 v{t0}, 9, v{t0}\nv_lshl_or_b32 v{t0}, v{hf}, 8, v{t0}\nv_bfe_u32 v{t2}, v0, 2, 2\nv_lshl_or_b32 v{t0}, v{t2}, 5, v{t0}')
        I(f'v_lshl_or_b32 v{t0}, v{t1}, 4, v{t0}\nv_bfe_u32 v{t2}, v0, 1, 1\nv_lshl_or_b32 v{t0}, v{t2}, 3, v{t0}\nv_add_u32 v57, {hex(WPH)}, v{t0}')
        I(f'v_lshrrev_b32 v{t0}, 3, v{n}\nv_and_b32 v{t1}, 3, v{n}\nv_lshl_or_b32 v{t0}, v{t0}, 2, v{t1}\nv_lshl_or_b32 v{t0}, v{b2}, 4, v{t0}')
        I(f'v_mov_b32 v58, 0x3f80')
        for d, cm in ((64, t0),):
            I(f'v_lshlrev_b32 v{t1}, 3, v{hf}\nv_sub_u32 v{t1}, v{cm}, v{t1}\nv_and_b32 v{t2}, 1, v{t1}\nv_lshlrev_b32 v{t2}, 4, v{t2}\nv_lshlrev_b32 v{t2}, v{t2}, v58\nv_ashrrev_i32 v{t1}, 1, v{t1}')
            for p in range(2):
                for r in range(4): I(f'v_cmp_eq_u32 vcc, {8*p+r}, v{t1}\nv_cndmask_b32 v{d+4*p+r}, 0, v{t2}, vcc')
        for r in range(8): I(f'v_accvgpr_write_b32 a{r}, v{64+r}')
        for r in range(4): I(f'v_accvgpr_write_b32 a{64+r}, s{sONES}')
        I(f's_mul_i32 s{sTAG}, s{sE}, 0x9E3779B1\ns_add_u32 s{sTAG}, s{sTAG}, 0x7F4A7C15')
    def fold(s):
        I = s.I
        s.k.wait(s.tok['P'])
        I('ds_read_b64_tr_b16 v[60:61], v57\nds_read_b64_tr_b16 v[62:63], v57 offset:128')
        I('v_cmp_eq_u32 vcc, 0, v53')
        for r in range(4): I(f'v_cndmask_b32 v{80+r}, 0, v{60+r}, vcc\nv_cndmask_b32 v{84+r}, v{60+r}, 0, vcc')
        for r in range(8): I(f'v_accvgpr_write_b32 a{16+r}, v{80+r}')
    def lbuild(s, tok, slot, B, si):
        I = s.I; k = s.k; off = (slot & 1)*0x8000
        k.wait(tok)
        for b in range(4):
            for p in range(2): I(f'ds_read_b128 {a_(32+8*b+4*p,4)}, v{vWR+p} offset:{off + b*2048}')
        def T(i):
            b, p = i >> 1, i & 1; d = 64 + 16*b
            I(f'v_mfma_f32_32x32x16_bf16 {v(d,16)}, {a_(32+8*b+4*p,4)}, {a_(B+4*p,4)}, {"0" if p == 0 else v(d,16)}')
        def C(i):
            d = 64 + 8*i
            for r in range(4): I(f'v_cvt_pk_bf16_f32 v{d+r}, v{d+2*r}, v{d+2*r+1}')
            I(f'ds_write_b128 v{vWW}, {v(d,4)} offset:{off + i*1024}')
        def S(i): I(f'v_mfma_f32_32x32x16_bf16 v[48:63], a[64:67], {v(64+8*i,4)}, {"0" if i == 0 else "v[48:63]"}')
        for i in range(16):
            (T if i < 8 else S)(i & 7)
            if 3 <= i < 11: C(i - 3)
        I('v_cvt_pk_bf16_f32 v49, v48, v48\nv_and_b32 v50, 0xffff0000, v49\nv_sub_f32 v50, v48, v50\nv_cvt_pk_bf16_f32 v49, v48, v50')
        return I(f'ds_write_b32 v{vSW}, v49 offset:{SUMS[si] - 0x20000}')
    def rowstats(s):
        I = s.I
        for r in range(2):
            for i in range(4):
                x = vROW + 4*r + i
                I(f'v_dot2_f32_bf16 v{248+r}, v{x}, s{sONES}, {"0" if i == 0 else v(248+r)}')
                I(f'v_dot2_f32_bf16 v{250+r}, v{x}, v{x}, {"0" if i == 0 else v(250+r)}')
        I('v_permlane32_swap_b32 v248, v249\nv_permlane32_swap_b32 v250, v251\nv_add_f32 v248, v248, v249\nv_add_f32 v250, v250, v251')
        I(f'v_and_b32 v252, 15, v0\nv_cmp_eq_u32 vcc, 0, v252\nv_lshrrev_b32 v252, 1, v0\nv_mov_b32 v253, {hex(OOB)}')
        I('v_permlane16_swap_b32 v248, v250\nv_cndmask_b32 v252, v253, v252, vcc\nv_add_f32 v248, v248, v250')
        I(f'v_mov_b32 v249, s{sTAG}\ns_lshl_b32 s64, s{sR}, 11\ns_lshl_b32 s65, s{sJ}, 7\ns_add_u32 s64, s64, s65\ns_lshl_b32 s65, s{sW}, 5\ns_add_u32 s64, s64, s65\ns_add_u32 s64, s64, {hex(S0)}')
        for mod in ('quad_perm:[1,0,3,2]', 'quad_perm:[2,3,0,1]', 'row_half_mirror', 'row_mirror'):
            I(f'v_add_f32_dpp v248, v248, v248 {mod} row_mask:0xf bank_mask:0xf')
        s.k.wait(s.tok['C'])
        I(f'buffer_store_dwordx2 v[248:249], v252, {WS}, s64 offen sc1')
    def init(s):
        I = s.I; k = s.k
        I(f's_load_dword s{sE}, s[8:9], 0')
        I(f's_lshl_b32 s64, s{sJ}, 2\ns_add_u32 s64, s64, s{sW}\ns_lshl_b32 s64, s64, 4\ns_add_u32 s{sKVP}, s64, s{sR}')
        I(f's_lshl_b32 s64, s{sKVP}, 9\ns_add_u32 s64, s64, {hex(KVP)}\ns_and_b32 s{sKVC}, s64, 0xfffff800\ns_lshl_b32 s65, s{sKVP}, 6\ns_add_u32 s65, s65, {hex(KVZ)}')
        for r in range(4): I(f'v_mov_b32 v{96+r}, -1')
        I(f'v_lshlrev_b32 v100, 11, v{vL16}\nv_or_b32 v100, v100, v{vL16}\nv_and_b32 v100, 0x1001f0, v100\nbuffer_store_dwordx4 v[96:99], v100, {WS}, s64 offen sc1')
        I(f'v_lshlrev_b32 v101, 16, v0\nv_lshl_or_b32 v101, v0, 2, v101\nv_and_b32 v101, 0x10003c, v101')
        s.tok['C'] = I(f'buffer_store_dword v96, v101, {WS}, s65 offen sc1')
        I(f's_getreg_b32 s{sMARK}, hwreg(HW_REG_XCC_ID)\ns_and_b32 s{sMARK}, s{sMARK}, 15\ns_or_b32 s{sMARK}, s{sMARK}, 0x80')
        I(f'v_add_u32 v{vL16b}, 0x10000, v{vL16}')
        I(f'v_cmp_eq_u32 vcc, 0, v0\nv_mov_b32 v{vT0}, {hex(OOB)}\nv_cndmask_b32 v{vL0}, v{vT0}, v0, vcc')
        I(f's_mov_b32 s{sLIM}, 20000')
        I(f'v_and_b32 v50, 15, v0\nv_lshrrev_b32 v51, 4, v0\nv_and_b32 v52, 31, v0\nv_lshrrev_b32 v53, 5, v0')
        I(f'v_lshlrev_b32 v{vFX}, 2, v50')
        I(f'v_bfe_u32 v54, v0, 2, 1\nv_and_b32 v55, 3, v0\nv_lshlrev_b32 v55, 2, v55\nv_lshl_or_b32 v{vFO}, v54, 7, v55')
        I(f'v_lshlrev_b32 v54, 4, v50\nv_lshl_or_b32 v{vPUB}, v51, 9, v54')
        I(f's_lshl_b32 s64, s{sW}, 9\ns_add_u32 s64, s64, {hex(XA)}\ns_movk_i32 s65, {6*PS}')
        I(f'v_mul_lo_u32 v54, v53, s65\nv_lshl_add_u32 v54, v52, 4, v54\nv_add_u32 v{vPHW}, s64, v54')
        I(f's_movk_i32 s65, {PS}\nv_bfe_u32 v54, v0, 1, 1\nv_mul_lo_u32 v54, v54, s65\nv_and_b32 v55, 1, v0\nv_lshl_add_u32 v54, v55, 3, v54')
        I(f'v_lshrrev_b32 v55, 2, v50\nv_lshl_add_u32 v55, v51, 3, v55\nv_lshl_add_u32 v54, v55, 4, v54')
        I(f's_lshr_b32 s66, s{sW}, 1\ns_mul_i32 s66, s66, {6*PS}\ns_add_u32 s66, s66, {hex(XA)}\ns_and_b32 s67, s{sW}, 1\ns_mul_i32 s67, s67, {2*PS}\ns_add_u32 s67, s67, s66\ns_add_u32 s66, s66, {4*PS}')
        I(f'v_add_u32 v{vTRA}, s67, v54\nv_add_u32 v{vTRB}, s66, v54')
        I(f'v_lshlrev_b32 v54, 4, v50\nv_lshl_or_b32 v54, v53, 8, v54\nv_and_b32 v55, 1, v51\nv_lshl_or_b32 v54, v55, 3, v54')
        I(f's_lshl_b32 s64, s{sW}, 9\ns_add_u32 s64, s64, {hex(KVA)}\nv_add_u32 v{vKVW}, s64, v54')
        I(f's_lshl_b32 s64, s{sW}, 5\ns_add_u32 s64, s64, {hex(ZA)}\nv_and_b32 v54, 3, v0\nv_lshl_or_b32 v54, v54, 1, v55\nv_lshl_or_b32 v54, v54, 1, v53\nv_lshl_add_u32 v{vZW}, v54, 1, s64')
        I(f'v_and_b32 v54, 3, v0\nv_bfe_u32 v55, v0, 2, 1\nv_lshl_or_b32 v54, v55, 3, v54\nv_bfe_u32 v55, v0, 3, 1\nv_lshl_or_b32 v54, v55, 2, v54')
        I(f'v_lshlrev_b32 v54, 4, v54\nv_lshl_or_b32 v54, v53, 10, v54\nv_add_u32 v54, {hex(KVA)}, v54')
        I(f'v_lshlrev_b32 v55, 6, v53\nv_add_u32 v55, {hex(ZA)}, v55\nv_bfe_u32 v56, v0, 4, 1\nv_cmp_eq_u32 vcc, v56, v53\nv_mov_b32 v57, {hex(ZERO)}')
        I(f'v_cndmask_b32 v{vKVR}, v57, v54, vcc\nv_cndmask_b32 v{vZR}, v57, v55, vcc')
        I(f'v_lshlrev_b32 v54, 4, v50\nv_lshl_or_b32 v54, v53, 8, v54\nv_lshl_or_b32 v54, v56, 13, v54\ns_lshl_b32 s64, s{sW}, 11\nv_add_u32 v{vREDW}, s64, v54')
        I(f'v_lshlrev_b32 v54, 10, v50\nv_lshl_or_b32 v{vNAT}, v51, 4, v54')
        I(f'v_lshlrev_b32 v54, 4, v50\nv_lshl_or_b32 v54, v53, 2, v54\nv_cmp_eq_u32 vcc, 0, v56\nv_mov_b32 v55, {hex(OOB)}\nv_cndmask_b32 v{vSTW}, v55, v54, vcc')
        I(f's_lshl_b32 s64, s{sW}, 7\ns_add_u32 s64, s64, {hex(RS)}\nv_lshlrev_b32 v54, 2, v52\nv_add_u32 v{vRSW}, s64, v54')
        I(f'v_mov_b32 v56, 0\nv_mov_b32 v57, 0\nv_mov_b32 v58, 0\nv_mov_b32 v59, 0\nv_add_u32 v54, {hex(ZERO)}, v{vL16}\nds_write_b128 v54, v[56:59]')
        I(f's_mov_b32 s{sSELLO}, 0x3f80\ns_mov_b32 s{sSELHI}, 0x3f800000\ns_mov_b32 s{sONES}, 0x3f803f80\ns_mov_b32 s{sLOG2E}, 0x3fb8aa3b')
        I(f's_lshl_b32 s66, s{sR}, 2\ns_add_u32 s65, s66, s{sW}')
        I(f's_lshl_b32 s64, s65, 15\ns_add_u32 s{sXIN}, s64, {hex(XB[0])}')
        I(f's_lshl_b32 s64, s65, 11\ns_add_u32 s{sSTIN}, s64, {hex(ST)}')
        I(f's_mul_i32 s64, s{sJ}, {224*1024}\ns_add_u32 s64, s64, s{sM0}\ns_add_u32 s{sGU}, s64, {hex(WGU)}')
        I(f's_lshr_b32 s67, s{sRK}, 3\ns_lshl_b32 s64, s{sW}, 2\ns_or_b32 s64, s64, s67\ns_lshl_b32 s64, s64, 8\ns_or_b32 s64, s64, s{sCG}\ns_lshl_b32 s{sWO}, s64, 7')
        I(f's_lshl_b32 s67, s{sHB}, 12\ns_or_b32 s{sOM}, s67, s{sM0}')
        I(f's_mul_i32 s64, s{sCG}, {224*1024}\ns_mul_i32 s67, s{sW}, {56*1024}\ns_add_u32 s64, s64, s67\ns_add_u32 s{sWD}, s64, {hex(WD_P)}')
        I(f's_lshl_b32 s67, s{sHB}, 1\ns_add_u32 s66, s66, s67')
        I(f's_lshr_b32 s67, s{sW}, 1\ns_add_u32 s67, s67, s66\ns_and_b32 s68, s{sW}, 1')
        I(f's_lshl_b32 s64, s66, 15\ns_add_u32 s64, s64, s{sM0}\ns_add_u32 s{sXO}, s64, {hex(XB[0])}')
        I(f's_lshl_b32 s64, s67, 15\ns_lshl_b32 s69, s{sCG}, 12\ns_add_u32 s64, s64, s69\ns_lshl_b32 s69, s68, 8\ns_add_u32 s64, s64, s69\ns_add_u32 s{sXPUB}, s64, {hex(XB[0])}')
        I(f's_lshl_b32 s64, s67, 11\ns_lshl_b32 s69, s68, 8\ns_add_u32 s64, s64, s69\ns_mul_i32 s69, s{sCG}, 0x108\ns_and_b32 s69, s69, 0x608\ns_add_u32 s64, s64, s69\ns_add_u32 s{sSTPUB}, s64, {hex(ST)}')
        I(f's_mul_i32 s64, s65, {112*1024}\ns_mul_i32 s69, s{sJ}, {7*1024}\ns_add_u32 s64, s64, s69\ns_add_u32 s{sHPUB}, s64, {hex(HB)}')
        I(f's_mul_i32 s64, s66, {112*1024}\ns_mul_i32 s69, s{sW}, {28*1024}\ns_add_u32 s64, s64, s69\ns_add_u32 s{sHIN}, s64, {hex(HB)}')
        I(f's_lshl_b32 s64, s65, 7\ns_add_u32 s{sFXC}, s64, {hex(FX)}')
        I(f's_lshl_b32 s69, s{sJ}, 2\ns_add_u32 s64, s64, s69\ns_add_u32 s{sFOP}, s64, {hex(FO)}')
        I(f's_lshl_b32 s64, s67, 7\ns_lshl_b32 s69, s{sCG}, 3\ns_add_u32 s64, s64, s69\ns_lshl_b32 s69, s68, 2\ns_add_u32 s64, s64, s69\ns_add_u32 s{sFXP}, s64, {hex(FX)}')
        I(f's_lshl_b32 s64, s66, 7\ns_lshl_b32 s69, s{sW}, 4\ns_add_u32 s64, s64, s69\ns_add_u32 s{sFOC}, s64, {hex(FO)}')
        I(f's_lshl_b32 s64, s{sR}, 17\ns_lshl_b32 s69, s{sHB}, 16\ns_add_u32 s64, s64, s69\ns_lshl_b32 s69, s{sW}, 14\ns_add_u32 s64, s64, s69\ns_lshl_b32 s69, s{sCG}, 7\ns_add_u32 s{sNAT}, s64, s69')
        I(f's_lshl_b32 s64, s{sHB}, 8\ns_lshl_b32 s69, s{sW}, 6\ns_add_u32 s64, s64, s69\ns_add_u32 s64, s64, {hex(RS)}\nv_add_u32 v{vRSR}, s64, v{vFX}')

    def xloads(s, buf, n1=2, perm=None):
        so = s.SO(s, sT0)
        d = buf*0x20000; n = s.P['xf']
        with s.k.cap() as f:
            for kc in range(33):
                if kc == s.P['sl']: s.ld(so, v(vTMP, 4), vL16, sSTIN, d, 'sc1'); s.ld(so, v(vTMP+4, 4), vL16, sSTIN, d + 1024, 'sc1')
                if kc == 32: break
                if perm is None: s.ld(so, v(vXB + 4*kc, 4), vL16, sXIN, buf*0x200000 + kc*1024, 'sc1')
                else:
                    with s.k.group():
                        if kc % 4 == 0 and kc: s.I(f's_xor_b32 s{perm}, s{perm}, {hex((kc ^ kc - 4) << 10)}')
                        s.I(f'buffer_load_dwordx4 {v(vXB + 4*kc, 4)}, v{vL16}, {WS}, s{perm} offen offset:{kc % 4*1024} sc1')
        s.k.put(f[:n])
        return (f[n:], 0, n1*(32 - n) - 1)
    def stats(s, own=False):
        I = s.I; t = vTMP
        I(f'v_add_f32 v{t}, v{t}, v{t+2}\nv_add_f32 v{t+1}, v{t+1}, v{t+3}')
        if not own:
            I(f'v_add_f32 v{t+4}, v{t+4}, v{t+6}\nv_add_f32 v{t+5}, v{t+5}, v{t+7}')
            I(f'v_add_f32 v{t}, v{t}, v{t+4}\nv_add_f32 v{t+1}, v{t+1}, v{t+5}')
        I(f'v_permlane32_swap_b32 v{t}, v{t+1}')
        I(f'v_add_f32 v{t}, v{t}, v{t+1}')
        I(f'v_mul_f32 v{t}, 0x3b000000, v{t}')
        I(f'v_mov_b32 v{t+1}, v{t}')
        I(f'v_permlane32_swap_b32 v{t}, v{t+1}')
        I(f'v_fma_f32 v{t+1}, -v{t}, v{t}, v{t+1}')
        I(f'v_max_f32 v{t+1}, 0, v{t+1}')
        I(f'v_add_f32 v{t+1}, 0x3727c5ac, v{t+1}')
    def phi(s, p, tA, tB, out, emit=None):
        I = s.I; mx, mn = vT0, vT2
        I(f'v_max3_f32 v{mx}, v{p}, v{p+1}, v{p+2}\nv_min3_f32 v{mn}, v{p}, v{p+1}, v{p+2}')
        for r in range(3, 15, 2): I(f'v_max3_f32 v{mx}, v{mx}, v{p+r}, v{p+r+1}\nv_min3_f32 v{mn}, v{mn}, v{p+r}, v{p+r+1}')
        I(f'v_max_f32 v{mx}, v{mx}, v{p+15}\nv_min_f32 v{mn}, v{mn}, v{p+15}')
        I(f'v_mul_f32 v{mx}, v{mx}, v{vC}\nv_mul_f32 v{mn}, v{mn}, v{vC}')
        for sg, t, m in ((0, tA, mx), (1, tB, mn)):
            for r in range(0, 16, 2):
                if sg == 0: I(f'v_pk_fma_f32 {v(t+r,2)}, {v(p+r,2)}, {v(vC-1,2)}, {v(m,2)} op_sel:[0,1,0] op_sel_hi:[1,1,0] neg_lo:[0,0,1] neg_hi:[0,0,1]')
                else: I(f'v_pk_fma_f32 {v(t+r,2)}, {v(p+r,2)}, {v(vC-1,2)}, {v(m,2)} op_sel:[0,1,0] op_sel_hi:[1,1,0] neg_lo:[1,0,0] neg_hi:[1,0,0]')
            for r in range(16): I(f'v_exp_f32 v{t+r}, v{t+r}')
            I(f'v_pk_add_f32 {v(vT4,2)}, {v(t,2)}, {v(t+2,2)}')
            for r in range(4, 16, 2): I(f'v_pk_add_f32 {v(vT4,2)}, {v(vT4,2)}, {v(t+r,2)}')
            I(f'v_add_f32 v{vT4}, v{vT4}, v{vT5}\nv_rcp_f32 v{vT4}, v{vT4}')
            for r in range(0, 16, 2): I(f'v_pk_mul_f32 {v(t+r,2)}, {v(t+r,2)}, {v(vT4,2)} op_sel_hi:[1,0]')
            for r in range(8):
                I(f'v_cvt_pk_bf16_f32 v{out+8*sg+r}, v{t+2*r}, v{t+2*r+1}')
                if emit and r % 4 == 3: emit(2*sg + r//4)

    def front(s):
        I = s.I; k = s.k; P = s.P
        s.init0()
        tx = {}; tr = {}; dl = {}
        def X(i):
            with k.group():
                if i >= 8 and i % 2 == 0: k.wait(tr[i//2 - 4])
                tx[i] = s.xdma(i//2, i % 2)
        def RD(c):
            with k.group() as g:
                k.wait(tx[2*c+1])
                for q in range(4): tr[c] = I(f'ds_read_b128 {v(vXB+16*c+4*q,4)}, v{vXR+q} offset:{s.xreg(c) - 0x10000}')
            dl[id(g)] = 8*c - 3
        def SL():
            with k.group() as g:
                I(f's_lshl_b32 s{sT0+3}, s{sR}, 11\ns_lshl_b32 s{sT0+4}, s{sW}, 9\ns_add_u32 s{sT0+3}, s{sT0+3}, s{sT0+4}\ns_add_u32 s{sT0+3}, s{sT0+3}, {hex(S0)}')
                I(f'v_and_b32 v{vT4}, 0x1f0, v{vL16}\nbuffer_load_dwordx4 v[52:55], v{vT4}, {WS}, s{sT0+3} offen sc1')
                I(f's_lshl_b32 s{sT0+5}, s{sJ}, 7\ns_add_u32 s{sT0+5}, s{sT0+5}, s{sM0}\ns_add_u32 s{sT0+5}, s{sT0+5}, {hex(S0)}')
                I(f'v_lshlrev_b32 v57, 9, v0\nv_lshl_or_b32 v57, v0, 5, v57\nv_and_b32 v57, 0x1860, v57\nbuffer_load_dword v56, v57, {WS}, s{sT0+5} offen offset:4 sc1')
            dl[id(g)] = 40; s.gSL = g
        def Q(p):
            with k.group():
                if p == 0: k.wait(tr[5])
                s.tok['Q0'] = s.wdma(p, 2, 0)
        def U(i):
            with k.group():
                if i == 0: k.wait(tr[7])
                s.tok['U'] = s.udma(i)
        with k.cap() as xs:
            for p in range(1, 4): tk = s.wdma(p, 0, 1024)
            for p in range(1, 4): tv = s.wdma(p, 1, 2048)
            for i in range(16):
                X(i)
                if i >= 5 and i % 2 == 1: RD((i - 5)//2)
            SL(); Q(0); RD(6); Q(1); RD(7); Q(2); Q(3)
            for i in range(6): U(i)
        with k.cap() as pre:
            s.unit()
            if P.get('tlb'):
                n, sh = P['tlb']
                I(f'v_min_u32 v54, {n - 1}, v0\nv_lshlrev_b32 v54, {sh}, v54\ns_lshl_b32 s64, s2, 7\nbuffer_load_dword v21, v54, {WS}, s64 offen offset:1024')
            s.init(); s.finit()
        n, f0, ev = P['sp']
        k.sprinkle(pre, xs[:n], f0, ev); xs = xs[n:]
        s.stamp('init')
        xa, xb, xc, xd = P['xa'], P['xb'], P['xc'], P['xd']
        with k.cap() as f:
            s.fold(); s.rowstats()
            I(f's_lshl_b32 s64, s{sG}, 5\ns_add_u32 s64, s64, s{sRK}\nv_mov_b32 v{vT0}, s{sMARK}\nbuffer_store_byte v{vT0}, v{vL0}, {DS}, s64 offen')
        k.sprinkle(f, xs[:xa], 0, P['xe']); xs = xs[xa:]
        s.stamp('issued')
        with k.cap() as f: s.lbuild(tk, 0, 16, 0)
        k.weave(f, (xs[:xb], 0, 15)); xs = xs[xb:]
        s.stamp('kbuild')
        with k.cap() as f: t = s.lbuild(tv, 1, 0, 1)
        k.weave(f, (xs[:xc], 0, 15)); xs = xs[xc:]
        k.wait(t); I('s_barrier')
        s.stamp('vbuild')
        while any(dl.get(id(x), 99) < 0 for x in xs[xd:]): xd += 1
        k.put(xs[:xd]); xs = xs[xd:]
        assert any(x is s.gSL for x in xs)
        gaps = [min(63, int(i*P['xr'])) for i in range(len(xs))]
        for i in range(len(xs) - 1, -1, -1):
            gaps[i] = min(gaps[i], dl.get(id(xs[i]), 63), max(gaps[i+1] - 1, 0) if i + 1 < len(xs) else 63)
        s.gaps = gaps
        fill = [([it], g, g) for it, g in zip(xs, gaps)]
        with k.cap() as f:
            for i in range(8): I(f'ds_read_b128 {a_(aKP+4*i,4)}, v{vWW} offset:{i*1024}')
        fill.append((f, *P['kp']))
        with k.cap() as f:
            I(f'ds_read_b128 a[28:31], v{vSR} offset:{SUMS[0] - 0x20000}\nds_read_b128 a[32:35], v{vSR} offset:{SUMS[1] - 0x20000}')
            Lb = s.label('S0'); D = s.label('S0D')
            with k.group():
                I(f's_mov_b32 s{sT0+9}, 0\n{Lb}:')
                I(f'v_xor_b32 v53, s{sTAG}, v53\nv_xor_b32 v55, s{sTAG}, v55\nv_xor_b32 v56, s{sTAG}, v56\nv_or3_b32 v53, v53, v55, v56\nv_cmp_ne_u32 vcc, 0, v53\ns_cbranch_vccz {D}')
                with k.cond():
                    I(f'buffer_load_dwordx4 v[52:55], v{vT4}, {WS}, s{sT0+3} offen sc1\nbuffer_load_dword v56, v57, {WS}, s{sT0+5} offen offset:4 sc1\ns_waitcnt vmcnt(0)')
                    I(f's_add_u32 s{sT0+9}, s{sT0+9}, 1\ns_cmp_lt_u32 s{sT0+9}, s{sLIM}\ns_cbranch_scc1 {Lb}\ns_mov_b32 s{sLIM}, 1')
                I(f'{D}:'); k.retire()
            I('v_mul_f32 v52, 0xbb000000, v52\nv_mul_f32 v54, 0x3b000000, v54')
            I('v_cvt_pk_bf16_f32 v53, v52, v52\nv_fma_f32 v54, -v52, v52, v54\nv_and_b32 v55, 0xffff0000, v53\nv_max_f32 v54, 0, v54')
            I(f'v_sub_f32 v55, v52, v55\nv_add_f32 v54, 0x3727c5ac, v54\nv_cvt_pk_bf16_f32 v55, v55, v55\nv_rsq_f32 v{vRSTD}, v54')
            with k.group(): I('v_cmp_gt_u32 vcc, 32, v0\nv_cndmask_b32 v53, v55, v53, vcc')
            I(f'v_mul_f32 v{vC}, s{sLOG2E}, v{vRSTD}')
            for r in range(4): I(f'v_accvgpr_write_b32 a{24+r}, v53')
        fill.append((f, 54, 62))
        return fill

    def wodma(s, L, p0, p1):
        I = s.I; k = s.k; P = s.P; two = None
        with k.cap() as fo:
            for p in range(p0, p1):
                with k.group():
                    if p == p0: I(f'v_lshrrev_b32 v{vT1}, 3, v0\nv_and_b32 v{vT3}, 0x70, v1\nv_lshl_or_b32 v{vT1}, v{vT1}, 10, v{vT3}\nv_add_u32 v{vT3}, 7168, v{vT1}')
                    I(f's_xor_b32 m0, s{sOM}, {hex((p >> 2)*WOX[L] + (p & 3)*2048)}\ns_xor_b32 s{sT0+1}, s{sWO}, {hex(p << 14)}')
                    I(f'buffer_load_dwordx4 v{vT1}, {US}, s{sT0+1} offen {s.md("w", "")} lds')
                    two = I(f'buffer_load_dwordx4 v{vT3}, {US}, s{sT0+1} offen offset:1024 {s.md("w", "")} lds')
                    if p == P['twp'][L]: k.put(s.touches(P['tw'][L], vMK if L else 47))
        return fo, two
    def qkv(s, L):
        I = s.I; k = s.k; P = s.P
        SK, SV, SQ = 0, 1, 2
        bA, bB = L, 1 - L
        aK, aV, aQ = vACC, vACC+16, vACC+32
        def wosrd(): I('s_load_dwordx2 s[84:85], s[0:1], 24\ns_mov_b32 s86, 0x80000\ns_mov_b32 s87, 0x20000')
        if L == 0:
            fill = s.front()
            with k.cap() as s.bw:
                so = s.SO(s, sT0+7)
                for jj, i in [(jj, i) for jj in range(4) for i in range(12)] + [(jj, i) for jj in range(4) for i in (12, 13)]:
                    s.ld(so, a_(aWD(jj, i//2, i % 2), 4), vL16, sWQ + jj, i*1024, s.md('d'))
        else:
            I(f's_lshl_b32 s{sT0+2}, s{sCG}, 12\ns_add_u32 s{sT0+2}, s{sT0+2}, s{sXIN}\ns_add_u32 s{sT0+2}, s{sT0+2}, {hex(bA*0x200000)}')
            s.poll(vFX, sFXC, 0, 2*L)
            s.stamp('x_ok')
            fill = [s.xloads(bA, 2, sT0+2)]
            k.wait(s.tok['K']); I('s_barrier')
            with k.cap() as f:
                I(f'v_and_b32 v{vT4}, 0x1f0, v{vL16}\nv_add_u32 v{vT4}, 0x20000, v{vT4}')
                I(f'ds_read_b128 v[96:99], v{vT4} offset:{SUMS[0] - 0x20000}\nds_read_b128 v[100:103], v{vT4} offset:{SUMS[1] - 0x20000}')
                s.stats(); s.meanop(vMU, vTMP, vTMP+2)
                for r in range(4): I(f'v_mov_b32 v{104+r}, v{vMU}')
                I(f'v_rsq_f32 v{vRSTD}, v{vTMP+1}')
                I(f'v_mul_f32 v{vC}, s{sLOG2E}, v{vRSTD}')
            fill.append((f, 44, 60))
        fill.append((s.touches(P['tk'][L]), P['tkg'][L], 63))
        if L == 0: s.gtile(0)
        else: s.tok[0] = None
        steps = []
        for kc in range(32): steps += [(SV, kc, aV, kc == 0), (SK, kc, aK, kc == 0)]
        base, _ = s.gemm(steps, {P['kf'][L]: (64, [])} if P['kf'][L] else {})
        k.weave(base, *fill)
        if L == 0:
            I(f'v_mfma_f32_32x32x16_bf16 {v(aV,16)}, a[32:35], a[24:27], {v(aV,16)}\nv_mfma_f32_32x32x16_bf16 {v(aK,16)}, a[28:31], a[24:27], {v(aK,16)}')
        else:
            I(f'v_mfma_f32_32x32x16_bf16 {v(aV,16)}, v[100:103], v[104:107], {v(aV,16)}\nv_mfma_f32_32x32x16_bf16 {v(aK,16)}, v[96:99], v[104:107], {v(aK,16)}')
        s.stamp('kv_gemm')
        if L == 0: wosrd()
        wob, kb = vXB + 64, vXB
        fo, two = s.wodma(L, P.get('so1', 0)*L, 8)
        with k.cap() as fx:
            I('v_bfe_u32 v126, v0, 2, 2\nv_lshrrev_b32 v125, 5, v0\nv_lshl_or_b32 v126, v125, 3, v126\nv_bfe_u32 v125, v0, 4, 1\nv_lshl_or_b32 v126, v126, 2, v125')
            I('v_and_b32 v125, 1, v0\nv_lshl_or_b32 v126, v126, 1, v125\nv_bfe_u32 v125, v0, 1, 1\nv_lshl_or_b32 v126, v126, 1, v125')
            with k.group(): I(f's_and_b32 s{sT0+3}, s{sR}, 1\ns_mul_i32 s{sT0+3}, s{sT0+3}, {hex(WOX[L])}\ns_or_b32 s{sT0+3}, s{sT0+3}, s{sM0}\nv_lshl_add_u32 v125, v126, 3, s{sT0+3}')
            I(f'v_xor_b32 v126, {hex(WOX[L])}, v125')
        def otr():
            k.wait(two)
            for kk in range(8):
                for ct in range(2):
                    for r in range(2): t = I(f'ds_read_b64_tr_b16 {v(wob+8*kk+4*ct+2*r,2)}, v{125 + (kk >> 2)} offset:{(kk & 3)*2048 + ct*64 + r*512}')
            return t
        on = P['on'][L]
        with k.cap() as f:
            for r in range(0, 16, 2): I(f'v_pk_mul_f32 {v(aV+r,2)}, {v(aV+r,2)}, {v(vRSTD,2)} op_sel_hi:[1,0]')
            for r in range(8): I(f'v_cvt_pk_bf16_f32 v{aV+r}, v{aV+2*r}, v{aV+2*r+1}')
            I(f'ds_write_b128 v{vPHW}, {v(aV,4)} offset:{4*PS}\nds_write_b128 v{vPHW}, {v(aV+4,4)} offset:{5*PS}')
            tw = []
            s.phi(aK, vACC+32, vACC+48, vTMP, emit=lambda n: tw.append(I(f'ds_write_b128 v{vPHW}, {v(vTMP+4*n,4)} offset:{n*PS}')))
            for r in range(4): I(f'v_mov_b32 v{72+r}, s{sONES}')
        if L == 0:
            assert P['op'] == 0 or P['kf'][0]
            k.sprinkle(f, fo[:P['op']], *P['tp'][1:]); fo = fo[P['op']:]; on -= P['op']
        else:
            s.gtile(1); s.gtile(2)
            assert on == 0 or P['kf'][1]
            k.sprinkle(f, fo[:on], 2, P['oe']); fo = fo[on:]
        k.wait(tw[-1])
        I('s_barrier')
        s.stamp('phik')
        for u in range(4):
            for p in range(2):
                I(f'ds_read_b64_tr_b16 {v(96+4*u+2*p,2)}, v{vTRA} offset:{u*512+p*64}')
            for p in range(2):
                I(f'ds_read_b64_tr_b16 {v(112+4*u+2*p,2)}, v{vTRB} offset:{u*512+p*64}')
        for u in range(4):
            I(f'v_mfma_f32_16x16x32_bf16 v[64:67], {v(96+4*u,4)}, {v(112+4*u,4)}, {"0" if u == 0 else "v[64:67]"}')
            I(f'v_mfma_f32_16x16x32_bf16 v[68:71], v[72:75], {v(96+4*u,4)}, {"0" if u == 0 else "v[68:71]"}')
        I(f's_sub_u32 s{sT0}, s{sKVP}, s{sW}\ns_lshl_b32 s{sT0}, s{sT0}, 9\ns_add_u32 s{sT0}, s{sT0}, {hex(KVP - KVA + L*0x100000)}')
        I(f's_lshl_b32 s{sT0+3}, s{sKVP}, 6\ns_add_u32 s{sT0+3}, s{sT0+3}, {hex(KVZ + L*0x100000)}')
        I('v_cvt_pk_bf16_f32 v112, v64, v65\nv_cvt_pk_bf16_f32 v113, v66, v67\nv_mov_b32 v114, v68')
        I(f'buffer_store_dwordx2 v[112:113], v{vKVW}, {WS}, s{sT0} offen sc1\nbuffer_store_dword v114, v{vFX}, {WS}, s{sT0+3} offen sc1')
        s.stamp('kvpub')
        s.wob = wob; zb = kb + 32; sel = kb + 40
        def kvld(r):
            with k.group():
                if r < 8: I(f's_xor_b32 s{sT0}, s{sKVC}, {hex(L*0x100000 + (3 - r//2)*2048)}\nbuffer_load_dwordx4 {v(kb+4*r,4)}, v{vPUB}, {WS}, s{sT0} offen offset:{256*(r & 1)} {s.md("k")}')
                else: I(f's_lshr_b32 s{sT0}, s{sKVP}, 4\ns_lshl_b32 s{sT0}, s{sT0}, 10\ns_add_u32 s{sT0}, s{sT0}, {hex(KVZ + L*0x100000)}\nbuffer_load_dwordx4 {v(zb,4)}, v{vL16}, {WS}, s{sT0} offen {s.md("k")}')
        with k.cap() as fk:
            for r in P['ko']: kvld(r)
        with k.cap() as fs:
            I(f'v_and_b32 v{sel+8}, 1, v0\nv_lshlrev_b32 v{sel+8}, 4, v{sel+8}\nv_lshlrev_b32 v{sel+8}, v{sel+8}, s{sSELLO}\nv_bfe_u32 v{sel+9}, v0, 1, 3')
            for r in range(8):
                with k.group(): I(f'v_cmp_eq_u32 vcc, {r}, v{sel+9}\nv_cndmask_b32 v{sel+r}, 0, v{sel+8}, vcc')
        assert P['ot'] == (0, 0)
        if L == 0:
            I(f'v_add_u32 v{vWR}, 0x10000, v{vWR}\nv_add_u32 v{vWR+1}, 0x10000, v{vWR+1}\nv_add_u32 v{vWW}, 0x10000, v{vWW}')
            with k.cap() as fa: s.uaddr()
            with k.cap() as f: t = s.lbuild(s.tok['Q0'], SQ, 16, 3)
            k.weave(f, (fa[:8], 0, 2), (fa[8:], 11, 15), (fo[:on], 0, 15)); fo = fo[on:]
            k.wait(t); I('s_barrier')
            s.stamp('qbuild')
            with k.cap() as fu: tu = s.uproc()
            with k.cap() as ff:
                with k.group():
                    if P.get('xs'): s.stamp('ff0')
                    k.wait(tu)
                    if P.get('xs'): s.stamp('ff1')
                    I(f's_barrier\ns_lshl_b32 s{sT0+3}, s2, 8\ns_lshl_b32 s{sT0+4}, s{sW}, 28\ns_add_u32 s{sT0+3}, s{sT0+3}, s{sT0+4}\ns_add_u32 s{sT0+3}, s{sT0+3}, {hex(FU)}')
                    I(f'v_mov_b32 v116, s{sTAG}\nv_lshlrev_b32 v117, 2, v0\nbuffer_store_dword v116, v117, {WS}, s{sT0+3} offen sc1')
            with k.cap() as fy:
                I(f'v_and_b32 v122, 7, v0\nv_min_u32 v127, 2, v122\nv_bfe_u32 v121, v0, 3, 1\nv_mad_u32_u24 v127, v121, 28, v127')
                with k.group(): I(f's_mul_i32 s{sT0+3}, s{sJ}, 7\ns_lshr_b32 s{sT0+3}, s{sT0+3}, 2\nv_add_u32 v127, s{sT0+3}, v127')
                with k.group(): I(f'v_lshl_add_u32 v121, v122, 3, s{sCG}\nv_cmp_lt_u32 vcc, 15, v0\nv_cndmask_b32 v127, v127, v121, vcc')
                with k.group(): I(f's_lshl_b32 s{sT0+3}, s{sW}, 6\nv_add_u32 v127, s{sT0+3}, v127')
                I(f'v_lshlrev_b32 v127, 8, v127')
            if s.stop == 'kv0':
                k.put(fu); k.put(ff); return True
            with k.cap() as f1:
                so = s.SO(s, sT0+2)
                s.ld(so, v(vRES, 4), vNAT, sNAT, 0, srdn=XS); s.ld(so, v(vRES+4, 4), vNAT, sNAT, 64, srdn=XS)
                with k.group(): I(f'v_and_b32 v{vMK}, 28, v{vFX}\ns_lshl_b32 s{sT0+3}, s{sG}, 5\nbuffer_load_dword v{vMK}, v{vMK}, {DS}, s{sT0+3} offen sc1')
                I(f'ds_read_b128 a[28:31], v{vSR} offset:{SUMS[3] - 0x20000}')
            assert P['og'][1] > P['ub']
            fill = [(fu[:8], 0, P['ub']), (fu[8:], P['ub'] + 1, 19), (f1, 27, 30), (fx + fy, 6, 30), (fs, 14, 30), (fo[:P['og'][0]], P['og'][1], 28)]; fo = fo[P['og'][0]:]
        else:
            with k.cap() as f1:
                I(f'v_and_b32 v{vT4}, 0x1f0, v{vL16}\nv_add_u32 v{vT4}, 0x20000, v{vT4}\nds_read_b128 v[64:67], v{vT4} offset:{SUMS[3] - 0x20000}')
                for r in range(4): I(f'v_mov_b32 v{68+r}, v{vMU}')
            fill = [(fo, *P['tb'][1:]), (fk[:P['kn']], P['k0'], 31), (f1 + fx, 10, 28), (fs, 14, 30)]
        base, _ = s.gemm([(SQ, kc, aQ, kc == 0) for kc in range(32)])
        k.weave(base, *fill)
        if L == 0: I(f'v_mfma_f32_32x32x16_bf16 {v(aQ,16)}, a[28:31], a[24:27], {v(aQ,16)}')
        else: I(f'v_mfma_f32_32x32x16_bf16 {v(aQ,16)}, v[64:67], v[68:71], {v(aQ,16)}')
        s.stamp('q_gemm')
        with k.cap() as f: s.phi(aQ, vACC, vACC+16, vTMP)
        if L == 0:
            with k.cap() as f2: k.sprinkle(f, ff, P['fg'], 1)
            with k.cap() as f3: k.sprinkle(f2, fo, *P['oq'][0])
            k.sprinkle(f3, fk, *P['kq'][0])
            I(f's_mul_i32 s{sT0+3}, s{sMARK}, 0x01010101\nv_cmp_ne_u32 vcc, s{sT0+3}, v{vMK}\ns_or_b32 s{sSLOW}, vcc_lo, vcc_hi')
        else: k.sprinkle(f, fk[P['kn']:], *P['kq'][1])
        s.stamp('phiq')
        def fuld(): return I(f's_mov_b32 s{sT0+4}, {hex(FU)}\nbuffer_load_dword v112, v127, {WS}, s{sT0+4} offen sc1')
        if L == 0 and P['fup'] == 0: fuld()
        if P['ot'][L] == 0: tot = otr()
        MK = [76] + list(range(88, 102, 2))
        Lb = s.label('KV'); D = s.label('KVD')
        I(f's_mov_b32 s{sT0+9}, 0')
        I(f'{Lb}:')
        first = True
        for r in P['ko']:
            if r < 8:
                I(f'v_mfma_f32_16x16x32_bf16 v[64:67], {v(sel+4*(r & 1),4)}, {v(kb+4*r,4)}, {"0" if first else "v[64:67]"}'); first = False
            else:
                I(f'v_permlane32_swap_b32 v{zb}, v{zb+1}\nv_permlane32_swap_b32 v{zb+2}, v{zb+3}\nv_add_f32 v68, v{zb}, v{zb+1}\nv_add_f32 v69, v{zb+2}, v{zb+3}')
                I('v_permlane16_swap_b32 v68, v69\nv_add_f32 v68, v68, v69')
                for n in (4, 8): I(f'v_add_f32_dpp v68, v68, v68 row_ror:{n} row_mask:0xf bank_mask:0xf')
        I(f'v_add_f32 v69, v68, v64\nv_cmp_u_f32 vcc, v69, v66\ns_cbranch_vccz {D}')
        with k.cond():
            kvld(8)
            for r in range(8):
                I(f'v_max3_u32 v69, v{kb+4*r}, v{kb+4*r+1}, v{kb+4*r+2}\nv_max_u32 v69, v69, v{kb+4*r+3}\nv_cmp_eq_u32 {s_(MK[r],2)}, -1, v69')
            for r in range(8):
                I(f's_mov_b64 exec, {s_(MK[r],2)}'); kvld(r)
            I('s_mov_b64 exec, -1\ns_waitcnt vmcnt(0)')
            I(f's_add_u32 s{sT0+9}, s{sT0+9}, 1\ns_cmp_lt_u32 s{sT0+9}, s{sLIM}\ns_cbranch_scc1 {Lb}\ns_mov_b32 s{sLIM}, 1')
        I(f'{D}:')
        k.retire()
        s.stamp('kv_ok')
        if L == 0 and P['fup']: fuld()
        if L:
            if P['ot'][L] == 0: k.wait(tot)
            k.put(s.take(P['t1'][L] if P['ot'][L] == 0 else min(8, P['t1'][L])))
        I('v_cvt_pk_bf16_f32 v70, v64, v65\nv_cvt_pk_bf16_f32 v71, v66, v67\nv_cvt_pk_bf16_f32 v68, v68, v68')
        I(f'ds_write_b64 v{vKVW}, v[70:71]')
        t = I(f'ds_write_b16 v{vZW}, v68')
        k.wait(t); I('s_barrier')
        aRING = s.ring
        for n in range(4):
            I(f'ds_read_b128 {a_(aRING+8*n,4)}, v{vZR} offset:{n*16}\nds_read_b128 {a_(aRING+8*n+4,4)}, v{vKVR} offset:{n*256}')
        for n in range(4):
            I(f'v_mfma_f32_32x32x16_bf16 v[80:95], {a_(aRING+8*n,4)}, {v(vTMP+4*n,4)}, {"0" if n == 0 else "v[80:95]"}')
        for n in range(4):
            I(f'v_mfma_f32_32x32x16_bf16 v[64:79], {a_(aRING+8*n+4,4)}, {v(vTMP+4*n,4)}, {"0" if n == 0 else "v[64:79]"}')
        I('v_add_f32 v80, 0x358637bd, v80\nv_add_f32 v88, 0x358637bd, v88\nv_rcp_f32 v80, v80\nv_rcp_f32 v88, v88')
        so = s.SO(s, sT0)
        I(f's_lshl_b32 s{sT0+3}, s{sJ}, 11\ns_add_u32 s{sT0+3}, s{sT0+3}, s{sXIN}')
        for c in range(2):
            for r in range(0, 8, 2): I(f'v_pk_mul_f32 {v(64+8*c+r,2)}, {v(64+8*c+r,2)}, {v(80+8*c,2)} op_sel_hi:[1,0]')
            for r in range(4): I(f'v_cvt_pk_bf16_f32 v{96+4*c+r}, v{64+8*c+2*r}, v{64+8*c+2*r+1}')
            t = s.pub(s.ld(so, v(96+4*c, 4), vL16, sT0+3, bB*0x200000 + c*1024, op='buffer_store_dwordx4'))
        k.wait(t)
        s.flag(sFOP, 0, L + 1)
        s.stamp('opub')
        if L == 0:
            Lb = s.label('FU'); D = s.label('FUD')
            I(f's_mov_b32 s{sT0+9}, 0\n{Lb}:\nv_cmp_ne_u32 vcc, s{sTAG}, v112\ns_cbranch_vccz {D}')
            with k.cond():
                fuld(); I('s_waitcnt vmcnt(0)')
                I(f's_add_u32 s{sT0+9}, s{sT0+9}, 1\ns_cmp_lt_u32 s{sT0+9}, s{sLIM}\ns_cbranch_scc1 {Lb}\ns_mov_b32 s{sLIM}, 1')
            I(f'{D}:')
            k.retire()
            s.stamp('fu_ok')
            I(f's_lshr_b32 s{sT0}, s{sRK}, 3' + ('' if s.P['ws'] == 1 else f'\ns_xor_b32 s{sT0}, s{sT0}, s{sCG}\ns_and_b32 s{sT0}, s{sT0}, {3 if s.P["ws"] else 0}'))
            for q in range(4):
                I(f's_xor_b32 s{sT0+2}, s{sT0}, {q}\ns_mul_i32 s{sT0+2}, s{sT0+2}, 7168\ns_add_u32 s{sHQ+q}, s{sHIN}, s{sT0+2}\ns_lshl1_add_u32 s{sWQ+q}, s{sT0+2}, s{sWD}')
        if P['ot'][L]: tot = otr()
        k.wait(tot)
        k.put(s.take(P['t2'][L]))
        k.put(s.takew(P['w2']))
        k.put(s.touches(P['to'][L]))
        return s.stop == f'o{L}'

    def red_write(s, slot, rt2, ct):
        I = s.I; a = vACC + 32*rt2 + 16*ct; t = None
        for h in range(2):
            for r in range(4): I(f'v_cvt_pk_bf16_f32 v{a+8*h+r}, v{a+8*h+2*r}, v{a+8*h+2*r+1}')
            t = I(f'ds_write_b128 v{vT1}, {v(a+8*h,4)} offset:{rt2*16384 + (2*ct+h)*512}')
        return t
    def red_finish(s, slot, scale, L, buf, p, final, pre, after=None, idle=None):
        I = s.I; k = s.k; rb = vXB + 64
        I(f's_add_u32 s{sT0+3}, s{sM0}, {hex(slot*0x8000)}\nv_add_u32 v{vT0}, s{sT0+3}, v{vL16}')
        k.wait(*pre); I('s_barrier')
        if scale: I(f'ds_read_b32 v{vT2}, v{vRSR}')
        t = None
        for c in range(2):
            for src in range(4): t = I(f'ds_read_b128 {v(rb+16*c+4*src,4)}, v{vT0} offset:{src*2048 + c*1024}')
        so = s.SO(s, sT0)
        for c in range(2):
            for src in range(4):
                for e in range(8):
                    d = (vACC if scale else vRES) + 8*c + e
                    I(f'v_dot2_f32_bf16 v{d}, v{rb+16*c+4*src+e//2}, s{sSELHI if e & 1 else sSELLO}, {"0" if scale and src == 0 else v(d)}')
            if scale:
                for e in range(0, 8, 2): I(f'v_pk_fma_f32 {v(vRES+8*c+e,2)}, {v(vACC+8*c+e,2)}, {v(vT2,2)}, {v(vRES+8*c+e,2)} op_sel_hi:[1,0,1]')
            for r in range(4): I(f'v_cvt_pk_bf16_f32 v{vTMP+4*c+r}, v{vRES+8*c+2*r}, v{vRES+8*c+2*r+1}')
            if final: s.ld(so, v(vTMP+4*c, 4), vNAT, sNAT, 64*c, s.P['om'], op='buffer_store_dwordx4', srdn=OS)
            else: s.pub(s.ld(so, v(vTMP+4*c, 4), vPUB, sXPUB, buf*0x200000 + 2048*c, op='buffer_store_dwordx4'))
        if final: return
        for r in range(8):
            I(f'v_dot2_f32_bf16 v{vT2}, v{vTMP+r}, s{sONES}, {"0" if r == 0 else v(vT2)}')
            I(f'v_dot2_f32_bf16 v{vT3}, v{vTMP+r}, v{vTMP+r}, {"0" if r == 0 else v(vT3)}')
        I(f'v_permlane32_swap_b32 v{vT2}, v{vT3}\nv_add_f32 v{vT2}, v{vT2}, v{vT3}\nv_mov_b32 v{vT3}, v{vT2}')
        I(f'v_permlane16_swap_b32 v{vT2}, v{vT3}\nv_add_f32 v{vT2}, v{vT2}, v{vT3}')
        t2 = s.pub(s.ld(so, v(vT2), vSTW, sSTPUB, buf*0x20000, op='buffer_store_dword'))
        if idle: idle()
        k.wait(t2)
        s.flag(sFXP, 0, p)
        if after: after()

    def wo(s, L):
        I = s.I; k = s.k
        SQ = 3 - L; bA, bB = L, 1 - L
        I(f'v_add_u32 v{vT1}, {hex(SQ*0x8000)}, v{vREDW}')
        if L == 0:
            for i in range(7, -1, -1): I(f'v_and_b32 v{vRES+2*i+1}, 0xffff0000, v{vRES+i}\nv_lshlrev_b32 v{vRES+2*i}, 16, v{vRES+i}')
        s.poll(vFO, sFOC, 0, L + 1)
        s.stamp('o_ok')
        so = s.SO(s, sT0); wob = s.wob; ob = 2*vXB + 64 - wob
        with k.cap() as fl:
            for rt2 in range(2):
                for kk in range(8): s.ld(so, v(ob + 32*rt2 + 4*kk, 4), vL16, sXO, bB*0x200000 + rt2*0x8000 + kk*1024, 'sc1')
        k.put(fl[:8])
        with k.cap() as base:
            for rt2 in range(2):
                for kk in range(8):
                    for ct in range(2):
                        a = vACC + 32*rt2 + 16*ct
                        I(f'v_mfma_f32_32x32x16_bf16 {v(a,16)}, {v(wob+8*kk+4*ct,4)}, {v(ob+32*rt2+4*kk,4)}, {"0" if kk == 0 else v(a,16)}')
        with k.cap() as f1:
            s.red_write(SQ, 0, 0); s.red_write(SQ, 0, 1)
        k.weave(base, (fl[8:], 0, 15), (s.take(s.P['t3'][L]) + s.takew(s.P['w3']), 18, 31), (f1, 19, 30))
        s.red_write(SQ, 1, 0); t = s.red_write(SQ, 1, 1)
        s.stamp('wo_gemm')
        def after():
            if L == 0:
                I(f's_mul_i32 s{sT0+3}, s{sJ}, 896\ns_lshl_b32 s{sT0+4}, s{sW}, 8\ns_add_u32 s{sT0+3}, s{sT0+3}, s{sT0+4}\nv_lshlrev_b32 v{vT2}, 2, v0')
                for q in range(4):
                    I(f's_add_u32 s{sT0+3}, s{sT0+3}, {hex(CS if q == 0 else 14336)}\nbuffer_load_dword v{56+q}, v{vT2}, {WS}, s{sT0+3} offen sc1')
            assert s.gslot(L, 1 + 2*L) == SQ; s.gtile(1 + 2*L)
            k.put(s.take(s.P['t4'][L])); k.put(s.takew(s.P['w4']))
        s.red_finish(SQ, False, L, bA, 2*L + 1, False, [t], after)
        s.stamp('x1pub')
        return s.stop == f'x{2*L+1}'

    def gu_epi(s, L, t):
        I = s.I; a = vACC + 16*(t % 4)
        for r in range(8): I(f'v_max_f32 v{a+r}, 0, v{a+r}')
        for r in range(8): I(f'v_mul_f32 v{a+r}, v{a+r}, v{a+8+r}')
        for r in range(4): I(f'v_cvt_pk_bf16_f32 v{a+8+r}, v{a+2*r}, v{a+2*r+1}')
        if s.P['hm'][L]: return s.ld(s.soH, v(a+8, 4), vL16, sHPUB, ORD[L][t]*1024, s.P['hm'][L], op='buffer_store_dwordx4')
        return s.pub(s.ld(s.soH, v(a+8, 4), vL16, sHPUB, ORD[L][t]*1024, op='buffer_store_dwordx4'))
    def gslot(s, L, t): return (3, 0, 1, 2)[t % 4] if L else (0, 3)[t % 2]
    def gtile(s, t): s.bg_tile(t, sGU, ORD[s.L][t]*0x8000, s.gslot(s.L, t))
    def gu(s, L):
        I = s.I; k = s.k; P = s.P
        slot = lambda t: s.gslot(L, t)
        bA = L; n1 = P['n1'][L]; ns = 2 + 2*L; E1 = 32*n1; EM = max(E1, 64)
        acc = lambda t: vACC + 16*(t % 4)
        s.poll(vFX, sFXC, 0, 2*L + 1)
        s.stamp('x1_ok')
        fill = [s.xloads(bA, n1)]
        k.wait(*[s.tok[t] for t in range(n1)]); I('s_barrier')
        fill.append((s.take(99), E1*5//8, E1 - 4))
        for names, g in P['tg'][L]: fill.append((s.touches(names), g, g + len(names) - 1))
        tcs = []
        if L == 0:
            with k.cap() as f:
                I(f'v_add_f32 v56, v56, v57\nv_add_f32 v58, v58, v59\nv_add_f32 v56, v56, v58')
                I('v_cvt_pk_bf16_f32 v57, v56, v56\nv_and_b32 v57, 0xffff0000, v57\nv_sub_f32 v57, v56, v57\nv_cvt_pk_bf16_f32 v57, v56, v57')
                with k.group(): I(f's_lshl_b32 s{sT0+3}, s{sW}, 8\ns_add_u32 s{sT0+3}, s{sT0+3}, {hex(WPH)}\nv_add_u32 v{vT2}, s{sT0+3}, v{vT2}')
                tcs.append(I(f'ds_write_b32 v{vT2}, v57'))
            fill.append((f, 24, 36))
        with k.cap() as f:
            s.stats(); s.meanop(60, vTMP, vTMP+2)
            I(f'v_rcp_f32 v{vRSTD}, v{vTMP+1}')
            I(f'v_mov_b32 v61, 0\nv_mov_b32 v62, 0\nv_mov_b32 v63, 0\nv_and_b32 v{vT2}, 31, v0\nv_lshlrev_b32 v{vT2}, 2, v{vT2}\nv_add_u32 v{vT2}, {hex(WPH)}, v{vT2}')
            s.tRS = I(f'ds_write_b32 v{vRSW}, v{vRSTD}')
        fill.append((f, EM - 27, EM - 5))
        steps = []
        for kc in range(32): steps += [(slot(t), kc, acc(t), kc == 0) for t in range(n1)]
        for t in range(n1, 7): steps += [(slot(t), kc, acc(t), kc == 0) for kc in range(32)]
        fences = {32*t - 4: (32*t, tcs if 32*t == EM else []) for t in range(n1, 7)}
        bub = n1 == ns; g = 0; dm = {}
        for t in range(n1, 7):
            if t >= ns:
                s.gtile(t); dm[t] = s.take(8)
                g = max(g, max(32*(t - ns + 1), E1) - 3)
                if bub and t == ns: fill.append((dm[t], g, g + 2))
                elif not (bub and t == ns + 1): fill.append((dm[t], g, g + P['dl'][L])); g += P['dl'][L] + 1
            if bub and t == ns: fences[32*t - 1] = (32*t, [s.tok[t]])
            else: fences[32*t - 4] = (32*t, fences[32*t - 4][1] + [s.tok[t]])
        s.soH = s.SO(s, sT0+4)
        th = {}; fb = []; ge = 0
        for t in range(7):
            r = 56 + 2*(t == 1); early = 32*t < EM
            with k.cap() as f:
                if t < 2: I(f'ds_read2_b32 {v(r,2)}, v{vT2} offset0:{32*ORD[L][t]} offset1:{32*ORD[L][t]}')
                else: I(f'ds_read_b32 v{r}, v{vT2} offset:{128*ORD[L][t]}')
                with k.group(): I(f'v_mfma_f32_32x32x16_bf16 {v(acc(t),16)}, {v(r,4)}, v[60:63], {v(acc(t),16)}')
            gm = (EM, EM + 1, EM + 5)[t] if early else 32*t + 24
            gr = EM - 3 if t < 2 else gm - 4
            fill.append(([f[0]], gr, gr))
            if bub and early: fb.insert(t, f[1])
            else: fill.append(([f[1]], gm, gm))
            if t < 6:
                with k.cap() as f: th[t] = s.gu_epi(L, t)
                ge = max(ge, (EM if early else 32*t + 32) + 4)
                if bub and early: fb += f
                else: fill.append((f, ge, ge + 9 + (not early))); ge += 10
        if bub:
            with k.cap() as f: k.sprinkle(fb, dm[ns + 1], 1, 5)
            fill.append((f, E1 - 1, E1 - 1))
        if L == 0:
            for n, g0, g1 in P['wl']: fill.append((s.takew(min(n, len(s.bw) - 8)), g0, g1))
            assert len(s.bw) == 8
        base, last = s.gemm(steps, fences)
        ne, e0, e1 = s.P['he'][L]; g4, gp, gc, g6 = s.P['hg'][L]
        s.hso = [s.SO(s, sT0), s.SO(s, sT0+2)]
        with k.cap() as f:
            with k.group():
                I(f's_add_u32 s{sT0+5}, s{sFOP}, {hex(FH - FO)}\ns_add_u32 s{sT0+6}, s{sFOC}, {hex(FH - FO)}')
                if ne: k.wait(th[3]); s.flag(sT0+5, 0, 7*L + 4)
            with k.group(): k.wait(th[5]); s.flag(sT0+5, 0, 7*L + 6)
            if ne:
                s.hpoll(); s.hcheck(7*L + 4)
                for i in range(ne): s.hld(i)
        for g, t0, t1 in s.P['ht'][L]:
            if g < 224:
                with k.cap() as ft: s.htouch(th[t1], t0, t1)
                fill.append((ft, g, g))
        fill.append((f[:1], g4, g4))
        if ne:
            assert all(e0 + (i*(e1 - e0 + 1))//ne >= 192 + i for i in range(ne)) and e0 >= gc > gp > g4
            fill += [(f[2:3], gp, gp), (f[3:4], gc, gc), (f[4:], e0, e1)]
        if g6 < 224: fill.append((f[1:2], g6, g6))
        k.weave(base, *fill)
        k.wait(last); I('s_barrier')
        s.th6 = s.gu_epi(L, 6)
        if g6 >= 224: k.put(f[1:2])
        s.stamp('gu')
        return s.stop == f'h{L}'

    horder = [(t, jj, rt2) for t in range(7) for jj in range(4) for rt2 in range(2)]
    def hld(s, i):
        t, jj, rt2 = s.horder[i]
        s.ld(s.hso[rt2], v(vXB + 4*(i % 32), 4), vL16, sHQ + jj, rt2*112*1024 + ORD[s.L][t]*1024, s.md('h'))
    def htouch(s, tok, t0, t1):
        with s.k.group():
            s.k.wait(tok)
            s.I(f'v_min_u32 v{vT3}, {8*(t1 - t0) + 7}, v0\nv_add_lshl_u32 v{vT3}, v{vT3}, {8*t0}, 7\nbuffer_load_dword v21, v{vT3}, {WS}, s{sHPUB} offen sc1')
    def hpoll(s): s.I(f'buffer_load_dword v{vT0}, v{vFO}, {WS}, s{sT0+6} offen sc1')
    def hcheck(s, p):
        D = s.label('HC')
        with s.k.group():
            s.check(vT0, p)
            s.I(f's_cbranch_vccz {D}')
            with s.k.cond(): s.poll(vFO, sT0+6, 0, p)
            s.I(f'{D}:')
    def down(s, L):
        I = s.I; k = s.k
        SR = s.gslot(L, 6); bB = 1 - L
        I(f'v_add_u32 v{vT1}, {hex(SR*0x8000)}, v{vREDW}')
        ne = s.P['he'][L][0]; p6, p7 = s.P['hp'][L]
        if not ne:
            s.poll(vFO, sT0+6, 0, 7*L + 6)
            s.flag(sT0+5, 0, 7*L + 7)
            s.stamp('h_ok')
        n = max(s.P['hf'], ne); hld = s.hld
        assert ne + n <= 48 and 32 < p7 < 48 and (not ne or n <= p6 < 32)
        for i in range(ne, n): hld(i)
        for i, (t, jj, rt2) in enumerate(s.horder):
            for ct in range(2):
                a = vACC + 32*rt2 + 16*ct
                I(f'v_mfma_f32_32x32x16_bf16 {v(a,16)}, {a_(aWD(jj, ORD[L][t], ct),4)}, {v(vXB+4*(i%32),4)}, {"0" if i < 2 else v(a,16)}')
            if ne and i == ne:
                k.wait(s.th6); s.flag(sT0+5, 0, 7*L + 7)
                for g, t0, t1 in s.P['ht'][L]:
                    if g >= 224: s.htouch(s.th6, t0, t1)
            if i + n == p7 or ne and i + n == p6: s.hpoll()
            if ne and i + n == 32: s.hcheck(7*L + 6)
            if i + n == 48: s.hcheck(7*L + 7)
            if i + n < 56: hld(i + n)
            if L == 0:
                w0, w1 = s.P['wd']; assert w0 + 7*w1 < 47
                if i >= w0 and (i - w0) % w1 == 0: k.put(s.takew(1))
        for rt2 in range(2):
            for ct in range(2): t = s.red_write(SR, rt2, ct)
        s.stamp('dn_gemm')
        def after():
            for i in range(8): s.tok['K'] = I(f'ds_write_b128 v{vT0}, {a_(aKP + 4*i, 4)} offset:{i*1024}')
        s.red_finish(SR, True, L, bB, 2*L + 2, L == 1, [t, s.tRS], None, after)
        s.stamp('x2pub')
        return s.stop == f'x{2*L+2}'

    def gen(s):
        I = s.I
        for L in range(2):
            s.L = L; s.ring = 192 + 32*L
            if s.qkv(L) or s.wo(L) or s.gu(L) or s.down(L): break
        I(f's_or_b32 s64, s{sR}, s{sJ}\ns_or_b32 s64, s64, s{sW}\ns_cmp_lg_u32 s64, 0\ns_cbranch_scc1 M_FIN')
        with s.k.cond():
            I(f's_add_u32 s64, s{sE}, 1\nv_mov_b32 v{vT5}, s64\nbuffer_store_dword v{vT5}, v{vL0}, {WS}, 0 offen')
        I('M_FIN:')
        if s.ts:
            s.stamp('end')
            I('s_memrealtime s[78:79]\ns_waitcnt lgkmcnt(0)\nv_writelane_b32 v23, s78, 61')
            I(f'v_writelane_b32 v23, s{sLIM}, 62\nv_writelane_b32 v23, s{sSLOW}, 63')
            I(f's_lshl_b32 s64, s{sR}, 4\ns_add_u32 s64, s64, s{sJ}\ns_lshl_b32 s64, s64, 2\ns_add_u32 s64, s64, s{sW}\ns_lshl_b32 s64, s64, 8\ns_add_u32 s64, s64, {hex(TS)}')
            I(f'v_lshlrev_b32 v{vT0}, 2, v0\nbuffer_store_dword v23, v{vT0}, {WS}, s64 offen sc1')
        if s.P.get('wb'): I('s_waitcnt vmcnt(0)\nbuffer_wbl2 sc1\ns_waitcnt vmcnt(0)')
        if s.P.get('dbg'):
            I(f's_cmp_lg_u32 s2, {s.P.get("dwg", 0)}\ns_cbranch_scc1 DB_END\ns_cmp_lg_u32 s{sW}, 0\ns_cbranch_scc1 DB_END')
            with s.k.cond():
                I('v_readlane_b32 s65, v23, 0\nv_mov_b32 v24, 0')
                for n, i in enumerate(s.P['dbg']): I(f'v_readlane_b32 s66, v23, {i}\ns_sub_u32 s66, s66, s65\nv_writelane_b32 v24, s66, {n}')
                I(f'v_lshlrev_b32 v25, 2, v0\nbuffer_store_dword v24, v25, {DS}, 0 offen')
            I('DB_END:')
        dg = s.P.get('diag')
        if dg is not None:
            I(f's_cmp_lg_u32 s2, {s.P.get("dwg", 0)}\ns_cbranch_scc1 DG_END\ns_cmp_lg_u32 s{sW}, 0\ns_cbranch_scc1 DG_END')
            with s.k.cond():
                I('v_readlane_b32 s64, v23, 60\ns_add_u32 s64, s64, 10000')
                if dg == 'rt': I('v_readlane_b32 s65, v23, 60\nv_readlane_b32 s66, v23, 61\ns_sub_u32 s66, s66, s65\ns_lshl_b32 s66, s66, 2\ns_add_u32 s64, s64, s66')
                elif dg:
                    i = [n for n, nm in enumerate(s.tsnames) if nm == dg[0]][dg[1]]
                    I(f'v_readlane_b32 s65, v23, 0\nv_readlane_b32 s66, v23, {i}\ns_sub_u32 s66, s66, s65\ns_lshr_b32 s66, s66, 2\ns_min_u32 s66, s66, 100000\ns_add_u32 s64, s64, s66')
                gs = s.P.get('gstat')
                if gs:
                    i = 60 if gs[0] == 'start' else [n for n, nm in enumerate(s.tsnames) if nm == gs[0]][gs[1]]
                    I('s_sub_u32 s68, s64, 2500\ns_mov_b32 s67, 0\nDG_W:\ns_memrealtime s[78:79]\ns_waitcnt lgkmcnt(0)\ns_sub_u32 s66, s78, s68\ns_cmp_lt_u32 s66, 0x80000000\ns_cbranch_scc1 DG_W2')
                    I('s_add_u32 s67, s67, 1\ns_cmp_lt_u32 s67, 200000\ns_cbranch_scc1 DG_W\nDG_W2:')
                    I(f'v_lshlrev_b32 v25, 10, v0\nv_readlane_b32 s65, v23, 60')
                    for q in range(4):
                        I(f's_mov_b32 s66, {hex(TS + q*65536)}\nbuffer_load_dword v{32+q}, v25, {WS}, s66 offen offset:240 sc1\nbuffer_load_dword v{36+q}, v25, {WS}, s66 offen offset:{4*i} sc1')
                    I('s_waitcnt vmcnt(0)')
                    for q in range(8): I(f'v_subrev_u32 v{32+q}, s65, v{32+q}')
                    op = {'max': 'max_i32', 'min': 'min_i32', 'mean': 'add_u32'}[gs[2]]
                    for q in range(1, 4): I(f'v_min_i32 v32, v32, v{32+q}\nv_{op} v36, v36, v{36+q}')
                    I('v_readlane_b32 s68, v32, 0\nv_readlane_b32 s69, v36, 0\ns_mov_b32 s67, 1\nDG_R:\ns_nop 4\nv_readlane_b32 s70, v32, s67\nv_readlane_b32 s71, v36, s67\ns_nop 4')
                    I(f's_min_i32 s68, s68, s70\ns_{op} s69, s69, s71\ns_add_u32 s67, s67, 1\ns_cmp_lt_u32 s67, 64\ns_cbranch_scc1 DG_R')
                    if gs[2] == 'mean': I('s_ashr_i32 s69, s69, 8')
                    I('s_sub_u32 s69, s69, s68\ns_lshl_b32 s69, s69, 2\ns_min_u32 s69, s69, 100000\ns_add_u32 s64, s64, s69')
                I('s_mov_b32 s67, 0\nDG_L:\ns_memrealtime s[78:79]\ns_waitcnt lgkmcnt(0)\ns_sub_u32 s66, s78, s64\ns_cmp_lt_u32 s66, 0x80000000\ns_cbranch_scc1 DG_END')
                I('s_add_u32 s67, s67, 1\ns_cmp_lt_u32 s67, 200000\ns_cbranch_scc1 DG_L')
            I('DG_END:')
        I('s_waitcnt vmcnt(0)\nM_END:\ns_endpgm')
        return s.k

HEADER = open('cdna_kernels/' + NAME + '.s.ref').read().split('; Override')[0] if __name__ == '__main__' else ''

def build(stop=None, ts=False, header='', **kw):
    st = {}
    m = Main(stop, ts, **kw)
    main = m.gen().finish(st)
    txt = header
    ls = kw.get('lst', 0)
    if ls == 2: txt += '; @launch kernel=pre_kernel grid=(256,1,1) block=(64,1,1) lds=0\n'
    txt += f'; @launch {"kernel=" + NAME + "_kernel " if ls else ""}grid=(256,1,1) block=(256,1,1) lds={LDS_MAIN}\n'
    if ls == 3: txt += '; @launch kernel=pre_kernel grid=(256,1,1) block=(64,1,1) lds=0\n'
    txt += '.amdgcn_target "amdgcn-amd-amdhsa--gfx950"\n.text\n'
    if ls > 1: txt += head('pre_kernel') + 's_endpgm\n' + kd('pre_kernel', 8, 8, 16)
    txt += head(NAME + '_kernel') + main + '\nCODE_END:\n'
    txt += kd(NAME + '_kernel', 512, 256)
    return txt, (st, m.tsnames)

if __name__ == '__main__':
    txt, st = build(header=HEADER)
    out = sys.argv[1] if len(sys.argv) > 1 else 'cdna_kernels/' + NAME + '.s'
    open(out, 'w').write(txt); print(st, len(txt))
```

```python
import sys, contextlib
from asm import Asm, Ins
NAME = 'interleave_layers__linear_kernel_hedgehog__glu_gated_reglu__prompt'

FX, FO, FH, FU, S0 = 0x2000, 0x4000, 0x6000, 0x30000, 0x10000
CS = 0x20000
ST = 0x40000
XB = (0x200000, 0x400000)
KVP = 0x600000
KVZ = 0x680000
HB = 0x800000
WQKV, WO_P, WD_P, WGU = 0x1000000, 0x1180000, 0x1200000, 0x1400000
TS = 0x2000000
WS_SIZE = 0x10000000
OOB = 0x7ffffff0
XA = 0x20000; PS = 2112
KVA = 0x26400; ZA = 0x26C00; ZERO = 0x26D00; RS = 0x27100
SUMS = (0x27400, 0x27600, 0x27C00, 0x27E00); WPH = 0x27800
LDS_MAIN = 163840

def v(a, n=1): return f'v{a}' if n == 1 else f'v[{a}:{a+n-1}]'
def a_(a, n=1): return f'a{a}' if n == 1 else f'a[{a}:{a+n-1}]'
def s_(a, n=1): return f's{a}' if n == 1 else f's[{a}:{a+n-1}]'

def kd(name, vgpr, acc, sgpr=102):
    return f'''.section .rodata,"a"
.p2align 6
.amdhsa_kernel {name}
  .amdhsa_next_free_vgpr {vgpr}
  .amdhsa_next_free_sgpr {sgpr}
  .amdhsa_accum_offset {acc}
  .amdhsa_group_segment_fixed_size 0
  .amdhsa_kernarg_size 88
  .amdhsa_user_sgpr_count 2
  .amdhsa_user_sgpr_kernarg_segment_ptr 1
  .amdhsa_system_sgpr_workgroup_id_x 1
.end_amdhsa_kernel
.text
'''
def head(name):
    return f'.globl {name}\n.p2align 8\n.type {name},@function\n{name}:\n'

def srd(I, d, b, size):
    I(f's_mov_b32 s{d}, s{b}\ns_mov_b32 s{d+1}, s{b+1}\ns_mov_b32 s{d+2}, {hex(size)}\ns_mov_b32 s{d+3}, 0x20000')

WS, XS, OS, DS = 's[8:11]', 's[12:15]', 's[16:19]', 's[20:23]'
sW, sG, sRK, sR, sJ, sHB, sCG, sTAG, sE, sLIM = 24, 25, 26, 27, 28, 29, 30, 31, 32, 33
sQKV, sGU, sWO, sWD = 34, 35, 36, 37
sXIN, sXO, sXPUB, sSTIN, sSTPUB = 38, 39, 40, 41, 42
sHPUB, sHIN, sFXC, sFXP, sFOC, sFOP, sKVP, sKVC, sNAT, sM0 = 43, 44, 45, 46, 47, 48, 49, 50, 51, 52
sSELLO, sSELHI, sONES, sLOG2E, sOM, sSLOW, sMARK = 53, 54, 55, 56, 57, 58, 59
sT0 = 60
QS, US, PS_, DS2, CSRD = 's[80:83]', 's[84:87]', 's[88:91]', 's[72:75]', 's[4:7]'
sPO, sWM, sXB, sXM, sUB, sUST, sUD = 92, 96, 97, 98, 99, 100, 101
sHQ, sWQ = 72, 80
sUKC, sUCS, sUB2, sUD2 = 76, 77, 88, 89
vW0, vX0, vU0, vWR, vXR, vSW, vSR, vWW = 32, 34, 36, 38, 40, 44, 45, 46
vUR, vUD = 40, 42
vMU, vMK = 20, 22
vROW = 240
vL, vL16, vL16b, vFX, vFO, vL0, vSTL, vPUB, vPHW, vTRA, vTRB, vKVW, vZW, vKVR, vZR, vREDW, vNAT, vSTW, vRSW, vRSR = range(20)
vRSTD, vC, vT0, vT1, vT2, vT3, vT4, vT5 = range(24, 32)
vRES = 32; vTMP = 48; vACC = 64; vXB = 128; aKP = 224
def aWD(jj, t, ct): return 4*((12*jj + 2*t if t < 6 else 48 + 2*jj) + ct)

P0 = dict(xf=8, hf=10, uf='nt', xnt='nt', rnt='nt', ct=1, k0=20, kn=3, ko=range(9),
          sp=(0, 0, 1), xa=6, xe=8, tp=('', 20, 30), xb=4, xc=4, xd=1, xr=3.0, ug=0, kq=((2, 12), (2, 12)), fg=110, fup=1, sl=12, oq=((0, 6), (0, 12)), ot=(0, 0), on=(4, 0), oe=35, og=(4, 9), tw=('Xf', ''), twp=(1, 1),
          t1=(0, 6), t2=(4, 4), t3=(4, 6), t4=(8, 4), late=(1, 1), w2=0, w3=8, w4=2, n1=(2, 2), ub=7, h0=1, f7=(17, 17), bi=(40, 40), fb=0, o1=(5, 4, 6, 3, 2, 1, 0), fd=((71, 88), (89, 106), (121, 150)), tr=(40, 60), tl=1, t1l=3, wa=0, kf=(0, 0), ta=0, tb=(0, 0, 24), op=0, wd=(10, 5), kw=(8, 4), kp=(2, 16),
          wl=((8, 44, 60), (11, 64, 92), (7, 108, 124), (7, 140, 156), (7, 172, 188)), dl=(14, 31),
          he=((12, 201, 223), (12, 201, 223)), hg=((175, 188, 200, 219), (175, 188, 200, 219)), hp=((22, 38), (22, 38)), ht=((), ()), ws=0, tk=('', 'xf'), tkg=(59, 60), hm=('sc1', 'sc1'), om='', nt=('', ''), tg=((('XSf', 190),), (('f', 190),)), to=('xs', ''))
WOX = (0x18000, 0x8000)
class Main:
    def __init__(s, stop=None, ts=False, **kw):
        s.k = Asm(); s.I = s.k.I; s.stop = stop; s.ts = ts; s.nl = 0; s.nts = 0; s.tsnames = []; s.bg = []; s.m0dirty = False; s.bw = []; s.tok = {}; s.P = dict(P0); s.P.update(kw)
    def md(s, key, d='sc1'): return d + (' nt' if str(key) in s.P['nt'][s.L] else '')
    def label(s, p):
        s.nl += 1; return f'{p}_{s.nl}'
    def stamp(s, name):
        if not s.ts or s.ts == 2 and name != 'end' or name in s.P.get('nos', ()): return
        r = 80 + 2*(s.nts % 10)
        s.tsnames.append(name)
        with s.k.group():
            s.I(f's_mem{"real" if s.P.get("gstat") else ""}time s[78:79]\ns_waitcnt lgkmcnt(0)\nv_writelane_b32 v23, s78, {s.nts}')
        s.nts += 1
    class SO:
        def __init__(o, m, tmp): o.m = m; o.tmp = tmp; o.key = None
        def get(o, base, off):
            hi = off & ~4095; lo = off & 4095
            if hi == 0: return f's{base}', lo
            if o.key != (base, hi):
                o.m.I(f's_add_u32 s{o.tmp}, s{base}, {hex(hi)}'); o.key = (base, hi)
            return f's{o.tmp}', lo
    def ld(s, so, dst, voff, base, off, mod='', op='buffer_load_dwordx4', srdn=WS):
        with s.k.group():
            r, lo = so.get(base, off)
            t = s.I(f'{op} {dst}, v{voff}, {srdn}, {r} offen' + (f' offset:{lo}' if lo else '') + (' ' + mod if mod else ''))
        return t
    def pub(s, t):
        t.alt = (f's{sSLOW}', t.text + ' sc1'); return t
    def dma_tile(s, so, base, off, slot, mod):
        t = None
        for h in range(2):
            for i in range(4):
                with s.k.group():
                    if i == 0:
                        s.I(f's_add_u32 m0, s{sM0}, {hex(slot*0x8000 + h*4096)}')
                        s.I(f's_add_u32 s{so}, s{base}, {hex(off + h*4096)}')
                    t = s.I(f'buffer_load_dwordx4 v{vL16}, {WS}, s{so} offen' + (f' offset:{i*1024}' if i else '') + f' {mod} lds')
        return t
    def bg_tile(s, key, base, off, slot):
        with s.k.cap() as f: s.tok[key] = s.dma_tile(sT0+1, base, off, slot, s.md(key))
        if (s.L, key) in s.P.get('st', ()): s.tok[key] = None; return
        s.bg += f
    def take(s, n):
        r = s.bg[:n]; s.bg = s.bg[n:]
        if r and len(r[0]) == 1 and s.m0dirty: r[0] = [Ins(x.text) for x in s.setup] + r[0]
        if r: s.m0dirty = False
        for g in r:
            if len(g) == 3: s.setup = g[:2]
        return r
    def takew(s, n):
        r = s.bw[:n]; s.bw = s.bw[n:]; return r
    def check(s, vt, p):
        s.I(f's_add_u32 s{sT0+8}, s{sTAG}, {p}\nv_subrev_u32 v{vt}, s{sT0+8}, v{vt}\nv_cmp_lt_u32 vcc, 15, v{vt}')
    def poll(s, voff, sbase, off, p, vt=vT0):
        I = s.I; L = s.label('POLL'); D = s.label('PD')
        I(f's_mov_b32 s{sT0+9}, 0')
        I(f'{L}:')
        I(f'buffer_load_dword v{vt}, v{voff}, {WS}, s{sbase} offen' + (f' offset:{off}' if off else '') + ' sc1')
        I('s_waitcnt vmcnt(0)')
        s.check(vt, p)
        I(f's_cbranch_vccz {D}')
        with s.k.cond():
            I(f's_add_u32 s{sT0+9}, s{sT0+9}, 1\ns_cmp_lt_u32 s{sT0+9}, s{sLIM}\ns_cbranch_scc1 {L}\ns_mov_b32 s{sLIM}, 1')
        I(f'{D}:')
    def flag(s, sbase, off, p):
        with s.k.group():
            s.I(f's_add_u32 s{sT0+10}, s{sTAG}, {p}\nv_mov_b32 v{vT5}, s{sT0+10}')
            s.pub(s.I(f'buffer_store_dword v{vT5}, v{vL0}, {WS}, s{sbase} offen' + (f' offset:{off}' if off else '')))
    def tX(s, buf, t=vT3):
        with s.k.group():
            s.I(f's_lshl_b32 s{sT0+11}, s{sJ}, 11\ns_add_u32 s{sT0+11}, s{sT0+11}, s{sXIN}' + (f'\ns_add_u32 s{sT0+11}, s{sT0+11}, 0x200000' if buf else ''))
            s.I(f'v_lshlrev_b32 v{t}, 5, v{vFX}\nbuffer_load_dword v21, v{t}, {WS}, s{sT0+11} offen sc1')
    def tS(s, buf, t=vT3):
        with s.k.group():
            if s.P['t1l'] & 1:
                s.I(f's_lshl_b32 s{sT0+11}, s{sJ}, 7\ns_add_u32 s{sT0+11}, s{sT0+11}, s{sSTIN}' + (f'\ns_add_u32 s{sT0+11}, s{sT0+11}, 0x20000' if buf else ''))
                s.I(f'buffer_load_dword v21, v{vL0}, {WS}, s{sT0+11} offen sc1')
                return
            if buf: s.I(f's_add_u32 s{sT0+11}, s{sSTIN}, 0x20000')
            s.I(f'v_lshlrev_b32 v{t}, 5, v{vFX}\nbuffer_load_dword v21, v{t}, {WS}, s{sT0+11 if buf else sSTIN} offen sc1')
    def tF(s, t=vT3):
        with s.k.group():
            if s.P['t1l'] & 2:
                s.I(f's_and_b32 s{sT0+11}, s{sJ}, 3\ns_lshl_b32 s{sT0+11}, s{sT0+11}, 13\ns_add_u32 s{sT0+11}, s{sT0+11}, s{sFXC}')
                s.I(f'buffer_load_dword v21, v{vL0}, {WS}, s{sT0+11} offen sc1')
                return
            s.I(f'v_and_b32 v{t}, 3, v0\nv_lshlrev_b32 v{t}, 13, v{t}\nbuffer_load_dword v21, v{t}, {WS}, s{sFXC} offen sc1')
    def tH(s, t=vT3):
        with s.k.group():
            s.I(f'v_min_u32 v{t}, 55, v0\nv_lshlrev_b32 v{t}, 7, v{t}\nbuffer_load_dword v21, v{t}, {WS}, s{sHPUB} offen sc1')
    def touches(s, names, t=vT3):
        with s.k.cap() as f:
            for n in names:
                {'x': lambda: s.tX(0, t), 'X': lambda: s.tX(1, t), 's': lambda: s.tS(0, t), 'S': lambda: s.tS(1, t), 'f': lambda: s.tF(t), 'h': lambda: s.tH(t)}[n]()
        return f
    def ldsA(s, slot, kc):
        a = slot*0x8000 + kc*1024
        return (vL16, a) if a < 0x10000 else (vL16b, a - 0x10000)
    def gemm(s, steps, fences={}, LA=6):
        I = s.I; n = len(steps); nr = 0; last = None; aRING = s.ring
        blocked = sorted((f[0], g) for g, f in fences.items())
        def limit(i):
            for st, g in blocked:
                if g > i: return st
            return n
        def rd():
            nonlocal nr, last
            vr, off = s.ldsA(steps[nr][0], steps[nr][1])
            last = I(f'ds_read_b128 {a_(aRING + 4*(nr % 8), 4)}, v{vr} offset:{off}'); nr += 1
        with s.k.cap() as base:
            while nr < min(LA, limit(-1)): rd()
            for i, (slot, kc, acc, first) in enumerate(steps):
                assert nr > i
                I(f'v_mfma_f32_32x32x16_bf16 {v(acc,16)}, {a_(aRING + 4*(i % 8), 4)}, {v(vXB+4*kc,4)}, {"0" if first else v(acc,16)}')
                if i in fences:
                    if len(fences[i]) == 2:
                        assert nr == fences[i][0], (nr, i, fences[i])
                        s.k.wait(last)
                    s.k.wait(*fences[i][1]); I('s_barrier')
                c = 0
                while nr < min(i + 1 + LA, limit(i), n) and c < 2: rd(); c += 1
        return base, last

    def init0(s):
        I = s.I; k = s.k
        I('s_cmp_ge_u32 s2, 256\ns_cbranch_scc1 M_END')
        I('s_load_dwordx2 s[80:81], s[0:1], 8\ns_load_dwordx2 s[88:89], s[0:1], 16\ns_load_dwordx2 s[12:13], s[0:1], 0')
        if s.ts:
            I('s_memtime s[78:79]\ns_memrealtime s[70:71]'); s.tsnames.append('start'); s.nts = 1
        I(f's_lshr_b32 s{sRK}, s2, 3')
        if s.P['ct']:
            I(f's_getpc_b64 s[4:5]\nPC0:\nv_lshrrev_b32 v2, 4, v0\nv_lshl_add_u32 v2, s{sRK}, 4, v2\nv_lshlrev_b32 v2, 7, v2\nv_min_u32 v2, CODE_END-PC0-4, v2')
            I(f'v_mov_b32 v3, s5\nv_add_co_u32 v2, vcc, s4, v2\nv_addc_co_u32 v3, vcc, 0, v3, vcc\nglobal_load_dword v21, v[2:3], off')
        I(f'v_lshrrev_b32 v1, 6, v0\nv_and_b32 v0, 63, v0\nv_readfirstlane_b32 s{sW}, v1')
        I(f's_mov_b32 s82, {hex(512*3072)}\ns_mov_b32 s83, 0x20000\ns_lshr_b32 s64, s{sRK}, 4')
        I(f's_and_b32 s{sJ}, s{sRK}, 15\ns_and_b32 s{sCG}, s{sJ}, 7\ns_lshl_b32 s{sM0}, s{sW}, 13')
        I(f's_lshl_b32 s65, s64, 11\ns_add_u32 s{sWM}, s65, s{sM0}')
        I(f's_lshl_b32 s65, s{sCG}, 1\ns_lshl_b32 s66, s{sW}, 2\ns_xor_b32 s65, s65, s66\ns_or_b32 s67, s64, s65')
        I(f's_lshl_b32 s65, s{sJ}, 6\ns_mul_i32 s66, s67, {32*3072}\ns_add_u32 s{sPO}, s66, s65')
        I(f'v_lshrrev_b32 v48, 2, v0\nv_and_b32 v49, 3, v0\nv_lshrrev_b32 v51, 4, v0\nv_xor_b32 v49, v49, v51\nv_lshlrev_b32 v49, 4, v49')
        I(f'v_mul_u32_u24 v{vW0}, 3072, v48\nv_add_u32 v{vW0}, v{vW0}, v49\nv_add_u32 v{vW0+1}, {16*3072-1024}, v{vW0}')
        I('s_waitcnt lgkmcnt(0)')
        s.wdma(0, 0, 1024)
        I('s_load_dwordx2 s[8:9], s[0:1], 80\ns_load_dwordx2 s[16:17], s[0:1], 64\ns_load_dwordx2 s[20:21], s[0:1], 72')
        I('s_load_dwordx4 s[40:43], s[0:1], 40\ns_load_dwordx2 s[72:73], s[0:1], 56')
        I(f's_mov_b32 s90, {hex(32*512)}\ns_mov_b32 s91, 0x20000\nv_lshlrev_b32 v{vL16}, 4, v0\ns_lshl_b32 s66, s{sJ}, 10\ns_mov_b32 m0, {hex(WPH)}')
        s.tok['P'] = I(f'buffer_load_dwordx4 v{vL16}, {PS_}, s66 offen lds')
        s.wdma(0, 1, 2048)
        I(f's_and_b32 s{sG}, s2, 7\ns_lshl_b32 s{sR}, s{sG}, 1\ns_add_u32 s{sR}, s{sR}, s64\ns_mov_b32 s14, {hex(2048*1024)}\ns_mov_b32 s15, 0x20000')
        I(f's_lshl_b32 s64, s{sR}, 17\ns_lshl_b32 s66, s{sJ}, 13\ns_add_u32 s64, s64, s66\ns_lshl_b32 s66, s{sW}, 11\ns_add_u32 s64, s64, s66')
        I(f'buffer_load_dwordx4 {v(vROW,4)}, v{vL16}, {XS}, s64 offen {s.P["rnt"]}\nbuffer_load_dwordx4 {v(vROW+4,4)}, v{vL16}, {XS}, s64 offen offset:1024 {s.P["rnt"]}')
        if s.ts: I('v_mov_b32 v23, 0\nv_writelane_b32 v23, s78, 0\nv_writelane_b32 v23, s70, 60')
        s.stamp('r1')
        if s.P.get('lat'):
            for n in (7, 6, 5, 4, 3, 2, 0): I(f's_waitcnt vmcnt({n})'); s.stamp(f'vm{n}')
        for p in range(1, 4): I(f's_xor_b32 s66, s67, {p}\ns_mul_i32 s66, s66, {32*3072}\ns_add_u32 s{sPO+p}, s66, s65')
        for d, size in ((8, WS_SIZE), (16, 2048*1024), (20, 256)):
            I(f's_mov_b32 s{d+2}, {hex(size)}\ns_mov_b32 s{d+3}, 0x20000')
        I(f's_lshr_b32 s{sHB}, s{sJ}, 3')
        I(f's_lshl_b32 s64, s{sR}, 2\ns_add_u32 s64, s64, s{sW}\ns_lshl_b32 s64, s64, 15\ns_lshl_b32 s65, s{sCG}, 7\ns_or_b32 s64, s64, s65\ns_lshl_b32 s65, s{sHB}, 14\ns_or_b32 s{sXB}, s64, s65')
        I(f's_lshl_b32 s65, s{sHB}, 11\ns_or_b32 s{sXM}, s65, s{sM0}')
        I(f'v_and_b32 v50, 7, v0\nv_lshlrev_b32 v53, 4, v50\nv_xor_b32 v50, v50, v51\nv_lshlrev_b32 v50, 4, v50\nv_lshrrev_b32 v52, 3, v0\nv_lshl_or_b32 v{vX0}, v52, 10, v50')
        I(f'v_xor_b32 v{vX0+1}, 64, v{vX0}\nv_add_u32 v{vX0+1}, {8192-1024}, v{vX0+1}')
    def wdma(s, p, slot, col):
        with s.k.group():
            s.I(f's_xor_b32 m0, s{sWM}, {hex(slot*0x8000 + p*2048)}\ns_add_u32 s{sT0+1}, s{sPO+p}, {col}')
            s.I(f'buffer_load_dwordx4 v{vW0}, {QS}, s{sT0+1} offen lds')
            return s.I(f'buffer_load_dwordx4 v{vW0+1}, {QS}, s{sT0+1} offen offset:1024 lds')
    def udma(s, i):
        with s.k.group():
            s.I(f's_add_u32 m0, s{sM0}, {hex(0x18000 + i*1024)}')
            if i < 4:
                t = s.I(f'buffer_load_dwordx4 v{vU0}, {US}, s{sUB} offen {s.P["uf"]} lds')
                if i < 3: s.I(f's_add_u32 s{sUB}, s{sUB}, {8*3584}')
            else:
                t = s.I(f'buffer_load_dwordx4 v{vU0+1}, {DS2}, s{sUB2} offen {s.P["uf"]} lds')
                if i < 5: s.I(f's_add_u32 s{sUB2}, s{sUB2}, 8192')
            return t
    def xreg(s, c): return (2 + (c >> 1 & 1))*0x8000 + (c & 1)*4096
    def xdma(s, c, p):
        with s.k.group():
            s.I(f's_xor_b32 m0, s{sXM}, {hex(s.xreg(c) + p*2048)}\ns_xor_b32 s{sT0+1}, s{sXB}, {hex(c*128 + p*16384)}')
            s.I(f'buffer_load_dwordx4 v{vX0}, {XS}, s{sT0+1} offen {s.P["xnt"]} lds')
            return s.I(f'buffer_load_dwordx4 v{vX0+1}, {XS}, s{sT0+1} offen offset:1024 {s.P["xnt"]} lds')
    def unit(s):
        I = s.I; k = s.k
        I(f's_lshr_b32 s64, s2, 6\ns_and_b32 s65, s2, 63\ns_and_b32 s66, s2, 7')
        I(f's_lshr_b32 s67, s{sW}, 1\ns_lshl_b32 s67, s67, 2\ns_and_b32 s68, s{sW}, 1\ns_or_b32 s67, s67, s68\ns_lshl_b32 s67, s67, 8')
        I(f's_mov_b32 s87, 0x20000\ns_mov_b32 s75, 0x20000')
        with k.group(): I(f's_cmp_lt_u32 s65, 56\ns_cselect_b32 s74, {hex(1792*1024)}, 0\ns_cselect_b32 s68, 0, 0x70000000')
        I(f's_mov_b32 s86, s74\ns_mul_i32 s70, s64, 7\ns_lshr_b32 s71, s65, 3\ns_add_u32 s70, s70, s71')
        I(f's_lshl_b32 s{sUB2}, s70, 16\ns_lshl_b32 s71, s{sW}, 14\ns_add_u32 s{sUB2}, s{sUB2}, s71\ns_lshl_b32 s71, s66, 7\ns_add_u32 s{sUB2}, s{sUB2}, s71')
        I(f's_mul_i32 s{sUD2}, s66, {224*1024}\ns_lshl_b32 s70, s70, 13\ns_add_u32 s{sUD2}, s{sUD2}, s70\ns_add_u32 s67, s67, s68\ns_add_u32 s{sUD2}, s{sUD2}, s67\ns_add_u32 s{sUD2}, s{sUD2}, {hex(WD_P)}')
        with k.group(): I(f's_cmp_ge_u32 s65, 28\ns_cselect_b32 s84, s42, s40\ns_cselect_b32 s85, s43, s41\ns_cselect_b32 s70, 28, 0\ns_cselect_b32 s71, 1, 0')
        I(f's_sub_u32 s65, s65, s70\ns_lshl_b32 s{sUB}, s65, 7\ns_lshl_b32 s65, s65, 2\ns_add_u32 s65, s65, s{sW}')
        I(f's_lshl_b32 s69, s64, 2\ns_add_u32 s69, s69, s{sW}\ns_mul_i32 s69, s69, {32*3584}\ns_add_u32 s{sUB}, s{sUB}, s69')
        I(f's_lshl_b32 s{sUD}, s65, 15\ns_lshl_b32 s70, s64, 13\ns_add_u32 s{sUD}, s{sUD}, s70\ns_lshl_b32 s70, s71, 8\ns_add_u32 s70, s70, s68\ns_add_u32 s{sUD}, s{sUD}, s70\ns_add_u32 s{sUD}, s{sUD}, {hex(WGU)}')
        I(f's_mul_i32 s64, s64, 112\ns_add_u32 s64, s64, s65\ns_lshl_b32 s64, s64, 1\ns_add_u32 s64, s64, s71\ns_lshl_b32 s64, s64, 6\ns_add_u32 s64, s64, s68\ns_add_u32 s{sUCS}, s64, {hex(CS)}')
        I(f'v_mul_u32_u24 v{vU0}, 3584, v52\nv_add_u32 v{vU0}, v{vU0}, v53\nv_lshl_or_b32 v{vU0+1}, v52, 10, v53')
    def uaddr(s):
        I = s.I; t0, t1 = vT2, vT4
        I(f'v_bfe_u32 v{t0}, v0, 2, 2\nv_lshrrev_b32 v{t1}, 5, v0\nv_lshl_or_b32 v{t0}, v{t1}, 3, v{t0}\nv_lshlrev_b32 v{vUR}, 7, v{t0}')
        I(f'v_lshlrev_b32 v{vUD}, 2, v{vFX}\nv_lshl_or_b32 v{vUD}, v{t1}, 9, v{vUD}')
        I(f'v_and_b32 v{t0}, 1, v0\nv_lshl_or_b32 v{vUR}, v{t0}, 4, v{vUR}\nv_bfe_u32 v{t0}, v0, 1, 1\nv_lshl_or_b32 v{vUR}, v{t0}, 3, v{vUR}')
        with s.k.group(): I(f's_lshl_b32 s{sT0+3}, s{sW}, 5\ns_add_u32 s{sT0+3}, s{sT0+3}, 0x18000\nv_add_u32 v{vUR}, s{sT0+3}, v{vUR}')
        I(f'v_bfe_u32 v{t0}, v0, 4, 1\nv_lshl_or_b32 v{vUR+1}, v{t0}, 13, v{vUR}\nv_lshl_or_b32 v{vUR}, v{t0}, 11, v{vUR}')
        I(f'v_lshl_or_b32 v{vUD+1}, v{t0}, 11, v{vUD}\nv_lshl_or_b32 v{vUD}, v{t0}, 10, v{vUD}')
    def uproc(s):
        I = s.I; k = s.k; d = 64
        for n, r in (('a', sUD), ('b', sUD2), ('c', sUCS)):
            if n in s.P.get('nou', ''): I(f's_mov_b32 s{r}, 0x70000000')
        with k.group():
            k.wait(s.tok['U'])
            if s.P.get('xs'): s.stamp('u_ok')
            I('s_barrier')
        for q in range(6):
            with k.group():
                for r in range(2):
                    if q < 4: t = I(f'ds_read_b64_tr_b16 {v(d+4*q+2*r,2)}, v{vUR} offset:{q*8192 + r*512}')
                    else: t = I(f'ds_read_b64_tr_b16 {v(d+4*q+2*r,2)}, v{vUR+1} offset:{(q-4)*16384 + 4096 + r*512}')
        with k.group(): k.wait(t); I('s_barrier')
        for q in range(6):
            with k.group():
                if q < 4:
                    I(f'v_mfma_f32_16x16x32_bf16 {v(d+24,4)}, a[64:67], {v(d+4*q,4)}, {"0" if q == 0 else v(d+24,4)}')
                    I(f'buffer_store_dwordx4 {v(d+4*q,4)}, v{vUD}, {WS}, s{sUD} offen' + (' offset:2048' if q & 1 else '') + ' sc1')
                    if q == 1: I(f's_add_u32 s{sUD}, s{sUD}, 4096')
                else:
                    I(f'buffer_store_dwordx4 {v(d+4*q,4)}, v{vUD+1}, {WS}, s{sUD2} offen sc1')
                    if q < 5: I(f's_add_u32 s{sUD2}, s{sUD2}, 4096')
        return I(f'buffer_store_dword v{d+24}, v{vFX}, {WS}, s{sUCS} offen sc1')
    def meanop(s, d, m, t):
        I = s.I
        I(f'v_cvt_pk_bf16_f32 v{d}, -v{m}, -v{m}\nv_and_b32 v{t}, 0xffff0000, v{d}\nv_sub_f32 v{t}, -v{m}, v{t}\nv_cvt_pk_bf16_f32 v{t}, v{t}, v{t}')
        with s.k.group(): I(f'v_cmp_gt_u32 vcc, 32, v0\nv_cndmask_b32 v{d}, v{t}, v{d}, vcc')
    def finit(s):
        I = s.I; k = s.k
        n, hf, sw, b2, t0, t1, t2 = 50, 51, 52, 53, 54, 55, 56
        I(f'v_and_b32 v{n}, 31, v0\nv_lshrrev_b32 v{hf}, 5, v0\nv_bfe_u32 v{b2}, v0, 2, 1\nv_bfe_u32 v{t0}, v0, 3, 1')
        I(f'v_and_b32 v{sw}, 19, v{n}\nv_lshl_or_b32 v{sw}, v{b2}, 3, v{sw}\nv_lshl_or_b32 v{sw}, v{t0}, 2, v{sw}')
        I(f'v_lshl_or_b32 v{t0}, v{b2}, 1, v{t0}\nv_xor_b32 v{t0}, v{t0}, v{hf}\nv_lshlrev_b32 v{t0}, 4, v{t0}\nv_lshl_or_b32 v{t0}, v{sw}, 6, v{t0}')
        I(f'v_add_u32 v{vWR}, s{sM0}, v{t0}\nv_xor_b32 v{vWR+1}, 32, v{vWR}\nv_add_u32 v{vWW}, s{sM0}, v{vL16}')
        I(f'v_bfe_u32 v{t0}, v0, 1, 3\nv_xor_b32 v{t0}, v{t0}, v{hf}\nv_lshlrev_b32 v{t0}, 4, v{t0}\nv_lshl_or_b32 v{t0}, v{n}, 7, v{t0}')
        I(f's_add_u32 s64, s{sM0}, 0x10000\nv_add_u32 v{vXR}, s64, v{t0}')
        for q in range(1, 4): I(f'v_xor_b32 v{vXR+q}, {32*q}, v{vXR}')
        I(f'v_lshlrev_b32 v{t0}, 4, v{n}\nv_add_u32 v{vSR}, 0x20000, v{t0}\ns_lshl_b32 s64, s{sW}, 2\nv_add_u32 v{vSW}, s64, v{vSR}')
        I(f'v_bfe_u32 v{t1}, v0, 4, 1')
        I(f'v_and_b32 v{t0}, 1, v0\nv_lshlrev_b32 v{t0}, 9, v{t0}\nv_lshl_or_b32 v{t0}, v{hf}, 8, v{t0}\nv_bfe_u32 v{t2}, v0, 2, 2\nv_lshl_or_b32 v{t0}, v{t2}, 5, v{t0}')
        I(f'v_lshl_or_b32 v{t0}, v{t1}, 4, v{t0}\nv_bfe_u32 v{t2}, v0, 1, 1\nv_lshl_or_b32 v{t0}, v{t2}, 3, v{t0}\nv_add_u32 v57, {hex(WPH)}, v{t0}')
        I(f'v_lshrrev_b32 v{t0}, 3, v{n}\nv_and_b32 v{t1}, 3, v{n}\nv_lshl_or_b32 v{t0}, v{t0}, 2, v{t1}\nv_lshl_or_b32 v{t0}, v{b2}, 4, v{t0}')
        I(f'v_mov_b32 v58, 0x3f80')
        for d, cm in ((64, t0),):
            I(f'v_lshlrev_b32 v{t1}, 3, v{hf}\nv_sub_u32 v{t1}, v{cm}, v{t1}\nv_and_b32 v{t2}, 1, v{t1}\nv_lshlrev_b32 v{t2}, 4, v{t2}\nv_lshlrev_b32 v{t2}, v{t2}, v58\nv_ashrrev_i32 v{t1}, 1, v{t1}')
            for p in range(2):
                for r in range(4): I(f'v_cmp_eq_u32 vcc, {8*p+r}, v{t1}\nv_cndmask_b32 v{d+4*p+r}, 0, v{t2}, vcc')
        for r in range(8): I(f'v_accvgpr_write_b32 a{r}, v{64+r}')
        for r in range(4): I(f'v_accvgpr_write_b32 a{64+r}, s{sONES}')
        I(f's_mul_i32 s{sTAG}, s{sE}, 0x9E3779B1\ns_add_u32 s{sTAG}, s{sTAG}, 0x7F4A7C15')
    def fold(s):
        I = s.I
        s.k.wait(s.tok['P'])
        I('ds_read_b64_tr_b16 v[60:61], v57\nds_read_b64_tr_b16 v[62:63], v57 offset:128')
        I('v_cmp_eq_u32 vcc, 0, v53')
        for r in range(4): I(f'v_cndmask_b32 v{80+r}, 0, v{60+r}, vcc\nv_cndmask_b32 v{84+r}, v{60+r}, 0, vcc')
        for r in range(8): I(f'v_accvgpr_write_b32 a{16+r}, v{80+r}')
    def lbuild(s, tok, slot, B, si):
        I = s.I; k = s.k; off = (slot & 1)*0x8000
        k.wait(tok)
        for b in range(4):
            for p in range(2): I(f'ds_read_b128 {a_(32+8*b+4*p,4)}, v{vWR+p} offset:{off + b*2048}')
        def T(i):
            b, p = i >> 1, i & 1; d = 64 + 16*b
            I(f'v_mfma_f32_32x32x16_bf16 {v(d,16)}, {a_(32+8*b+4*p,4)}, {a_(B+4*p,4)}, {"0" if p == 0 else v(d,16)}')
        def C(i):
            d = 64 + 8*i
            for r in range(4): I(f'v_cvt_pk_bf16_f32 v{d+r}, v{d+2*r}, v{d+2*r+1}')
            I(f'ds_write_b128 v{vWW}, {v(d,4)} offset:{off + i*1024}')
        def S(i): I(f'v_mfma_f32_32x32x16_bf16 v[48:63], a[64:67], {v(64+8*i,4)}, {"0" if i == 0 else "v[48:63]"}')
        for i in range(16):
            (T if i < 8 else S)(i & 7)
            if 3 <= i < 11: C(i - 3)
        I('v_cvt_pk_bf16_f32 v49, v48, v48\nv_and_b32 v50, 0xffff0000, v49\nv_sub_f32 v50, v48, v50\nv_cvt_pk_bf16_f32 v49, v48, v50')
        return I(f'ds_write_b32 v{vSW}, v49 offset:{SUMS[si] - 0x20000}')
    def rowstats(s):
        I = s.I
        for r in range(2):
            for i in range(4):
                x = vROW + 4*r + i
                I(f'v_dot2_f32_bf16 v{248+r}, v{x}, s{sONES}, {"0" if i == 0 else v(248+r)}')
                I(f'v_dot2_f32_bf16 v{250+r}, v{x}, v{x}, {"0" if i == 0 else v(250+r)}')
        I('v_permlane32_swap_b32 v248, v249\nv_permlane32_swap_b32 v250, v251\nv_add_f32 v248, v248, v249\nv_add_f32 v250, v250, v251')
        I(f'v_and_b32 v252, 15, v0\nv_cmp_eq_u32 vcc, 0, v252\nv_lshrrev_b32 v252, 1, v0\nv_mov_b32 v253, {hex(OOB)}')
        I('v_permlane16_swap_b32 v248, v250\nv_cndmask_b32 v252, v253, v252, vcc\nv_add_f32 v248, v248, v250')
        I(f'v_mov_b32 v249, s{sTAG}\ns_lshl_b32 s64, s{sR}, 11\ns_lshl_b32 s65, s{sJ}, 7\ns_add_u32 s64, s64, s65\ns_lshl_b32 s65, s{sW}, 5\ns_add_u32 s64, s64, s65\ns_add_u32 s64, s64, {hex(S0)}')
        for mod in ('quad_perm:[1,0,3,2]', 'quad_perm:[2,3,0,1]', 'row_half_mirror', 'row_mirror'):
            I(f'v_add_f32_dpp v248, v248, v248 {mod} row_mask:0xf bank_mask:0xf')
        s.k.wait(s.tok['C'])
        I(f'buffer_store_dwordx2 v[248:249], v252, {WS}, s64 offen sc1')
    def init(s):
        I = s.I; k = s.k
        I(f's_load_dword s{sE}, s[8:9], 0')
        I(f's_lshl_b32 s64, s{sJ}, 2\ns_add_u32 s64, s64, s{sW}\ns_lshl_b32 s64, s64, 4\ns_add_u32 s{sKVP}, s64, s{sR}')
        I(f's_lshl_b32 s64, s{sKVP}, 9\ns_add_u32 s64, s64, {hex(KVP)}\ns_and_b32 s{sKVC}, s64, 0xfffff800\ns_lshl_b32 s65, s{sKVP}, 6\ns_add_u32 s65, s65, {hex(KVZ)}')
        for r in range(4): I(f'v_mov_b32 v{96+r}, -1')
        I(f'v_lshlrev_b32 v100, 11, v{vL16}\nv_or_b32 v100, v100, v{vL16}\nv_and_b32 v100, 0x1001f0, v100\nbuffer_store_dwordx4 v[96:99], v100, {WS}, s64 offen sc1')
        I(f'v_lshlrev_b32 v101, 16, v0\nv_lshl_or_b32 v101, v0, 2, v101\nv_and_b32 v101, 0x10003c, v101')
        s.tok['C'] = I(f'buffer_store_dword v96, v101, {WS}, s65 offen sc1')
        I(f's_getreg_b32 s{sMARK}, hwreg(HW_REG_XCC_ID)\ns_and_b32 s{sMARK}, s{sMARK}, 15\ns_or_b32 s{sMARK}, s{sMARK}, 0x80')
        I(f'v_add_u32 v{vL16b}, 0x10000, v{vL16}')
        I(f'v_cmp_eq_u32 vcc, 0, v0\nv_mov_b32 v{vT0}, {hex(OOB)}\nv_cndmask_b32 v{vL0}, v{vT0}, v0, vcc')
        I(f's_mov_b32 s{sLIM}, 20000')
        I(f'v_and_b32 v50, 15, v0\nv_lshrrev_b32 v51, 4, v0\nv_and_b32 v52, 31, v0\nv_lshrrev_b32 v53, 5, v0')
        I(f'v_lshlrev_b32 v{vFX}, 2, v50')
        I(f'v_bfe_u32 v54, v0, 2, 1\nv_and_b32 v55, 3, v0\nv_lshlrev_b32 v55, 2, v55\nv_lshl_or_b32 v{vFO}, v54, 7, v55')
        I(f'v_lshlrev_b32 v54, 4, v50\nv_lshl_or_b32 v{vPUB}, v51, 9, v54')
        I(f's_lshl_b32 s64, s{sW}, 9\ns_add_u32 s64, s64, {hex(XA)}\ns_movk_i32 s65, {6*PS}')
        I(f'v_mul_lo_u32 v54, v53, s65\nv_lshl_add_u32 v54, v52, 4, v54\nv_add_u32 v{vPHW}, s64, v54')
        I(f's_movk_i32 s65, {PS}\nv_bfe_u32 v54, v0, 1, 1\nv_mul_lo_u32 v54, v54, s65\nv_and_b32 v55, 1, v0\nv_lshl_add_u32 v54, v55, 3, v54')
        I(f'v_lshrrev_b32 v55, 2, v50\nv_lshl_add_u32 v55, v51, 3, v55\nv_lshl_add_u32 v54, v55, 4, v54')
        I(f's_lshr_b32 s66, s{sW}, 1\ns_mul_i32 s66, s66, {6*PS}\ns_add_u32 s66, s66, {hex(XA)}\ns_and_b32 s67, s{sW}, 1\ns_mul_i32 s67, s67, {2*PS}\ns_add_u32 s67, s67, s66\ns_add_u32 s66, s66, {4*PS}')
        I(f'v_add_u32 v{vTRA}, s67, v54\nv_add_u32 v{vTRB}, s66, v54')
        I(f'v_lshlrev_b32 v54, 4, v50\nv_lshl_or_b32 v54, v53, 8, v54\nv_and_b32 v55, 1, v51\nv_lshl_or_b32 v54, v55, 3, v54')
        I(f's_lshl_b32 s64, s{sW}, 9\ns_add_u32 s64, s64, {hex(KVA)}\nv_add_u32 v{vKVW}, s64, v54')
        I(f's_lshl_b32 s64, s{sW}, 5\ns_add_u32 s64, s64, {hex(ZA)}\nv_and_b32 v54, 3, v0\nv_lshl_or_b32 v54, v54, 1, v55\nv_lshl_or_b32 v54, v54, 1, v53\nv_lshl_add_u32 v{vZW}, v54, 1, s64')
        I(f'v_and_b32 v54, 3, v0\nv_bfe_u32 v55, v0, 2, 1\nv_lshl_or_b32 v54, v55, 3, v54\nv_bfe_u32 v55, v0, 3, 1\nv_lshl_or_b32 v54, v55, 2, v54')
        I(f'v_lshlrev_b32 v54, 4, v54\nv_lshl_or_b32 v54, v53, 10, v54\nv_add_u32 v54, {hex(KVA)}, v54')
        I(f'v_lshlrev_b32 v55, 6, v53\nv_add_u32 v55, {hex(ZA)}, v55\nv_bfe_u32 v56, v0, 4, 1\nv_cmp_eq_u32 vcc, v56, v53\nv_mov_b32 v57, {hex(ZERO)}')
        I(f'v_cndmask_b32 v{vKVR}, v57, v54, vcc\nv_cndmask_b32 v{vZR}, v57, v55, vcc')
        I(f'v_lshlrev_b32 v54, 4, v50\nv_lshl_or_b32 v54, v53, 8, v54\nv_lshl_or_b32 v54, v56, 13, v54\ns_lshl_b32 s64, s{sW}, 11\nv_add_u32 v{vREDW}, s64, v54')
        I(f'v_lshlrev_b32 v54, 10, v50\nv_lshl_or_b32 v{vNAT}, v51, 4, v54')
        I(f'v_lshlrev_b32 v54, 4, v50\nv_lshl_or_b32 v54, v53, 2, v54\nv_cmp_eq_u32 vcc, 0, v56\nv_mov_b32 v55, {hex(OOB)}\nv_cndmask_b32 v{vSTW}, v55, v54, vcc')
        I(f's_lshl_b32 s64, s{sW}, 7\ns_add_u32 s64, s64, {hex(RS)}\nv_lshlrev_b32 v54, 2, v52\nv_add_u32 v{vRSW}, s64, v54')
        I(f'v_mov_b32 v56, 0\nv_mov_b32 v57, 0\nv_mov_b32 v58, 0\nv_mov_b32 v59, 0\nv_add_u32 v54, {hex(ZERO)}, v{vL16}\nds_write_b128 v54, v[56:59]')
        I(f's_mov_b32 s{sSELLO}, 0x3f80\ns_mov_b32 s{sSELHI}, 0x3f800000\ns_mov_b32 s{sONES}, 0x3f803f80\ns_mov_b32 s{sLOG2E}, 0x3fb8aa3b')
        I(f's_lshl_b32 s66, s{sR}, 2\ns_add_u32 s65, s66, s{sW}')
        I(f's_lshl_b32 s64, s65, 15\ns_add_u32 s{sXIN}, s64, {hex(XB[0])}')
        I(f's_lshl_b32 s64, s65, 11\ns_add_u32 s{sSTIN}, s64, {hex(ST)}')
        I(f's_mul_i32 s64, s{sJ}, {224*1024}\ns_add_u32 s64, s64, s{sM0}\ns_add_u32 s{sGU}, s64, {hex(WGU)}')
        I(f's_lshr_b32 s67, s{sRK}, 3\ns_lshl_b32 s64, s{sW}, 2\ns_or_b32 s64, s64, s67\ns_lshl_b32 s64, s64, 8\ns_or_b32 s64, s64, s{sCG}\ns_lshl_b32 s{sWO}, s64, 7')
        I(f's_lshl_b32 s67, s{sHB}, 12\ns_or_b32 s{sOM}, s67, s{sM0}')
        I(f's_mul_i32 s64, s{sCG}, {224*1024}\ns_mul_i32 s67, s{sW}, {56*1024}\ns_add_u32 s64, s64, s67\ns_add_u32 s{sWD}, s64, {hex(WD_P)}')
        I(f's_lshl_b32 s67, s{sHB}, 1\ns_add_u32 s66, s66, s67')
        I(f's_lshr_b32 s67, s{sW}, 1\ns_add_u32 s67, s67, s66\ns_and_b32 s68, s{sW}, 1')
        I(f's_lshl_b32 s64, s66, 15\ns_add_u32 s64, s64, s{sM0}\ns_add_u32 s{sXO}, s64, {hex(XB[0])}')
        I(f's_lshl_b32 s64, s67, 15\ns_lshl_b32 s69, s{sCG}, 12\ns_add_u32 s64, s64, s69\ns_lshl_b32 s69, s68, 8\ns_add_u32 s64, s64, s69\ns_add_u32 s{sXPUB}, s64, {hex(XB[0])}')
        I(f's_lshl_b32 s64, s67, 11\ns_lshl_b32 s69, s68, 8\ns_add_u32 s64, s64, s69\ns_mul_i32 s69, s{sCG}, 0x108\ns_and_b32 s69, s69, 0x608\ns_add_u32 s64, s64, s69\ns_add_u32 s{sSTPUB}, s64, {hex(ST)}')
        I(f's_mul_i32 s64, s65, {112*1024}\ns_mul_i32 s69, s{sJ}, {7*1024}\ns_add_u32 s64, s64, s69\ns_add_u32 s{sHPUB}, s64, {hex(HB)}')
        I(f's_mul_i32 s64, s66, {112*1024}\ns_mul_i32 s69, s{sW}, {28*1024}\ns_add_u32 s64, s64, s69\ns_add_u32 s{sHIN}, s64, {hex(HB)}')
        I(f's_lshl_b32 s64, s65, 7\ns_add_u32 s{sFXC}, s64, {hex(FX)}')
        I(f's_lshl_b32 s69, s{sJ}, 2\ns_add_u32 s64, s64, s69\ns_add_u32 s{sFOP}, s64, {hex(FO)}')
        I(f's_lshl_b32 s64, s67, 7\ns_lshl_b32 s69, s{sCG}, 3\ns_add_u32 s64, s64, s69\ns_lshl_b32 s69, s68, 2\ns_add_u32 s64, s64, s69\ns_add_u32 s{sFXP}, s64, {hex(FX)}')
        I(f's_lshl_b32 s64, s66, 7\ns_lshl_b32 s69, s{sW}, 4\ns_add_u32 s64, s64, s69\ns_add_u32 s{sFOC}, s64, {hex(FO)}')
        I(f's_lshl_b32 s64, s{sR}, 17\ns_lshl_b32 s69, s{sHB}, 16\ns_add_u32 s64, s64, s69\ns_lshl_b32 s69, s{sW}, 14\ns_add_u32 s64, s64, s69\ns_lshl_b32 s69, s{sCG}, 7\ns_add_u32 s{sNAT}, s64, s69')
        I(f's_lshl_b32 s64, s{sHB}, 8\ns_lshl_b32 s69, s{sW}, 6\ns_add_u32 s64, s64, s69\ns_add_u32 s64, s64, {hex(RS)}\nv_add_u32 v{vRSR}, s64, v{vFX}')

    def xloads(s, buf, n1=2, perm=None):
        so = s.SO(s, sT0)
        d = buf*0x20000; n = s.P['xf']
        with s.k.cap() as f:
            for kc in range(33):
                if kc == s.P['sl']: s.ld(so, v(vTMP, 4), vL16, sSTIN, d, 'sc1'); s.ld(so, v(vTMP+4, 4), vL16, sSTIN, d + 1024, 'sc1')
                if kc == 32: break
                if perm is None: s.ld(so, v(vXB + 4*kc, 4), vL16, sXIN, buf*0x200000 + kc*1024, 'sc1')
                else:
                    with s.k.group():
                        if kc % 4 == 0 and kc: s.I(f's_xor_b32 s{perm}, s{perm}, {hex((kc ^ kc - 4) << 10)}')
                        s.I(f'buffer_load_dwordx4 {v(vXB + 4*kc, 4)}, v{vL16}, {WS}, s{perm} offen offset:{kc % 4*1024} sc1')
        s.k.put(f[:n])
        return (f[n:], 0, n1*(32 - n) - 1)
    def stats(s, own=False):
        I = s.I; t = vTMP
        I(f'v_add_f32 v{t}, v{t}, v{t+2}\nv_add_f32 v{t+1}, v{t+1}, v{t+3}')
        if not own:
            I(f'v_add_f32 v{t+4}, v{t+4}, v{t+6}\nv_add_f32 v{t+5}, v{t+5}, v{t+7}')
            I(f'v_add_f32 v{t}, v{t}, v{t+4}\nv_add_f32 v{t+1}, v{t+1}, v{t+5}')
        I(f'v_permlane32_swap_b32 v{t}, v{t+1}')
        I(f'v_add_f32 v{t}, v{t}, v{t+1}')
        I(f'v_mul_f32 v{t}, 0x3b000000, v{t}')
        I(f'v_mov_b32 v{t+1}, v{t}')
        I(f'v_permlane32_swap_b32 v{t}, v{t+1}')
        I(f'v_fma_f32 v{t+1}, -v{t}, v{t}, v{t+1}')
        I(f'v_max_f32 v{t+1}, 0, v{t+1}')
        I(f'v_add_f32 v{t+1}, 0x3727c5ac, v{t+1}')
    def phi(s, p, tA, tB, out, emit=None):
        I = s.I; mx, mn = vT0, vT2
        I(f'v_max3_f32 v{mx}, v{p}, v{p+1}, v{p+2}\nv_min3_f32 v{mn}, v{p}, v{p+1}, v{p+2}')
        for r in range(3, 15, 2): I(f'v_max3_f32 v{mx}, v{mx}, v{p+r}, v{p+r+1}\nv_min3_f32 v{mn}, v{mn}, v{p+r}, v{p+r+1}')
        I(f'v_max_f32 v{mx}, v{mx}, v{p+15}\nv_min_f32 v{mn}, v{mn}, v{p+15}')
        I(f'v_mul_f32 v{mx}, v{mx}, v{vC}\nv_mul_f32 v{mn}, v{mn}, v{vC}')
        for sg, t, m in ((0, tA, mx), (1, tB, mn)):
            for r in range(0, 16, 2):
                if sg == 0: I(f'v_pk_fma_f32 {v(t+r,2)}, {v(p+r,2)}, {v(vC-1,2)}, {v(m,2)} op_sel:[0,1,0] op_sel_hi:[1,1,0] neg_lo:[0,0,1] neg_hi:[0,0,1]')
                else: I(f'v_pk_fma_f32 {v(t+r,2)}, {v(p+r,2)}, {v(vC-1,2)}, {v(m,2)} op_sel:[0,1,0] op_sel_hi:[1,1,0] neg_lo:[1,0,0] neg_hi:[1,0,0]')
            for r in range(16): I(f'v_exp_f32 v{t+r}, v{t+r}')
            I(f'v_pk_add_f32 {v(vT4,2)}, {v(t,2)}, {v(t+2,2)}')
            for r in range(4, 16, 2): I(f'v_pk_add_f32 {v(vT4,2)}, {v(vT4,2)}, {v(t+r,2)}')
            I(f'v_add_f32 v{vT4}, v{vT4}, v{vT5}\nv_rcp_f32 v{vT4}, v{vT4}')
            for r in range(0, 16, 2): I(f'v_pk_mul_f32 {v(t+r,2)}, {v(t+r,2)}, {v(vT4,2)} op_sel_hi:[1,0]')
            for r in range(8):
                I(f'v_cvt_pk_bf16_f32 v{out+8*sg+r}, v{t+2*r}, v{t+2*r+1}')
                if emit and r % 4 == 3: emit(2*sg + r//4)

    def front(s):
        I = s.I; k = s.k; P = s.P
        s.init0()
        tx = {}; tr = {}; dl = {}
        def X(i):
            with k.group():
                if i >= 8 and i % 2 == 0: k.wait(tr[i//2 - 4])
                tx[i] = s.xdma(i//2, i % 2)
        def RD(c):
            with k.group() as g:
                k.wait(tx[2*c+1])
                for q in range(4): tr[c] = I(f'ds_read_b128 {v(vXB+16*c+4*q,4)}, v{vXR+q} offset:{s.xreg(c) - 0x10000}')
            dl[id(g)] = 8*c - 3
        def SL():
            with k.group() as g:
                I(f's_lshl_b32 s{sT0+3}, s{sR}, 11\ns_lshl_b32 s{sT0+4}, s{sW}, 9\ns_add_u32 s{sT0+3}, s{sT0+3}, s{sT0+4}\ns_add_u32 s{sT0+3}, s{sT0+3}, {hex(S0)}')
                I(f'v_and_b32 v{vT4}, 0x1f0, v{vL16}\nbuffer_load_dwordx4 v[52:55], v{vT4}, {WS}, s{sT0+3} offen sc1')
                I(f's_lshl_b32 s{sT0+5}, s{sJ}, 7\ns_add_u32 s{sT0+5}, s{sT0+5}, s{sM0}\ns_add_u32 s{sT0+5}, s{sT0+5}, {hex(S0)}')
                I(f'v_lshlrev_b32 v57, 9, v0\nv_lshl_or_b32 v57, v0, 5, v57\nv_and_b32 v57, 0x1860, v57\nbuffer_load_dword v56, v57, {WS}, s{sT0+5} offen offset:4 sc1')
            dl[id(g)] = 40; s.gSL = g
        def Q(p):
            with k.group():
                if p == 0: k.wait(tr[5])
                s.tok['Q0'] = s.wdma(p, 2, 0)
        def U(i):
            with k.group():
                if i == 0: k.wait(tr[7])
                s.tok['U'] = s.udma(i)
        with k.cap() as xs:
            for p in range(1, 4): tk = s.wdma(p, 0, 1024)
            for p in range(1, 4): tv = s.wdma(p, 1, 2048)
            for i in range(16):
                X(i)
                if i >= 5 and i % 2 == 1: RD((i - 5)//2)
            SL(); Q(0); RD(6); Q(1); RD(7); Q(2); Q(3)
            for i in range(6): U(i)
        with k.cap() as pre:
            s.unit()
            if P.get('tlb'):
                n, sh = P['tlb']
                I(f'v_min_u32 v54, {n - 1}, v0\nv_lshlrev_b32 v54, {sh}, v54\ns_lshl_b32 s64, s2, 7\nbuffer_load_dword v21, v54, {WS}, s64 offen offset:1024')
            s.init(); s.finit()
        n, f0, ev = P['sp']
        k.sprinkle(pre, xs[:n], f0, ev); xs = xs[n:]
        s.stamp('init')
        xa, xb, xc, xd = P['xa'], P['xb'], P['xc'], P['xd']
        with k.cap() as f:
            s.fold(); s.rowstats()
            I(f's_lshl_b32 s64, s{sG}, 5\ns_add_u32 s64, s64, s{sRK}\nv_mov_b32 v{vT0}, s{sMARK}\nbuffer_store_byte v{vT0}, v{vL0}, {DS}, s64 offen')
        k.sprinkle(f, xs[:xa], 0, P['xe']); xs = xs[xa:]
        s.stamp('issued')
        with k.cap() as f: s.lbuild(tk, 0, 16, 0)
        k.weave(f, (xs[:xb], 0, 15)); xs = xs[xb:]
        s.stamp('kbuild')
        with k.cap() as f: t = s.lbuild(tv, 1, 0, 1)
        k.weave(f, (xs[:xc], 0, 15)); xs = xs[xc:]
        k.wait(t); I('s_barrier')
        s.stamp('vbuild')
        while any(dl.get(id(x), 99) < 0 for x in xs[xd:]): xd += 1
        k.put(xs[:xd]); xs = xs[xd:]
        assert any(x is s.gSL for x in xs)
        gaps = [min(63, int(i*P['xr'])) for i in range(len(xs))]
        for i in range(len(xs) - 1, -1, -1):
            gaps[i] = min(gaps[i], dl.get(id(xs[i]), 63), max(gaps[i+1] - 1, 0) if i + 1 < len(xs) else 63)
        s.gaps = gaps
        fill = [([it], g, g) for it, g in zip(xs, gaps)]
        with k.cap() as f:
            for i in range(8): I(f'ds_read_b128 {a_(aKP+4*i,4)}, v{vWW} offset:{i*1024}')
        fill.append((f, *P['kp']))
        with k.cap() as f:
            I(f'ds_read_b128 a[28:31], v{vSR} offset:{SUMS[0] - 0x20000}\nds_read_b128 a[32:35], v{vSR} offset:{SUMS[1] - 0x20000}')
            Lb = s.label('S0'); D = s.label('S0D')
            with k.group():
                I(f's_mov_b32 s{sT0+9}, 0\n{Lb}:')
                I(f'v_xor_b32 v53, s{sTAG}, v53\nv_xor_b32 v55, s{sTAG}, v55\nv_xor_b32 v56, s{sTAG}, v56\nv_or3_b32 v53, v53, v55, v56\nv_cmp_ne_u32 vcc, 0, v53\ns_cbranch_vccz {D}')
                with k.cond():
                    I(f'buffer_load_dwordx4 v[52:55], v{vT4}, {WS}, s{sT0+3} offen sc1\nbuffer_load_dword v56, v57, {WS}, s{sT0+5} offen offset:4 sc1\ns_waitcnt vmcnt(0)')
                    I(f's_add_u32 s{sT0+9}, s{sT0+9}, 1\ns_cmp_lt_u32 s{sT0+9}, s{sLIM}\ns_cbranch_scc1 {Lb}\ns_mov_b32 s{sLIM}, 1')
                I(f'{D}:'); k.retire()
            I('v_mul_f32 v52, 0xbb000000, v52\nv_mul_f32 v54, 0x3b000000, v54')
            I('v_cvt_pk_bf16_f32 v53, v52, v52\nv_fma_f32 v54, -v52, v52, v54\nv_and_b32 v55, 0xffff0000, v53\nv_max_f32 v54, 0, v54')
            I(f'v_sub_f32 v55, v52, v55\nv_add_f32 v54, 0x3727c5ac, v54\nv_cvt_pk_bf16_f32 v55, v55, v55\nv_rsq_f32 v{vRSTD}, v54')
            with k.group(): I('v_cmp_gt_u32 vcc, 32, v0\nv_cndmask_b32 v53, v55, v53, vcc')
            I(f'v_mul_f32 v{vC}, s{sLOG2E}, v{vRSTD}')
            for r in range(4): I(f'v_accvgpr_write_b32 a{24+r}, v53')
        fill.append((f, 54, 62))
        return fill

    def wodma(s, L, p0, p1):
        I = s.I; k = s.k; P = s.P; two = None
        with k.cap() as fo:
            for p in range(p0, p1):
                with k.group():
                    if p == p0: I(f'v_lshrrev_b32 v{vT1}, 3, v0\nv_and_b32 v{vT3}, 0x70, v1\nv_lshl_or_b32 v{vT1}, v{vT1}, 10, v{vT3}\nv_add_u32 v{vT3}, 7168, v{vT1}')
                    I(f's_xor_b32 m0, s{sOM}, {hex((p >> 2)*WOX[L] + (p & 3)*2048)}\ns_xor_b32 s{sT0+1}, s{sWO}, {hex(p << 14)}')
                    I(f'buffer_load_dwordx4 v{vT1}, {US}, s{sT0+1} offen {s.md("w", "")} lds')
                    two = I(f'buffer_load_dwordx4 v{vT3}, {US}, s{sT0+1} offen offset:1024 {s.md("w", "")} lds')
                    if p == P['twp'][L]: k.put(s.touches(P['tw'][L], vMK if L else 47))
        return fo, two
    def qkv(s, L):
        I = s.I; k = s.k; P = s.P
        SK, SV, SQ = 0, 1, 2
        bA, bB = L, 1 - L
        aK, aV, aQ = vACC, vACC+16, vACC+32
        def wosrd(): I('s_load_dwordx2 s[84:85], s[0:1], 24\ns_mov_b32 s86, 0x80000\ns_mov_b32 s87, 0x20000')
        if L == 0:
            fill = s.front()
            with k.cap() as s.bw:
                so = s.SO(s, sT0+7)
                for jj, i in [(jj, i) for jj in range(4) for i in range(12)] + [(jj, i) for jj in range(4) for i in (12, 13)]:
                    s.ld(so, a_(aWD(jj, i//2, i % 2), 4), vL16, sWQ + jj, i*1024, s.md('d'))
        else:
            I(f's_lshl_b32 s{sT0+2}, s{sCG}, 12\ns_add_u32 s{sT0+2}, s{sT0+2}, s{sXIN}\ns_add_u32 s{sT0+2}, s{sT0+2}, {hex(bA*0x200000)}')
            s.poll(vFX, sFXC, 0, 2*L)
            s.stamp('x_ok')
            fill = [s.xloads(bA, 2, sT0+2)]
            k.wait(s.tok['K']); I('s_barrier')
            with k.cap() as f:
                I(f'v_and_b32 v{vT4}, 0x1f0, v{vL16}\nv_add_u32 v{vT4}, 0x20000, v{vT4}')
                I(f'ds_read_b128 v[96:99], v{vT4} offset:{SUMS[0] - 0x20000}\nds_read_b128 v[100:103], v{vT4} offset:{SUMS[1] - 0x20000}')
                s.stats(); s.meanop(vMU, vTMP, vTMP+2)
                for r in range(4): I(f'v_mov_b32 v{104+r}, v{vMU}')
                I(f'v_rsq_f32 v{vRSTD}, v{vTMP+1}')
                I(f'v_mul_f32 v{vC}, s{sLOG2E}, v{vRSTD}')
            fill.append((f, 44, 60))
        fill.append((s.touches(P['tk'][L]), P['tkg'][L], 63))
        if L == 0: s.gtile(0)
        else: s.tok[0] = None
        steps = []
        for kc in range(32): steps += [(SV, kc, aV, kc == 0), (SK, kc, aK, kc == 0)]
        base, _ = s.gemm(steps, {P['kf'][L]: (64, [])} if P['kf'][L] else {})
        k.weave(base, *fill)
        if L == 0:
            I(f'v_mfma_f32_32x32x16_bf16 {v(aV,16)}, a[32:35], a[24:27], {v(aV,16)}\nv_mfma_f32_32x32x16_bf16 {v(aK,16)}, a[28:31], a[24:27], {v(aK,16)}')
        else:
            I(f'v_mfma_f32_32x32x16_bf16 {v(aV,16)}, v[100:103], v[104:107], {v(aV,16)}\nv_mfma_f32_32x32x16_bf16 {v(aK,16)}, v[96:99], v[104:107], {v(aK,16)}')
        s.stamp('kv_gemm')
        if L == 0: wosrd()
        wob, kb = vXB + 64, vXB
        fo, two = s.wodma(L, P.get('so1', 0)*L, 8)
        with k.cap() as fx:
            I('v_bfe_u32 v126, v0, 2, 2\nv_lshrrev_b32 v125, 5, v0\nv_lshl_or_b32 v126, v125, 3, v126\nv_bfe_u32 v125, v0, 4, 1\nv_lshl_or_b32 v126, v126, 2, v125')
            I('v_and_b32 v125, 1, v0\nv_lshl_or_b32 v126, v126, 1, v125\nv_bfe_u32 v125, v0, 1, 1\nv_lshl_or_b32 v126, v126, 1, v125')
            with k.group(): I(f's_and_b32 s{sT0+3}, s{sR}, 1\ns_mul_i32 s{sT0+3}, s{sT0+3}, {hex(WOX[L])}\ns_or_b32 s{sT0+3}, s{sT0+3}, s{sM0}\nv_lshl_add_u32 v125, v126, 3, s{sT0+3}')
            I(f'v_xor_b32 v126, {hex(WOX[L])}, v125')
        def otr():
            k.wait(two)
            for kk in range(8):
                for ct in range(2):
                    for r in range(2): t = I(f'ds_read_b64_tr_b16 {v(wob+8*kk+4*ct+2*r,2)}, v{125 + (kk >> 2)} offset:{(kk & 3)*2048 + ct*64 + r*512}')
            return t
        on = P['on'][L]
        with k.cap() as f:
            for r in range(0, 16, 2): I(f'v_pk_mul_f32 {v(aV+r,2)}, {v(aV+r,2)}, {v(vRSTD,2)} op_sel_hi:[1,0]')
            for r in range(8): I(f'v_cvt_pk_bf16_f32 v{aV+r}, v{aV+2*r}, v{aV+2*r+1}')
            I(f'ds_write_b128 v{vPHW}, {v(aV,4)} offset:{4*PS}\nds_write_b128 v{vPHW}, {v(aV+4,4)} offset:{5*PS}')
            tw = []
            s.phi(aK, vACC+32, vACC+48, vTMP, emit=lambda n: tw.append(I(f'ds_write_b128 v{vPHW}, {v(vTMP+4*n,4)} offset:{n*PS}')))
            for r in range(4): I(f'v_mov_b32 v{72+r}, s{sONES}')
        if L == 0:
            assert P['op'] == 0 or P['kf'][0]
            k.sprinkle(f, fo[:P['op']], *P['tp'][1:]); fo = fo[P['op']:]; on -= P['op']
        else:
            s.gtile(1); s.gtile(2)
            assert on == 0 or P['kf'][1]
            k.sprinkle(f, fo[:on], 2, P['oe']); fo = fo[on:]
        k.wait(tw[-1])
        I('s_barrier')
        s.stamp('phik')
        for u in range(4):
            for p in range(2):
                I(f'ds_read_b64_tr_b16 {v(96+4*u+2*p,2)}, v{vTRA} offset:{u*512+p*64}')
            for p in range(2):
                I(f'ds_read_b64_tr_b16 {v(112+4*u+2*p,2)}, v{vTRB} offset:{u*512+p*64}')
        for u in range(4):
            I(f'v_mfma_f32_16x16x32_bf16 v[64:67], {v(96+4*u,4)}, {v(112+4*u,4)}, {"0" if u == 0 else "v[64:67]"}')
            I(f'v_mfma_f32_16x16x32_bf16 v[68:71], v[72:75], {v(96+4*u,4)}, {"0" if u == 0 else "v[68:71]"}')
        I(f's_sub_u32 s{sT0}, s{sKVP}, s{sW}\ns_lshl_b32 s{sT0}, s{sT0}, 9\ns_add_u32 s{sT0}, s{sT0}, {hex(KVP - KVA + L*0x100000)}')
        I(f's_lshl_b32 s{sT0+3}, s{sKVP}, 6\ns_add_u32 s{sT0+3}, s{sT0+3}, {hex(KVZ + L*0x100000)}')
        I('v_cvt_pk_bf16_f32 v112, v64, v65\nv_cvt_pk_bf16_f32 v113, v66, v67\nv_mov_b32 v114, v68')
        I(f'buffer_store_dwordx2 v[112:113], v{vKVW}, {WS}, s{sT0} offen sc1\nbuffer_store_dword v114, v{vFX}, {WS}, s{sT0+3} offen sc1')
        s.stamp('kvpub')
        s.wob = wob; zb = kb + 32; sel = kb + 40
        def kvld(r):
            with k.group():
                if r < 8: I(f's_xor_b32 s{sT0}, s{sKVC}, {hex(L*0x100000 + (3 - r//2)*2048)}\nbuffer_load_dwordx4 {v(kb+4*r,4)}, v{vPUB}, {WS}, s{sT0} offen offset:{256*(r & 1)} {s.md("k")}')
                else: I(f's_lshr_b32 s{sT0}, s{sKVP}, 4\ns_lshl_b32 s{sT0}, s{sT0}, 10\ns_add_u32 s{sT0}, s{sT0}, {hex(KVZ + L*0x100000)}\nbuffer_load_dwordx4 {v(zb,4)}, v{vL16}, {WS}, s{sT0} offen {s.md("k")}')
        with k.cap() as fk:
            for r in P['ko']: kvld(r)
        with k.cap() as fs:
            I(f'v_and_b32 v{sel+8}, 1, v0\nv_lshlrev_b32 v{sel+8}, 4, v{sel+8}\nv_lshlrev_b32 v{sel+8}, v{sel+8}, s{sSELLO}\nv_bfe_u32 v{sel+9}, v0, 1, 3')
            for r in range(8):
                with k.group(): I(f'v_cmp_eq_u32 vcc, {r}, v{sel+9}\nv_cndmask_b32 v{sel+r}, 0, v{sel+8}, vcc')
        assert P['ot'] == (0, 0)
        if L == 0:
            I(f'v_add_u32 v{vWR}, 0x10000, v{vWR}\nv_add_u32 v{vWR+1}, 0x10000, v{vWR+1}\nv_add_u32 v{vWW}, 0x10000, v{vWW}')
            with k.cap() as fa: s.uaddr()
            with k.cap() as f: t = s.lbuild(s.tok['Q0'], SQ, 16, 3)
            k.weave(f, (fa[:8], 0, 2), (fa[8:], 11, 15), (fo[:on], 0, 15)); fo = fo[on:]
            k.wait(t); I('s_barrier')
            s.stamp('qbuild')
            with k.cap() as fu: tu = s.uproc()
            with k.cap() as ff:
                with k.group():
                    if P.get('xs'): s.stamp('ff0')
                    k.wait(tu)
                    if P.get('xs'): s.stamp('ff1')
                    I(f's_barrier\ns_lshl_b32 s{sT0+3}, s2, 8\ns_lshl_b32 s{sT0+4}, s{sW}, 28\ns_add_u32 s{sT0+3}, s{sT0+3}, s{sT0+4}\ns_add_u32 s{sT0+3}, s{sT0+3}, {hex(FU)}')
                    I(f'v_mov_b32 v116, s{sTAG}\nv_lshlrev_b32 v117, 2, v0\nbuffer_store_dword v116, v117, {WS}, s{sT0+3} offen sc1')
            with k.cap() as fy:
                I(f'v_and_b32 v122, 7, v0\nv_min_u32 v127, 2, v122\nv_bfe_u32 v121, v0, 3, 1\nv_mad_u32_u24 v127, v121, 28, v127')
                with k.group(): I(f's_mul_i32 s{sT0+3}, s{sJ}, 7\ns_lshr_b32 s{sT0+3}, s{sT0+3}, 2\nv_add_u32 v127, s{sT0+3}, v127')
                with k.group(): I(f'v_lshl_add_u32 v121, v122, 3, s{sCG}\nv_cmp_lt_u32 vcc, 15, v0\nv_cndmask_b32 v127, v127, v121, vcc')
                with k.group(): I(f's_lshl_b32 s{sT0+3}, s{sW}, 6\nv_add_u32 v127, s{sT0+3}, v127')
                I(f'v_lshlrev_b32 v127, 8, v127')
            if s.stop == 'kv0':
                k.put(fu); k.put(ff); return True
            with k.cap() as f1:
                so = s.SO(s, sT0+2)
                s.ld(so, v(vRES, 4), vNAT, sNAT, 0, srdn=XS); s.ld(so, v(vRES+4, 4), vNAT, sNAT, 64, srdn=XS)
                with k.group(): I(f'v_and_b32 v{vMK}, 28, v{vFX}\ns_lshl_b32 s{sT0+3}, s{sG}, 5\nbuffer_load_dword v{vMK}, v{vMK}, {DS}, s{sT0+3} offen sc1')
                I(f'ds_read_b128 a[28:31], v{vSR} offset:{SUMS[3] - 0x20000}')
            assert P['og'][1] > P['ub']
            fill = [(fu[:8], 0, P['ub']), (fu[8:], P['ub'] + 1, 19), (f1, 27, 30), (fx + fy, 6, 30), (fs, 14, 30), (fo[:P['og'][0]], P['og'][1], 28)]; fo = fo[P['og'][0]:]
        else:
            with k.cap() as f1:
                I(f'v_and_b32 v{vT4}, 0x1f0, v{vL16}\nv_add_u32 v{vT4}, 0x20000, v{vT4}\nds_read_b128 v[64:67], v{vT4} offset:{SUMS[3] - 0x20000}')
                for r in range(4): I(f'v_mov_b32 v{68+r}, v{vMU}')
            fill = [(fo, *P['tb'][1:]), (fk[:P['kn']], P['k0'], 31), (f1 + fx, 10, 28), (fs, 14, 30)]
        base, _ = s.gemm([(SQ, kc, aQ, kc == 0) for kc in range(32)])
        k.weave(base, *fill)
        if L == 0: I(f'v_mfma_f32_32x32x16_bf16 {v(aQ,16)}, a[28:31], a[24:27], {v(aQ,16)}')
        else: I(f'v_mfma_f32_32x32x16_bf16 {v(aQ,16)}, v[64:67], v[68:71], {v(aQ,16)}')
        s.stamp('q_gemm')
        with k.cap() as f: s.phi(aQ, vACC, vACC+16, vTMP)
        if L == 0:
            with k.cap() as f2: k.sprinkle(f, ff, P['fg'], 1)
            with k.cap() as f3: k.sprinkle(f2, fo, *P['oq'][0])
            k.sprinkle(f3, fk, *P['kq'][0])
            I(f's_mul_i32 s{sT0+3}, s{sMARK}, 0x01010101\nv_cmp_ne_u32 vcc, s{sT0+3}, v{vMK}\ns_or_b32 s{sSLOW}, vcc_lo, vcc_hi')
        else: k.sprinkle(f, fk[P['kn']:], *P['kq'][1])
        s.stamp('phiq')
        def fuld(): return I(f's_mov_b32 s{sT0+4}, {hex(FU)}\nbuffer_load_dword v112, v127, {WS}, s{sT0+4} offen sc1')
        if L == 0 and P['fup'] == 0: fuld()
        if P['ot'][L] == 0: tot = otr()
        MK = [76] + list(range(88, 102, 2))
        Lb = s.label('KV'); D = s.label('KVD')
        I(f's_mov_b32 s{sT0+9}, 0')
        I(f'{Lb}:')
        first = True
        for r in P['ko']:
            if r < 8:
                I(f'v_mfma_f32_16x16x32_bf16 v[64:67], {v(sel+4*(r & 1),4)}, {v(kb+4*r,4)}, {"0" if first else "v[64:67]"}'); first = False
            else:
                I(f'v_permlane32_swap_b32 v{zb}, v{zb+1}\nv_permlane32_swap_b32 v{zb+2}, v{zb+3}\nv_add_f32 v68, v{zb}, v{zb+1}\nv_add_f32 v69, v{zb+2}, v{zb+3}')
                I('v_permlane16_swap_b32 v68, v69\nv_add_f32 v68, v68, v69')
                for n in (4, 8): I(f'v_add_f32_dpp v68, v68, v68 row_ror:{n} row_mask:0xf bank_mask:0xf')
        I(f'v_add_f32 v69, v68, v64\nv_cmp_u_f32 vcc, v69, v66\ns_cbranch_vccz {D}')
        with k.cond():
            kvld(8)
            for r in range(8):
                I(f'v_max3_u32 v69, v{kb+4*r}, v{kb+4*r+1}, v{kb+4*r+2}\nv_max_u32 v69, v69, v{kb+4*r+3}\nv_cmp_eq_u32 {s_(MK[r],2)}, -1, v69')
            for r in range(8):
                I(f's_mov_b64 exec, {s_(MK[r],2)}'); kvld(r)
            I('s_mov_b64 exec, -1\ns_waitcnt vmcnt(0)')
            I(f's_add_u32 s{sT0+9}, s{sT0+9}, 1\ns_cmp_lt_u32 s{sT0+9}, s{sLIM}\ns_cbranch_scc1 {Lb}\ns_mov_b32 s{sLIM}, 1')
        I(f'{D}:')
        k.retire()
        s.stamp('kv_ok')
        if L == 0 and P['fup']: fuld()
        if L:
            if P['ot'][L] == 0: k.wait(tot)
            k.put(s.take(P['t1'][L] if P['ot'][L] == 0 else min(8, P['t1'][L])))
        I('v_cvt_pk_bf16_f32 v70, v64, v65\nv_cvt_pk_bf16_f32 v71, v66, v67\nv_cvt_pk_bf16_f32 v68, v68, v68')
        I(f'ds_write_b64 v{vKVW}, v[70:71]')
        t = I(f'ds_write_b16 v{vZW}, v68')
        k.wait(t); I('s_barrier')
        aRING = s.ring
        for n in range(4):
            I(f'ds_read_b128 {a_(aRING+8*n,4)}, v{vZR} offset:{n*16}\nds_read_b128 {a_(aRING+8*n+4,4)}, v{vKVR} offset:{n*256}')
        for n in range(4):
            I(f'v_mfma_f32_32x32x16_bf16 v[80:95], {a_(aRING+8*n,4)}, {v(vTMP+4*n,4)}, {"0" if n == 0 else "v[80:95]"}')
        for n in range(4):
            I(f'v_mfma_f32_32x32x16_bf16 v[64:79], {a_(aRING+8*n+4,4)}, {v(vTMP+4*n,4)}, {"0" if n == 0 else "v[64:79]"}')
        I('v_add_f32 v80, 0x358637bd, v80\nv_add_f32 v88, 0x358637bd, v88\nv_rcp_f32 v80, v80\nv_rcp_f32 v88, v88')
        so = s.SO(s, sT0)
        I(f's_lshl_b32 s{sT0+3}, s{sJ}, 11\ns_add_u32 s{sT0+3}, s{sT0+3}, s{sXIN}')
        for c in range(2):
            for r in range(0, 8, 2): I(f'v_pk_mul_f32 {v(64+8*c+r,2)}, {v(64+8*c+r,2)}, {v(80+8*c,2)} op_sel_hi:[1,0]')
            for r in range(4): I(f'v_cvt_pk_bf16_f32 v{96+4*c+r}, v{64+8*c+2*r}, v{64+8*c+2*r+1}')
            t = s.pub(s.ld(so, v(96+4*c, 4), vL16, sT0+3, bB*0x200000 + c*1024, op='buffer_store_dwordx4'))
        k.wait(t)
        s.flag(sFOP, 0, L + 1)
        s.stamp('opub')
        if L == 0:
            Lb = s.label('FU'); D = s.label('FUD')
            I(f's_mov_b32 s{sT0+9}, 0\n{Lb}:\nv_cmp_ne_u32 vcc, s{sTAG}, v112\ns_cbranch_vccz {D}')
            with k.cond():
                fuld(); I('s_waitcnt vmcnt(0)')
                I(f's_add_u32 s{sT0+9}, s{sT0+9}, 1\ns_cmp_lt_u32 s{sT0+9}, s{sLIM}\ns_cbranch_scc1 {Lb}\ns_mov_b32 s{sLIM}, 1')
            I(f'{D}:')
            k.retire()
            s.stamp('fu_ok')
            I(f's_lshr_b32 s{sT0}, s{sRK}, 3' + ('' if s.P['ws'] == 1 else f'\ns_xor_b32 s{sT0}, s{sT0}, s{sCG}\ns_and_b32 s{sT0}, s{sT0}, {3 if s.P["ws"] else 0}'))
            for q in range(4):
                I(f's_xor_b32 s{sT0+2}, s{sT0}, {q}\ns_mul_i32 s{sT0+2}, s{sT0+2}, 7168\ns_add_u32 s{sHQ+q}, s{sHIN}, s{sT0+2}\ns_lshl1_add_u32 s{sWQ+q}, s{sT0+2}, s{sWD}')
        if P['ot'][L]: tot = otr()
        k.wait(tot)
        k.put(s.take(P['t2'][L]))
        k.put(s.takew(P['w2']))
        k.put(s.touches(P['to'][L]))
        return s.stop == f'o{L}'

    def red_write(s, slot, rt2, ct):
        I = s.I; a = vACC + 32*rt2 + 16*ct; t = None
        for h in range(2):
            for r in range(4): I(f'v_cvt_pk_bf16_f32 v{a+8*h+r}, v{a+8*h+2*r}, v{a+8*h+2*r+1}')
            t = I(f'ds_write_b128 v{vT1}, {v(a+8*h,4)} offset:{rt2*16384 + (2*ct+h)*512}')
        return t
    def red_finish(s, slot, scale, L, buf, p, final, pre, after=None, idle=None):
        I = s.I; k = s.k; rb = vXB + 64
        I(f's_add_u32 s{sT0+3}, s{sM0}, {hex(slot*0x8000)}\nv_add_u32 v{vT0}, s{sT0+3}, v{vL16}')
        k.wait(*pre); I('s_barrier')
        if scale: I(f'ds_read_b32 v{vT2}, v{vRSR}')
        t = None
        for c in range(2):
            for src in range(4): t = I(f'ds_read_b128 {v(rb+16*c+4*src,4)}, v{vT0} offset:{src*2048 + c*1024}')
        so = s.SO(s, sT0)
        for c in range(2):
            for src in range(4):
                for e in range(8):
                    d = (vACC if scale else vRES) + 8*c + e
                    I(f'v_dot2_f32_bf16 v{d}, v{rb+16*c+4*src+e//2}, s{sSELHI if e & 1 else sSELLO}, {"0" if scale and src == 0 else v(d)}')
            if scale:
                for e in range(0, 8, 2): I(f'v_pk_fma_f32 {v(vRES+8*c+e,2)}, {v(vACC+8*c+e,2)}, {v(vT2,2)}, {v(vRES+8*c+e,2)} op_sel_hi:[1,0,1]')
            for r in range(4): I(f'v_cvt_pk_bf16_f32 v{vTMP+4*c+r}, v{vRES+8*c+2*r}, v{vRES+8*c+2*r+1}')
            if final: s.ld(so, v(vTMP+4*c, 4), vNAT, sNAT, 64*c, s.P['om'], op='buffer_store_dwordx4', srdn=OS)
            else: s.pub(s.ld(so, v(vTMP+4*c, 4), vPUB, sXPUB, buf*0x200000 + 2048*c, op='buffer_store_dwordx4'))
        if final: return
        for r in range(8):
            I(f'v_dot2_f32_bf16 v{vT2}, v{vTMP+r}, s{sONES}, {"0" if r == 0 else v(vT2)}')
            I(f'v_dot2_f32_bf16 v{vT3}, v{vTMP+r}, v{vTMP+r}, {"0" if r == 0 else v(vT3)}')
        I(f'v_permlane32_swap_b32 v{vT2}, v{vT3}\nv_add_f32 v{vT2}, v{vT2}, v{vT3}\nv_mov_b32 v{vT3}, v{vT2}')
        I(f'v_permlane16_swap_b32 v{vT2}, v{vT3}\nv_add_f32 v{vT2}, v{vT2}, v{vT3}')
        t2 = s.pub(s.ld(so, v(vT2), vSTW, sSTPUB, buf*0x20000, op='buffer_store_dword'))
        if idle: idle()
        k.wait(t2)
        s.flag(sFXP, 0, p)
        if after: after()

    def wo(s, L):
        I = s.I; k = s.k
        SQ = 3 - L; bA, bB = L, 1 - L
        I(f'v_add_u32 v{vT1}, {hex(SQ*0x8000)}, v{vREDW}')
        if L == 0:
            for i in range(7, -1, -1): I(f'v_and_b32 v{vRES+2*i+1}, 0xffff0000, v{vRES+i}\nv_lshlrev_b32 v{vRES+2*i}, 16, v{vRES+i}')
        s.poll(vFO, sFOC, 0, L + 1)
        s.stamp('o_ok')
        so = s.SO(s, sT0); wob = s.wob; ob = 2*vXB + 64 - wob
        with k.cap() as fl:
            for rt2 in range(2):
                for kk in range(8): s.ld(so, v(ob + 32*rt2 + 4*kk, 4), vL16, sXO, bB*0x200000 + rt2*0x8000 + kk*1024, 'sc1')
        k.put(fl[:8])
        with k.cap() as base:
            for rt2 in range(2):
                for kk in range(8):
                    for ct in range(2):
                        a = vACC + 32*rt2 + 16*ct
                        I(f'v_mfma_f32_32x32x16_bf16 {v(a,16)}, {v(wob+8*kk+4*ct,4)}, {v(ob+32*rt2+4*kk,4)}, {"0" if kk == 0 else v(a,16)}')
        with k.cap() as f1:
            s.red_write(SQ, 0, 0); s.red_write(SQ, 0, 1)
        k.weave(base, (fl[8:], 0, 15), (s.take(s.P['t3'][L]) + s.takew(s.P['w3']), 18, 31), (f1, 19, 30))
        s.red_write(SQ, 1, 0); t = s.red_write(SQ, 1, 1)
        s.stamp('wo_gemm')
        def after():
            if L == 0:
                I(f's_mul_i32 s{sT0+3}, s{sJ}, 896\ns_lshl_b32 s{sT0+4}, s{sW}, 8\ns_add_u32 s{sT0+3}, s{sT0+3}, s{sT0+4}\nv_lshlrev_b32 v{vT2}, 2, v0')
                for q in range(4):
                    I(f's_add_u32 s{sT0+3}, s{sT0+3}, {hex(CS if q == 0 else 14336)}\nbuffer_load_dword v{56+q}, v{vT2}, {WS}, s{sT0+3} offen sc1')
            assert s.gslot(L, 1 + 2*L) == SQ; s.gtile(1 + 2*L)
            k.put(s.take(s.P['t4'][L])); k.put(s.takew(s.P['w4']))
        s.red_finish(SQ, False, L, bA, 2*L + 1, False, [t], after)
        s.stamp('x1pub')
        return s.stop == f'x{2*L+1}'

    def gu_epi(s, L, t):
        I = s.I; a = vACC + 16*(t % 4)
        for r in range(8): I(f'v_max_f32 v{a+r}, 0, v{a+r}')
        for r in range(8): I(f'v_mul_f32 v{a+r}, v{a+r}, v{a+8+r}')
        for r in range(4): I(f'v_cvt_pk_bf16_f32 v{a+8+r}, v{a+2*r}, v{a+2*r+1}')
        if s.P['hm'][L]: return s.ld(s.soH, v(a+8, 4), vL16, sHPUB, s.ord(L)[t]*1024, s.P['hm'][L], op='buffer_store_dwordx4')
        return s.pub(s.ld(s.soH, v(a+8, 4), vL16, sHPUB, s.ord(L)[t]*1024, op='buffer_store_dwordx4'))
    def ord(s, L): return s.P['o1'] if L else range(7)
    def gslot(s, L, t): return (3, 0, 1, 2)[t % 4] if L else (0, 3)[t % 2]
    def gtile(s, t): s.bg_tile(t, sGU, s.ord(s.L)[t]*0x8000, s.gslot(s.L, t))
    def gu(s, L):
        I = s.I; k = s.k; P = s.P
        slot = lambda t: s.gslot(L, t)
        bA = L; n1 = P['n1'][L]; ns = 2 + 2*L; E1 = 32*n1; EM = max(E1, 64)
        acc = lambda t: vACC + 16*(t % 4)
        s.poll(vFX, sFXC, 0, 2*L + 1)
        s.stamp('x1_ok')
        fill = [s.xloads(bA, n1)]
        nb = L and P['fb']
        k.wait(*[s.tok[t] for t in range(3 if nb else n1)]); I('s_barrier')
        fill.append((s.take(99), *(P['tr'] if nb else (E1*5//8, E1 - 4))))
        for names, g in P['tg'][L]: fill.append((s.touches(names), g, g + len(names) - 1))
        tcs = []
        if L == 0:
            with k.cap() as f:
                I(f'v_add_f32 v56, v56, v57\nv_add_f32 v58, v58, v59\nv_add_f32 v56, v56, v58')
                I('v_cvt_pk_bf16_f32 v57, v56, v56\nv_and_b32 v57, 0xffff0000, v57\nv_sub_f32 v57, v56, v57\nv_cvt_pk_bf16_f32 v57, v56, v57')
                with k.group(): I(f's_lshl_b32 s{sT0+3}, s{sW}, 8\ns_add_u32 s{sT0+3}, s{sT0+3}, {hex(WPH)}\nv_add_u32 v{vT2}, s{sT0+3}, v{vT2}')
                tcs.append(I(f'ds_write_b32 v{vT2}, v57'))
            fill.append((f, 24, 36))
        with k.cap() as f:
            s.stats(); s.meanop(60, vTMP, vTMP+2)
            I(f'v_rcp_f32 v{vRSTD}, v{vTMP+1}')
            I(f'v_mov_b32 v61, 0\nv_mov_b32 v62, 0\nv_mov_b32 v63, 0\nv_and_b32 v{vT2}, 31, v0\nv_lshlrev_b32 v{vT2}, 2, v{vT2}\nv_add_u32 v{vT2}, {hex(WPH)}, v{vT2}')
            s.tRS = I(f'ds_write_b32 v{vRSW}, v{vRSTD}')
        fill.append((f, EM - 27, EM - 5))
        steps = []
        for kc in range(32): steps += [(slot(t), kc, acc(t), kc == 0) for t in range(n1)]
        for t in range(n1, 7): steps += [(slot(t), kc, acc(t), kc == 0) for kc in range(32)]
        fences = {32*t - 4: (32*t, tcs if 32*t == EM else []) for t in range(n1, 7)}
        bub = n1 == ns; g = 0; dm = {}
        if nb:
            for t in range(4, 7):
                s.gtile(t); a, b = P['fd'][t - 4]; fill.append((s.take(8), a, b))
                assert any(max(32*(t - 3), E1) <= g < a for g, _ in nb) and any(t in ts and b <= g for g, ts in nb) and (t == 4 or a > P['fd'][t - 5][1])
            fences = {g: (32*min(ts, default=7), [s.tok[t] for t in ts], 0) for g, ts in nb}
            assert sorted(t for g, ts in nb for t in ts) == [3, 4, 5, 6]
        for t in range(n1, 7 if not nb else 0):
            if t >= ns:
                s.gtile(t); dm[t] = s.take(8)
                g = max(g, max(32*(t - ns + 1), E1) - 3)
                if bub and t == ns: fill.append((dm[t], g, g + 2))
                elif not (bub and t == ns + 1): fill.append((dm[t], g, g + P['dl'][L])); g += P['dl'][L] + 1
            if bub and t == ns: fences[32*t - 1] = (32*t, [s.tok[t]])
            else: fences[32*t - 4] = (32*t, fences[32*t - 4][1] + [s.tok[t]])
        s.soH = s.SO(s, sT0+4)
        th = {}; fb = []; ge = 0
        for t in range(7):
            r = 56 + 2*(t == 1); early = 32*t < EM
            with k.cap() as f:
                if t < 2: I(f'ds_read2_b32 {v(r,2)}, v{vT2} offset0:{32*s.ord(L)[t]} offset1:{32*s.ord(L)[t]}')
                else: I(f'ds_read_b32 v{r}, v{vT2} offset:{128*s.ord(L)[t]}')
                with k.group(): I(f'v_mfma_f32_32x32x16_bf16 {v(acc(t),16)}, {v(r,4)}, v[60:63], {v(acc(t),16)}')
            gm = (EM, EM + 1, EM + 5)[t] if early else 32*t + 24
            gr = EM - 3 if t < 2 else gm - 4
            fill.append(([f[0]], gr, gr))
            if bub and early: fb.insert(t, f[1])
            else: fill.append(([f[1]], gm, gm))
            if t < 6:
                with k.cap() as f: th[t] = s.gu_epi(L, t)
                ge = max(ge, (EM if early else 32*t + 32) + 4)
                if bub and early: fb += f
                else: fill.append((f, ge, ge + 9 + (not early))); ge += 10
        if bub:
            with k.cap() as f: k.sprinkle(fb, dm[ns + 1], 1, 5)
            fill.append((f, E1 - 1, E1 - 1))
        if L == 0:
            for n, g0, g1 in P['wl']: fill.append((s.takew(min(n, len(s.bw) - 8)), g0, g1))
            assert len(s.bw) == 8
        for g in P.get('gs', ()):
            with k.cap() as f: s.stamp(f'g{g}')
            fill.append((f, g, g))
        base, last = s.gemm(steps, fences)
        ne, e0, e1 = s.P['he'][L]; g4, gp, gc, g6 = s.P['hg'][L]
        s.hso = [s.SO(s, sT0), s.SO(s, sT0+2)]
        with k.cap() as f:
            with k.group():
                I(f's_add_u32 s{sT0+5}, s{sFOP}, {hex(FH - FO)}\ns_add_u32 s{sT0+6}, s{sFOC}, {hex(FH - FO)}')
                if ne: k.wait(th[3]); s.flag(sT0+5, 0, 7*L + 4)
            with k.group(): k.wait(th[5]); s.flag(sT0+5, 0, 7*L + 6)
            if ne:
                s.hpoll(); s.hcheck(7*L + 4)
                for i in range(ne): s.hld(i)
        for g, t0, t1 in s.P['ht'][L]:
            if g < 224:
                with k.cap() as ft: s.htouch(th[t1], t0, t1)
                fill.append((ft, g, g))
        fill.append((f[:1], g4, g4))
        if ne:
            assert all(e0 + (i*(e1 - e0 + 1))//ne >= 192 + i for i in range(ne)) and e0 >= gc > gp > g4
            fill += [(f[2:3], gp, gp), (f[3:4], gc, gc), (f[4:], e0, e1)]
        if g6 < 224: fill.append((f[1:2], g6, g6))
        k.weave(base, *fill)
        s.f6 = f[1:2]
        with k.cap() as s.fe6: s.th6 = s.gu_epi(L, 6)
        if not P['h0'] or s.stop == f'h{L}':
            k.wait(last); I('s_barrier'); k.put(s.fe6); s.fe6 = []
        s.stamp('gu')
        return s.stop == f'h{L}'

    @property
    def horder(s):
        h0, tl = s.P['h0'], s.P['tl']
        return ([(t, jj, rt2) for rt2 in range(2) for t in range(h0) for jj in range(4)] + [(t, jj, rt2) for t in range(h0, 7 - tl) for jj in range(4) for rt2 in range(2)]
                + [(t, jj, rt2) for rt2 in range(2) for t in range(7 - tl, 7) for jj in range(4)])
    def hld(s, i):
        t, jj, rt2 = s.horder[i]
        s.ld(s.hso[rt2], v(vXB + 4*(i % 32), 4), vL16, sHQ + jj, rt2*112*1024 + s.ord(s.L)[t]*1024, s.md('h'))
    def htouch(s, tok, t0, t1):
        with s.k.group():
            s.k.wait(tok)
            s.I(f'v_min_u32 v{vT3}, {8*(t1 - t0) + 7}, v0\nv_add_lshl_u32 v{vT3}, v{vT3}, {8*t0}, 7\nbuffer_load_dword v21, v{vT3}, {WS}, s{sHPUB} offen sc1')
    def hpoll(s): s.I(f'buffer_load_dword v{vT0}, v{vFO}, {WS}, s{sT0+6} offen sc1')
    def hcheck(s, p):
        D = s.label('HC')
        with s.k.group():
            s.check(vT0, p)
            s.I(f's_cbranch_vccz {D}')
            with s.k.cond(): s.poll(vFO, sT0+6, 0, p)
            s.I(f'{D}:')
    def down(s, L):
        I = s.I; k = s.k
        SR = s.gslot(L, 6); bB = 1 - L
        I(f'v_add_u32 v{vT1}, {hex(SR*0x8000)}, v{vREDW}')
        ne = s.P['he'][L][0]; p6, p7 = s.P['hp'][L]
        if not ne:
            s.poll(vFO, sT0+6, 0, 7*L + 6)
            s.flag(sT0+5, 0, 7*L + 7)
            s.stamp('h_ok')
        n = max(s.P['hf'], ne); hld = s.hld
        assert ne + n <= 48 and 32 < p7 < 48 and (not ne or n <= p6 < 32)
        for i in range(ne, n): hld(i)
        P = s.P; seen = set()
        def mm(i, ct):
            t, jj, rt2 = s.horder[i]; a = vACC + 32*rt2 + 16*ct
            I(f'v_mfma_f32_32x32x16_bf16 {v(a,16)}, {a_(aWD(jj, s.ord(L)[t], ct),4)}, {v(vXB+4*(i%32),4)}, {v(a,16) if a in seen else "0"}'); seen.add(a)
        with k.cap() as base:
            for i in range(56):
                mm(i, 0)
                if i < 52 or not P['tl']: mm(i, 1)
                if i in P.get('ds', ()): s.stamp(f'd{i}')
                if i == P['hg'][L][3] - 224: k.put(s.f6)
                if ne and i == (P['f7'][L] if P['h0'] else ne): k.wait(s.th6); s.flag(sT0+5, 0, 7*L + 7)
                if P['h0'] and i == P['bi'][L]: I('s_barrier')
                if i + n == p7 or ne and i + n == p6: s.hpoll()
                if ne and i + n == 32: s.hcheck(7*L + 6)
                if i + n == 48: s.hcheck(7*L + 7)
                if i + n < 56: hld(i + n)
                if L == 0:
                    w0, w1 = P['wd']; assert w0 + 7*w1 < 47
                    if i >= w0 and (i - w0) % w1 == 0: k.put(s.takew(1))
            if P['tl']:
                for i in range(52, 56): mm(i, 1)
        rw = []
        for q in range(4):
            with k.cap() as f: t = s.red_write(SR, q >> 1, q & 1)
            rw.append((f, *(((105, 106), (107, 108), (109, 111), (999, 999))[q] if P['tl'] else (999, 999))))
        k.weave(base, (s.fe6, 1, 8*P['h0'] - 1), *rw)
        s.stamp('dn_gemm')
        def after():
            for i in range(8): s.tok['K'] = I(f'ds_write_b128 v{vT0}, {a_(aKP + 4*i, 4)} offset:{i*1024}')
        s.red_finish(SR, True, L, bB, 2*L + 2, L == 1, [t, s.tRS], None, after)
        s.stamp('x2pub')
        return s.stop == f'x{2*L+2}'

    def gen(s):
        I = s.I
        for L in range(2):
            s.L = L; s.ring = 192 + 32*L
            if s.qkv(L) or s.wo(L) or s.gu(L) or s.down(L): break
        I(f's_or_b32 s64, s{sR}, s{sJ}\ns_or_b32 s64, s64, s{sW}\ns_cmp_lg_u32 s64, 0\ns_cbranch_scc1 M_FIN')
        with s.k.cond():
            I(f's_add_u32 s64, s{sE}, 1\nv_mov_b32 v{vT5}, s64\nbuffer_store_dword v{vT5}, v{vL0}, {WS}, 0 offen')
        I('M_FIN:')
        if s.ts:
            s.stamp('end')
            I('s_memrealtime s[78:79]\ns_waitcnt lgkmcnt(0)\nv_writelane_b32 v23, s78, 61')
            I(f'v_writelane_b32 v23, s{sLIM}, 62\nv_writelane_b32 v23, s{sSLOW}, 63')
            I(f's_lshl_b32 s64, s{sR}, 4\ns_add_u32 s64, s64, s{sJ}\ns_lshl_b32 s64, s64, 2\ns_add_u32 s64, s64, s{sW}\ns_lshl_b32 s64, s64, 8\ns_add_u32 s64, s64, {hex(TS)}')
            I(f'v_lshlrev_b32 v{vT0}, 2, v0\nbuffer_store_dword v23, v{vT0}, {WS}, s64 offen sc1')
        if s.P.get('wb'): I('s_waitcnt vmcnt(0)\nbuffer_wbl2 sc1\ns_waitcnt vmcnt(0)')
        if s.P.get('dbg'):
            I(f's_cmp_lg_u32 s2, {s.P.get("dwg", 0)}\ns_cbranch_scc1 DB_END\ns_cmp_lg_u32 s{sW}, 0\ns_cbranch_scc1 DB_END')
            with s.k.cond():
                I('v_readlane_b32 s65, v23, 0\nv_mov_b32 v24, 0')
                for n, i in enumerate(s.P['dbg']): I(f'v_readlane_b32 s66, v23, {i}\ns_sub_u32 s66, s66, s65\nv_writelane_b32 v24, s66, {n}')
                I(f'v_lshlrev_b32 v25, 2, v0\nbuffer_store_dword v24, v25, {DS}, 0 offen')
            I('DB_END:')
        dg = s.P.get('diag')
        if dg is not None:
            I(f's_cmp_lg_u32 s2, {s.P.get("dwg", 0)}\ns_cbranch_scc1 DG_END\ns_cmp_lg_u32 s{sW}, 0\ns_cbranch_scc1 DG_END')
            with s.k.cond():
                I('v_readlane_b32 s64, v23, 60\ns_add_u32 s64, s64, 10000')
                if dg == 'rt': I('v_readlane_b32 s65, v23, 60\nv_readlane_b32 s66, v23, 61\ns_sub_u32 s66, s66, s65\ns_lshl_b32 s66, s66, 2\ns_add_u32 s64, s64, s66')
                elif dg:
                    i = [n for n, nm in enumerate(s.tsnames) if nm == dg[0]][dg[1]]
                    I(f'v_readlane_b32 s65, v23, 0\nv_readlane_b32 s66, v23, {i}\ns_sub_u32 s66, s66, s65\ns_lshr_b32 s66, s66, 2\ns_min_u32 s66, s66, 100000\ns_add_u32 s64, s64, s66')
                gs = s.P.get('gstat')
                if gs:
                    i = 60 if gs[0] == 'start' else [n for n, nm in enumerate(s.tsnames) if nm == gs[0]][gs[1]]
                    I('s_sub_u32 s68, s64, 2500\ns_mov_b32 s67, 0\nDG_W:\ns_memrealtime s[78:79]\ns_waitcnt lgkmcnt(0)\ns_sub_u32 s66, s78, s68\ns_cmp_lt_u32 s66, 0x80000000\ns_cbranch_scc1 DG_W2')
                    I('s_add_u32 s67, s67, 1\ns_cmp_lt_u32 s67, 200000\ns_cbranch_scc1 DG_W\nDG_W2:')
                    I(f'v_lshlrev_b32 v25, 10, v0\nv_readlane_b32 s65, v23, 60')
                    for q in range(4):
                        I(f's_mov_b32 s66, {hex(TS + q*65536)}\nbuffer_load_dword v{32+q}, v25, {WS}, s66 offen offset:240 sc1\nbuffer_load_dword v{36+q}, v25, {WS}, s66 offen offset:{4*i} sc1')
                    I('s_waitcnt vmcnt(0)')
                    for q in range(8): I(f'v_subrev_u32 v{32+q}, s65, v{32+q}')
                    op = {'max': 'max_i32', 'min': 'min_i32', 'mean': 'add_u32'}[gs[2]]
                    for q in range(1, 4): I(f'v_min_i32 v32, v32, v{32+q}\nv_{op} v36, v36, v{36+q}')
                    I('v_readlane_b32 s68, v32, 0\nv_readlane_b32 s69, v36, 0\ns_mov_b32 s67, 1\nDG_R:\ns_nop 4\nv_readlane_b32 s70, v32, s67\nv_readlane_b32 s71, v36, s67\ns_nop 4')
                    I(f's_min_i32 s68, s68, s70\ns_{op} s69, s69, s71\ns_add_u32 s67, s67, 1\ns_cmp_lt_u32 s67, 64\ns_cbranch_scc1 DG_R')
                    if gs[2] == 'mean': I('s_ashr_i32 s69, s69, 8')
                    I('s_sub_u32 s69, s69, s68\ns_lshl_b32 s69, s69, 2\ns_min_u32 s69, s69, 100000\ns_add_u32 s64, s64, s69')
                I('s_mov_b32 s67, 0\nDG_L:\ns_memrealtime s[78:79]\ns_waitcnt lgkmcnt(0)\ns_sub_u32 s66, s78, s64\ns_cmp_lt_u32 s66, 0x80000000\ns_cbranch_scc1 DG_END')
                I('s_add_u32 s67, s67, 1\ns_cmp_lt_u32 s67, 200000\ns_cbranch_scc1 DG_L')
            I('DG_END:')
        I('s_waitcnt vmcnt(0)\nM_END:\ns_endpgm')
        return s.k

HEADER = open('cdna_kernels/' + NAME + '.s.ref').read().split('; Override')[0] if __name__ == '__main__' else ''

def build(stop=None, ts=False, header='', **kw):
    st = {}
    m = Main(stop, ts, **kw)
    main = m.gen().finish(st)
    txt = header
    ls = kw.get('lst', 0)
    if ls == 2: txt += '; @launch kernel=pre_kernel grid=(256,1,1) block=(64,1,1) lds=0\n'
    txt += f'; @launch {"kernel=" + NAME + "_kernel " if ls else ""}grid=(256,1,1) block=(256,1,1) lds={LDS_MAIN}\n'
    if ls == 3: txt += '; @launch kernel=pre_kernel grid=(256,1,1) block=(64,1,1) lds=0\n'
    txt += '.amdgcn_target "amdgcn-amd-amdhsa--gfx950"\n.text\n'
    if ls > 1: txt += head('pre_kernel') + 's_endpgm\n' + kd('pre_kernel', 8, 8, 16)
    txt += head(NAME + '_kernel') + main + '\nCODE_END:\n'
    txt += kd(NAME + '_kernel', 512, 256)
    return txt, (st, m.tsnames)

if __name__ == '__main__':
    txt, st = build(header=HEADER)
    out = sys.argv[1] if len(sys.argv) > 1 else 'cdna_kernels/' + NAME + '.s'
    open(out, 'w').write(txt); print(st, len(txt))
```

```python
import sys, contextlib
from asm import Asm, Ins
NAME = 'interleave_layers__linear_kernel_hedgehog__glu_gated_reglu__prompt'

FX, FO, FH, FU, S0 = 0x2000, 0x4000, 0x6000, 0x30000, 0x10000
CS = 0x20000
ST = 0x40000
XB = (0x200000, 0x400000)
KVP = 0x600000
KVZ = 0x680000
HB = 0x800000
WQKV, WO_P, WD_P, WGU = 0x1000000, 0x1180000, 0x1200000, 0x1400000
TS = 0x2000000
WS_SIZE = 0x10000000
OOB = 0x7ffffff0
XA = 0x20000; PS = 2112
KVA = 0x26400; ZA = 0x26C00; ZERO = 0x26D00; RS = 0x27100
SUMS = (0x27400, 0x27600, 0x27C00, 0x27E00); WPH = 0x27800
LDS_MAIN = 163840

def v(a, n=1): return f'v{a}' if n == 1 else f'v[{a}:{a+n-1}]'
def a_(a, n=1): return f'a{a}' if n == 1 else f'a[{a}:{a+n-1}]'
def s_(a, n=1): return f's{a}' if n == 1 else f's[{a}:{a+n-1}]'

def kd(name, vgpr, acc, sgpr=102):
    return f'''.section .rodata,"a"
.p2align 6
.amdhsa_kernel {name}
  .amdhsa_next_free_vgpr {vgpr}
  .amdhsa_next_free_sgpr {sgpr}
  .amdhsa_accum_offset {acc}
  .amdhsa_group_segment_fixed_size 0
  .amdhsa_kernarg_size 88
  .amdhsa_user_sgpr_count 2
  .amdhsa_user_sgpr_kernarg_segment_ptr 1
  .amdhsa_system_sgpr_workgroup_id_x 1
.end_amdhsa_kernel
.text
'''
def head(name):
    return f'.globl {name}\n.p2align 8\n.type {name},@function\n{name}:\n'

def srd(I, d, b, size):
    I(f's_mov_b32 s{d}, s{b}\ns_mov_b32 s{d+1}, s{b+1}\ns_mov_b32 s{d+2}, {hex(size)}\ns_mov_b32 s{d+3}, 0x20000')

WS, XS, OS, DS = 's[8:11]', 's[12:15]', 's[16:19]', 's[20:23]'
sW, sG, sRK, sR, sJ, sHB, sCG, sTAG, sE, sLIM = 24, 25, 26, 27, 28, 29, 30, 31, 32, 33
sQKV, sGU, sWO, sWD = 34, 35, 36, 37
sXIN, sXO, sXPUB, sSTIN, sSTPUB = 38, 39, 40, 41, 42
sHPUB, sHIN, sFXC, sFXP, sFOC, sFOP, sKVP, sKVC, sNAT, sM0 = 43, 44, 45, 46, 47, 48, 49, 50, 51, 52
sSELLO, sSELHI, sONES, sLOG2E, sOM, sSLOW, sMARK = 53, 54, 55, 56, 57, 58, 59
sT0 = 60
QS, US, PS_, DS2, CSRD = 's[80:83]', 's[84:87]', 's[88:91]', 's[72:75]', 's[4:7]'
sPO, sWM, sXB, sXM, sUB, sUST, sUD = 92, 96, 97, 98, 99, 100, 101
sHQ, sWQ = 72, 80
sUKC, sUCS, sUB2, sUD2 = 76, 77, 88, 89
vW0, vX0, vU0, vWR, vXR, vSW, vSR, vWW = 32, 34, 36, 38, 40, 44, 45, 46
vUR, vUD = 40, 42
vMU, vMK = 20, 22
vROW = 240
vL, vL16, vL16b, vFX, vFO, vL0, vSTL, vPUB, vPHW, vTRA, vTRB, vKVW, vZW, vKVR, vZR, vREDW, vNAT, vSTW, vRSW, vRSR = range(20)
vRSTD, vC, vT0, vT1, vT2, vT3, vT4, vT5 = range(24, 32)
vRES = 32; vTMP = 48; vACC = 64; vXB = 128; aKP = 224
def aWD(jj, t, ct): return 4*((12*jj + 2*t if t < 6 else 48 + 2*jj) + ct)

P0 = dict(xf=8, hf=10, uf='nt', xnt='', rnt='nt', ct=1, k0=20, kn=3, ko=range(9),
          sp=(0, 0, 1), xa=6, xe=8, tp=('', 10, 18), xb=4, xc=4, xd=1, xr=2.5, ug=0, kq=((50, 8), (2, 12), (110, 4)), fg=-30, fup=1, sl=12, oq=((0, 6), (0, 12)), ot=(0, 0), on=(4, 0), oe=35, og=(4, 13), tw=('Xf', ''), twp=(7, 1),
          t1=(0, 6), t2=(4, 4), t3=(4, 6), t4=(8, 4), late=(1, 1), w2=0, w3=8, w4=2, n1=(2, 2), ub=4, qw=0, qo=0, up=7, rl=1, f1p=(0, 0, 1), uc=12, f1=(27, 30), oh=28, po=(), fe=0, w1=0, ue=0, uw=(2, 4, 15, 0, 15), vm=0, tq=('', ''), tz=('', ''), h0=1, f7=(17, 17), bi=(40, 40), fb=0, o1=(5, 4, 6, 3, 2, 1, 0), fd=((71, 88), (89, 106), (121, 150)), tr=(40, 60), tl=1, t1l=3, wa=0, kf=(0, 0), ta=0, tb=(0, 0, 24), op=0, wd=(10, 5), kw=(8, 4), kp=(2, 16),
          wl=((8, 44, 60), (11, 64, 92), (7, 108, 124), (7, 140, 156), (7, 172, 188)), dl=(14, 31),
          he=((12, 201, 223), (12, 201, 223)), hg=((175, 188, 200, 219), (175, 188, 200, 219)), hp=((22, 38), (22, 38)), ht=((), ()), ws=0, tk=('', 'xf'), tkg=(59, 60), hm=('sc1', 'sc1'), om='', nt=('', ''), tg=((('XSf', 190),), (('f', 190),)), to=('xs', ''))
WOX = (0x18000, 0x8000)
class Main:
    def __init__(s, stop=None, ts=False, **kw):
        s.k = Asm(); s.I = s.k.I; s.stop = stop; s.ts = ts; s.nl = 0; s.nts = 0; s.tsnames = []; s.bg = []; s.m0dirty = False; s.bw = []; s.tok = {}; s.P = dict(P0); s.P.update(kw)
    def md(s, key, d='sc1'): return d + (' nt' if str(key) in s.P['nt'][s.L] else '')
    def label(s, p):
        s.nl += 1; return f'{p}_{s.nl}'
    def stamp(s, name):
        if not s.ts or s.ts == 2 and name != 'end' or name in s.P.get('nos', ()): return
        r = 80 + 2*(s.nts % 10)
        s.tsnames.append(name)
        with s.k.group():
            s.I(f's_mem{"real" if s.P.get("gstat") else ""}time s[78:79]\ns_waitcnt lgkmcnt(0)\nv_writelane_b32 v23, s78, {s.nts}')
        s.nts += 1
    class SO:
        def __init__(o, m, tmp): o.m = m; o.tmp = tmp; o.key = None
        def get(o, base, off):
            hi = off & ~4095; lo = off & 4095
            if hi == 0: return f's{base}', lo
            if o.key != (base, hi):
                o.m.I(f's_add_u32 s{o.tmp}, s{base}, {hex(hi)}'); o.key = (base, hi)
            return f's{o.tmp}', lo
    def ld(s, so, dst, voff, base, off, mod='', op='buffer_load_dwordx4', srdn=WS):
        with s.k.group():
            r, lo = so.get(base, off)
            t = s.I(f'{op} {dst}, v{voff}, {srdn}, {r} offen' + (f' offset:{lo}' if lo else '') + (' ' + mod if mod else ''))
        return t
    def pub(s, t):
        t.alt = (f's{sSLOW}', t.text + ' sc1'); return t
    def dma_tile(s, so, base, off, slot, mod):
        t = None
        for h in range(2):
            for i in range(4):
                with s.k.group():
                    if i == 0:
                        s.I(f's_add_u32 m0, s{sM0}, {hex(slot*0x8000 + h*4096)}')
                        s.I(f's_add_u32 s{so}, s{base}, {hex(off + h*4096)}')
                    t = s.I(f'buffer_load_dwordx4 v{vL16}, {WS}, s{so} offen' + (f' offset:{i*1024}' if i else '') + f' {mod} lds')
        return t
    def bg_tile(s, key, base, off, slot):
        with s.k.cap() as f: s.tok[key] = s.dma_tile(sT0+1, base, off, slot, s.md(key))
        if (s.L, key) in s.P.get('st', ()): s.tok[key] = None; return
        s.bg += f
    def take(s, n):
        r = s.bg[:n]; s.bg = s.bg[n:]
        if r and len(r[0]) == 1 and s.m0dirty: r[0] = [Ins(x.text) for x in s.setup] + r[0]
        if r: s.m0dirty = False
        for g in r:
            if len(g) == 3: s.setup = g[:2]
        return r
    def takew(s, n):
        r = s.bw[:n]; s.bw = s.bw[n:]; return r
    def check(s, vt, p):
        s.I(f's_add_u32 s{sT0+8}, s{sTAG}, {p}\nv_subrev_u32 v{vt}, s{sT0+8}, v{vt}\nv_cmp_lt_u32 vcc, 15, v{vt}')
    def poll(s, voff, sbase, off, p, vt=vT0):
        I = s.I; L = s.label('POLL'); D = s.label('PD')
        I(f's_mov_b32 s{sT0+9}, 0')
        I(f'{L}:')
        I(f'buffer_load_dword v{vt}, v{voff}, {WS}, s{sbase} offen' + (f' offset:{off}' if off else '') + ' sc1')
        I('s_waitcnt vmcnt(0)')
        s.check(vt, p)
        I(f's_cbranch_vccz {D}')
        with s.k.cond():
            I(f's_add_u32 s{sT0+9}, s{sT0+9}, 1\ns_cmp_lt_u32 s{sT0+9}, s{sLIM}\ns_cbranch_scc1 {L}\ns_mov_b32 s{sLIM}, 1')
        I(f'{D}:')
    def flag(s, sbase, off, p):
        with s.k.group():
            s.I(f's_add_u32 s{sT0+10}, s{sTAG}, {p}\nv_mov_b32 v{vT5}, s{sT0+10}')
            s.pub(s.I(f'buffer_store_dword v{vT5}, v{vL0}, {WS}, s{sbase} offen' + (f' offset:{off}' if off else '')))
    def tX(s, buf, t=vT3):
        with s.k.group():
            s.I(f's_lshl_b32 s{sT0+11}, s{sJ}, 11\ns_add_u32 s{sT0+11}, s{sT0+11}, s{sXIN}' + (f'\ns_add_u32 s{sT0+11}, s{sT0+11}, 0x200000' if buf else ''))
            s.I(f'v_lshlrev_b32 v{t}, 5, v{vFX}\nbuffer_load_dword v21, v{t}, {WS}, s{sT0+11} offen sc1')
    def tS(s, buf, t=vT3):
        with s.k.group():
            if s.P['t1l'] & 1:
                s.I(f's_lshl_b32 s{sT0+11}, s{sJ}, 7\ns_add_u32 s{sT0+11}, s{sT0+11}, s{sSTIN}' + (f'\ns_add_u32 s{sT0+11}, s{sT0+11}, 0x20000' if buf else ''))
                s.I(f'buffer_load_dword v21, v{vL0}, {WS}, s{sT0+11} offen sc1')
                return
            if buf: s.I(f's_add_u32 s{sT0+11}, s{sSTIN}, 0x20000')
            s.I(f'v_lshlrev_b32 v{t}, 5, v{vFX}\nbuffer_load_dword v21, v{t}, {WS}, s{sT0+11 if buf else sSTIN} offen sc1')
    def tF(s, t=vT3):
        with s.k.group():
            if s.P['t1l'] & 2:
                s.I(f's_and_b32 s{sT0+11}, s{sJ}, 3\ns_lshl_b32 s{sT0+11}, s{sT0+11}, 13\ns_add_u32 s{sT0+11}, s{sT0+11}, s{sFXC}')
                s.I(f'buffer_load_dword v21, v{vL0}, {WS}, s{sT0+11} offen sc1')
                return
            s.I(f'v_and_b32 v{t}, 3, v0\nv_lshlrev_b32 v{t}, 13, v{t}\nbuffer_load_dword v21, v{t}, {WS}, s{sFXC} offen sc1')
    def tH(s, t=vT3):
        with s.k.group():
            s.I(f'v_min_u32 v{t}, 55, v0\nv_lshlrev_b32 v{t}, 7, v{t}\nbuffer_load_dword v21, v{t}, {WS}, s{sHPUB} offen sc1')
    def tG(s, d, t):
        o = s.ord(s.L); a, b = sorted((o[d], o[min(d + 1, 6)]))
        with s.k.group():
            s.I(f's_and_b32 s{sT0+11}, s{sR}, 1\ns_lshl_b32 s{sT0+11}, s{sT0+11}, 12\ns_add_u32 s{sT0+11}, s{sT0+11}, s{sGU}\ns_add_u32 s{sT0+11}, s{sT0+11}, {hex(a*0x8000)}')
            if a == b: s.I(f'v_and_b32 v{t}, 31, v0\nv_lshlrev_b32 v{t}, 7, v{t}')
            else: s.I(f'v_and_b32 v{t}, 32, v0\nv_mul_u32_u24 v{t}, {hex((b - a)*8 - 1)}, v{t}\nv_add_lshl_u32 v{t}, v{t}, v0, 7')
            s.I(f'buffer_load_dword v21, v{t}, {WS}, s{sT0+11} offen sc1')
    def tW(s, h, t):
        with s.k.group():
            s.I(f's_lshr_b32 s{sT0+11}, s{sRK}, 3\ns_lshl_b32 s{sT0+11}, s{sT0+11}, 7\ns_add_u32 s{sT0+11}, s{sT0+11}, s{sWD}' + (f'\ns_add_u32 s{sT0+11}, s{sT0+11}, 28672' if h else ''))
            s.I(f'v_min_u32 v{t}, 55, v0\nv_lshlrev_b32 v{t}, 9, v{t}\nbuffer_load_dword v21, v{t}, {WS}, s{sT0+11} offen sc1')
    def touches(s, names, t=vT3):
        with s.k.cap() as f:
            for n in names:
                if n.isdigit(): s.tG(int(n), t); continue
                if n in 'wW': s.tW(n == 'W', t); continue
                {'x': lambda: s.tX(0, t), 'X': lambda: s.tX(1, t), 's': lambda: s.tS(0, t), 'S': lambda: s.tS(1, t), 'f': lambda: s.tF(t), 'h': lambda: s.tH(t)}[n]()
        return f
    def ldsA(s, slot, kc):
        a = slot*0x8000 + kc*1024
        return (vL16, a) if a < 0x10000 else (vL16b, a - 0x10000)
    def gemm(s, steps, fences={}, LA=6):
        I = s.I; n = len(steps); nr = 0; last = None; aRING = s.ring
        blocked = sorted((f[0], g) for g, f in fences.items())
        def limit(i):
            for st, g in blocked:
                if g > i: return st
            return n
        def rd():
            nonlocal nr, last
            vr, off = s.ldsA(steps[nr][0], steps[nr][1])
            last = I(f'ds_read_b128 {a_(aRING + 4*(nr % 8), 4)}, v{vr} offset:{off}'); nr += 1
        with s.k.cap() as base:
            while nr < min(LA, limit(-1)): rd()
            for i, (slot, kc, acc, first) in enumerate(steps):
                assert nr > i
                I(f'v_mfma_f32_32x32x16_bf16 {v(acc,16)}, {a_(aRING + 4*(i % 8), 4)}, {v(vXB+4*kc,4)}, {"0" if first else v(acc,16)}')
                if i in fences:
                    if len(fences[i]) == 2:
                        assert nr == fences[i][0], (nr, i, fences[i])
                        s.k.wait(last)
                    s.k.wait(*fences[i][1]); I('s_barrier')
                c = 0
                while nr < min(i + 1 + LA, limit(i), n) and c < 2: rd(); c += 1
        return base, last

    def init0(s):
        I = s.I; k = s.k
        I('s_cmp_ge_u32 s2, 256\ns_cbranch_scc1 M_END')
        I('s_load_dwordx2 s[80:81], s[0:1], 8\ns_load_dwordx2 s[88:89], s[0:1], 16\ns_load_dwordx2 s[12:13], s[0:1], 0')
        if s.ts:
            I('s_memtime s[78:79]\ns_memrealtime s[70:71]'); s.tsnames.append('start'); s.nts = 1
        I(f's_lshr_b32 s{sRK}, s2, 3')
        if s.P['ct']:
            I(f's_getpc_b64 s[4:5]\nPC0:\nv_lshrrev_b32 v2, 4, v0\nv_lshl_add_u32 v2, s{sRK}, 4, v2\nv_lshlrev_b32 v2, 7, v2\nv_min_u32 v2, CODE_END-PC0-4, v2')
            I(f'v_mov_b32 v3, s5\nv_add_co_u32 v2, vcc, s4, v2\nv_addc_co_u32 v3, vcc, 0, v3, vcc\nglobal_load_dword v21, v[2:3], off')
        I(f'v_lshrrev_b32 v1, 6, v0\nv_and_b32 v0, 63, v0\nv_readfirstlane_b32 s{sW}, v1')
        I(f's_mov_b32 s82, {hex(512*3072)}\ns_mov_b32 s83, 0x20000\ns_lshr_b32 s64, s{sRK}, 4')
        I(f's_and_b32 s{sJ}, s{sRK}, 15\ns_and_b32 s{sCG}, s{sJ}, 7\ns_lshl_b32 s{sM0}, s{sW}, 13')
        I(f's_lshl_b32 s65, s64, 11\ns_add_u32 s{sWM}, s65, s{sM0}')
        I(f's_lshl_b32 s65, s{sCG}, 1\ns_lshl_b32 s66, s{sW}, 2\ns_xor_b32 s65, s65, s66\ns_or_b32 s67, s64, s65')
        I(f's_lshl_b32 s65, s{sJ}, 6\ns_mul_i32 s66, s67, {32*3072}\ns_add_u32 s{sPO}, s66, s65')
        I(f'v_lshrrev_b32 v48, 2, v0\nv_and_b32 v49, 3, v0\nv_lshrrev_b32 v51, 4, v0\nv_xor_b32 v49, v49, v51\nv_lshlrev_b32 v49, 4, v49')
        I(f'v_mul_u32_u24 v{vW0}, 3072, v48\nv_add_u32 v{vW0}, v{vW0}, v49\nv_add_u32 v{vW0+1}, {16*3072-1024}, v{vW0}')
        I('s_waitcnt lgkmcnt(0)')
        s.wdma(0, 0, 1024)
        I('s_load_dwordx2 s[8:9], s[0:1], 80\ns_load_dwordx2 s[16:17], s[0:1], 64\ns_load_dwordx2 s[20:21], s[0:1], 72')
        I('s_load_dwordx4 s[40:43], s[0:1], 40\ns_load_dwordx2 s[72:73], s[0:1], 56')
        I('s_load_dwordx2 s[6:7], s[0:1], 24')
        I(f's_mov_b32 s90, {hex(32*512)}\ns_mov_b32 s91, 0x20000\nv_lshlrev_b32 v{vL16}, 4, v0\ns_lshl_b32 s66, s{sJ}, 10\ns_mov_b32 m0, {hex(WPH)}')
        s.tok['P'] = I(f'buffer_load_dwordx4 v{vL16}, {PS_}, s66 offen lds')
        s.wdma(0, 1, 2048)
        I(f's_and_b32 s{sG}, s2, 7\ns_lshl_b32 s{sR}, s{sG}, 1\ns_add_u32 s{sR}, s{sR}, s64\ns_mov_b32 s14, {hex(2048*1024)}\ns_mov_b32 s15, 0x20000')
        I(f's_lshl_b32 s64, s{sR}, 17\ns_lshl_b32 s66, s{sJ}, 13\ns_add_u32 s64, s64, s66\ns_lshl_b32 s66, s{sW}, 11\ns_add_u32 s64, s64, s66')
        I(f'buffer_load_dwordx4 {v(vROW,4)}, v{vL16}, {XS}, s64 offen {s.P["rnt"]}\nbuffer_load_dwordx4 {v(vROW+4,4)}, v{vL16}, {XS}, s64 offen offset:1024 {s.P["rnt"]}')
        if s.ts: I('v_mov_b32 v23, 0\nv_writelane_b32 v23, s78, 0\nv_writelane_b32 v23, s70, 60')
        s.stamp('r1')
        if s.P.get('lat'):
            for n in (7, 6, 5, 4, 3, 2, 0): I(f's_waitcnt vmcnt({n})'); s.stamp(f'vm{n}')
        for p in range(1, 4): I(f's_xor_b32 s66, s67, {p}\ns_mul_i32 s66, s66, {32*3072}\ns_add_u32 s{sPO+p}, s66, s65')
        for d, size in ((8, WS_SIZE), (16, 2048*1024), (20, 256)):
            I(f's_mov_b32 s{d+2}, {hex(size)}\ns_mov_b32 s{d+3}, 0x20000')
        I(f's_lshr_b32 s{sHB}, s{sJ}, 3')
        I(f's_lshl_b32 s64, s{sR}, 2\ns_add_u32 s64, s64, s{sW}\ns_lshl_b32 s64, s64, 15\ns_lshl_b32 s65, s{sCG}, 7\ns_or_b32 s64, s64, s65\ns_lshl_b32 s65, s{sHB}, 14\ns_or_b32 s{sXB}, s64, s65')
        I(f's_lshl_b32 s65, s{sHB}, 11\ns_or_b32 s{sXM}, s65, s{sM0}')
        I(f'v_and_b32 v50, 7, v0\nv_lshlrev_b32 v53, 4, v50\nv_xor_b32 v50, v50, v51\nv_lshlrev_b32 v50, 4, v50\nv_lshrrev_b32 v52, 3, v0\nv_lshl_or_b32 v{vX0}, v52, 10, v50')
        I(f'v_xor_b32 v{vX0+1}, 64, v{vX0}\nv_add_u32 v{vX0+1}, {8192-1024}, v{vX0+1}')
    def wdma(s, p, slot, col):
        with s.k.group():
            s.I(f's_xor_b32 m0, s{sWM}, {hex(slot*0x8000 + p*2048)}\ns_add_u32 s{sT0+1}, s{sPO+p}, {col}')
            s.I(f'buffer_load_dwordx4 v{vW0}, {QS}, s{sT0+1} offen lds')
            return s.I(f'buffer_load_dwordx4 v{vW0+1}, {QS}, s{sT0+1} offen offset:1024 lds')
    def udma(s, i):
        with s.k.group():
            s.I(f's_add_u32 m0, s{sM0}, {hex(0x18000 + i*1024)}')
            if i < 4:
                t = s.I(f'buffer_load_dwordx4 v{vU0}, {US}, s{sUB} offen {s.P["uf"]} lds')
                if i < 3: s.I(f's_add_u32 s{sUB}, s{sUB}, {8*3584}')
            else:
                t = s.I(f'buffer_load_dwordx4 v{vU0+1}, {DS2}, s{sUB2} offen {s.P["uf"]} lds')
                if i < 5: s.I(f's_add_u32 s{sUB2}, s{sUB2}, 8192')
            return t
    def xreg(s, c): return (2 + (c >> 1 & 1))*0x8000 + (c & 1)*4096
    def xdma(s, c, p):
        with s.k.group():
            s.I(f's_xor_b32 m0, s{sXM}, {hex(s.xreg(c) + p*2048)}\ns_xor_b32 s{sT0+1}, s{sXB}, {hex(c*128 + p*16384)}')
            s.I(f'buffer_load_dwordx4 v{vX0}, {XS}, s{sT0+1} offen {s.P["xnt"]} lds')
            return s.I(f'buffer_load_dwordx4 v{vX0+1}, {XS}, s{sT0+1} offen offset:1024 {s.P["xnt"]} lds')
    def unit(s):
        I = s.I; k = s.k
        I(f's_lshr_b32 s64, s2, 6\ns_and_b32 s65, s2, 63\ns_and_b32 s66, s2, 7')
        I(f's_lshr_b32 s67, s{sW}, 1\ns_lshl_b32 s67, s67, 2\ns_and_b32 s68, s{sW}, 1\ns_or_b32 s67, s67, s68\ns_lshl_b32 s67, s67, 8')
        I(f's_mov_b32 s87, 0x20000\ns_mov_b32 s75, 0x20000')
        with k.group(): I(f's_cmp_lt_u32 s65, 56\ns_cselect_b32 s74, {hex(1792*1024)}, 0\ns_cselect_b32 s68, 0, 0x70000000')
        I(f's_mov_b32 s86, s74\ns_mul_i32 s70, s64, 7\ns_lshr_b32 s71, s65, 3\ns_add_u32 s70, s70, s71')
        I(f's_lshl_b32 s{sUB2}, s70, 16\ns_lshl_b32 s71, s{sW}, 14\ns_add_u32 s{sUB2}, s{sUB2}, s71\ns_lshl_b32 s71, s66, 7\ns_add_u32 s{sUB2}, s{sUB2}, s71')
        I(f's_mul_i32 s{sUD2}, s66, {224*1024}\ns_lshl_b32 s70, s70, 13\ns_add_u32 s{sUD2}, s{sUD2}, s70\ns_add_u32 s67, s67, s68\ns_add_u32 s{sUD2}, s{sUD2}, s67\ns_add_u32 s{sUD2}, s{sUD2}, {hex(WD_P)}')
        with k.group(): I(f's_cmp_ge_u32 s65, 28\ns_cselect_b32 s84, s42, s40\ns_cselect_b32 s85, s43, s41\ns_cselect_b32 s70, 28, 0\ns_cselect_b32 s71, 1, 0')
        I(f's_sub_u32 s65, s65, s70\ns_lshl_b32 s{sUB}, s65, 7\ns_lshl_b32 s65, s65, 2\ns_add_u32 s65, s65, s{sW}')
        I(f's_lshl_b32 s69, s64, 2\ns_add_u32 s69, s69, s{sW}\ns_mul_i32 s69, s69, {32*3584}\ns_add_u32 s{sUB}, s{sUB}, s69')
        I(f's_lshl_b32 s{sUD}, s65, 15\ns_lshl_b32 s70, s64, 13\ns_add_u32 s{sUD}, s{sUD}, s70\ns_lshl_b32 s70, s71, 8\ns_add_u32 s70, s70, s68\ns_add_u32 s{sUD}, s{sUD}, s70\ns_add_u32 s{sUD}, s{sUD}, {hex(WGU)}')
        I(f's_mul_i32 s64, s64, 112\ns_add_u32 s64, s64, s65\ns_lshl_b32 s64, s64, 1\ns_add_u32 s64, s64, s71\ns_lshl_b32 s64, s64, 6\ns_add_u32 s64, s64, s68\ns_add_u32 s{sUCS}, s64, {hex(CS)}')
        I(f'v_mul_u32_u24 v{vU0}, 3584, v52\nv_add_u32 v{vU0}, v{vU0}, v53\nv_lshl_or_b32 v{vU0+1}, v52, 10, v53')
    def uaddr(s):
        I = s.I; t0, t1 = vT2, vT4
        I(f'v_bfe_u32 v{t0}, v0, 2, 2\nv_lshrrev_b32 v{t1}, 5, v0\nv_lshl_or_b32 v{t0}, v{t1}, 3, v{t0}\nv_lshlrev_b32 v{vUR}, 7, v{t0}')
        I(f'v_lshlrev_b32 v{vUD}, 2, v{vFX}\nv_lshl_or_b32 v{vUD}, v{t1}, 9, v{vUD}')
        I(f'v_and_b32 v{t0}, 1, v0\nv_lshl_or_b32 v{vUR}, v{t0}, 4, v{vUR}\nv_bfe_u32 v{t0}, v0, 1, 1\nv_lshl_or_b32 v{vUR}, v{t0}, 3, v{vUR}')
        with s.k.group(): I(f's_lshl_b32 s{sT0+3}, s{sW}, 5\ns_add_u32 s{sT0+3}, s{sT0+3}, 0x18000\nv_add_u32 v{vUR}, s{sT0+3}, v{vUR}')
        I(f'v_bfe_u32 v{t0}, v0, 4, 1\nv_lshl_or_b32 v{vUR+1}, v{t0}, 13, v{vUR}\nv_lshl_or_b32 v{vUR}, v{t0}, 11, v{vUR}')
        I(f'v_lshl_or_b32 v{vUD+1}, v{t0}, 11, v{vUD}\nv_lshl_or_b32 v{vUD}, v{t0}, 10, v{vUD}')
    def uproc(s):
        I = s.I; k = s.k; d = 64; v = globals()['v']
        if s.P['ue']: d = 96; v = a_
        for n, r in (('a', sUD), ('b', sUD2), ('c', sUCS)):
            if n in s.P.get('nou', ''): I(f's_mov_b32 s{r}, 0x70000000')
        with k.group():
            k.wait(s.tok['U'])
            if s.P.get('xs'): s.stamp('u_ok')
            I('s_barrier')
        for q in range(6):
            with k.group():
                for r in range(2):
                    if q < 4: t = I(f'ds_read_b64_tr_b16 {v(d+4*q+2*r,2)}, v{vUR} offset:{q*8192 + r*512}')
                    else: t = I(f'ds_read_b64_tr_b16 {v(d+4*q+2*r,2)}, v{vUR+1} offset:{(q-4)*16384 + 4096 + r*512}')
        with k.group(): k.wait(t); I('s_barrier')
        for q in range(6):
            with k.group():
                if q < 4:
                    I(f'v_mfma_f32_16x16x32_bf16 {v(d+24,4)}, a[64:67], {v(d+4*q,4)}, {"0" if q == 0 else v(d+24,4)}')
                    I(f'buffer_store_dwordx4 {v(d+4*q,4)}, v{vUD}, {WS}, s{sUD} offen' + (' offset:2048' if q & 1 else '') + ' sc1')
                    if q == 1: I(f's_add_u32 s{sUD}, s{sUD}, 4096')
                else:
                    I(f'buffer_store_dwordx4 {v(d+4*q,4)}, v{vUD+1}, {WS}, s{sUD2} offen sc1')
                    if q < 5: I(f's_add_u32 s{sUD2}, s{sUD2}, 4096')
        return I(f'buffer_store_dword {"av"[not s.P["ue"]]}{d+24}, v{vFX}, {WS}, s{sUCS} offen sc1')
    def meanop(s, d, m, t):
        I = s.I
        I(f'v_cvt_pk_bf16_f32 v{d}, -v{m}, -v{m}\nv_and_b32 v{t}, 0xffff0000, v{d}\nv_sub_f32 v{t}, -v{m}, v{t}\nv_cvt_pk_bf16_f32 v{t}, v{t}, v{t}')
        with s.k.group(): I(f'v_cmp_gt_u32 vcc, 32, v0\nv_cndmask_b32 v{d}, v{t}, v{d}, vcc')
    def finit(s):
        I = s.I; k = s.k
        n, hf, sw, b2, t0, t1, t2 = 50, 51, 52, 53, 54, 55, 56
        I(f'v_and_b32 v{n}, 31, v0\nv_lshrrev_b32 v{hf}, 5, v0\nv_bfe_u32 v{b2}, v0, 2, 1\nv_bfe_u32 v{t0}, v0, 3, 1')
        I(f'v_and_b32 v{sw}, 19, v{n}\nv_lshl_or_b32 v{sw}, v{b2}, 3, v{sw}\nv_lshl_or_b32 v{sw}, v{t0}, 2, v{sw}')
        I(f'v_lshl_or_b32 v{t0}, v{b2}, 1, v{t0}\nv_xor_b32 v{t0}, v{t0}, v{hf}\nv_lshlrev_b32 v{t0}, 4, v{t0}\nv_lshl_or_b32 v{t0}, v{sw}, 6, v{t0}')
        I(f'v_add_u32 v{vWR}, s{sM0}, v{t0}\nv_xor_b32 v{vWR+1}, 32, v{vWR}\nv_add_u32 v{vWW}, s{sM0}, v{vL16}')
        I(f'v_bfe_u32 v{t0}, v0, 1, 3\nv_xor_b32 v{t0}, v{t0}, v{hf}\nv_lshlrev_b32 v{t0}, 4, v{t0}\nv_lshl_or_b32 v{t0}, v{n}, 7, v{t0}')
        I(f's_add_u32 s64, s{sM0}, 0x10000\nv_add_u32 v{vXR}, s64, v{t0}')
        for q in range(1, 4): I(f'v_xor_b32 v{vXR+q}, {32*q}, v{vXR}')
        I(f'v_lshlrev_b32 v{t0}, 4, v{n}\nv_add_u32 v{vSR}, 0x20000, v{t0}\ns_lshl_b32 s64, s{sW}, 2\nv_add_u32 v{vSW}, s64, v{vSR}')
        I(f'v_bfe_u32 v{t1}, v0, 4, 1')
        I(f'v_and_b32 v{t0}, 1, v0\nv_lshlrev_b32 v{t0}, 9, v{t0}\nv_lshl_or_b32 v{t0}, v{hf}, 8, v{t0}\nv_bfe_u32 v{t2}, v0, 2, 2\nv_lshl_or_b32 v{t0}, v{t2}, 5, v{t0}')
        I(f'v_lshl_or_b32 v{t0}, v{t1}, 4, v{t0}\nv_bfe_u32 v{t2}, v0, 1, 1\nv_lshl_or_b32 v{t0}, v{t2}, 3, v{t0}\nv_add_u32 v57, {hex(WPH)}, v{t0}')
        I(f'v_lshrrev_b32 v{t0}, 3, v{n}\nv_and_b32 v{t1}, 3, v{n}\nv_lshl_or_b32 v{t0}, v{t0}, 2, v{t1}\nv_lshl_or_b32 v{t0}, v{b2}, 4, v{t0}')
        I(f'v_mov_b32 v58, 0x3f80')
        for d, cm in ((64, t0),):
            I(f'v_lshlrev_b32 v{t1}, 3, v{hf}\nv_sub_u32 v{t1}, v{cm}, v{t1}\nv_and_b32 v{t2}, 1, v{t1}\nv_lshlrev_b32 v{t2}, 4, v{t2}\nv_lshlrev_b32 v{t2}, v{t2}, v58\nv_ashrrev_i32 v{t1}, 1, v{t1}')
            for p in range(2):
                for r in range(4): I(f'v_cmp_eq_u32 vcc, {8*p+r}, v{t1}\nv_cndmask_b32 v{d+4*p+r}, 0, v{t2}, vcc')
        for r in range(8): I(f'v_accvgpr_write_b32 a{r}, v{64+r}')
        for r in range(4): I(f'v_accvgpr_write_b32 a{64+r}, s{sONES}')
        if s.P['rl']:
            I(f'v_lshrrev_b32 v{t0}, 4, v0\nv_bfe_u32 v{t1}, v0, 1, 3\nv_xor_b32 v{t0}, v{t0}, v{t1}\nv_lshlrev_b32 v{t0}, 4, v{t0}\nv_lshl_or_b32 v{t0}, v{vFX}, 5, v{t0}')
            I(f's_lshl_b32 s64, s{sW}, 11\ns_lshl_b32 s65, s{sW}, 12\ns_or_b32 s64, s64, s65\ns_and_b32 s64, s64, 0x2800\ns_lshl_b32 s65, s{sHB}, 14\ns_or_b32 s64, s64, s65\ns_or_b32 s64, s64, 0x10000\nv_or_b32 v47, s64, v{t0}')
        I(f's_mul_i32 s{sTAG}, s{sE}, 0x9E3779B1\ns_add_u32 s{sTAG}, s{sTAG}, 0x7F4A7C15')
    def fold(s):
        I = s.I
        s.k.wait(s.tok['P'])
        I('ds_read_b64_tr_b16 v[60:61], v57\nds_read_b64_tr_b16 v[62:63], v57 offset:128')
        I('v_cmp_eq_u32 vcc, 0, v53')
        for r in range(4): I(f'v_cndmask_b32 v{80+r}, 0, v{60+r}, vcc\nv_cndmask_b32 v{84+r}, v{60+r}, 0, vcc')
        for r in range(8): I(f'v_accvgpr_write_b32 a{16+r}, v{80+r}')
    def lbuild(s, tok, slot, B, si):
        I = s.I; k = s.k; off = (slot & 1)*0x8000
        k.wait(tok)
        for b in range(4):
            for p in range(2): I(f'ds_read_b128 {a_(32+8*b+4*p,4)}, v{vWR+p} offset:{off + b*2048}')
        def T(i):
            b, p = i >> 1, i & 1; d = 64 + 16*b
            I(f'v_mfma_f32_32x32x16_bf16 {v(d,16)}, {a_(32+8*b+4*p,4)}, {a_(B+4*p,4)}, {"0" if p == 0 else v(d,16)}')
        def C(i):
            d = 64 + 8*i
            for r in range(4): I(f'v_cvt_pk_bf16_f32 v{d+r}, v{d+2*r}, v{d+2*r+1}')
            I(f'ds_write_b128 v{vWW}, {v(d,4)} offset:{off + i*1024}')
        def S(i): I(f'v_mfma_f32_32x32x16_bf16 v[48:63], a[64:67], {v(64+8*i,4)}, {"0" if i == 0 else "v[48:63]"}')
        for i in range(16):
            (T if i < 8 else S)(i & 7)
            if 3 <= i < 11: C(i - 3)
        I('v_cvt_pk_bf16_f32 v49, v48, v48\nv_and_b32 v50, 0xffff0000, v49\nv_sub_f32 v50, v48, v50\nv_cvt_pk_bf16_f32 v49, v48, v50')
        return I(f'ds_write_b32 v{vSW}, v49 offset:{SUMS[si] - 0x20000}')
    def rowstats(s):
        I = s.I
        for r in range(2):
            for i in range(4):
                x = vROW + 4*r + i
                I(f'v_dot2_f32_bf16 v{248+r}, v{x}, s{sONES}, {"0" if i == 0 else v(248+r)}')
                I(f'v_dot2_f32_bf16 v{250+r}, v{x}, v{x}, {"0" if i == 0 else v(250+r)}')
        I('v_permlane32_swap_b32 v248, v249\nv_permlane32_swap_b32 v250, v251\nv_add_f32 v248, v248, v249\nv_add_f32 v250, v250, v251')
        I(f'v_and_b32 v252, 15, v0\nv_cmp_eq_u32 vcc, 0, v252\nv_lshrrev_b32 v252, 1, v0\nv_mov_b32 v253, {hex(OOB)}')
        I('v_permlane16_swap_b32 v248, v250\nv_cndmask_b32 v252, v253, v252, vcc\nv_add_f32 v248, v248, v250')
        I(f'v_mov_b32 v249, s{sTAG}\ns_lshl_b32 s64, s{sR}, 11\ns_lshl_b32 s65, s{sJ}, 7\ns_add_u32 s64, s64, s65\ns_lshl_b32 s65, s{sW}, 5\ns_add_u32 s64, s64, s65\ns_add_u32 s64, s64, {hex(S0)}')
        for mod in ('quad_perm:[1,0,3,2]', 'quad_perm:[2,3,0,1]', 'row_half_mirror', 'row_mirror'):
            I(f'v_add_f32_dpp v248, v248, v248 {mod} row_mask:0xf bank_mask:0xf')
        s.k.wait(s.tok['C'])
        I(f'buffer_store_dwordx2 v[248:249], v252, {WS}, s64 offen sc1')
    def init(s):
        I = s.I; k = s.k
        I(f's_load_dword s{sE}, s[8:9], 0')
        I(f's_lshl_b32 s64, s{sJ}, 2\ns_add_u32 s64, s64, s{sW}\ns_lshl_b32 s64, s64, 4\ns_add_u32 s{sKVP}, s64, s{sR}')
        I(f's_lshl_b32 s64, s{sKVP}, 9\ns_add_u32 s64, s64, {hex(KVP)}\ns_and_b32 s{sKVC}, s64, 0xfffff800\ns_lshl_b32 s65, s{sKVP}, 6\ns_add_u32 s65, s65, {hex(KVZ)}')
        for r in range(4): I(f'v_mov_b32 v{96+r}, -1')
        I(f'v_lshlrev_b32 v100, 11, v{vL16}\nv_or_b32 v100, v100, v{vL16}\nv_and_b32 v100, 0x1001f0, v100\nbuffer_store_dwordx4 v[96:99], v100, {WS}, s64 offen sc1')
        I(f'v_lshlrev_b32 v101, 16, v0\nv_lshl_or_b32 v101, v0, 2, v101\nv_and_b32 v101, 0x10003c, v101')
        s.tok['C'] = I(f'buffer_store_dword v96, v101, {WS}, s65 offen sc1')
        I(f's_getreg_b32 s{sMARK}, hwreg(HW_REG_XCC_ID)\ns_and_b32 s{sMARK}, s{sMARK}, 15\ns_or_b32 s{sMARK}, s{sMARK}, 0x80')
        I(f'v_add_u32 v{vL16b}, 0x10000, v{vL16}')
        I(f'v_cmp_eq_u32 vcc, 0, v0\nv_mov_b32 v{vT0}, {hex(OOB)}\nv_cndmask_b32 v{vL0}, v{vT0}, v0, vcc')
        I(f's_mov_b32 s{sLIM}, 20000')
        I(f'v_and_b32 v50, 15, v0\nv_lshrrev_b32 v51, 4, v0\nv_and_b32 v52, 31, v0\nv_lshrrev_b32 v53, 5, v0')
        I(f'v_lshlrev_b32 v{vFX}, 2, v50')
        I(f'v_bfe_u32 v54, v0, 2, 1\nv_and_b32 v55, 3, v0\nv_lshlrev_b32 v55, 2, v55\nv_lshl_or_b32 v{vFO}, v54, 7, v55')
        I(f'v_lshlrev_b32 v54, 4, v50\nv_lshl_or_b32 v{vPUB}, v51, 9, v54')
        I(f's_lshl_b32 s64, s{sW}, 9\ns_add_u32 s64, s64, {hex(XA)}\ns_movk_i32 s65, {6*PS}')
        I(f'v_mul_lo_u32 v54, v53, s65\nv_lshl_add_u32 v54, v52, 4, v54\nv_add_u32 v{vPHW}, s64, v54')
        I(f's_movk_i32 s65, {PS}\nv_bfe_u32 v54, v0, 1, 1\nv_mul_lo_u32 v54, v54, s65\nv_and_b32 v55, 1, v0\nv_lshl_add_u32 v54, v55, 3, v54')
        I(f'v_lshrrev_b32 v55, 2, v50\nv_lshl_add_u32 v55, v51, 3, v55\nv_lshl_add_u32 v54, v55, 4, v54')
        I(f's_lshr_b32 s66, s{sW}, 1\ns_mul_i32 s66, s66, {6*PS}\ns_add_u32 s66, s66, {hex(XA)}\ns_and_b32 s67, s{sW}, 1\ns_mul_i32 s67, s67, {2*PS}\ns_add_u32 s67, s67, s66\ns_add_u32 s66, s66, {4*PS}')
        I(f'v_add_u32 v{vTRA}, s67, v54\nv_add_u32 v{vTRB}, s66, v54')
        I(f'v_lshlrev_b32 v54, 4, v50\nv_lshl_or_b32 v54, v53, 8, v54\nv_and_b32 v55, 1, v51\nv_lshl_or_b32 v54, v55, 3, v54')
        I(f's_lshl_b32 s64, s{sW}, 9\ns_add_u32 s64, s64, {hex(KVA)}\nv_add_u32 v{vKVW}, s64, v54')
        I(f's_lshl_b32 s64, s{sW}, 5\ns_add_u32 s64, s64, {hex(ZA)}\nv_and_b32 v54, 3, v0\nv_lshl_or_b32 v54, v54, 1, v55\nv_lshl_or_b32 v54, v54, 1, v53\nv_lshl_add_u32 v{vZW}, v54, 1, s64')
        I(f'v_and_b32 v54, 3, v0\nv_bfe_u32 v55, v0, 2, 1\nv_lshl_or_b32 v54, v55, 3, v54\nv_bfe_u32 v55, v0, 3, 1\nv_lshl_or_b32 v54, v55, 2, v54')
        I(f'v_lshlrev_b32 v54, 4, v54\nv_lshl_or_b32 v54, v53, 10, v54\nv_add_u32 v54, {hex(KVA)}, v54')
        I(f'v_lshlrev_b32 v55, 6, v53\nv_add_u32 v55, {hex(ZA)}, v55\nv_bfe_u32 v56, v0, 4, 1\nv_cmp_eq_u32 vcc, v56, v53\nv_mov_b32 v57, {hex(ZERO)}')
        I(f'v_cndmask_b32 v{vKVR}, v57, v54, vcc\nv_cndmask_b32 v{vZR}, v57, v55, vcc')
        I(f'v_lshlrev_b32 v54, 4, v50\nv_lshl_or_b32 v54, v53, 8, v54\nv_lshl_or_b32 v54, v56, 13, v54\ns_lshl_b32 s64, s{sW}, 11\nv_add_u32 v{vREDW}, s64, v54')
        I(f'v_lshlrev_b32 v54, 10, v50\nv_lshl_or_b32 v{vNAT}, v51, 4, v54')
        I(f'v_lshlrev_b32 v54, 4, v50\nv_lshl_or_b32 v54, v53, 2, v54\nv_cmp_eq_u32 vcc, 0, v56\nv_mov_b32 v55, {hex(OOB)}\nv_cndmask_b32 v{vSTW}, v55, v54, vcc')
        I(f's_lshl_b32 s64, s{sW}, 7\ns_add_u32 s64, s64, {hex(RS)}\nv_lshlrev_b32 v54, 2, v52\nv_add_u32 v{vRSW}, s64, v54')
        I(f'v_mov_b32 v56, 0\nv_mov_b32 v57, 0\nv_mov_b32 v58, 0\nv_mov_b32 v59, 0\nv_add_u32 v54, {hex(ZERO)}, v{vL16}\nds_write_b128 v54, v[56:59]')
        I(f's_mov_b32 s{sSELLO}, 0x3f80\ns_mov_b32 s{sSELHI}, 0x3f800000\ns_mov_b32 s{sONES}, 0x3f803f80\ns_mov_b32 s{sLOG2E}, 0x3fb8aa3b')
        I(f's_lshl_b32 s66, s{sR}, 2\ns_add_u32 s65, s66, s{sW}')
        I(f's_lshl_b32 s64, s65, 15\ns_add_u32 s{sXIN}, s64, {hex(XB[0])}')
        I(f's_lshl_b32 s64, s65, 11\ns_add_u32 s{sSTIN}, s64, {hex(ST)}')
        I(f's_mul_i32 s64, s{sJ}, {224*1024}\ns_add_u32 s64, s64, s{sM0}\ns_add_u32 s{sGU}, s64, {hex(WGU)}')
        I(f's_lshr_b32 s67, s{sRK}, 3\ns_lshl_b32 s64, s{sW}, 2\ns_or_b32 s64, s64, s67\ns_lshl_b32 s64, s64, 8\ns_or_b32 s64, s64, s{sCG}\ns_lshl_b32 s{sWO}, s64, 7')
        I(f's_lshl_b32 s67, s{sHB}, 12\ns_or_b32 s{sOM}, s67, s{sM0}')
        I(f's_mul_i32 s64, s{sCG}, {224*1024}\ns_mul_i32 s67, s{sW}, {56*1024}\ns_add_u32 s64, s64, s67\ns_add_u32 s{sWD}, s64, {hex(WD_P)}')
        I(f's_lshl_b32 s67, s{sHB}, 1\ns_add_u32 s66, s66, s67')
        I(f's_lshr_b32 s67, s{sW}, 1\ns_add_u32 s67, s67, s66\ns_and_b32 s68, s{sW}, 1')
        I(f's_lshl_b32 s64, s66, 15\ns_add_u32 s64, s64, s{sM0}\ns_add_u32 s{sXO}, s64, {hex(XB[0])}')
        I(f's_lshl_b32 s64, s67, 15\ns_lshl_b32 s69, s{sCG}, 12\ns_add_u32 s64, s64, s69\ns_lshl_b32 s69, s68, 8\ns_add_u32 s64, s64, s69\ns_add_u32 s{sXPUB}, s64, {hex(XB[0])}')
        I(f's_lshl_b32 s64, s67, 11\ns_lshl_b32 s69, s68, 8\ns_add_u32 s64, s64, s69\ns_mul_i32 s69, s{sCG}, 0x108\ns_and_b32 s69, s69, 0x608\ns_add_u32 s64, s64, s69\ns_add_u32 s{sSTPUB}, s64, {hex(ST)}')
        I(f's_mul_i32 s64, s65, {112*1024}\ns_mul_i32 s69, s{sJ}, {7*1024}\ns_add_u32 s64, s64, s69\ns_add_u32 s{sHPUB}, s64, {hex(HB)}')
        I(f's_mul_i32 s64, s66, {112*1024}\ns_mul_i32 s69, s{sW}, {28*1024}\ns_add_u32 s64, s64, s69\ns_add_u32 s{sHIN}, s64, {hex(HB)}')
        I(f's_lshl_b32 s64, s65, 7\ns_add_u32 s{sFXC}, s64, {hex(FX)}')
        I(f's_lshl_b32 s69, s{sJ}, 2\ns_add_u32 s64, s64, s69\ns_add_u32 s{sFOP}, s64, {hex(FO)}')
        I(f's_lshl_b32 s64, s67, 7\ns_lshl_b32 s69, s{sCG}, 3\ns_add_u32 s64, s64, s69\ns_lshl_b32 s69, s68, 2\ns_add_u32 s64, s64, s69\ns_add_u32 s{sFXP}, s64, {hex(FX)}')
        I(f's_lshl_b32 s64, s66, 7\ns_lshl_b32 s69, s{sW}, 4\ns_add_u32 s64, s64, s69\ns_add_u32 s{sFOC}, s64, {hex(FO)}')
        I(f's_lshl_b32 s64, s{sR}, 17\ns_lshl_b32 s69, s{sHB}, 16\ns_add_u32 s64, s64, s69\ns_lshl_b32 s69, s{sW}, 14\ns_add_u32 s64, s64, s69\ns_lshl_b32 s69, s{sCG}, 7\ns_add_u32 s{sNAT}, s64, s69')
        I(f's_lshl_b32 s64, s{sHB}, 8\ns_lshl_b32 s69, s{sW}, 6\ns_add_u32 s64, s64, s69\ns_add_u32 s64, s64, {hex(RS)}\nv_add_u32 v{vRSR}, s64, v{vFX}')

    def xloads(s, buf, n1=2, perm=None):
        so = s.SO(s, sT0)
        d = buf*0x20000; n = s.P['xf']
        with s.k.cap() as f:
            for kc in range(33):
                if kc == s.P['sl']: s.ld(so, v(vTMP, 4), vL16, sSTIN, d, 'sc1'); s.ld(so, v(vTMP+4, 4), vL16, sSTIN, d + 1024, 'sc1')
                if kc == 32: break
                if perm is None: s.ld(so, v(vXB + 4*kc, 4), vL16, sXIN, buf*0x200000 + kc*1024, 'sc1')
                else:
                    with s.k.group():
                        if kc % 4 == 0 and kc: s.I(f's_xor_b32 s{perm}, s{perm}, {hex((kc ^ kc - 4) << 10)}')
                        s.I(f'buffer_load_dwordx4 {v(vXB + 4*kc, 4)}, v{vL16}, {WS}, s{perm} offen offset:{kc % 4*1024} sc1')
        s.k.put(f[:n])
        return (f[n:], 0, n1*(32 - n) - 1)
    def stats(s, own=False):
        I = s.I; t = vTMP
        I(f'v_add_f32 v{t}, v{t}, v{t+2}\nv_add_f32 v{t+1}, v{t+1}, v{t+3}')
        if not own:
            I(f'v_add_f32 v{t+4}, v{t+4}, v{t+6}\nv_add_f32 v{t+5}, v{t+5}, v{t+7}')
            I(f'v_add_f32 v{t}, v{t}, v{t+4}\nv_add_f32 v{t+1}, v{t+1}, v{t+5}')
        I(f'v_permlane32_swap_b32 v{t}, v{t+1}')
        I(f'v_add_f32 v{t}, v{t}, v{t+1}')
        I(f'v_mul_f32 v{t}, 0x3b000000, v{t}')
        I(f'v_mov_b32 v{t+1}, v{t}')
        I(f'v_permlane32_swap_b32 v{t}, v{t+1}')
        I(f'v_fma_f32 v{t+1}, -v{t}, v{t}, v{t+1}')
        I(f'v_max_f32 v{t+1}, 0, v{t+1}')
        I(f'v_add_f32 v{t+1}, 0x3727c5ac, v{t+1}')
    def phi(s, p, tA, tB, out, emit=None):
        I = s.I; mx, mn = vT0, vT2
        I(f'v_max3_f32 v{mx}, v{p}, v{p+1}, v{p+2}\nv_min3_f32 v{mn}, v{p}, v{p+1}, v{p+2}')
        for r in range(3, 15, 2): I(f'v_max3_f32 v{mx}, v{mx}, v{p+r}, v{p+r+1}\nv_min3_f32 v{mn}, v{mn}, v{p+r}, v{p+r+1}')
        I(f'v_max_f32 v{mx}, v{mx}, v{p+15}\nv_min_f32 v{mn}, v{mn}, v{p+15}')
        I(f'v_mul_f32 v{mx}, v{mx}, v{vC}\nv_mul_f32 v{mn}, v{mn}, v{vC}')
        for sg, t, m in ((0, tA, mx), (1, tB, mn)):
            for r in range(0, 16, 2):
                if sg == 0: I(f'v_pk_fma_f32 {v(t+r,2)}, {v(p+r,2)}, {v(vC-1,2)}, {v(m,2)} op_sel:[0,1,0] op_sel_hi:[1,1,0] neg_lo:[0,0,1] neg_hi:[0,0,1]')
                else: I(f'v_pk_fma_f32 {v(t+r,2)}, {v(p+r,2)}, {v(vC-1,2)}, {v(m,2)} op_sel:[0,1,0] op_sel_hi:[1,1,0] neg_lo:[1,0,0] neg_hi:[1,0,0]')
            for r in range(16): I(f'v_exp_f32 v{t+r}, v{t+r}')
            I(f'v_pk_add_f32 {v(vT4,2)}, {v(t,2)}, {v(t+2,2)}')
            for r in range(4, 16, 2): I(f'v_pk_add_f32 {v(vT4,2)}, {v(vT4,2)}, {v(t+r,2)}')
            I(f'v_add_f32 v{vT4}, v{vT4}, v{vT5}\nv_rcp_f32 v{vT4}, v{vT4}')
            for r in range(0, 16, 2): I(f'v_pk_mul_f32 {v(t+r,2)}, {v(t+r,2)}, {v(vT4,2)} op_sel_hi:[1,0]')
            for r in range(8):
                I(f'v_cvt_pk_bf16_f32 v{out+8*sg+r}, v{t+2*r}, v{t+2*r+1}')
                if emit and r % 4 == 3: emit(2*sg + r//4)

    def front(s):
        I = s.I; k = s.k; P = s.P
        s.init0()
        tx = {}; tr = {}; dl = {}
        def X(i):
            with k.group():
                if i >= 8 and i % 2 == 0: k.wait(tr[i//2 - 4])
                tx[i] = s.xdma(i//2, i % 2)
        def RD(c):
            with k.group() as g:
                k.wait(tx[2*c+1])
                for q in range(4): tr[c] = I(f'ds_read_b128 {v(vXB+16*c+4*q,4)}, v{vXR+q} offset:{s.xreg(c) - 0x10000}')
            dl[id(g)] = 8*c - 3
        def SL():
            with k.group() as g:
                I(f's_lshl_b32 s{sT0+3}, s{sR}, 11\ns_lshl_b32 s{sT0+4}, s{sW}, 9\ns_add_u32 s{sT0+3}, s{sT0+3}, s{sT0+4}\ns_add_u32 s{sT0+3}, s{sT0+3}, {hex(S0)}')
                I(f'v_and_b32 v{vT4}, 0x1f0, v{vL16}\nbuffer_load_dwordx4 v[52:55], v{vT4}, {WS}, s{sT0+3} offen sc1')
                I(f's_lshl_b32 s{sT0+5}, s{sJ}, 7\ns_add_u32 s{sT0+5}, s{sT0+5}, s{sM0}\ns_add_u32 s{sT0+5}, s{sT0+5}, {hex(S0)}')
                I(f'v_lshlrev_b32 v57, 9, v0\nv_lshl_or_b32 v57, v0, 5, v57\nv_and_b32 v57, 0x1860, v57\nbuffer_load_dword v56, v57, {WS}, s{sT0+5} offen offset:4 sc1')
            dl[id(g)] = 40; s.gSL = g
        def Q(p):
            with k.group():
                if p == 0: k.wait(tr[5])
                s.tok['Q0'] = s.wdma(p, 2, 0)
        def U(i):
            with k.group():
                if i == 0: k.wait(tr[7])
                s.tok['U'] = s.udma(i)
        with k.cap() as xs:
            for p in range(1, 4): tk = s.wdma(p, 0, 1024)
            for p in range(1, 4): tv = s.wdma(p, 1, 2048)
            for i in range(16):
                X(i)
                if i >= 5 and i % 2 == 1: RD((i - 5)//2)
            SL(); Q(0); RD(6); Q(1); RD(7); Q(2); Q(3)
            for i in range(6): U(i)
        for pos, md in P['po']:
            with k.cap() as f:
                with k.group():
                    if md == 1: I(f's_lshl_b32 s{sT0+11}, s{sRK}, 2\ns_add_u32 s{sT0+11}, s{sT0+11}, s{sW}\ns_lshl_b32 s{sT0+11}, s{sT0+11}, 5\nv_and_or_b32 v47, v0, 31, s{sT0+11}')
                    else: I(f's_lshl_b32 s{sT0+11}, s2, 2\ns_add_u32 s{sT0+11}, s{sT0+11}, s{sW}\ns_lshl_b32 s{sT0+11}, s{sT0+11}, 2\nv_and_or_b32 v47, v0, 3, s{sT0+11}')
                    if md == 2: I(f's_lshr_b32 s{sT0+11}, s{sT0+11}, 3\ns_lshl_b32 s{sT0+11}, s{sT0+11}, 11\nv_lshlrev_b32 v47, 7, v47\nbuffer_load_dword v21, v47, {QS}, s{sT0+11} offen')
                    else: I(f'v_lshlrev_b32 v47, 7, v47\nglobal_load_dword v21, v47, s[6:7]')
            xs[pos] = [xs[pos], f] if id(xs[pos]) not in dl else 1/0
        with k.cap() as pre:
            s.unit()
            if P.get('tlb'):
                n, sh = P['tlb']
                I(f'v_min_u32 v54, {n - 1}, v0\nv_lshlrev_b32 v54, {sh}, v54\ns_lshl_b32 s64, s2, 7\nbuffer_load_dword v21, v54, {WS}, s64 offen offset:1024')
            s.init(); s.finit()
        n, f0, ev = P['sp']
        k.sprinkle(pre, xs[:n], f0, ev); xs = xs[n:]
        s.stamp('init')
        xa, xb, xc, xd = P['xa'], P['xb'], P['xc'], P['xd']
        with k.cap() as f:
            s.fold(); s.rowstats()
            I(f's_lshl_b32 s64, s{sG}, 5\ns_add_u32 s64, s64, s{sRK}\nv_mov_b32 v{vT0}, s{sMARK}\nbuffer_store_byte v{vT0}, v{vL0}, {DS}, s64 offen')
        k.sprinkle(f, xs[:xa], 0, P['xe']); xs = xs[xa:]
        s.stamp('issued')
        with k.cap() as f: s.lbuild(tk, 0, 16, 0)
        k.weave(f, (xs[:xb], 0, 15)); xs = xs[xb:]
        s.stamp('kbuild')
        with k.cap() as f: t = s.lbuild(tv, 1, 0, 1)
        k.weave(f, (xs[:xc], 0, 15)); xs = xs[xc:]
        if P['rl']: k.wait(tx[1]); I('v_xor_b32 v64, 64, v47')
        k.wait(t); I('s_barrier')
        if P['rl']: s.tok['R'] = I('ds_read_b128 a[68:71], v47\nds_read_b128 a[72:75], v64')
        s.stamp('vbuild')
        while any(dl.get(id(x), 99) < 0 for x in xs[xd:]): xd += 1
        k.put(xs[:xd]); xs = xs[xd:]
        assert any(x is s.gSL for x in xs)
        s.late = []
        while len(s.late) < P['up']:
            i = max(i for i, x in enumerate(xs) if id(x) not in dl); s.late.insert(0, xs.pop(i))
        gaps = [min(63, int(i*P['xr'])) for i in range(len(xs))]
        for i in range(len(xs) - 1, -1, -1):
            gaps[i] = min(gaps[i], dl.get(id(xs[i]), 63), max(gaps[i+1] - 1, 0) if i + 1 < len(xs) else 63)
        s.gaps = gaps
        assert not P['rl'] or [g for it, g in zip(xs, gaps) if tx[8] in Asm.flat([it])][0] >= P['rl'] - 1
        fill = [([it], g, g) for it, g in zip(xs, gaps)]
        if P['rl']:
            with k.cap() as f: k.wait(s.tok['R']); I('s_barrier')
            fill.insert(0, (f, P['rl'] - 1, P['rl'] - 1))
        with k.cap() as f:
            for i in range(8): I(f'ds_read_b128 {a_(aKP+4*i,4)}, v{vWW} offset:{i*1024}')
        fill.append((f, *P['kp']))
        with k.cap() as f:
            I(f'ds_read_b128 a[28:31], v{vSR} offset:{SUMS[0] - 0x20000}\nds_read_b128 a[32:35], v{vSR} offset:{SUMS[1] - 0x20000}')
            Lb = s.label('S0'); D = s.label('S0D')
            with k.group():
                I(f's_mov_b32 s{sT0+9}, 0\n{Lb}:')
                I(f'v_xor_b32 v53, s{sTAG}, v53\nv_xor_b32 v55, s{sTAG}, v55\nv_xor_b32 v56, s{sTAG}, v56\nv_or3_b32 v53, v53, v55, v56\nv_cmp_ne_u32 vcc, 0, v53\ns_cbranch_vccz {D}')
                with k.cond():
                    I(f'buffer_load_dwordx4 v[52:55], v{vT4}, {WS}, s{sT0+3} offen sc1\nbuffer_load_dword v56, v57, {WS}, s{sT0+5} offen offset:4 sc1\ns_waitcnt vmcnt(0)')
                    I(f's_add_u32 s{sT0+9}, s{sT0+9}, 1\ns_cmp_lt_u32 s{sT0+9}, s{sLIM}\ns_cbranch_scc1 {Lb}\ns_mov_b32 s{sLIM}, 1')
                I(f'{D}:'); k.retire()
            I('v_mul_f32 v52, 0xbb000000, v52\nv_mul_f32 v54, 0x3b000000, v54')
            I('v_cvt_pk_bf16_f32 v53, v52, v52\nv_fma_f32 v54, -v52, v52, v54\nv_and_b32 v55, 0xffff0000, v53\nv_max_f32 v54, 0, v54')
            I(f'v_sub_f32 v55, v52, v55\nv_add_f32 v54, 0x3727c5ac, v54\nv_cvt_pk_bf16_f32 v55, v55, v55\nv_rsq_f32 v{vRSTD}, v54')
            with k.group(): I('v_cmp_gt_u32 vcc, 32, v0\nv_cndmask_b32 v53, v55, v53, vcc')
            I(f'v_mul_f32 v{vC}, s{sLOG2E}, v{vRSTD}')
            for r in range(4): I(f'v_accvgpr_write_b32 a{24+r}, v53')
        fill.append((f, 54, 62))
        return fill

    def wodma(s, L, p0, p1):
        I = s.I; k = s.k; P = s.P; two = None
        with k.cap() as fo:
            for p in range(p0, p1):
                with k.group():
                    if p == p0: I(f'v_lshrrev_b32 v{vT1}, 3, v0\nv_and_b32 v{vT3}, 0x70, v1\nv_lshl_or_b32 v{vT1}, v{vT1}, 10, v{vT3}\nv_add_u32 v{vT3}, 7168, v{vT1}')
                    I(f's_xor_b32 m0, s{sOM}, {hex((p >> 2)*WOX[L] + (p & 3)*2048)}\ns_xor_b32 s{sT0+1}, s{sWO}, {hex(p << 14)}')
                    I(f'buffer_load_dwordx4 v{vT1}, {US}, s{sT0+1} offen {s.md("w", "")} lds')
                    two = I(f'buffer_load_dwordx4 v{vT3}, {US}, s{sT0+1} offen offset:1024 {s.md("w", "")} lds')
                    if p == P['twp'][L]: k.put(s.touches(P['tw'][L], vMK if L else 47))
        return fo, two
    def qkv(s, L):
        I = s.I; k = s.k; P = s.P
        SK, SV, SQ = 0, 1, 2
        bA, bB = L, 1 - L
        aK, aV, aQ = vACC, vACC+16, vACC+32
        qw = P['qw']*L
        def wosrd(): I('s_mov_b32 s84, s6\ns_mov_b32 s85, s7\ns_mov_b32 s86, 0x80000\ns_mov_b32 s87, 0x20000')
        if L == 0:
            fill = s.front()
            with k.cap() as s.bw:
                so = s.SO(s, sT0+7)
                for jj, i in [(jj, i) for jj in range(4) for i in range(12)] + [(jj, i) for jj in range(4) for i in (12, 13)]:
                    s.ld(so, a_(aWD(jj, i//2, i % 2), 4), vL16, sWQ + jj, i*1024, s.md('d'))
        else:
            I(f's_lshl_b32 s{sT0+2}, s{sCG}, 12\ns_add_u32 s{sT0+2}, s{sT0+2}, s{sXIN}\ns_add_u32 s{sT0+2}, s{sT0+2}, {hex(bA*0x200000)}')
            s.poll(vFX, sFXC, 0, 2*L)
            s.stamp('x_ok')
            fill = [s.xloads(bA, 2, sT0+2)]
            k.wait(s.tok['K']); I('s_barrier')
            with k.cap() as f:
                I(f'v_and_b32 v{vT4}, 0x1f0, v{vL16}\nv_add_u32 v{vT4}, 0x20000, v{vT4}')
                I(f'ds_read_b128 v[112:115], v{vT4} offset:{SUMS[0] - 0x20000}\nds_read_b128 v[116:119], v{vT4} offset:{SUMS[1] - 0x20000}')
                if qw: I(f'ds_read_b128 v[120:123], v{vT4} offset:{SUMS[3] - 0x20000}')
                s.stats(); s.meanop(vMU, vTMP, vTMP+2)
                for r in range(4): I(f'v_mov_b32 v{124+r}, v{vMU}')
                I(f'v_rsq_f32 v{vRSTD}, v{vTMP+1}')
                I(f'v_mul_f32 v{vC}, s{sLOG2E}, v{vRSTD}')
            fill.append((f, 44, 60))
        fill.append((s.touches(P['tk'][L]), P['tkg'][L], 63))
        if L == 0: s.gtile(0)
        else: s.tok[0] = None
        steps = []
        for kc in range(32): steps += [(SV, kc, aV, kc == 0), (SK, kc, aK, kc == 0)]
        if qw: steps += [(SQ, kc, aQ, False) for kc in range(32)]
        base, _ = s.gemm(steps, {63: (96, [], 1)} if qw and P['on'][1] else {P['kf'][L]: (64, [])} if P['kf'][L] else {})
        with k.cap() as fm:
            if L == 0:
                I(f'v_mfma_f32_32x32x16_bf16 {v(aV,16)}, a[32:35], a[24:27], {v(aV,16)}\nv_mfma_f32_32x32x16_bf16 {v(aK,16)}, a[28:31], a[24:27], {v(aK,16)}')
            else:
                I(f'v_mfma_f32_32x32x16_bf16 {v(aV,16)}, v[116:119], v[124:127], {v(aV,16)}\nv_mfma_f32_32x32x16_bf16 {v(aK,16)}, v[112:115], v[124:127], {v(aK,16)}')
                if qw: I(f'v_mfma_f32_32x32x16_bf16 {v(aQ,16)}, v[120:123], v[124:127], 0')
        if not qw:
            nv = P['vm'] >> L & 1
            k.weave(base, *fill, (fm[:nv], 62, 62)); k.put(fm[nv:])
            s.stamp('kv_gemm')
        wob, kb = vXB + 64, vXB
        fo, two = s.wodma(L, P.get('so1', 0)*L, 8)
        with k.cap() as fx:
            I('v_bfe_u32 v126, v0, 2, 2\nv_lshrrev_b32 v125, 5, v0\nv_lshl_or_b32 v126, v125, 3, v126\nv_bfe_u32 v125, v0, 4, 1\nv_lshl_or_b32 v126, v126, 2, v125')
            I('v_and_b32 v125, 1, v0\nv_lshl_or_b32 v126, v126, 1, v125\nv_bfe_u32 v125, v0, 1, 1\nv_lshl_or_b32 v126, v126, 1, v125')
            with k.group(): I(f's_and_b32 s{sT0+3}, s{sR}, 1\ns_mul_i32 s{sT0+3}, s{sT0+3}, {hex(WOX[L])}\ns_or_b32 s{sT0+3}, s{sT0+3}, s{sM0}\nv_lshl_add_u32 v125, v126, 3, s{sT0+3}')
            I(f'v_xor_b32 v126, {hex(WOX[L])}, v125')
        def otr():
            k.wait(two)
            for kk in range(8):
                for ct in range(2):
                    for r in range(2): t = I(f'ds_read_b64_tr_b16 {v(wob+8*kk+4*ct+2*r,2)}, v{125 + (kk >> 2)} offset:{(kk & 3)*2048 + ct*64 + r*512}')
            return t
        on = P['on'][L]
        with k.cap() as f:
            for r in range(0, 16, 2): I(f'v_pk_mul_f32 {v(aV+r,2)}, {v(aV+r,2)}, {v(vRSTD,2)} op_sel_hi:[1,0]')
            for r in range(8): I(f'v_cvt_pk_bf16_f32 v{aV+r}, v{aV+2*r}, v{aV+2*r+1}')
            I(f'ds_write_b128 v{vPHW}, {v(aV,4)} offset:{4*PS}\nds_write_b128 v{vPHW}, {v(aV+4,4)} offset:{5*PS}')
            tw = []
            s.phi(aK, vACC+48, aK, vTMP, emit=lambda n: tw.append(I(f'ds_write_b128 v{vPHW}, {v(vTMP+4*n,4)} offset:{n*PS}')))
            for r in range(4): I(f'v_mov_b32 v{72+r}, s{sONES}')
        if qw: cap = k.cap(); fq = cap.__enter__()
        ta = vXB if qw else 96
        if L == 0:
            assert P['op'] == 0 or P['kf'][0]
            k.sprinkle(f, s.late + fo[:P['op']], *P['tp'][1:]); fo = fo[P['op']:]; on -= P['op']
        else:
            s.gtile(1); s.gtile(2)
            assert on == 0 or P['kf'][1] or qw
            k.sprinkle(f, fo[:on], 9 + qw//4 if qw else 2, P['oe']); fo = fo[on:]
        with k.group():
            k.wait(tw[-1])
            if L == 0 and P['ue'] == 2: k.wait(s.tok['U'])
            I('s_barrier')
            s.stamp('phik')
        for u in range(4):
            for p in range(2):
                I(f'ds_read_b64_tr_b16 {v(ta+4*u+2*p,2)}, v{vTRA} offset:{u*512+p*64}')
            for p in range(2):
                I(f'ds_read_b64_tr_b16 {v(ta+16+4*u+2*p,2)}, v{vTRB} offset:{u*512+p*64}')
        if L == 0 and P['ue']: s.uaddr()
        with k.group():
            for u in range(4):
                I(f'v_mfma_f32_16x16x32_bf16 v[64:67], {v(ta+4*u,4)}, {v(ta+16+4*u,4)}, {"0" if u == 0 else "v[64:67]"}')
                I(f'v_mfma_f32_16x16x32_bf16 v[68:71], v[72:75], {v(ta+4*u,4)}, {"0" if u == 0 else "v[68:71]"}')
        I(f's_sub_u32 s{sT0}, s{sKVP}, s{sW}\ns_lshl_b32 s{sT0}, s{sT0}, 9\ns_add_u32 s{sT0}, s{sT0}, {hex(KVP - KVA + L*0x100000)}')
        I(f's_lshl_b32 s{sT0+3}, s{sKVP}, 6\ns_add_u32 s{sT0+3}, s{sT0+3}, {hex(KVZ + L*0x100000)}')
        I('v_cvt_pk_bf16_f32 v112, v64, v65\nv_cvt_pk_bf16_f32 v113, v66, v67\nv_mov_b32 v114, v68')
        I(f'buffer_store_dwordx2 v[112:113], v{vKVW}, {WS}, s{sT0} offen sc1\nbuffer_store_dword v114, v{vFX}, {WS}, s{sT0+3} offen sc1')
        s.stamp('kvpub')
        if qw:
            cap.__exit__(None, None, None)
            fill += [(fm[:1], 62, 62), (fm[1:2] + fq[:8] + fm[2:], 63, 63)]; c = 0
            for it in fq[8:]:
                gq = 63 + c//qw
                fill.append(([it], gq, gq))
                c += sum(16 if x.text[:5] in ('v_exp', 'v_rcp') else 4 for x in Asm.flat([it]) if x.text[:2] != 's_')
            fill.append((fo[:P['qo']], gq + 1, 95)); fo = fo[P['qo']:]
            k.weave(base, *fill)
        s.wob = wob; zb = kb + 32; sel = kb + 40
        def kvld(r):
            with k.group():
                if r < 8: I(f's_xor_b32 s{sT0}, s{sKVC}, {hex(L*0x100000 + (3 - r//2)*2048)}\nbuffer_load_dwordx4 {v(kb+4*r,4)}, v{vPUB}, {WS}, s{sT0} offen offset:{256*(r & 1)} {s.md("k")}')
                else: I(f's_lshr_b32 s{sT0}, s{sKVP}, 4\ns_lshl_b32 s{sT0}, s{sT0}, 10\ns_add_u32 s{sT0}, s{sT0}, {hex(KVZ + L*0x100000)}\nbuffer_load_dwordx4 {v(zb,4)}, v{vL16}, {WS}, s{sT0} offen {s.md("k")}')
        with k.cap() as fk:
            for r in P['ko']: kvld(r)
        with k.cap() as fs:
            I(f'v_and_b32 v{sel+8}, 1, v0\nv_lshlrev_b32 v{sel+8}, 4, v{sel+8}\nv_lshlrev_b32 v{sel+8}, v{sel+8}, s{sSELLO}\nv_bfe_u32 v{sel+9}, v0, 1, 3')
            for r in range(8):
                with k.group(): I(f'v_cmp_eq_u32 vcc, {r}, v{sel+9}\nv_cndmask_b32 v{sel+r}, 0, v{sel+8}, vcc')
        assert P['ot'] == (0, 0)
        if L == 0:
            assert P['op'] == 0; wosrd()
            I(f'v_add_u32 v{vWR}, 0x10000, v{vWR}\nv_add_u32 v{vWR+1}, 0x10000, v{vWR+1}\nv_add_u32 v{vWW}, 0x10000, v{vWW}')
            with k.cap() as fa: s.uaddr()
            with k.cap() as f: t = s.lbuild(s.tok['Q0'], SQ, 16, 3)
            with k.cap() as fu: tu = s.uproc()
            if P['ue']:
                if P['ue'] == 1: k.put(fu[:1])
                u0, u1, u2, o0, o1 = P['uw']
                k.weave(f, (fu[1:7], 0, u0), (fu[8:], u1, u2), (fo[:on], o0, o1)); fu = []
            else: k.weave(f, (fa[:8], 0, 2), (fa[8:], 11, 15), (fo[:on], 0, 15))
            fo = fo[on:]
            k.wait(t); I('s_barrier')
            s.stamp('qbuild')
            with k.cap() as ff:
                with k.group():
                    if P.get('xs'): s.stamp('ff0')
                    k.wait(tu)
                    if P.get('xs'): s.stamp('ff1')
                    I(f's_barrier\ns_lshl_b32 s{sT0+3}, s2, 8\ns_lshl_b32 s{sT0+4}, s{sW}, 28\ns_add_u32 s{sT0+3}, s{sT0+3}, s{sT0+4}\ns_add_u32 s{sT0+3}, s{sT0+3}, {hex(FU)}')
                    I(f'v_mov_b32 v116, s{sTAG}\nv_lshlrev_b32 v117, 2, v0\nbuffer_store_dword v116, v117, {WS}, s{sT0+3} offen sc1')
            with k.cap() as fy:
                I(f'v_and_b32 v122, 7, v0\nv_min_u32 v127, 2, v122\nv_bfe_u32 v121, v0, 3, 1\nv_mad_u32_u24 v127, v121, 28, v127')
                with k.group(): I(f's_mul_i32 s{sT0+3}, s{sJ}, 7\ns_lshr_b32 s{sT0+3}, s{sT0+3}, 2\nv_add_u32 v127, s{sT0+3}, v127')
                with k.group(): I(f'v_lshl_add_u32 v121, v122, 3, s{sCG}\nv_cmp_lt_u32 vcc, 15, v0\nv_cndmask_b32 v127, v127, v121, vcc')
                with k.group(): I(f's_lshl_b32 s{sT0+3}, s{sW}, 6\nv_add_u32 v127, s{sT0+3}, v127')
                I(f'v_lshlrev_b32 v127, 8, v127')
            if s.stop == 'kv0':
                k.put(fu); k.put(ff); return True
            with k.cap() as f1:
                so = s.SO(s, sT0+2)
                if P['rl']:
                    for r in range(8): I(f'v_accvgpr_read_b32 v{vRES+r}, a{68+r}')
                else: s.ld(so, v(vRES, 4), vNAT, sNAT, 0, srdn=XS); s.ld(so, v(vRES+4, 4), vNAT, sNAT, 64, srdn=XS)
                with k.group(): I(f'v_and_b32 v{vMK}, 28, v{vFX}\ns_lshl_b32 s{sT0+3}, s{sG}, 5\nbuffer_load_dword v{vMK}, v{vMK}, {DS}, s{sT0+3} offen sc1')
                I(f'ds_read_b128 a[28:31], v{vSR} offset:{SUMS[3] - 0x20000}')
            assert P['og'][1] > P['ub'] or P['ue']
            n = P['f1p'][0]; fr = f1[:n]; f1 = f1[n:]
            fill = [(fu[:8], 0, P['ub']), (fu[8:], P['ub'] + 1, P['uc']), (f1, *P['f1']), (fx + fy, 6, 30), (fs, 14, 30), (fo[:P['og'][0]], P['og'][1], P['oh'])]; fo = fo[P['og'][0]:]
            if P['fg'] < 0: fill.append((ff, -P['fg'], -P['fg'])); ff = []
        else:
            with k.cap() as f1:
                I(f'v_and_b32 v{vT4}, 0x1f0, v{vL16}\nv_add_u32 v{vT4}, 0x20000, v{vT4}\nds_read_b128 v[64:67], v{vT4} offset:{SUMS[3] - 0x20000}')
                for r in range(4): I(f'v_mov_b32 v{68+r}, v{vMU}')
            fill = [(fo, *P['tb'][1:]), (fk[:P['kn']], P['k0'], 31), (f1 + fx, 10, 28), (fs, 14, 30)]
        if not qw:
            base, _ = s.gemm([(SQ, kc, aQ, kc == 0) for kc in range(32)])
            k.weave(base, *fill)
            if L == 0: I(f'v_mfma_f32_32x32x16_bf16 {v(aQ,16)}, a[28:31], a[24:27], {v(aQ,16)}')
            else: I(f'v_mfma_f32_32x32x16_bf16 {v(aQ,16)}, v[64:67], v[68:71], {v(aQ,16)}')
            s.stamp('q_gemm')
        with k.cap() as f: s.phi(aQ, vACC, vACC+16, vTMP)
        if L == 0:
            with k.cap() as f2: k.sprinkle(f, ff, P['fg'], 1)
            with k.cap() as f3: k.sprinkle(f2, fo, *P['oq'][0])
            with k.cap() as f4: k.sprinkle(f3, fk, *P['kq'][0])
            if P['f1p'][1] < 200: k.sprinkle(f4, fr, *P['f1p'][1:]); fr = []
            else: k.put(f4)
        elif qw:
            f = fx + f + fs
            with k.cap() as f3: k.sprinkle(f, fo, *P['oq'][1])
            k.sprinkle(f3, fk, *P['kq'][2])
        else: k.sprinkle(f, fk[P['kn']:], *P['kq'][1])
        s.stamp('phiq')
        def fuld(): return I(f's_mov_b32 s{sT0+4}, {hex(FU)}\nbuffer_load_dword v112, v127, {WS}, s{sT0+4} offen sc1')
        if L == 0 and P['fup'] == 0: fuld()
        if P['ot'][L] == 0: tot = otr()
        MK = [76] + list(range(88, 102, 2))
        Lb = s.label('KV'); D = s.label('KVD')
        I(f's_mov_b32 s{sT0+9}, 0')
        I(f'{Lb}:')
        first = True
        for r in P['ko']:
            if r < 8:
                I(f'v_mfma_f32_16x16x32_bf16 v[64:67], {v(sel+4*(r & 1),4)}, {v(kb+4*r,4)}, {"0" if first else "v[64:67]"}'); first = False
            else:
                I(f'v_permlane32_swap_b32 v{zb}, v{zb+1}\nv_permlane32_swap_b32 v{zb+2}, v{zb+3}\nv_add_f32 v68, v{zb}, v{zb+1}\nv_add_f32 v69, v{zb+2}, v{zb+3}')
                I('v_permlane16_swap_b32 v68, v69\nv_add_f32 v68, v68, v69')
                for n in (4, 8): I(f'v_add_f32_dpp v68, v68, v68 row_ror:{n} row_mask:0xf bank_mask:0xf')
        I(f'v_add_f32 v69, v68, v64\nv_cmp_u_f32 vcc, v69, v66\ns_cbranch_vccz {D}')
        with k.cond():
            kvld(8)
            for r in range(8):
                I(f'v_max3_u32 v69, v{kb+4*r}, v{kb+4*r+1}, v{kb+4*r+2}\nv_max_u32 v69, v69, v{kb+4*r+3}\nv_cmp_eq_u32 {s_(MK[r],2)}, -1, v69')
            for r in range(8):
                I(f's_mov_b64 exec, {s_(MK[r],2)}'); kvld(r)
            I('s_mov_b64 exec, -1\ns_waitcnt vmcnt(0)')
            I(f's_add_u32 s{sT0+9}, s{sT0+9}, 1\ns_cmp_lt_u32 s{sT0+9}, s{sLIM}\ns_cbranch_scc1 {Lb}\ns_mov_b32 s{sLIM}, 1')
        I(f'{D}:')
        k.retire()
        s.stamp('kv_ok')
        def fuok():
            Lb = s.label('FU'); D = s.label('FUD')
            I(f's_mov_b32 s{sT0+9}, 0\n{Lb}:\nv_cmp_ne_u32 vcc, s{sTAG}, v112\ns_cbranch_vccz {D}')
            with k.cond():
                fuld(); I('s_waitcnt vmcnt(0)')
                I(f's_add_u32 s{sT0+9}, s{sT0+9}, 1\ns_cmp_lt_u32 s{sT0+9}, s{sLIM}\ns_cbranch_scc1 {Lb}\ns_mov_b32 s{sLIM}, 1')
            I(f'{D}:')
            k.retire()
            s.stamp('fu_ok')
            I(f's_lshr_b32 s{sT0}, s{sRK}, 3' + ('' if s.P['ws'] == 1 else f'\ns_xor_b32 s{sT0}, s{sT0}, s{sCG}\ns_and_b32 s{sT0}, s{sT0}, {3 if s.P["ws"] else 0}'))
            for q in range(4):
                I(f's_xor_b32 s{sT0+2}, s{sT0}, {q}\ns_mul_i32 s{sT0+2}, s{sT0+2}, 7168\ns_add_u32 s{sHQ+q}, s{sHIN}, s{sT0+2}\ns_lshl1_add_u32 s{sWQ+q}, s{sT0+2}, s{sWD}')
        if L == 0:
            I(f's_mul_i32 s{sT0+3}, s{sMARK}, 0x01010101\nv_cmp_ne_u32 vcc, s{sT0+3}, v{vMK}\ns_or_b32 s{sSLOW}, vcc_lo, vcc_hi')
            if P['f1p'][1] == 200: k.put(fr); fr = []
        if L == 0 and P['fup']: fuld()
        if L == 0 and P['fe']:
            fuok(); k.wait(tot); k.put(s.take(P['t1'][0])); k.put(s.takew(P['w1']))
        if L:
            if P['ot'][L] == 0: k.wait(tot)
            k.put(s.take(P['t1'][L] if P['ot'][L] == 0 else min(8, P['t1'][L])))
        I('v_cvt_pk_bf16_f32 v70, v64, v65\nv_cvt_pk_bf16_f32 v71, v66, v67\nv_cvt_pk_bf16_f32 v68, v68, v68')
        I(f'ds_write_b64 v{vKVW}, v[70:71]')
        t = I(f'ds_write_b16 v{vZW}, v68')
        k.wait(t); I('s_barrier')
        aRING = s.ring
        for n in range(4):
            I(f'ds_read_b128 {a_(aRING+8*n,4)}, v{vZR} offset:{n*16}\nds_read_b128 {a_(aRING+8*n+4,4)}, v{vKVR} offset:{n*256}')
        for n in range(4):
            I(f'v_mfma_f32_32x32x16_bf16 v[80:95], {a_(aRING+8*n,4)}, {v(vTMP+4*n,4)}, {"0" if n == 0 else "v[80:95]"}')
        for n in range(4):
            I(f'v_mfma_f32_32x32x16_bf16 v[64:79], {a_(aRING+8*n+4,4)}, {v(vTMP+4*n,4)}, {"0" if n == 0 else "v[64:79]"}')
        I('v_add_f32 v80, 0x358637bd, v80\nv_add_f32 v88, 0x358637bd, v88\nv_rcp_f32 v80, v80\nv_rcp_f32 v88, v88')
        so = s.SO(s, sT0)
        I(f's_lshl_b32 s{sT0+3}, s{sJ}, 11\ns_add_u32 s{sT0+3}, s{sT0+3}, s{sXIN}')
        for c in range(2):
            for r in range(0, 8, 2): I(f'v_pk_mul_f32 {v(64+8*c+r,2)}, {v(64+8*c+r,2)}, {v(80+8*c,2)} op_sel_hi:[1,0]')
            for r in range(4): I(f'v_cvt_pk_bf16_f32 v{96+4*c+r}, v{64+8*c+2*r}, v{64+8*c+2*r+1}')
            t = s.pub(s.ld(so, v(96+4*c, 4), vL16, sT0+3, bB*0x200000 + c*1024, op='buffer_store_dwordx4'))
        k.wait(t)
        s.flag(sFOP, 0, L + 1)
        s.stamp('opub')
        if L == 0 and not P['fe']: fuok()
        if P['ot'][L]: tot = otr()
        k.wait(tot)
        k.put(s.take(P['t2'][L]))
        k.put(s.takew(P['w2']))
        k.put(s.touches(P['to'][L]))
        if L == 0: k.put(fr)
        return s.stop == f'o{L}'

    def red_write(s, slot, rt2, ct):
        I = s.I; a = vACC + 32*rt2 + 16*ct; t = None
        for h in range(2):
            for r in range(4): I(f'v_cvt_pk_bf16_f32 v{a+8*h+r}, v{a+8*h+2*r}, v{a+8*h+2*r+1}')
            t = I(f'ds_write_b128 v{vT1}, {v(a+8*h,4)} offset:{rt2*16384 + (2*ct+h)*512}')
        return t
    def red_finish(s, slot, scale, L, buf, p, final, pre, after=None, idle=None):
        I = s.I; k = s.k; rb = vXB + 64
        I(f's_add_u32 s{sT0+3}, s{sM0}, {hex(slot*0x8000)}\nv_add_u32 v{vT0}, s{sT0+3}, v{vL16}')
        k.wait(*pre); I('s_barrier')
        if scale: I(f'ds_read_b32 v{vT2}, v{vRSR}')
        t = None
        for c in range(2):
            for src in range(4): t = I(f'ds_read_b128 {v(rb+16*c+4*src,4)}, v{vT0} offset:{src*2048 + c*1024}')
        so = s.SO(s, sT0)
        for c in range(2):
            for src in range(4):
                for e in range(8):
                    d = (vACC if scale else vRES) + 8*c + e
                    I(f'v_dot2_f32_bf16 v{d}, v{rb+16*c+4*src+e//2}, s{sSELHI if e & 1 else sSELLO}, {"0" if scale and src == 0 else v(d)}')
            if scale:
                for e in range(0, 8, 2): I(f'v_pk_fma_f32 {v(vRES+8*c+e,2)}, {v(vACC+8*c+e,2)}, {v(vT2,2)}, {v(vRES+8*c+e,2)} op_sel_hi:[1,0,1]')
            for r in range(4): I(f'v_cvt_pk_bf16_f32 v{vTMP+4*c+r}, v{vRES+8*c+2*r}, v{vRES+8*c+2*r+1}')
            if final: s.ld(so, v(vTMP+4*c, 4), vNAT, sNAT, 64*c, s.P['om'], op='buffer_store_dwordx4', srdn=OS)
            else: s.pub(s.ld(so, v(vTMP+4*c, 4), vPUB, sXPUB, buf*0x200000 + 2048*c, op='buffer_store_dwordx4'))
        if final: return
        for r in range(8):
            I(f'v_dot2_f32_bf16 v{vT2}, v{vTMP+r}, s{sONES}, {"0" if r == 0 else v(vT2)}')
            I(f'v_dot2_f32_bf16 v{vT3}, v{vTMP+r}, v{vTMP+r}, {"0" if r == 0 else v(vT3)}')
        I(f'v_permlane32_swap_b32 v{vT2}, v{vT3}\nv_add_f32 v{vT2}, v{vT2}, v{vT3}\nv_mov_b32 v{vT3}, v{vT2}')
        I(f'v_permlane16_swap_b32 v{vT2}, v{vT3}\nv_add_f32 v{vT2}, v{vT2}, v{vT3}')
        t2 = s.pub(s.ld(so, v(vT2), vSTW, sSTPUB, buf*0x20000, op='buffer_store_dword'))
        if idle: idle()
        k.wait(t2)
        s.flag(sFXP, 0, p)
        if after: after()

    def wo(s, L):
        I = s.I; k = s.k
        SQ = 3 - L; bA, bB = L, 1 - L
        I(f'v_add_u32 v{vT1}, {hex(SQ*0x8000)}, v{vREDW}')
        if L == 0:
            for i in range(7, -1, -1): I(f'v_and_b32 v{vRES+2*i+1}, 0xffff0000, v{vRES+i}\nv_lshlrev_b32 v{vRES+2*i}, 16, v{vRES+i}')
        s.poll(vFO, sFOC, 0, L + 1)
        s.stamp('o_ok')
        so = s.SO(s, sT0); wob = s.wob; ob = 2*vXB + 64 - wob
        with k.cap() as fl:
            for rt2 in range(2):
                for kk in range(8): s.ld(so, v(ob + 32*rt2 + 4*kk, 4), vL16, sXO, bB*0x200000 + rt2*0x8000 + kk*1024, 'sc1')
        k.put(fl[:8])
        with k.cap() as base:
            for rt2 in range(2):
                for kk in range(8):
                    for ct in range(2):
                        a = vACC + 32*rt2 + 16*ct
                        I(f'v_mfma_f32_32x32x16_bf16 {v(a,16)}, {v(wob+8*kk+4*ct,4)}, {v(ob+32*rt2+4*kk,4)}, {"0" if kk == 0 else v(a,16)}')
        with k.cap() as f1:
            s.red_write(SQ, 0, 0); s.red_write(SQ, 0, 1)
        k.weave(base, (fl[8:], 0, 15), (s.take(s.P['t3'][L]) + s.takew(s.P['w3']) + s.touches(s.P['tq'][L]), 18, 31), (f1, 19, 30))
        s.red_write(SQ, 1, 0); t = s.red_write(SQ, 1, 1)
        s.stamp('wo_gemm')
        def after():
            if L == 0:
                I(f's_mul_i32 s{sT0+3}, s{sJ}, 896\ns_lshl_b32 s{sT0+4}, s{sW}, 8\ns_add_u32 s{sT0+3}, s{sT0+3}, s{sT0+4}\nv_lshlrev_b32 v{vT2}, 2, v0')
                for q in range(4):
                    I(f's_add_u32 s{sT0+3}, s{sT0+3}, {hex(CS if q == 0 else 14336)}\nbuffer_load_dword v{56+q}, v{vT2}, {WS}, s{sT0+3} offen sc1')
            assert s.gslot(L, 1 + 2*L) == SQ; s.gtile(1 + 2*L)
            k.put(s.take(s.P['t4'][L])); k.put(s.takew(s.P['w4'])); k.put(s.touches(s.P['tz'][L]))
        s.red_finish(SQ, False, L, bA, 2*L + 1, False, [t], after)
        s.stamp('x1pub')
        return s.stop == f'x{2*L+1}'

    def gu_epi(s, L, t):
        I = s.I; a = vACC + 16*(t % 4)
        for r in range(8): I(f'v_max_f32 v{a+r}, 0, v{a+r}')
        for r in range(8): I(f'v_mul_f32 v{a+r}, v{a+r}, v{a+8+r}')
        for r in range(4): I(f'v_cvt_pk_bf16_f32 v{a+8+r}, v{a+2*r}, v{a+2*r+1}')
        if s.P['hm'][L]: return s.ld(s.soH, v(a+8, 4), vL16, sHPUB, s.ord(L)[t]*1024, s.P['hm'][L], op='buffer_store_dwordx4')
        return s.pub(s.ld(s.soH, v(a+8, 4), vL16, sHPUB, s.ord(L)[t]*1024, op='buffer_store_dwordx4'))
    def ord(s, L): return s.P['o1'] if L else range(7)
    def gslot(s, L, t): return (3, 0, 1, 2)[t % 4] if L else (0, 3)[t % 2]
    def gtile(s, t): s.bg_tile(t, sGU, s.ord(s.L)[t]*0x8000, s.gslot(s.L, t))
    def gu(s, L):
        I = s.I; k = s.k; P = s.P
        slot = lambda t: s.gslot(L, t)
        bA = L; n1 = P['n1'][L]; ns = 2 + 2*L; E1 = 32*n1; EM = max(E1, 64)
        acc = lambda t: vACC + 16*(t % 4)
        s.poll(vFX, sFXC, 0, 2*L + 1)
        s.stamp('x1_ok')
        fill = [s.xloads(bA, n1)]
        nb = L and P['fb']
        k.wait(*[s.tok[t] for t in range(3 if nb else n1)]); I('s_barrier')
        fill.append((s.take(99), *(P['tr'] if nb else (E1*5//8, E1 - 4))))
        for names, g in P['tg'][L]: fill.append((s.touches(names), g, g + len(names) - 1))
        tcs = []
        if L == 0:
            with k.cap() as f:
                I(f'v_add_f32 v56, v56, v57\nv_add_f32 v58, v58, v59\nv_add_f32 v56, v56, v58')
                I('v_cvt_pk_bf16_f32 v57, v56, v56\nv_and_b32 v57, 0xffff0000, v57\nv_sub_f32 v57, v56, v57\nv_cvt_pk_bf16_f32 v57, v56, v57')
                with k.group(): I(f's_lshl_b32 s{sT0+3}, s{sW}, 8\ns_add_u32 s{sT0+3}, s{sT0+3}, {hex(WPH)}\nv_add_u32 v{vT2}, s{sT0+3}, v{vT2}')
                tcs.append(I(f'ds_write_b32 v{vT2}, v57'))
            fill.append((f, 24, 36))
        with k.cap() as f:
            s.stats(); s.meanop(60, vTMP, vTMP+2)
            I(f'v_rcp_f32 v{vRSTD}, v{vTMP+1}')
            I(f'v_mov_b32 v61, 0\nv_mov_b32 v62, 0\nv_mov_b32 v63, 0\nv_and_b32 v{vT2}, 31, v0\nv_lshlrev_b32 v{vT2}, 2, v{vT2}\nv_add_u32 v{vT2}, {hex(WPH)}, v{vT2}')
            s.tRS = I(f'ds_write_b32 v{vRSW}, v{vRSTD}')
        fill.append((f, EM - 27, EM - 5))
        steps = []
        for kc in range(32): steps += [(slot(t), kc, acc(t), kc == 0) for t in range(n1)]
        for t in range(n1, 7): steps += [(slot(t), kc, acc(t), kc == 0) for kc in range(32)]
        fences = {32*t - 4: (32*t, tcs if 32*t == EM else []) for t in range(n1, 7)}
        bub = n1 == ns; g = 0; dm = {}
        if nb:
            for t in range(4, 7):
                s.gtile(t); a, b = P['fd'][t - 4]; fill.append((s.take(8), a, b))
                assert any(max(32*(t - 3), E1) <= g < a for g, _ in nb) and any(t in ts and b <= g for g, ts in nb) and (t == 4 or a > P['fd'][t - 5][1])
            fences = {g: (32*min(ts, default=7), [s.tok[t] for t in ts], 0) for g, ts in nb}
            assert sorted(t for g, ts in nb for t in ts) == [3, 4, 5, 6]
        for t in range(n1, 7 if not nb else 0):
            if t >= ns:
                s.gtile(t); dm[t] = s.take(8)
                g = max(g, max(32*(t - ns + 1), E1) - 3)
                if bub and t == ns: fill.append((dm[t], g, g + 2))
                elif not (bub and t == ns + 1): fill.append((dm[t], g, g + P['dl'][L])); g += P['dl'][L] + 1
            if bub and t == ns: fences[32*t - 1] = (32*t, [s.tok[t]])
            else: fences[32*t - 4] = (32*t, fences[32*t - 4][1] + [s.tok[t]])
        s.soH = s.SO(s, sT0+4)
        th = {}; fb = []; ge = 0
        for t in range(7):
            r = 56 + 2*(t == 1); early = 32*t < EM
            with k.cap() as f:
                if t < 2: I(f'ds_read2_b32 {v(r,2)}, v{vT2} offset0:{32*s.ord(L)[t]} offset1:{32*s.ord(L)[t]}')
                else: I(f'ds_read_b32 v{r}, v{vT2} offset:{128*s.ord(L)[t]}')
                with k.group(): I(f'v_mfma_f32_32x32x16_bf16 {v(acc(t),16)}, {v(r,4)}, v[60:63], {v(acc(t),16)}')
            gm = (EM, EM + 1, EM + 5)[t] if early else 32*t + 24
            gr = EM - 3 if t < 2 else gm - 4
            fill.append(([f[0]], gr, gr))
            if bub and early: fb.insert(t, f[1])
            else: fill.append(([f[1]], gm, gm))
            if t < 6:
                with k.cap() as f: th[t] = s.gu_epi(L, t)
                ge = max(ge, (EM if early else 32*t + 32) + 4)
                if bub and early: fb += f
                else: fill.append((f, ge, ge + 9 + (not early))); ge += 10
        if bub:
            with k.cap() as f: k.sprinkle(fb, dm[ns + 1], 1, 5)
            fill.append((f, E1 - 1, E1 - 1))
        if L == 0:
            for n, g0, g1 in P['wl']: fill.append((s.takew(min(n, len(s.bw) - 8)), g0, g1))
            assert len(s.bw) == 8
        for g in P.get('gs', ()):
            with k.cap() as f: s.stamp(f'g{g}')
            fill.append((f, g, g))
        base, last = s.gemm(steps, fences)
        ne, e0, e1 = s.P['he'][L]; g4, gp, gc, g6 = s.P['hg'][L]
        s.hso = [s.SO(s, sT0), s.SO(s, sT0+2)]
        with k.cap() as f:
            with k.group():
                I(f's_add_u32 s{sT0+5}, s{sFOP}, {hex(FH - FO)}\ns_add_u32 s{sT0+6}, s{sFOC}, {hex(FH - FO)}')
                if ne: k.wait(th[3]); s.flag(sT0+5, 0, 7*L + 4)
            with k.group(): k.wait(th[5]); s.flag(sT0+5, 0, 7*L + 6)
            if ne:
                s.hpoll(); s.hcheck(7*L + 4)
                for i in range(ne): s.hld(i)
        for g, t0, t1 in s.P['ht'][L]:
            if g < 224:
                with k.cap() as ft: s.htouch(th[t1], t0, t1)
                fill.append((ft, g, g))
        fill.append((f[:1], g4, g4))
        if ne:
            assert all(e0 + (i*(e1 - e0 + 1))//ne >= 192 + i for i in range(ne)) and e0 >= gc > gp > g4
            fill += [(f[2:3], gp, gp), (f[3:4], gc, gc), (f[4:], e0, e1)]
        if g6 < 224: fill.append((f[1:2], g6, g6))
        k.weave(base, *fill)
        s.f6 = f[1:2]
        with k.cap() as s.fe6: s.th6 = s.gu_epi(L, 6)
        if not P['h0'] or s.stop == f'h{L}':
            k.wait(last); I('s_barrier'); k.put(s.fe6); s.fe6 = []
        s.stamp('gu')
        return s.stop == f'h{L}'

    @property
    def horder(s):
        h0, tl = s.P['h0'], s.P['tl']
        return ([(t, jj, rt2) for rt2 in range(2) for t in range(h0) for jj in range(4)] + [(t, jj, rt2) for t in range(h0, 7 - tl) for jj in range(4) for rt2 in range(2)]
                + [(t, jj, rt2) for rt2 in range(2) for t in range(7 - tl, 7) for jj in range(4)])
    def hld(s, i):
        t, jj, rt2 = s.horder[i]
        s.ld(s.hso[rt2], v(vXB + 4*(i % 32), 4), vL16, sHQ + jj, rt2*112*1024 + s.ord(s.L)[t]*1024, s.md('h'))
    def htouch(s, tok, t0, t1):
        with s.k.group():
            s.k.wait(tok)
            s.I(f'v_min_u32 v{vT3}, {8*(t1 - t0) + 7}, v0\nv_add_lshl_u32 v{vT3}, v{vT3}, {8*t0}, 7\nbuffer_load_dword v21, v{vT3}, {WS}, s{sHPUB} offen sc1')
    def hpoll(s): s.I(f'buffer_load_dword v{vT0}, v{vFO}, {WS}, s{sT0+6} offen sc1')
    def hcheck(s, p):
        D = s.label('HC')
        with s.k.group():
            s.check(vT0, p)
            s.I(f's_cbranch_vccz {D}')
            with s.k.cond(): s.poll(vFO, sT0+6, 0, p)
            s.I(f'{D}:')
    def down(s, L):
        I = s.I; k = s.k
        SR = s.gslot(L, 6); bB = 1 - L
        I(f'v_add_u32 v{vT1}, {hex(SR*0x8000)}, v{vREDW}')
        ne = s.P['he'][L][0]; p6, p7 = s.P['hp'][L]
        if not ne:
            s.poll(vFO, sT0+6, 0, 7*L + 6)
            s.flag(sT0+5, 0, 7*L + 7)
            s.stamp('h_ok')
        n = max(s.P['hf'], ne); hld = s.hld
        assert ne + n <= 48 and 32 < p7 < 48 and (not ne or n <= p6 < 32)
        for i in range(ne, n): hld(i)
        P = s.P; seen = set()
        def mm(i, ct):
            t, jj, rt2 = s.horder[i]; a = vACC + 32*rt2 + 16*ct
            I(f'v_mfma_f32_32x32x16_bf16 {v(a,16)}, {a_(aWD(jj, s.ord(L)[t], ct),4)}, {v(vXB+4*(i%32),4)}, {v(a,16) if a in seen else "0"}'); seen.add(a)
        with k.cap() as base:
            for i in range(56):
                mm(i, 0)
                if i < 52 or not P['tl']: mm(i, 1)
                if i in P.get('ds', ()): s.stamp(f'd{i}')
                if i == P['hg'][L][3] - 224: k.put(s.f6)
                if ne and i == (P['f7'][L] if P['h0'] else ne): k.wait(s.th6); s.flag(sT0+5, 0, 7*L + 7)
                if P['h0'] and i == P['bi'][L]: I('s_barrier')
                if i + n == p7 or ne and i + n == p6: s.hpoll()
                if ne and i + n == 32: s.hcheck(7*L + 6)
                if i + n == 48: s.hcheck(7*L + 7)
                if i + n < 56: hld(i + n)
                if L == 0:
                    w0, w1 = P['wd']; assert w0 + 7*w1 < 47
                    if i >= w0 and (i - w0) % w1 == 0: k.put(s.takew(1))
            if P['tl']:
                for i in range(52, 56): mm(i, 1)
        rw = []
        for q in range(4):
            with k.cap() as f: t = s.red_write(SR, q >> 1, q & 1)
            rw.append((f, *(((105, 106), (107, 108), (109, 111), (999, 999))[q] if P['tl'] else (999, 999))))
        k.weave(base, (s.fe6, 1, 8*P['h0'] - 1), *rw)
        s.stamp('dn_gemm')
        def after():
            for i in range(8): s.tok['K'] = I(f'ds_write_b128 v{vT0}, {a_(aKP + 4*i, 4)} offset:{i*1024}')
        s.red_finish(SR, True, L, bB, 2*L + 2, L == 1, [t, s.tRS], None, after)
        s.stamp('x2pub')
        return s.stop == f'x{2*L+2}'

    def gen(s):
        I = s.I
        for L in range(2):
            s.L = L; s.ring = 192 + 32*L
            if s.qkv(L) or s.wo(L) or s.gu(L) or s.down(L): break
        I(f's_or_b32 s64, s{sR}, s{sJ}\ns_or_b32 s64, s64, s{sW}\ns_cmp_lg_u32 s64, 0\ns_cbranch_scc1 M_FIN')
        with s.k.cond():
            I(f's_add_u32 s64, s{sE}, 1\nv_mov_b32 v{vT5}, s64\nbuffer_store_dword v{vT5}, v{vL0}, {WS}, 0 offen')
        I('M_FIN:')
        if s.ts:
            s.stamp('end')
            I('s_memrealtime s[78:79]\ns_waitcnt lgkmcnt(0)\nv_writelane_b32 v23, s78, 61')
            I(f'v_writelane_b32 v23, s{sLIM}, 62\nv_writelane_b32 v23, s{sSLOW}, 63')
            I(f's_lshl_b32 s64, s{sR}, 4\ns_add_u32 s64, s64, s{sJ}\ns_lshl_b32 s64, s64, 2\ns_add_u32 s64, s64, s{sW}\ns_lshl_b32 s64, s64, 8\ns_add_u32 s64, s64, {hex(TS)}')
            I(f'v_lshlrev_b32 v{vT0}, 2, v0\nbuffer_store_dword v23, v{vT0}, {WS}, s64 offen sc1')
        if s.P.get('wb'): I('s_waitcnt vmcnt(0)\nbuffer_wbl2 sc1\ns_waitcnt vmcnt(0)')
        if s.P.get('dbg'):
            I(f's_cmp_lg_u32 s2, {s.P.get("dwg", 0)}\ns_cbranch_scc1 DB_END\ns_cmp_lg_u32 s{sW}, 0\ns_cbranch_scc1 DB_END')
            with s.k.cond():
                I('v_readlane_b32 s65, v23, 0\nv_mov_b32 v24, 0')
                for n, i in enumerate(s.P['dbg']): I(f'v_readlane_b32 s66, v23, {i}\ns_sub_u32 s66, s66, s65\nv_writelane_b32 v24, s66, {n}')
                I(f'v_lshlrev_b32 v25, 2, v0\nbuffer_store_dword v24, v25, {DS}, 0 offen')
            I('DB_END:')
        dg = s.P.get('diag')
        if dg is not None:
            I(f's_cmp_lg_u32 s2, {s.P.get("dwg", 0)}\ns_cbranch_scc1 DG_END\ns_cmp_lg_u32 s{sW}, 0\ns_cbranch_scc1 DG_END')
            with s.k.cond():
                I('v_readlane_b32 s64, v23, 60\ns_add_u32 s64, s64, 10000')
                if dg == 'rt': I('v_readlane_b32 s65, v23, 60\nv_readlane_b32 s66, v23, 61\ns_sub_u32 s66, s66, s65\ns_lshl_b32 s66, s66, 2\ns_add_u32 s64, s64, s66')
                elif dg:
                    i = [n for n, nm in enumerate(s.tsnames) if nm == dg[0]][dg[1]]
                    I(f'v_readlane_b32 s65, v23, 0\nv_readlane_b32 s66, v23, {i}\ns_sub_u32 s66, s66, s65\ns_lshr_b32 s66, s66, 2\ns_min_u32 s66, s66, 100000\ns_add_u32 s64, s64, s66')
                gs = s.P.get('gstat')
                if gs:
                    i = 60 if gs[0] == 'start' else [n for n, nm in enumerate(s.tsnames) if nm == gs[0]][gs[1]]
                    I('s_sub_u32 s68, s64, 2500\ns_mov_b32 s67, 0\nDG_W:\ns_memrealtime s[78:79]\ns_waitcnt lgkmcnt(0)\ns_sub_u32 s66, s78, s68\ns_cmp_lt_u32 s66, 0x80000000\ns_cbranch_scc1 DG_W2')
                    I('s_add_u32 s67, s67, 1\ns_cmp_lt_u32 s67, 200000\ns_cbranch_scc1 DG_W\nDG_W2:')
                    I(f'v_lshlrev_b32 v25, 10, v0\nv_readlane_b32 s65, v23, 60')
                    for q in range(4):
                        I(f's_mov_b32 s66, {hex(TS + q*65536)}\nbuffer_load_dword v{32+q}, v25, {WS}, s66 offen offset:240 sc1\nbuffer_load_dword v{36+q}, v25, {WS}, s66 offen offset:{4*i} sc1')
                    I('s_waitcnt vmcnt(0)')
                    for q in range(8): I(f'v_subrev_u32 v{32+q}, s65, v{32+q}')
                    op = {'max': 'max_i32', 'min': 'min_i32', 'mean': 'add_u32'}[gs[2]]
                    for q in range(1, 4): I(f'v_min_i32 v32, v32, v{32+q}\nv_{op} v36, v36, v{36+q}')
                    I('v_readlane_b32 s68, v32, 0\nv_readlane_b32 s69, v36, 0\ns_mov_b32 s67, 1\nDG_R:\ns_nop 4\nv_readlane_b32 s70, v32, s67\nv_readlane_b32 s71, v36, s67\ns_nop 4')
                    I(f's_min_i32 s68, s68, s70\ns_{op} s69, s69, s71\ns_add_u32 s67, s67, 1\ns_cmp_lt_u32 s67, 64\ns_cbranch_scc1 DG_R')
                    if gs[2] == 'mean': I('s_ashr_i32 s69, s69, 8')
                    I('s_sub_u32 s69, s69, s68\ns_lshl_b32 s69, s69, 2\ns_min_u32 s69, s69, 100000\ns_add_u32 s64, s64, s69')
                I('s_mov_b32 s67, 0\nDG_L:\ns_memrealtime s[78:79]\ns_waitcnt lgkmcnt(0)\ns_sub_u32 s66, s78, s64\ns_cmp_lt_u32 s66, 0x80000000\ns_cbranch_scc1 DG_END')
                I('s_add_u32 s67, s67, 1\ns_cmp_lt_u32 s67, 200000\ns_cbranch_scc1 DG_L')
            I('DG_END:')
        I('s_waitcnt vmcnt(0)\nM_END:\ns_endpgm')
        return s.k

HEADER = open('cdna_kernels/' + NAME + '.s.ref').read().split('; Override')[0] if __name__ == '__main__' else ''

def build(stop=None, ts=False, header='', **kw):
    st = {}
    m = Main(stop, ts, **kw)
    main = m.gen().finish(st)
    txt = header
    ls = kw.get('lst', 0)
    if ls == 2: txt += '; @launch kernel=pre_kernel grid=(256,1,1) block=(64,1,1) lds=0\n'
    txt += f'; @launch {"kernel=" + NAME + "_kernel " if ls else ""}grid=(256,1,1) block=(256,1,1) lds={LDS_MAIN}\n'
    if ls == 3: txt += '; @launch kernel=pre_kernel grid=(256,1,1) block=(64,1,1) lds=0\n'
    txt += '.amdgcn_target "amdgcn-amd-amdhsa--gfx950"\n.text\n'
    if ls > 1: txt += head('pre_kernel') + 's_endpgm\n' + kd('pre_kernel', 8, 8, 16)
    txt += head(NAME + '_kernel') + main + '\nCODE_END:\n'
    txt += kd(NAME + '_kernel', 512, 256)
    return txt, (st, m.tsnames)

if __name__ == '__main__':
    txt, st = build(header=HEADER)
    out = sys.argv[1] if len(sys.argv) > 1 else 'cdna_kernels/' + NAME + '.s'
    open(out, 'w').write(txt); print(st, len(txt))
```

```python
import sys, contextlib
from asm import Asm, Ins
NAME = 'interleave_layers__linear_kernel_hedgehog__glu_gated_reglu__prompt'

FX, FO, FH, FU, S0 = 0x2000, 0x4000, 0x6000, 0x30000, 0x10000
CS = 0x20000
ST = 0x40000
XB = (0x200000, 0x400000)
KVP = 0x600000
KVZ = 0x680000
HB = 0x800000
WQKV, WO_P, WD_P, WGU = 0x1000000, 0x1180000, 0x1200000, 0x1400000
TS = 0x2000000
WS_SIZE = 0x10000000
OOB = 0x7ffffff0
XA = 0x20000; PS = 2112
KVA = 0x26400; ZA = 0x26C00; ZERO = 0x26D00; RS = 0x27100
SUMS = (0x27400, 0x27600, 0x27C00, 0x27E00); WPH = 0x27800
LDS_MAIN = 163840

def v(a, n=1): return f'v{a}' if n == 1 else f'v[{a}:{a+n-1}]'
def a_(a, n=1): return f'a{a}' if n == 1 else f'a[{a}:{a+n-1}]'
def s_(a, n=1): return f's{a}' if n == 1 else f's[{a}:{a+n-1}]'

def kd(name, vgpr, acc, sgpr=102):
    return f'''.section .rodata,"a"
.p2align 6
.amdhsa_kernel {name}
  .amdhsa_next_free_vgpr {vgpr}
  .amdhsa_next_free_sgpr {sgpr}
  .amdhsa_accum_offset {acc}
  .amdhsa_group_segment_fixed_size 0
  .amdhsa_kernarg_size 88
  .amdhsa_user_sgpr_count 2
  .amdhsa_user_sgpr_kernarg_segment_ptr 1
  .amdhsa_system_sgpr_workgroup_id_x 1
.end_amdhsa_kernel
.text
'''
def head(name):
    return f'.globl {name}\n.p2align 8\n.type {name},@function\n{name}:\n'

def srd(I, d, b, size):
    I(f's_mov_b32 s{d}, s{b}\ns_mov_b32 s{d+1}, s{b+1}\ns_mov_b32 s{d+2}, {hex(size)}\ns_mov_b32 s{d+3}, 0x20000')

WS, XS, OS, DS = 's[8:11]', 's[12:15]', 's[16:19]', 's[20:23]'
sW, sG, sRK, sR, sJ, sHB, sCG, sTAG, sE, sLIM = 24, 25, 26, 27, 28, 29, 30, 31, 32, 33
sQKV, sGU, sWO, sWD = 34, 35, 36, 37
sXIN, sXO, sXPUB, sSTIN, sSTPUB = 38, 39, 40, 41, 42
sHPUB, sHIN, sFXC, sFXP, sFOC, sFOP, sKVP, sKVC, sNAT, sM0 = 43, 44, 45, 46, 47, 48, 49, 50, 51, 52
sSELLO, sSELHI, sONES, sLOG2E, sOM, sSLOW, sMARK = 53, 54, 55, 56, 57, 58, 59
sT0 = 60
QS, US, PS_, DS2, CSRD = 's[80:83]', 's[84:87]', 's[88:91]', 's[72:75]', 's[4:7]'
sPO, sWM, sXB, sXM, sUB, sUST, sUD = 92, 96, 97, 98, 99, 100, 101
sHQ, sWQ = 72, 80
sUKC, sUCS, sUB2, sUD2 = 76, 77, 88, 89
vW0, vX0, vU0, vWR, vXR, vSW, vSR, vWW = 32, 34, 36, 38, 40, 44, 45, 46
vUR, vUD = 40, 42
vMU, vMK = 20, 22
vROW = 240
vL, vL16, vL16b, vFX, vFO, vL0, vSTL, vPUB, vPHW, vTRA, vTRB, vKVW, vZW, vKVR, vZR, vREDW, vNAT, vSTW, vRSW, vRSR = range(20)
vRSTD, vC, vT0, vT1, vT2, vT3, vT4, vT5 = range(24, 32)
vRES = 32; vTMP = 48; vACC = 64; vXB = 128; aKP = 224
def aWD(jj, t, ct): return 4*((12*jj + 2*t if t < 6 else 48 + 2*jj) + ct)

P0 = dict(xf=8, hf=10, uf='nt', xnt='nt', rnt='nt', ct=1, k0=20, kn=3, ko=range(9),
          sp=(0, 0, 1), xa=6, xe=8, tp=('', 20, 30), xb=4, xc=4, xd=1, xr=3.0, ug=0, kq=((2, 12), (2, 12), (110, 4)), fg=110, fup=1, sl=12, oq=((0, 6), (0, 12)), ot=(0, 0), on=(4, 0), oe=35, og=(4, 9), tw=('Xf', ''), twp=(1, 1),
          t1=(0, 6), t2=(4, 4), t3=(4, 6), t4=(8, 4), late=(1, 1), w2=0, w3=8, w4=2, n1=(2, 2), ub=7, qw=36, qo=0, h0=1, f7=(17, 17), bi=(40, 40), fb=0, o1=(5, 4, 6, 3, 2, 1, 0), fd=((71, 88), (89, 106), (121, 150)), tr=(40, 60), tl=1, t1l=3, wa=0, kf=(0, 0), ta=0, tb=(0, 0, 24), op=0, wd=(10, 5), kw=(8, 4), kp=(2, 16),
          wl=((8, 44, 60), (11, 64, 92), (7, 108, 124), (7, 140, 156), (7, 172, 188)), dl=(14, 31),
          he=((12, 201, 223), (12, 201, 223)), hg=((175, 188, 200, 219), (175, 188, 200, 219)), hp=((22, 38), (22, 38)), ht=((), ()), ws=0, tk=('', 'xf'), tkg=(59, 60), hm=('sc1', 'sc1'), om='', nt=('', ''), tg=((('XSf', 190),), (('f', 190),)), to=('xs', ''))
WOX = (0x18000, 0x8000)
class Main:
    def __init__(s, stop=None, ts=False, **kw):
        s.k = Asm(); s.I = s.k.I; s.stop = stop; s.ts = ts; s.nl = 0; s.nts = 0; s.tsnames = []; s.bg = []; s.m0dirty = False; s.bw = []; s.tok = {}; s.P = dict(P0); s.P.update(kw)
    def md(s, key, d='sc1'): return d + (' nt' if str(key) in s.P['nt'][s.L] else '')
    def label(s, p):
        s.nl += 1; return f'{p}_{s.nl}'
    def stamp(s, name):
        if not s.ts or s.ts == 2 and name != 'end' or name in s.P.get('nos', ()): return
        r = 80 + 2*(s.nts % 10)
        s.tsnames.append(name)
        with s.k.group():
            s.I(f's_mem{"real" if s.P.get("gstat") else ""}time s[78:79]\ns_waitcnt lgkmcnt(0)\nv_writelane_b32 v23, s78, {s.nts}')
        s.nts += 1
    class SO:
        def __init__(o, m, tmp): o.m = m; o.tmp = tmp; o.key = None
        def get(o, base, off):
            hi = off & ~4095; lo = off & 4095
            if hi == 0: return f's{base}', lo
            if o.key != (base, hi):
                o.m.I(f's_add_u32 s{o.tmp}, s{base}, {hex(hi)}'); o.key = (base, hi)
            return f's{o.tmp}', lo
    def ld(s, so, dst, voff, base, off, mod='', op='buffer_load_dwordx4', srdn=WS):
        with s.k.group():
            r, lo = so.get(base, off)
            t = s.I(f'{op} {dst}, v{voff}, {srdn}, {r} offen' + (f' offset:{lo}' if lo else '') + (' ' + mod if mod else ''))
        return t
    def pub(s, t):
        t.alt = (f's{sSLOW}', t.text + ' sc1'); return t
    def dma_tile(s, so, base, off, slot, mod):
        t = None
        for h in range(2):
            for i in range(4):
                with s.k.group():
                    if i == 0:
                        s.I(f's_add_u32 m0, s{sM0}, {hex(slot*0x8000 + h*4096)}')
                        s.I(f's_add_u32 s{so}, s{base}, {hex(off + h*4096)}')
                    t = s.I(f'buffer_load_dwordx4 v{vL16}, {WS}, s{so} offen' + (f' offset:{i*1024}' if i else '') + f' {mod} lds')
        return t
    def bg_tile(s, key, base, off, slot):
        with s.k.cap() as f: s.tok[key] = s.dma_tile(sT0+1, base, off, slot, s.md(key))
        if (s.L, key) in s.P.get('st', ()): s.tok[key] = None; return
        s.bg += f
    def take(s, n):
        r = s.bg[:n]; s.bg = s.bg[n:]
        if r and len(r[0]) == 1 and s.m0dirty: r[0] = [Ins(x.text) for x in s.setup] + r[0]
        if r: s.m0dirty = False
        for g in r:
            if len(g) == 3: s.setup = g[:2]
        return r
    def takew(s, n):
        r = s.bw[:n]; s.bw = s.bw[n:]; return r
    def check(s, vt, p):
        s.I(f's_add_u32 s{sT0+8}, s{sTAG}, {p}\nv_subrev_u32 v{vt}, s{sT0+8}, v{vt}\nv_cmp_lt_u32 vcc, 15, v{vt}')
    def poll(s, voff, sbase, off, p, vt=vT0):
        I = s.I; L = s.label('POLL'); D = s.label('PD')
        I(f's_mov_b32 s{sT0+9}, 0')
        I(f'{L}:')
        I(f'buffer_load_dword v{vt}, v{voff}, {WS}, s{sbase} offen' + (f' offset:{off}' if off else '') + ' sc1')
        I('s_waitcnt vmcnt(0)')
        s.check(vt, p)
        I(f's_cbranch_vccz {D}')
        with s.k.cond():
            I(f's_add_u32 s{sT0+9}, s{sT0+9}, 1\ns_cmp_lt_u32 s{sT0+9}, s{sLIM}\ns_cbranch_scc1 {L}\ns_mov_b32 s{sLIM}, 1')
        I(f'{D}:')
    def flag(s, sbase, off, p):
        with s.k.group():
            s.I(f's_add_u32 s{sT0+10}, s{sTAG}, {p}\nv_mov_b32 v{vT5}, s{sT0+10}')
            s.pub(s.I(f'buffer_store_dword v{vT5}, v{vL0}, {WS}, s{sbase} offen' + (f' offset:{off}' if off else '')))
    def tX(s, buf, t=vT3):
        with s.k.group():
            s.I(f's_lshl_b32 s{sT0+11}, s{sJ}, 11\ns_add_u32 s{sT0+11}, s{sT0+11}, s{sXIN}' + (f'\ns_add_u32 s{sT0+11}, s{sT0+11}, 0x200000' if buf else ''))
            s.I(f'v_lshlrev_b32 v{t}, 5, v{vFX}\nbuffer_load_dword v21, v{t}, {WS}, s{sT0+11} offen sc1')
    def tS(s, buf, t=vT3):
        with s.k.group():
            if s.P['t1l'] & 1:
                s.I(f's_lshl_b32 s{sT0+11}, s{sJ}, 7\ns_add_u32 s{sT0+11}, s{sT0+11}, s{sSTIN}' + (f'\ns_add_u32 s{sT0+11}, s{sT0+11}, 0x20000' if buf else ''))
                s.I(f'buffer_load_dword v21, v{vL0}, {WS}, s{sT0+11} offen sc1')
                return
            if buf: s.I(f's_add_u32 s{sT0+11}, s{sSTIN}, 0x20000')
            s.I(f'v_lshlrev_b32 v{t}, 5, v{vFX}\nbuffer_load_dword v21, v{t}, {WS}, s{sT0+11 if buf else sSTIN} offen sc1')
    def tF(s, t=vT3):
        with s.k.group():
            if s.P['t1l'] & 2:
                s.I(f's_and_b32 s{sT0+11}, s{sJ}, 3\ns_lshl_b32 s{sT0+11}, s{sT0+11}, 13\ns_add_u32 s{sT0+11}, s{sT0+11}, s{sFXC}')
                s.I(f'buffer_load_dword v21, v{vL0}, {WS}, s{sT0+11} offen sc1')
                return
            s.I(f'v_and_b32 v{t}, 3, v0\nv_lshlrev_b32 v{t}, 13, v{t}\nbuffer_load_dword v21, v{t}, {WS}, s{sFXC} offen sc1')
    def tH(s, t=vT3):
        with s.k.group():
            s.I(f'v_min_u32 v{t}, 55, v0\nv_lshlrev_b32 v{t}, 7, v{t}\nbuffer_load_dword v21, v{t}, {WS}, s{sHPUB} offen sc1')
    def touches(s, names, t=vT3):
        with s.k.cap() as f:
            for n in names:
                {'x': lambda: s.tX(0, t), 'X': lambda: s.tX(1, t), 's': lambda: s.tS(0, t), 'S': lambda: s.tS(1, t), 'f': lambda: s.tF(t), 'h': lambda: s.tH(t)}[n]()
        return f
    def ldsA(s, slot, kc):
        a = slot*0x8000 + kc*1024
        return (vL16, a) if a < 0x10000 else (vL16b, a - 0x10000)
    def gemm(s, steps, fences={}, LA=6):
        I = s.I; n = len(steps); nr = 0; last = None; aRING = s.ring
        blocked = sorted((f[0], g) for g, f in fences.items())
        def limit(i):
            for st, g in blocked:
                if g > i: return st
            return n
        def rd():
            nonlocal nr, last
            vr, off = s.ldsA(steps[nr][0], steps[nr][1])
            last = I(f'ds_read_b128 {a_(aRING + 4*(nr % 8), 4)}, v{vr} offset:{off}'); nr += 1
        with s.k.cap() as base:
            while nr < min(LA, limit(-1)): rd()
            for i, (slot, kc, acc, first) in enumerate(steps):
                assert nr > i
                I(f'v_mfma_f32_32x32x16_bf16 {v(acc,16)}, {a_(aRING + 4*(i % 8), 4)}, {v(vXB+4*kc,4)}, {"0" if first else v(acc,16)}')
                if i in fences:
                    if len(fences[i]) == 2:
                        assert nr == fences[i][0], (nr, i, fences[i])
                        s.k.wait(last)
                    s.k.wait(*fences[i][1]); I('s_barrier')
                c = 0
                while nr < min(i + 1 + LA, limit(i), n) and c < 2: rd(); c += 1
        return base, last

    def init0(s):
        I = s.I; k = s.k
        I('s_cmp_ge_u32 s2, 256\ns_cbranch_scc1 M_END')
        I('s_load_dwordx2 s[80:81], s[0:1], 8\ns_load_dwordx2 s[88:89], s[0:1], 16\ns_load_dwordx2 s[12:13], s[0:1], 0')
        if s.ts:
            I('s_memtime s[78:79]\ns_memrealtime s[70:71]'); s.tsnames.append('start'); s.nts = 1
        I(f's_lshr_b32 s{sRK}, s2, 3')
        if s.P['ct']:
            I(f's_getpc_b64 s[4:5]\nPC0:\nv_lshrrev_b32 v2, 4, v0\nv_lshl_add_u32 v2, s{sRK}, 4, v2\nv_lshlrev_b32 v2, 7, v2\nv_min_u32 v2, CODE_END-PC0-4, v2')
            I(f'v_mov_b32 v3, s5\nv_add_co_u32 v2, vcc, s4, v2\nv_addc_co_u32 v3, vcc, 0, v3, vcc\nglobal_load_dword v21, v[2:3], off')
        I(f'v_lshrrev_b32 v1, 6, v0\nv_and_b32 v0, 63, v0\nv_readfirstlane_b32 s{sW}, v1')
        I(f's_mov_b32 s82, {hex(512*3072)}\ns_mov_b32 s83, 0x20000\ns_lshr_b32 s64, s{sRK}, 4')
        I(f's_and_b32 s{sJ}, s{sRK}, 15\ns_and_b32 s{sCG}, s{sJ}, 7\ns_lshl_b32 s{sM0}, s{sW}, 13')
        I(f's_lshl_b32 s65, s64, 11\ns_add_u32 s{sWM}, s65, s{sM0}')
        I(f's_lshl_b32 s65, s{sCG}, 1\ns_lshl_b32 s66, s{sW}, 2\ns_xor_b32 s65, s65, s66\ns_or_b32 s67, s64, s65')
        I(f's_lshl_b32 s65, s{sJ}, 6\ns_mul_i32 s66, s67, {32*3072}\ns_add_u32 s{sPO}, s66, s65')
        I(f'v_lshrrev_b32 v48, 2, v0\nv_and_b32 v49, 3, v0\nv_lshrrev_b32 v51, 4, v0\nv_xor_b32 v49, v49, v51\nv_lshlrev_b32 v49, 4, v49')
        I(f'v_mul_u32_u24 v{vW0}, 3072, v48\nv_add_u32 v{vW0}, v{vW0}, v49\nv_add_u32 v{vW0+1}, {16*3072-1024}, v{vW0}')
        I('s_waitcnt lgkmcnt(0)')
        s.wdma(0, 0, 1024)
        I('s_load_dwordx2 s[8:9], s[0:1], 80\ns_load_dwordx2 s[16:17], s[0:1], 64\ns_load_dwordx2 s[20:21], s[0:1], 72')
        I('s_load_dwordx4 s[40:43], s[0:1], 40\ns_load_dwordx2 s[72:73], s[0:1], 56')
        I(f's_mov_b32 s90, {hex(32*512)}\ns_mov_b32 s91, 0x20000\nv_lshlrev_b32 v{vL16}, 4, v0\ns_lshl_b32 s66, s{sJ}, 10\ns_mov_b32 m0, {hex(WPH)}')
        s.tok['P'] = I(f'buffer_load_dwordx4 v{vL16}, {PS_}, s66 offen lds')
        s.wdma(0, 1, 2048)
        I(f's_and_b32 s{sG}, s2, 7\ns_lshl_b32 s{sR}, s{sG}, 1\ns_add_u32 s{sR}, s{sR}, s64\ns_mov_b32 s14, {hex(2048*1024)}\ns_mov_b32 s15, 0x20000')
        I(f's_lshl_b32 s64, s{sR}, 17\ns_lshl_b32 s66, s{sJ}, 13\ns_add_u32 s64, s64, s66\ns_lshl_b32 s66, s{sW}, 11\ns_add_u32 s64, s64, s66')
        I(f'buffer_load_dwordx4 {v(vROW,4)}, v{vL16}, {XS}, s64 offen {s.P["rnt"]}\nbuffer_load_dwordx4 {v(vROW+4,4)}, v{vL16}, {XS}, s64 offen offset:1024 {s.P["rnt"]}')
        if s.ts: I('v_mov_b32 v23, 0\nv_writelane_b32 v23, s78, 0\nv_writelane_b32 v23, s70, 60')
        s.stamp('r1')
        if s.P.get('lat'):
            for n in (7, 6, 5, 4, 3, 2, 0): I(f's_waitcnt vmcnt({n})'); s.stamp(f'vm{n}')
        for p in range(1, 4): I(f's_xor_b32 s66, s67, {p}\ns_mul_i32 s66, s66, {32*3072}\ns_add_u32 s{sPO+p}, s66, s65')
        for d, size in ((8, WS_SIZE), (16, 2048*1024), (20, 256)):
            I(f's_mov_b32 s{d+2}, {hex(size)}\ns_mov_b32 s{d+3}, 0x20000')
        I(f's_lshr_b32 s{sHB}, s{sJ}, 3')
        I(f's_lshl_b32 s64, s{sR}, 2\ns_add_u32 s64, s64, s{sW}\ns_lshl_b32 s64, s64, 15\ns_lshl_b32 s65, s{sCG}, 7\ns_or_b32 s64, s64, s65\ns_lshl_b32 s65, s{sHB}, 14\ns_or_b32 s{sXB}, s64, s65')
        I(f's_lshl_b32 s65, s{sHB}, 11\ns_or_b32 s{sXM}, s65, s{sM0}')
        I(f'v_and_b32 v50, 7, v0\nv_lshlrev_b32 v53, 4, v50\nv_xor_b32 v50, v50, v51\nv_lshlrev_b32 v50, 4, v50\nv_lshrrev_b32 v52, 3, v0\nv_lshl_or_b32 v{vX0}, v52, 10, v50')
        I(f'v_xor_b32 v{vX0+1}, 64, v{vX0}\nv_add_u32 v{vX0+1}, {8192-1024}, v{vX0+1}')
    def wdma(s, p, slot, col):
        with s.k.group():
            s.I(f's_xor_b32 m0, s{sWM}, {hex(slot*0x8000 + p*2048)}\ns_add_u32 s{sT0+1}, s{sPO+p}, {col}')
            s.I(f'buffer_load_dwordx4 v{vW0}, {QS}, s{sT0+1} offen lds')
            return s.I(f'buffer_load_dwordx4 v{vW0+1}, {QS}, s{sT0+1} offen offset:1024 lds')
    def udma(s, i):
        with s.k.group():
            s.I(f's_add_u32 m0, s{sM0}, {hex(0x18000 + i*1024)}')
            if i < 4:
                t = s.I(f'buffer_load_dwordx4 v{vU0}, {US}, s{sUB} offen {s.P["uf"]} lds')
                if i < 3: s.I(f's_add_u32 s{sUB}, s{sUB}, {8*3584}')
            else:
                t = s.I(f'buffer_load_dwordx4 v{vU0+1}, {DS2}, s{sUB2} offen {s.P["uf"]} lds')
                if i < 5: s.I(f's_add_u32 s{sUB2}, s{sUB2}, 8192')
            return t
    def xreg(s, c): return (2 + (c >> 1 & 1))*0x8000 + (c & 1)*4096
    def xdma(s, c, p):
        with s.k.group():
            s.I(f's_xor_b32 m0, s{sXM}, {hex(s.xreg(c) + p*2048)}\ns_xor_b32 s{sT0+1}, s{sXB}, {hex(c*128 + p*16384)}')
            s.I(f'buffer_load_dwordx4 v{vX0}, {XS}, s{sT0+1} offen {s.P["xnt"]} lds')
            return s.I(f'buffer_load_dwordx4 v{vX0+1}, {XS}, s{sT0+1} offen offset:1024 {s.P["xnt"]} lds')
    def unit(s):
        I = s.I; k = s.k
        I(f's_lshr_b32 s64, s2, 6\ns_and_b32 s65, s2, 63\ns_and_b32 s66, s2, 7')
        I(f's_lshr_b32 s67, s{sW}, 1\ns_lshl_b32 s67, s67, 2\ns_and_b32 s68, s{sW}, 1\ns_or_b32 s67, s67, s68\ns_lshl_b32 s67, s67, 8')
        I(f's_mov_b32 s87, 0x20000\ns_mov_b32 s75, 0x20000')
        with k.group(): I(f's_cmp_lt_u32 s65, 56\ns_cselect_b32 s74, {hex(1792*1024)}, 0\ns_cselect_b32 s68, 0, 0x70000000')
        I(f's_mov_b32 s86, s74\ns_mul_i32 s70, s64, 7\ns_lshr_b32 s71, s65, 3\ns_add_u32 s70, s70, s71')
        I(f's_lshl_b32 s{sUB2}, s70, 16\ns_lshl_b32 s71, s{sW}, 14\ns_add_u32 s{sUB2}, s{sUB2}, s71\ns_lshl_b32 s71, s66, 7\ns_add_u32 s{sUB2}, s{sUB2}, s71')
        I(f's_mul_i32 s{sUD2}, s66, {224*1024}\ns_lshl_b32 s70, s70, 13\ns_add_u32 s{sUD2}, s{sUD2}, s70\ns_add_u32 s67, s67, s68\ns_add_u32 s{sUD2}, s{sUD2}, s67\ns_add_u32 s{sUD2}, s{sUD2}, {hex(WD_P)}')
        with k.group(): I(f's_cmp_ge_u32 s65, 28\ns_cselect_b32 s84, s42, s40\ns_cselect_b32 s85, s43, s41\ns_cselect_b32 s70, 28, 0\ns_cselect_b32 s71, 1, 0')
        I(f's_sub_u32 s65, s65, s70\ns_lshl_b32 s{sUB}, s65, 7\ns_lshl_b32 s65, s65, 2\ns_add_u32 s65, s65, s{sW}')
        I(f's_lshl_b32 s69, s64, 2\ns_add_u32 s69, s69, s{sW}\ns_mul_i32 s69, s69, {32*3584}\ns_add_u32 s{sUB}, s{sUB}, s69')
        I(f's_lshl_b32 s{sUD}, s65, 15\ns_lshl_b32 s70, s64, 13\ns_add_u32 s{sUD}, s{sUD}, s70\ns_lshl_b32 s70, s71, 8\ns_add_u32 s70, s70, s68\ns_add_u32 s{sUD}, s{sUD}, s70\ns_add_u32 s{sUD}, s{sUD}, {hex(WGU)}')
        I(f's_mul_i32 s64, s64, 112\ns_add_u32 s64, s64, s65\ns_lshl_b32 s64, s64, 1\ns_add_u32 s64, s64, s71\ns_lshl_b32 s64, s64, 6\ns_add_u32 s64, s64, s68\ns_add_u32 s{sUCS}, s64, {hex(CS)}')
        I(f'v_mul_u32_u24 v{vU0}, 3584, v52\nv_add_u32 v{vU0}, v{vU0}, v53\nv_lshl_or_b32 v{vU0+1}, v52, 10, v53')
    def uaddr(s):
        I = s.I; t0, t1 = vT2, vT4
        I(f'v_bfe_u32 v{t0}, v0, 2, 2\nv_lshrrev_b32 v{t1}, 5, v0\nv_lshl_or_b32 v{t0}, v{t1}, 3, v{t0}\nv_lshlrev_b32 v{vUR}, 7, v{t0}')
        I(f'v_lshlrev_b32 v{vUD}, 2, v{vFX}\nv_lshl_or_b32 v{vUD}, v{t1}, 9, v{vUD}')
        I(f'v_and_b32 v{t0}, 1, v0\nv_lshl_or_b32 v{vUR}, v{t0}, 4, v{vUR}\nv_bfe_u32 v{t0}, v0, 1, 1\nv_lshl_or_b32 v{vUR}, v{t0}, 3, v{vUR}')
        with s.k.group(): I(f's_lshl_b32 s{sT0+3}, s{sW}, 5\ns_add_u32 s{sT0+3}, s{sT0+3}, 0x18000\nv_add_u32 v{vUR}, s{sT0+3}, v{vUR}')
        I(f'v_bfe_u32 v{t0}, v0, 4, 1\nv_lshl_or_b32 v{vUR+1}, v{t0}, 13, v{vUR}\nv_lshl_or_b32 v{vUR}, v{t0}, 11, v{vUR}')
        I(f'v_lshl_or_b32 v{vUD+1}, v{t0}, 11, v{vUD}\nv_lshl_or_b32 v{vUD}, v{t0}, 10, v{vUD}')
    def uproc(s):
        I = s.I; k = s.k; d = 64
        for n, r in (('a', sUD), ('b', sUD2), ('c', sUCS)):
            if n in s.P.get('nou', ''): I(f's_mov_b32 s{r}, 0x70000000')
        with k.group():
            k.wait(s.tok['U'])
            if s.P.get('xs'): s.stamp('u_ok')
            I('s_barrier')
        for q in range(6):
            with k.group():
                for r in range(2):
                    if q < 4: t = I(f'ds_read_b64_tr_b16 {v(d+4*q+2*r,2)}, v{vUR} offset:{q*8192 + r*512}')
                    else: t = I(f'ds_read_b64_tr_b16 {v(d+4*q+2*r,2)}, v{vUR+1} offset:{(q-4)*16384 + 4096 + r*512}')
        with k.group(): k.wait(t); I('s_barrier')
        for q in range(6):
            with k.group():
                if q < 4:
                    I(f'v_mfma_f32_16x16x32_bf16 {v(d+24,4)}, a[64:67], {v(d+4*q,4)}, {"0" if q == 0 else v(d+24,4)}')
                    I(f'buffer_store_dwordx4 {v(d+4*q,4)}, v{vUD}, {WS}, s{sUD} offen' + (' offset:2048' if q & 1 else '') + ' sc1')
                    if q == 1: I(f's_add_u32 s{sUD}, s{sUD}, 4096')
                else:
                    I(f'buffer_store_dwordx4 {v(d+4*q,4)}, v{vUD+1}, {WS}, s{sUD2} offen sc1')
                    if q < 5: I(f's_add_u32 s{sUD2}, s{sUD2}, 4096')
        return I(f'buffer_store_dword v{d+24}, v{vFX}, {WS}, s{sUCS} offen sc1')
    def meanop(s, d, m, t):
        I = s.I
        I(f'v_cvt_pk_bf16_f32 v{d}, -v{m}, -v{m}\nv_and_b32 v{t}, 0xffff0000, v{d}\nv_sub_f32 v{t}, -v{m}, v{t}\nv_cvt_pk_bf16_f32 v{t}, v{t}, v{t}')
        with s.k.group(): I(f'v_cmp_gt_u32 vcc, 32, v0\nv_cndmask_b32 v{d}, v{t}, v{d}, vcc')
    def finit(s):
        I = s.I; k = s.k
        n, hf, sw, b2, t0, t1, t2 = 50, 51, 52, 53, 54, 55, 56
        I(f'v_and_b32 v{n}, 31, v0\nv_lshrrev_b32 v{hf}, 5, v0\nv_bfe_u32 v{b2}, v0, 2, 1\nv_bfe_u32 v{t0}, v0, 3, 1')
        I(f'v_and_b32 v{sw}, 19, v{n}\nv_lshl_or_b32 v{sw}, v{b2}, 3, v{sw}\nv_lshl_or_b32 v{sw}, v{t0}, 2, v{sw}')
        I(f'v_lshl_or_b32 v{t0}, v{b2}, 1, v{t0}\nv_xor_b32 v{t0}, v{t0}, v{hf}\nv_lshlrev_b32 v{t0}, 4, v{t0}\nv_lshl_or_b32 v{t0}, v{sw}, 6, v{t0}')
        I(f'v_add_u32 v{vWR}, s{sM0}, v{t0}\nv_xor_b32 v{vWR+1}, 32, v{vWR}\nv_add_u32 v{vWW}, s{sM0}, v{vL16}')
        I(f'v_bfe_u32 v{t0}, v0, 1, 3\nv_xor_b32 v{t0}, v{t0}, v{hf}\nv_lshlrev_b32 v{t0}, 4, v{t0}\nv_lshl_or_b32 v{t0}, v{n}, 7, v{t0}')
        I(f's_add_u32 s64, s{sM0}, 0x10000\nv_add_u32 v{vXR}, s64, v{t0}')
        for q in range(1, 4): I(f'v_xor_b32 v{vXR+q}, {32*q}, v{vXR}')
        I(f'v_lshlrev_b32 v{t0}, 4, v{n}\nv_add_u32 v{vSR}, 0x20000, v{t0}\ns_lshl_b32 s64, s{sW}, 2\nv_add_u32 v{vSW}, s64, v{vSR}')
        I(f'v_bfe_u32 v{t1}, v0, 4, 1')
        I(f'v_and_b32 v{t0}, 1, v0\nv_lshlrev_b32 v{t0}, 9, v{t0}\nv_lshl_or_b32 v{t0}, v{hf}, 8, v{t0}\nv_bfe_u32 v{t2}, v0, 2, 2\nv_lshl_or_b32 v{t0}, v{t2}, 5, v{t0}')
        I(f'v_lshl_or_b32 v{t0}, v{t1}, 4, v{t0}\nv_bfe_u32 v{t2}, v0, 1, 1\nv_lshl_or_b32 v{t0}, v{t2}, 3, v{t0}\nv_add_u32 v57, {hex(WPH)}, v{t0}')
        I(f'v_lshrrev_b32 v{t0}, 3, v{n}\nv_and_b32 v{t1}, 3, v{n}\nv_lshl_or_b32 v{t0}, v{t0}, 2, v{t1}\nv_lshl_or_b32 v{t0}, v{b2}, 4, v{t0}')
        I(f'v_mov_b32 v58, 0x3f80')
        for d, cm in ((64, t0),):
            I(f'v_lshlrev_b32 v{t1}, 3, v{hf}\nv_sub_u32 v{t1}, v{cm}, v{t1}\nv_and_b32 v{t2}, 1, v{t1}\nv_lshlrev_b32 v{t2}, 4, v{t2}\nv_lshlrev_b32 v{t2}, v{t2}, v58\nv_ashrrev_i32 v{t1}, 1, v{t1}')
            for p in range(2):
                for r in range(4): I(f'v_cmp_eq_u32 vcc, {8*p+r}, v{t1}\nv_cndmask_b32 v{d+4*p+r}, 0, v{t2}, vcc')
        for r in range(8): I(f'v_accvgpr_write_b32 a{r}, v{64+r}')
        for r in range(4): I(f'v_accvgpr_write_b32 a{64+r}, s{sONES}')
        I(f's_mul_i32 s{sTAG}, s{sE}, 0x9E3779B1\ns_add_u32 s{sTAG}, s{sTAG}, 0x7F4A7C15')
    def fold(s):
        I = s.I
        s.k.wait(s.tok['P'])
        I('ds_read_b64_tr_b16 v[60:61], v57\nds_read_b64_tr_b16 v[62:63], v57 offset:128')
        I('v_cmp_eq_u32 vcc, 0, v53')
        for r in range(4): I(f'v_cndmask_b32 v{80+r}, 0, v{60+r}, vcc\nv_cndmask_b32 v{84+r}, v{60+r}, 0, vcc')
        for r in range(8): I(f'v_accvgpr_write_b32 a{16+r}, v{80+r}')
    def lbuild(s, tok, slot, B, si):
        I = s.I; k = s.k; off = (slot & 1)*0x8000
        k.wait(tok)
        for b in range(4):
            for p in range(2): I(f'ds_read_b128 {a_(32+8*b+4*p,4)}, v{vWR+p} offset:{off + b*2048}')
        def T(i):
            b, p = i >> 1, i & 1; d = 64 + 16*b
            I(f'v_mfma_f32_32x32x16_bf16 {v(d,16)}, {a_(32+8*b+4*p,4)}, {a_(B+4*p,4)}, {"0" if p == 0 else v(d,16)}')
        def C(i):
            d = 64 + 8*i
            for r in range(4): I(f'v_cvt_pk_bf16_f32 v{d+r}, v{d+2*r}, v{d+2*r+1}')
            I(f'ds_write_b128 v{vWW}, {v(d,4)} offset:{off + i*1024}')
        def S(i): I(f'v_mfma_f32_32x32x16_bf16 v[48:63], a[64:67], {v(64+8*i,4)}, {"0" if i == 0 else "v[48:63]"}')
        for i in range(16):
            (T if i < 8 else S)(i & 7)
            if 3 <= i < 11: C(i - 3)
        I('v_cvt_pk_bf16_f32 v49, v48, v48\nv_and_b32 v50, 0xffff0000, v49\nv_sub_f32 v50, v48, v50\nv_cvt_pk_bf16_f32 v49, v48, v50')
        return I(f'ds_write_b32 v{vSW}, v49 offset:{SUMS[si] - 0x20000}')
    def rowstats(s):
        I = s.I
        for r in range(2):
            for i in range(4):
                x = vROW + 4*r + i
                I(f'v_dot2_f32_bf16 v{248+r}, v{x}, s{sONES}, {"0" if i == 0 else v(248+r)}')
                I(f'v_dot2_f32_bf16 v{250+r}, v{x}, v{x}, {"0" if i == 0 else v(250+r)}')
        I('v_permlane32_swap_b32 v248, v249\nv_permlane32_swap_b32 v250, v251\nv_add_f32 v248, v248, v249\nv_add_f32 v250, v250, v251')
        I(f'v_and_b32 v252, 15, v0\nv_cmp_eq_u32 vcc, 0, v252\nv_lshrrev_b32 v252, 1, v0\nv_mov_b32 v253, {hex(OOB)}')
        I('v_permlane16_swap_b32 v248, v250\nv_cndmask_b32 v252, v253, v252, vcc\nv_add_f32 v248, v248, v250')
        I(f'v_mov_b32 v249, s{sTAG}\ns_lshl_b32 s64, s{sR}, 11\ns_lshl_b32 s65, s{sJ}, 7\ns_add_u32 s64, s64, s65\ns_lshl_b32 s65, s{sW}, 5\ns_add_u32 s64, s64, s65\ns_add_u32 s64, s64, {hex(S0)}')
        for mod in ('quad_perm:[1,0,3,2]', 'quad_perm:[2,3,0,1]', 'row_half_mirror', 'row_mirror'):
            I(f'v_add_f32_dpp v248, v248, v248 {mod} row_mask:0xf bank_mask:0xf')
        s.k.wait(s.tok['C'])
        I(f'buffer_store_dwordx2 v[248:249], v252, {WS}, s64 offen sc1')
    def init(s):
        I = s.I; k = s.k
        I(f's_load_dword s{sE}, s[8:9], 0')
        I(f's_lshl_b32 s64, s{sJ}, 2\ns_add_u32 s64, s64, s{sW}\ns_lshl_b32 s64, s64, 4\ns_add_u32 s{sKVP}, s64, s{sR}')
        I(f's_lshl_b32 s64, s{sKVP}, 9\ns_add_u32 s64, s64, {hex(KVP)}\ns_and_b32 s{sKVC}, s64, 0xfffff800\ns_lshl_b32 s65, s{sKVP}, 6\ns_add_u32 s65, s65, {hex(KVZ)}')
        for r in range(4): I(f'v_mov_b32 v{96+r}, -1')
        I(f'v_lshlrev_b32 v100, 11, v{vL16}\nv_or_b32 v100, v100, v{vL16}\nv_and_b32 v100, 0x1001f0, v100\nbuffer_store_dwordx4 v[96:99], v100, {WS}, s64 offen sc1')
        I(f'v_lshlrev_b32 v101, 16, v0\nv_lshl_or_b32 v101, v0, 2, v101\nv_and_b32 v101, 0x10003c, v101')
        s.tok['C'] = I(f'buffer_store_dword v96, v101, {WS}, s65 offen sc1')
        I(f's_getreg_b32 s{sMARK}, hwreg(HW_REG_XCC_ID)\ns_and_b32 s{sMARK}, s{sMARK}, 15\ns_or_b32 s{sMARK}, s{sMARK}, 0x80')
        I(f'v_add_u32 v{vL16b}, 0x10000, v{vL16}')
        I(f'v_cmp_eq_u32 vcc, 0, v0\nv_mov_b32 v{vT0}, {hex(OOB)}\nv_cndmask_b32 v{vL0}, v{vT0}, v0, vcc')
        I(f's_mov_b32 s{sLIM}, 20000')
        I(f'v_and_b32 v50, 15, v0\nv_lshrrev_b32 v51, 4, v0\nv_and_b32 v52, 31, v0\nv_lshrrev_b32 v53, 5, v0')
        I(f'v_lshlrev_b32 v{vFX}, 2, v50')
        I(f'v_bfe_u32 v54, v0, 2, 1\nv_and_b32 v55, 3, v0\nv_lshlrev_b32 v55, 2, v55\nv_lshl_or_b32 v{vFO}, v54, 7, v55')
        I(f'v_lshlrev_b32 v54, 4, v50\nv_lshl_or_b32 v{vPUB}, v51, 9, v54')
        I(f's_lshl_b32 s64, s{sW}, 9\ns_add_u32 s64, s64, {hex(XA)}\ns_movk_i32 s65, {6*PS}')
        I(f'v_mul_lo_u32 v54, v53, s65\nv_lshl_add_u32 v54, v52, 4, v54\nv_add_u32 v{vPHW}, s64, v54')
        I(f's_movk_i32 s65, {PS}\nv_bfe_u32 v54, v0, 1, 1\nv_mul_lo_u32 v54, v54, s65\nv_and_b32 v55, 1, v0\nv_lshl_add_u32 v54, v55, 3, v54')
        I(f'v_lshrrev_b32 v55, 2, v50\nv_lshl_add_u32 v55, v51, 3, v55\nv_lshl_add_u32 v54, v55, 4, v54')
        I(f's_lshr_b32 s66, s{sW}, 1\ns_mul_i32 s66, s66, {6*PS}\ns_add_u32 s66, s66, {hex(XA)}\ns_and_b32 s67, s{sW}, 1\ns_mul_i32 s67, s67, {2*PS}\ns_add_u32 s67, s67, s66\ns_add_u32 s66, s66, {4*PS}')
        I(f'v_add_u32 v{vTRA}, s67, v54\nv_add_u32 v{vTRB}, s66, v54')
        I(f'v_lshlrev_b32 v54, 4, v50\nv_lshl_or_b32 v54, v53, 8, v54\nv_and_b32 v55, 1, v51\nv_lshl_or_b32 v54, v55, 3, v54')
        I(f's_lshl_b32 s64, s{sW}, 9\ns_add_u32 s64, s64, {hex(KVA)}\nv_add_u32 v{vKVW}, s64, v54')
        I(f's_lshl_b32 s64, s{sW}, 5\ns_add_u32 s64, s64, {hex(ZA)}\nv_and_b32 v54, 3, v0\nv_lshl_or_b32 v54, v54, 1, v55\nv_lshl_or_b32 v54, v54, 1, v53\nv_lshl_add_u32 v{vZW}, v54, 1, s64')
        I(f'v_and_b32 v54, 3, v0\nv_bfe_u32 v55, v0, 2, 1\nv_lshl_or_b32 v54, v55, 3, v54\nv_bfe_u32 v55, v0, 3, 1\nv_lshl_or_b32 v54, v55, 2, v54')
        I(f'v_lshlrev_b32 v54, 4, v54\nv_lshl_or_b32 v54, v53, 10, v54\nv_add_u32 v54, {hex(KVA)}, v54')
        I(f'v_lshlrev_b32 v55, 6, v53\nv_add_u32 v55, {hex(ZA)}, v55\nv_bfe_u32 v56, v0, 4, 1\nv_cmp_eq_u32 vcc, v56, v53\nv_mov_b32 v57, {hex(ZERO)}')
        I(f'v_cndmask_b32 v{vKVR}, v57, v54, vcc\nv_cndmask_b32 v{vZR}, v57, v55, vcc')
        I(f'v_lshlrev_b32 v54, 4, v50\nv_lshl_or_b32 v54, v53, 8, v54\nv_lshl_or_b32 v54, v56, 13, v54\ns_lshl_b32 s64, s{sW}, 11\nv_add_u32 v{vREDW}, s64, v54')
        I(f'v_lshlrev_b32 v54, 10, v50\nv_lshl_or_b32 v{vNAT}, v51, 4, v54')
        I(f'v_lshlrev_b32 v54, 4, v50\nv_lshl_or_b32 v54, v53, 2, v54\nv_cmp_eq_u32 vcc, 0, v56\nv_mov_b32 v55, {hex(OOB)}\nv_cndmask_b32 v{vSTW}, v55, v54, vcc')
        I(f's_lshl_b32 s64, s{sW}, 7\ns_add_u32 s64, s64, {hex(RS)}\nv_lshlrev_b32 v54, 2, v52\nv_add_u32 v{vRSW}, s64, v54')
        I(f'v_mov_b32 v56, 0\nv_mov_b32 v57, 0\nv_mov_b32 v58, 0\nv_mov_b32 v59, 0\nv_add_u32 v54, {hex(ZERO)}, v{vL16}\nds_write_b128 v54, v[56:59]')
        I(f's_mov_b32 s{sSELLO}, 0x3f80\ns_mov_b32 s{sSELHI}, 0x3f800000\ns_mov_b32 s{sONES}, 0x3f803f80\ns_mov_b32 s{sLOG2E}, 0x3fb8aa3b')
        I(f's_lshl_b32 s66, s{sR}, 2\ns_add_u32 s65, s66, s{sW}')
        I(f's_lshl_b32 s64, s65, 15\ns_add_u32 s{sXIN}, s64, {hex(XB[0])}')
        I(f's_lshl_b32 s64, s65, 11\ns_add_u32 s{sSTIN}, s64, {hex(ST)}')
        I(f's_mul_i32 s64, s{sJ}, {224*1024}\ns_add_u32 s64, s64, s{sM0}\ns_add_u32 s{sGU}, s64, {hex(WGU)}')
        I(f's_lshr_b32 s67, s{sRK}, 3\ns_lshl_b32 s64, s{sW}, 2\ns_or_b32 s64, s64, s67\ns_lshl_b32 s64, s64, 8\ns_or_b32 s64, s64, s{sCG}\ns_lshl_b32 s{sWO}, s64, 7')
        I(f's_lshl_b32 s67, s{sHB}, 12\ns_or_b32 s{sOM}, s67, s{sM0}')
        I(f's_mul_i32 s64, s{sCG}, {224*1024}\ns_mul_i32 s67, s{sW}, {56*1024}\ns_add_u32 s64, s64, s67\ns_add_u32 s{sWD}, s64, {hex(WD_P)}')
        I(f's_lshl_b32 s67, s{sHB}, 1\ns_add_u32 s66, s66, s67')
        I(f's_lshr_b32 s67, s{sW}, 1\ns_add_u32 s67, s67, s66\ns_and_b32 s68, s{sW}, 1')
        I(f's_lshl_b32 s64, s66, 15\ns_add_u32 s64, s64, s{sM0}\ns_add_u32 s{sXO}, s64, {hex(XB[0])}')
        I(f's_lshl_b32 s64, s67, 15\ns_lshl_b32 s69, s{sCG}, 12\ns_add_u32 s64, s64, s69\ns_lshl_b32 s69, s68, 8\ns_add_u32 s64, s64, s69\ns_add_u32 s{sXPUB}, s64, {hex(XB[0])}')
        I(f's_lshl_b32 s64, s67, 11\ns_lshl_b32 s69, s68, 8\ns_add_u32 s64, s64, s69\ns_mul_i32 s69, s{sCG}, 0x108\ns_and_b32 s69, s69, 0x608\ns_add_u32 s64, s64, s69\ns_add_u32 s{sSTPUB}, s64, {hex(ST)}')
        I(f's_mul_i32 s64, s65, {112*1024}\ns_mul_i32 s69, s{sJ}, {7*1024}\ns_add_u32 s64, s64, s69\ns_add_u32 s{sHPUB}, s64, {hex(HB)}')
        I(f's_mul_i32 s64, s66, {112*1024}\ns_mul_i32 s69, s{sW}, {28*1024}\ns_add_u32 s64, s64, s69\ns_add_u32 s{sHIN}, s64, {hex(HB)}')
        I(f's_lshl_b32 s64, s65, 7\ns_add_u32 s{sFXC}, s64, {hex(FX)}')
        I(f's_lshl_b32 s69, s{sJ}, 2\ns_add_u32 s64, s64, s69\ns_add_u32 s{sFOP}, s64, {hex(FO)}')
        I(f's_lshl_b32 s64, s67, 7\ns_lshl_b32 s69, s{sCG}, 3\ns_add_u32 s64, s64, s69\ns_lshl_b32 s69, s68, 2\ns_add_u32 s64, s64, s69\ns_add_u32 s{sFXP}, s64, {hex(FX)}')
        I(f's_lshl_b32 s64, s66, 7\ns_lshl_b32 s69, s{sW}, 4\ns_add_u32 s64, s64, s69\ns_add_u32 s{sFOC}, s64, {hex(FO)}')
        I(f's_lshl_b32 s64, s{sR}, 17\ns_lshl_b32 s69, s{sHB}, 16\ns_add_u32 s64, s64, s69\ns_lshl_b32 s69, s{sW}, 14\ns_add_u32 s64, s64, s69\ns_lshl_b32 s69, s{sCG}, 7\ns_add_u32 s{sNAT}, s64, s69')
        I(f's_lshl_b32 s64, s{sHB}, 8\ns_lshl_b32 s69, s{sW}, 6\ns_add_u32 s64, s64, s69\ns_add_u32 s64, s64, {hex(RS)}\nv_add_u32 v{vRSR}, s64, v{vFX}')

    def xloads(s, buf, n1=2, perm=None):
        so = s.SO(s, sT0)
        d = buf*0x20000; n = s.P['xf']
        with s.k.cap() as f:
            for kc in range(33):
                if kc == s.P['sl']: s.ld(so, v(vTMP, 4), vL16, sSTIN, d, 'sc1'); s.ld(so, v(vTMP+4, 4), vL16, sSTIN, d + 1024, 'sc1')
                if kc == 32: break
                if perm is None: s.ld(so, v(vXB + 4*kc, 4), vL16, sXIN, buf*0x200000 + kc*1024, 'sc1')
                else:
                    with s.k.group():
                        if kc % 4 == 0 and kc: s.I(f's_xor_b32 s{perm}, s{perm}, {hex((kc ^ kc - 4) << 10)}')
                        s.I(f'buffer_load_dwordx4 {v(vXB + 4*kc, 4)}, v{vL16}, {WS}, s{perm} offen offset:{kc % 4*1024} sc1')
        s.k.put(f[:n])
        return (f[n:], 0, n1*(32 - n) - 1)
    def stats(s, own=False):
        I = s.I; t = vTMP
        I(f'v_add_f32 v{t}, v{t}, v{t+2}\nv_add_f32 v{t+1}, v{t+1}, v{t+3}')
        if not own:
            I(f'v_add_f32 v{t+4}, v{t+4}, v{t+6}\nv_add_f32 v{t+5}, v{t+5}, v{t+7}')
            I(f'v_add_f32 v{t}, v{t}, v{t+4}\nv_add_f32 v{t+1}, v{t+1}, v{t+5}')
        I(f'v_permlane32_swap_b32 v{t}, v{t+1}')
        I(f'v_add_f32 v{t}, v{t}, v{t+1}')
        I(f'v_mul_f32 v{t}, 0x3b000000, v{t}')
        I(f'v_mov_b32 v{t+1}, v{t}')
        I(f'v_permlane32_swap_b32 v{t}, v{t+1}')
        I(f'v_fma_f32 v{t+1}, -v{t}, v{t}, v{t+1}')
        I(f'v_max_f32 v{t+1}, 0, v{t+1}')
        I(f'v_add_f32 v{t+1}, 0x3727c5ac, v{t+1}')
    def phi(s, p, tA, tB, out, emit=None):
        I = s.I; mx, mn = vT0, vT2
        I(f'v_max3_f32 v{mx}, v{p}, v{p+1}, v{p+2}\nv_min3_f32 v{mn}, v{p}, v{p+1}, v{p+2}')
        for r in range(3, 15, 2): I(f'v_max3_f32 v{mx}, v{mx}, v{p+r}, v{p+r+1}\nv_min3_f32 v{mn}, v{mn}, v{p+r}, v{p+r+1}')
        I(f'v_max_f32 v{mx}, v{mx}, v{p+15}\nv_min_f32 v{mn}, v{mn}, v{p+15}')
        I(f'v_mul_f32 v{mx}, v{mx}, v{vC}\nv_mul_f32 v{mn}, v{mn}, v{vC}')
        for sg, t, m in ((0, tA, mx), (1, tB, mn)):
            for r in range(0, 16, 2):
                if sg == 0: I(f'v_pk_fma_f32 {v(t+r,2)}, {v(p+r,2)}, {v(vC-1,2)}, {v(m,2)} op_sel:[0,1,0] op_sel_hi:[1,1,0] neg_lo:[0,0,1] neg_hi:[0,0,1]')
                else: I(f'v_pk_fma_f32 {v(t+r,2)}, {v(p+r,2)}, {v(vC-1,2)}, {v(m,2)} op_sel:[0,1,0] op_sel_hi:[1,1,0] neg_lo:[1,0,0] neg_hi:[1,0,0]')
            for r in range(16): I(f'v_exp_f32 v{t+r}, v{t+r}')
            I(f'v_pk_add_f32 {v(vT4,2)}, {v(t,2)}, {v(t+2,2)}')
            for r in range(4, 16, 2): I(f'v_pk_add_f32 {v(vT4,2)}, {v(vT4,2)}, {v(t+r,2)}')
            I(f'v_add_f32 v{vT4}, v{vT4}, v{vT5}\nv_rcp_f32 v{vT4}, v{vT4}')
            for r in range(0, 16, 2): I(f'v_pk_mul_f32 {v(t+r,2)}, {v(t+r,2)}, {v(vT4,2)} op_sel_hi:[1,0]')
            for r in range(8):
                I(f'v_cvt_pk_bf16_f32 v{out+8*sg+r}, v{t+2*r}, v{t+2*r+1}')
                if emit and r % 4 == 3: emit(2*sg + r//4)

    def front(s):
        I = s.I; k = s.k; P = s.P
        s.init0()
        tx = {}; tr = {}; dl = {}
        def X(i):
            with k.group():
                if i >= 8 and i % 2 == 0: k.wait(tr[i//2 - 4])
                tx[i] = s.xdma(i//2, i % 2)
        def RD(c):
            with k.group() as g:
                k.wait(tx[2*c+1])
                for q in range(4): tr[c] = I(f'ds_read_b128 {v(vXB+16*c+4*q,4)}, v{vXR+q} offset:{s.xreg(c) - 0x10000}')
            dl[id(g)] = 8*c - 3
        def SL():
            with k.group() as g:
                I(f's_lshl_b32 s{sT0+3}, s{sR}, 11\ns_lshl_b32 s{sT0+4}, s{sW}, 9\ns_add_u32 s{sT0+3}, s{sT0+3}, s{sT0+4}\ns_add_u32 s{sT0+3}, s{sT0+3}, {hex(S0)}')
                I(f'v_and_b32 v{vT4}, 0x1f0, v{vL16}\nbuffer_load_dwordx4 v[52:55], v{vT4}, {WS}, s{sT0+3} offen sc1')
                I(f's_lshl_b32 s{sT0+5}, s{sJ}, 7\ns_add_u32 s{sT0+5}, s{sT0+5}, s{sM0}\ns_add_u32 s{sT0+5}, s{sT0+5}, {hex(S0)}')
                I(f'v_lshlrev_b32 v57, 9, v0\nv_lshl_or_b32 v57, v0, 5, v57\nv_and_b32 v57, 0x1860, v57\nbuffer_load_dword v56, v57, {WS}, s{sT0+5} offen offset:4 sc1')
            dl[id(g)] = 40; s.gSL = g
        def Q(p):
            with k.group():
                if p == 0: k.wait(tr[5])
                s.tok['Q0'] = s.wdma(p, 2, 0)
        def U(i):
            with k.group():
                if i == 0: k.wait(tr[7])
                s.tok['U'] = s.udma(i)
        with k.cap() as xs:
            for p in range(1, 4): tk = s.wdma(p, 0, 1024)
            for p in range(1, 4): tv = s.wdma(p, 1, 2048)
            for i in range(16):
                X(i)
                if i >= 5 and i % 2 == 1: RD((i - 5)//2)
            SL(); Q(0); RD(6); Q(1); RD(7); Q(2); Q(3)
            for i in range(6): U(i)
        with k.cap() as pre:
            s.unit()
            if P.get('tlb'):
                n, sh = P['tlb']
                I(f'v_min_u32 v54, {n - 1}, v0\nv_lshlrev_b32 v54, {sh}, v54\ns_lshl_b32 s64, s2, 7\nbuffer_load_dword v21, v54, {WS}, s64 offen offset:1024')
            s.init(); s.finit()
        n, f0, ev = P['sp']
        k.sprinkle(pre, xs[:n], f0, ev); xs = xs[n:]
        s.stamp('init')
        xa, xb, xc, xd = P['xa'], P['xb'], P['xc'], P['xd']
        with k.cap() as f:
            s.fold(); s.rowstats()
            I(f's_lshl_b32 s64, s{sG}, 5\ns_add_u32 s64, s64, s{sRK}\nv_mov_b32 v{vT0}, s{sMARK}\nbuffer_store_byte v{vT0}, v{vL0}, {DS}, s64 offen')
        k.sprinkle(f, xs[:xa], 0, P['xe']); xs = xs[xa:]
        s.stamp('issued')
        with k.cap() as f: s.lbuild(tk, 0, 16, 0)
        k.weave(f, (xs[:xb], 0, 15)); xs = xs[xb:]
        s.stamp('kbuild')
        with k.cap() as f: t = s.lbuild(tv, 1, 0, 1)
        k.weave(f, (xs[:xc], 0, 15)); xs = xs[xc:]
        k.wait(t); I('s_barrier')
        s.stamp('vbuild')
        while any(dl.get(id(x), 99) < 0 for x in xs[xd:]): xd += 1
        k.put(xs[:xd]); xs = xs[xd:]
        assert any(x is s.gSL for x in xs)
        gaps = [min(63, int(i*P['xr'])) for i in range(len(xs))]
        for i in range(len(xs) - 1, -1, -1):
            gaps[i] = min(gaps[i], dl.get(id(xs[i]), 63), max(gaps[i+1] - 1, 0) if i + 1 < len(xs) else 63)
        s.gaps = gaps
        fill = [([it], g, g) for it, g in zip(xs, gaps)]
        with k.cap() as f:
            for i in range(8): I(f'ds_read_b128 {a_(aKP+4*i,4)}, v{vWW} offset:{i*1024}')
        fill.append((f, *P['kp']))
        with k.cap() as f:
            I(f'ds_read_b128 a[28:31], v{vSR} offset:{SUMS[0] - 0x20000}\nds_read_b128 a[32:35], v{vSR} offset:{SUMS[1] - 0x20000}')
            Lb = s.label('S0'); D = s.label('S0D')
            with k.group():
                I(f's_mov_b32 s{sT0+9}, 0\n{Lb}:')
                I(f'v_xor_b32 v53, s{sTAG}, v53\nv_xor_b32 v55, s{sTAG}, v55\nv_xor_b32 v56, s{sTAG}, v56\nv_or3_b32 v53, v53, v55, v56\nv_cmp_ne_u32 vcc, 0, v53\ns_cbranch_vccz {D}')
                with k.cond():
                    I(f'buffer_load_dwordx4 v[52:55], v{vT4}, {WS}, s{sT0+3} offen sc1\nbuffer_load_dword v56, v57, {WS}, s{sT0+5} offen offset:4 sc1\ns_waitcnt vmcnt(0)')
                    I(f's_add_u32 s{sT0+9}, s{sT0+9}, 1\ns_cmp_lt_u32 s{sT0+9}, s{sLIM}\ns_cbranch_scc1 {Lb}\ns_mov_b32 s{sLIM}, 1')
                I(f'{D}:'); k.retire()
            I('v_mul_f32 v52, 0xbb000000, v52\nv_mul_f32 v54, 0x3b000000, v54')
            I('v_cvt_pk_bf16_f32 v53, v52, v52\nv_fma_f32 v54, -v52, v52, v54\nv_and_b32 v55, 0xffff0000, v53\nv_max_f32 v54, 0, v54')
            I(f'v_sub_f32 v55, v52, v55\nv_add_f32 v54, 0x3727c5ac, v54\nv_cvt_pk_bf16_f32 v55, v55, v55\nv_rsq_f32 v{vRSTD}, v54')
            with k.group(): I('v_cmp_gt_u32 vcc, 32, v0\nv_cndmask_b32 v53, v55, v53, vcc')
            I(f'v_mul_f32 v{vC}, s{sLOG2E}, v{vRSTD}')
            for r in range(4): I(f'v_accvgpr_write_b32 a{24+r}, v53')
        fill.append((f, 54, 62))
        return fill

    def wodma(s, L, p0, p1):
        I = s.I; k = s.k; P = s.P; two = None
        with k.cap() as fo:
            for p in range(p0, p1):
                with k.group():
                    if p == p0: I(f'v_lshrrev_b32 v{vT1}, 3, v0\nv_and_b32 v{vT3}, 0x70, v1\nv_lshl_or_b32 v{vT1}, v{vT1}, 10, v{vT3}\nv_add_u32 v{vT3}, 7168, v{vT1}')
                    I(f's_xor_b32 m0, s{sOM}, {hex((p >> 2)*WOX[L] + (p & 3)*2048)}\ns_xor_b32 s{sT0+1}, s{sWO}, {hex(p << 14)}')
                    I(f'buffer_load_dwordx4 v{vT1}, {US}, s{sT0+1} offen {s.md("w", "")} lds')
                    two = I(f'buffer_load_dwordx4 v{vT3}, {US}, s{sT0+1} offen offset:1024 {s.md("w", "")} lds')
                    if p == P['twp'][L]: k.put(s.touches(P['tw'][L], vMK if L else 47))
        return fo, two
    def qkv(s, L):
        I = s.I; k = s.k; P = s.P
        SK, SV, SQ = 0, 1, 2
        bA, bB = L, 1 - L
        aK, aV, aQ = vACC, vACC+16, vACC+32
        qw = P['qw']*L
        def wosrd(): I('s_load_dwordx2 s[84:85], s[0:1], 24\ns_mov_b32 s86, 0x80000\ns_mov_b32 s87, 0x20000')
        if L == 0:
            fill = s.front()
            with k.cap() as s.bw:
                so = s.SO(s, sT0+7)
                for jj, i in [(jj, i) for jj in range(4) for i in range(12)] + [(jj, i) for jj in range(4) for i in (12, 13)]:
                    s.ld(so, a_(aWD(jj, i//2, i % 2), 4), vL16, sWQ + jj, i*1024, s.md('d'))
        else:
            I(f's_lshl_b32 s{sT0+2}, s{sCG}, 12\ns_add_u32 s{sT0+2}, s{sT0+2}, s{sXIN}\ns_add_u32 s{sT0+2}, s{sT0+2}, {hex(bA*0x200000)}')
            s.poll(vFX, sFXC, 0, 2*L)
            s.stamp('x_ok')
            fill = [s.xloads(bA, 2, sT0+2)]
            k.wait(s.tok['K']); I('s_barrier')
            with k.cap() as f:
                I(f'v_and_b32 v{vT4}, 0x1f0, v{vL16}\nv_add_u32 v{vT4}, 0x20000, v{vT4}')
                I(f'ds_read_b128 v[112:115], v{vT4} offset:{SUMS[0] - 0x20000}\nds_read_b128 v[116:119], v{vT4} offset:{SUMS[1] - 0x20000}')
                if qw: I(f'ds_read_b128 v[120:123], v{vT4} offset:{SUMS[3] - 0x20000}')
                s.stats(); s.meanop(vMU, vTMP, vTMP+2)
                for r in range(4): I(f'v_mov_b32 v{124+r}, v{vMU}')
                I(f'v_rsq_f32 v{vRSTD}, v{vTMP+1}')
                I(f'v_mul_f32 v{vC}, s{sLOG2E}, v{vRSTD}')
            fill.append((f, 44, 60))
        fill.append((s.touches(P['tk'][L]), P['tkg'][L], 63))
        if L == 0: s.gtile(0)
        else: s.tok[0] = None
        steps = []
        for kc in range(32): steps += [(SV, kc, aV, kc == 0), (SK, kc, aK, kc == 0)]
        if qw: steps += [(SQ, kc, aQ, False) for kc in range(32)]
        base, _ = s.gemm(steps, {P['kf'][L]: (64, [])} if P['kf'][L] else {})
        with k.cap() as fm:
            if L == 0:
                I(f'v_mfma_f32_32x32x16_bf16 {v(aV,16)}, a[32:35], a[24:27], {v(aV,16)}\nv_mfma_f32_32x32x16_bf16 {v(aK,16)}, a[28:31], a[24:27], {v(aK,16)}')
            else:
                I(f'v_mfma_f32_32x32x16_bf16 {v(aV,16)}, v[116:119], v[124:127], {v(aV,16)}\nv_mfma_f32_32x32x16_bf16 {v(aK,16)}, v[112:115], v[124:127], {v(aK,16)}')
                if qw: I(f'v_mfma_f32_32x32x16_bf16 {v(aQ,16)}, v[120:123], v[124:127], 0')
        if not qw:
            k.weave(base, *fill); k.put(fm)
            s.stamp('kv_gemm')
        if L == 0: wosrd()
        wob, kb = vXB + 64, vXB
        fo, two = s.wodma(L, P.get('so1', 0)*L, 8)
        with k.cap() as fx:
            I('v_bfe_u32 v126, v0, 2, 2\nv_lshrrev_b32 v125, 5, v0\nv_lshl_or_b32 v126, v125, 3, v126\nv_bfe_u32 v125, v0, 4, 1\nv_lshl_or_b32 v126, v126, 2, v125')
            I('v_and_b32 v125, 1, v0\nv_lshl_or_b32 v126, v126, 1, v125\nv_bfe_u32 v125, v0, 1, 1\nv_lshl_or_b32 v126, v126, 1, v125')
            with k.group(): I(f's_and_b32 s{sT0+3}, s{sR}, 1\ns_mul_i32 s{sT0+3}, s{sT0+3}, {hex(WOX[L])}\ns_or_b32 s{sT0+3}, s{sT0+3}, s{sM0}\nv_lshl_add_u32 v125, v126, 3, s{sT0+3}')
            I(f'v_xor_b32 v126, {hex(WOX[L])}, v125')
        def otr():
            k.wait(two)
            for kk in range(8):
                for ct in range(2):
                    for r in range(2): t = I(f'ds_read_b64_tr_b16 {v(wob+8*kk+4*ct+2*r,2)}, v{125 + (kk >> 2)} offset:{(kk & 3)*2048 + ct*64 + r*512}')
            return t
        on = P['on'][L]
        with k.cap() as f:
            for r in range(0, 16, 2): I(f'v_pk_mul_f32 {v(aV+r,2)}, {v(aV+r,2)}, {v(vRSTD,2)} op_sel_hi:[1,0]')
            for r in range(8): I(f'v_cvt_pk_bf16_f32 v{aV+r}, v{aV+2*r}, v{aV+2*r+1}')
            I(f'ds_write_b128 v{vPHW}, {v(aV,4)} offset:{4*PS}\nds_write_b128 v{vPHW}, {v(aV+4,4)} offset:{5*PS}')
            tw = []
            s.phi(aK, vACC+48, aK, vTMP, emit=lambda n: tw.append(I(f'ds_write_b128 v{vPHW}, {v(vTMP+4*n,4)} offset:{n*PS}')))
            for r in range(4): I(f'v_mov_b32 v{72+r}, s{sONES}')
        if qw: cap = k.cap(); fq = cap.__enter__()
        ta = vXB if qw else 96
        if L == 0:
            assert P['op'] == 0 or P['kf'][0]
            k.sprinkle(f, fo[:P['op']], *P['tp'][1:]); fo = fo[P['op']:]; on -= P['op']
        else:
            s.gtile(1); s.gtile(2)
            assert on == 0 or P['kf'][1]
            k.sprinkle(f, fo[:on], 2, P['oe']); fo = fo[on:]
        with k.group():
            k.wait(tw[-1])
            I('s_barrier')
            s.stamp('phik')
        for u in range(4):
            for p in range(2):
                I(f'ds_read_b64_tr_b16 {v(ta+4*u+2*p,2)}, v{vTRA} offset:{u*512+p*64}')
            for p in range(2):
                I(f'ds_read_b64_tr_b16 {v(ta+16+4*u+2*p,2)}, v{vTRB} offset:{u*512+p*64}')
        with k.group():
            for u in range(4):
                I(f'v_mfma_f32_16x16x32_bf16 v[64:67], {v(ta+4*u,4)}, {v(ta+16+4*u,4)}, {"0" if u == 0 else "v[64:67]"}')
                I(f'v_mfma_f32_16x16x32_bf16 v[68:71], v[72:75], {v(ta+4*u,4)}, {"0" if u == 0 else "v[68:71]"}')
        I(f's_sub_u32 s{sT0}, s{sKVP}, s{sW}\ns_lshl_b32 s{sT0}, s{sT0}, 9\ns_add_u32 s{sT0}, s{sT0}, {hex(KVP - KVA + L*0x100000)}')
        I(f's_lshl_b32 s{sT0+3}, s{sKVP}, 6\ns_add_u32 s{sT0+3}, s{sT0+3}, {hex(KVZ + L*0x100000)}')
        I('v_cvt_pk_bf16_f32 v112, v64, v65\nv_cvt_pk_bf16_f32 v113, v66, v67\nv_mov_b32 v114, v68')
        I(f'buffer_store_dwordx2 v[112:113], v{vKVW}, {WS}, s{sT0} offen sc1\nbuffer_store_dword v114, v{vFX}, {WS}, s{sT0+3} offen sc1')
        s.stamp('kvpub')
        if qw:
            cap.__exit__(None, None, None)
            fill += [(fm[:1], 62, 62), (fm[1:2] + fq[:8] + fm[2:], 63, 63)]; c = 0
            for it in fq[8:]:
                gq = 63 + c//qw
                fill.append(([it], gq, gq))
                c += sum(16 if x.text[:5] in ('v_exp', 'v_rcp') else 4 for x in Asm.flat([it]) if x.text[:2] != 's_')
            fill.append((fo[:P['qo']], gq + 1, 95)); fo = fo[P['qo']:]
            k.weave(base, *fill)
        s.wob = wob; zb = kb + 32; sel = kb + 40
        def kvld(r):
            with k.group():
                if r < 8: I(f's_xor_b32 s{sT0}, s{sKVC}, {hex(L*0x100000 + (3 - r//2)*2048)}\nbuffer_load_dwordx4 {v(kb+4*r,4)}, v{vPUB}, {WS}, s{sT0} offen offset:{256*(r & 1)} {s.md("k")}')
                else: I(f's_lshr_b32 s{sT0}, s{sKVP}, 4\ns_lshl_b32 s{sT0}, s{sT0}, 10\ns_add_u32 s{sT0}, s{sT0}, {hex(KVZ + L*0x100000)}\nbuffer_load_dwordx4 {v(zb,4)}, v{vL16}, {WS}, s{sT0} offen {s.md("k")}')
        with k.cap() as fk:
            for r in P['ko']: kvld(r)
        with k.cap() as fs:
            I(f'v_and_b32 v{sel+8}, 1, v0\nv_lshlrev_b32 v{sel+8}, 4, v{sel+8}\nv_lshlrev_b32 v{sel+8}, v{sel+8}, s{sSELLO}\nv_bfe_u32 v{sel+9}, v0, 1, 3')
            for r in range(8):
                with k.group(): I(f'v_cmp_eq_u32 vcc, {r}, v{sel+9}\nv_cndmask_b32 v{sel+r}, 0, v{sel+8}, vcc')
        assert P['ot'] == (0, 0)
        if L == 0:
            I(f'v_add_u32 v{vWR}, 0x10000, v{vWR}\nv_add_u32 v{vWR+1}, 0x10000, v{vWR+1}\nv_add_u32 v{vWW}, 0x10000, v{vWW}')
            with k.cap() as fa: s.uaddr()
            with k.cap() as f: t = s.lbuild(s.tok['Q0'], SQ, 16, 3)
            k.weave(f, (fa[:8], 0, 2), (fa[8:], 11, 15), (fo[:on], 0, 15)); fo = fo[on:]
            k.wait(t); I('s_barrier')
            s.stamp('qbuild')
            with k.cap() as fu: tu = s.uproc()
            with k.cap() as ff:
                with k.group():
                    if P.get('xs'): s.stamp('ff0')
                    k.wait(tu)
                    if P.get('xs'): s.stamp('ff1')
                    I(f's_barrier\ns_lshl_b32 s{sT0+3}, s2, 8\ns_lshl_b32 s{sT0+4}, s{sW}, 28\ns_add_u32 s{sT0+3}, s{sT0+3}, s{sT0+4}\ns_add_u32 s{sT0+3}, s{sT0+3}, {hex(FU)}')
                    I(f'v_mov_b32 v116, s{sTAG}\nv_lshlrev_b32 v117, 2, v0\nbuffer_store_dword v116, v117, {WS}, s{sT0+3} offen sc1')
            with k.cap() as fy:
                I(f'v_and_b32 v122, 7, v0\nv_min_u32 v127, 2, v122\nv_bfe_u32 v121, v0, 3, 1\nv_mad_u32_u24 v127, v121, 28, v127')
                with k.group(): I(f's_mul_i32 s{sT0+3}, s{sJ}, 7\ns_lshr_b32 s{sT0+3}, s{sT0+3}, 2\nv_add_u32 v127, s{sT0+3}, v127')
                with k.group(): I(f'v_lshl_add_u32 v121, v122, 3, s{sCG}\nv_cmp_lt_u32 vcc, 15, v0\nv_cndmask_b32 v127, v127, v121, vcc')
                with k.group(): I(f's_lshl_b32 s{sT0+3}, s{sW}, 6\nv_add_u32 v127, s{sT0+3}, v127')
                I(f'v_lshlrev_b32 v127, 8, v127')
            if s.stop == 'kv0':
                k.put(fu); k.put(ff); return True
            with k.cap() as f1:
                so = s.SO(s, sT0+2)
                s.ld(so, v(vRES, 4), vNAT, sNAT, 0, srdn=XS); s.ld(so, v(vRES+4, 4), vNAT, sNAT, 64, srdn=XS)
                with k.group(): I(f'v_and_b32 v{vMK}, 28, v{vFX}\ns_lshl_b32 s{sT0+3}, s{sG}, 5\nbuffer_load_dword v{vMK}, v{vMK}, {DS}, s{sT0+3} offen sc1')
                I(f'ds_read_b128 a[28:31], v{vSR} offset:{SUMS[3] - 0x20000}')
            assert P['og'][1] > P['ub']
            fill = [(fu[:8], 0, P['ub']), (fu[8:], P['ub'] + 1, 19), (f1, 27, 30), (fx + fy, 6, 30), (fs, 14, 30), (fo[:P['og'][0]], P['og'][1], 28)]; fo = fo[P['og'][0]:]
        else:
            with k.cap() as f1:
                I(f'v_and_b32 v{vT4}, 0x1f0, v{vL16}\nv_add_u32 v{vT4}, 0x20000, v{vT4}\nds_read_b128 v[64:67], v{vT4} offset:{SUMS[3] - 0x20000}')
                for r in range(4): I(f'v_mov_b32 v{68+r}, v{vMU}')
            fill = [(fo, *P['tb'][1:]), (fk[:P['kn']], P['k0'], 31), (f1 + fx, 10, 28), (fs, 14, 30)]
        if not qw:
            base, _ = s.gemm([(SQ, kc, aQ, kc == 0) for kc in range(32)])
            k.weave(base, *fill)
            if L == 0: I(f'v_mfma_f32_32x32x16_bf16 {v(aQ,16)}, a[28:31], a[24:27], {v(aQ,16)}')
            else: I(f'v_mfma_f32_32x32x16_bf16 {v(aQ,16)}, v[64:67], v[68:71], {v(aQ,16)}')
            s.stamp('q_gemm')
        with k.cap() as f: s.phi(aQ, vACC, vACC+16, vTMP)
        if L == 0:
            with k.cap() as f2: k.sprinkle(f, ff, P['fg'], 1)
            with k.cap() as f3: k.sprinkle(f2, fo, *P['oq'][0])
            k.sprinkle(f3, fk, *P['kq'][0])
            I(f's_mul_i32 s{sT0+3}, s{sMARK}, 0x01010101\nv_cmp_ne_u32 vcc, s{sT0+3}, v{vMK}\ns_or_b32 s{sSLOW}, vcc_lo, vcc_hi')
        elif qw:
            f = fx + f + fs
            with k.cap() as f3: k.sprinkle(f, fo, *P['oq'][1])
            k.sprinkle(f3, fk, *P['kq'][2])
        else: k.sprinkle(f, fk[P['kn']:], *P['kq'][1])
        s.stamp('phiq')
        def fuld(): return I(f's_mov_b32 s{sT0+4}, {hex(FU)}\nbuffer_load_dword v112, v127, {WS}, s{sT0+4} offen sc1')
        if L == 0 and P['fup'] == 0: fuld()
        if P['ot'][L] == 0: tot = otr()
        MK = [76] + list(range(88, 102, 2))
        Lb = s.label('KV'); D = s.label('KVD')
        I(f's_mov_b32 s{sT0+9}, 0')
        I(f'{Lb}:')
        first = True
        for r in P['ko']:
            if r < 8:
                I(f'v_mfma_f32_16x16x32_bf16 v[64:67], {v(sel+4*(r & 1),4)}, {v(kb+4*r,4)}, {"0" if first else "v[64:67]"}'); first = False
            else:
                I(f'v_permlane32_swap_b32 v{zb}, v{zb+1}\nv_permlane32_swap_b32 v{zb+2}, v{zb+3}\nv_add_f32 v68, v{zb}, v{zb+1}\nv_add_f32 v69, v{zb+2}, v{zb+3}')
                I('v_permlane16_swap_b32 v68, v69\nv_add_f32 v68, v68, v69')
                for n in (4, 8): I(f'v_add_f32_dpp v68, v68, v68 row_ror:{n} row_mask:0xf bank_mask:0xf')
        I(f'v_add_f32 v69, v68, v64\nv_cmp_u_f32 vcc, v69, v66\ns_cbranch_vccz {D}')
        with k.cond():
            kvld(8)
            for r in range(8):
                I(f'v_max3_u32 v69, v{kb+4*r}, v{kb+4*r+1}, v{kb+4*r+2}\nv_max_u32 v69, v69, v{kb+4*r+3}\nv_cmp_eq_u32 {s_(MK[r],2)}, -1, v69')
            for r in range(8):
                I(f's_mov_b64 exec, {s_(MK[r],2)}'); kvld(r)
            I('s_mov_b64 exec, -1\ns_waitcnt vmcnt(0)')
            I(f's_add_u32 s{sT0+9}, s{sT0+9}, 1\ns_cmp_lt_u32 s{sT0+9}, s{sLIM}\ns_cbranch_scc1 {Lb}\ns_mov_b32 s{sLIM}, 1')
        I(f'{D}:')
        k.retire()
        s.stamp('kv_ok')
        if L == 0 and P['fup']: fuld()
        if L:
            if P['ot'][L] == 0: k.wait(tot)
            k.put(s.take(P['t1'][L] if P['ot'][L] == 0 else min(8, P['t1'][L])))
        I('v_cvt_pk_bf16_f32 v70, v64, v65\nv_cvt_pk_bf16_f32 v71, v66, v67\nv_cvt_pk_bf16_f32 v68, v68, v68')
        I(f'ds_write_b64 v{vKVW}, v[70:71]')
        t = I(f'ds_write_b16 v{vZW}, v68')
        k.wait(t); I('s_barrier')
        aRING = s.ring
        for n in range(4):
            I(f'ds_read_b128 {a_(aRING+8*n,4)}, v{vZR} offset:{n*16}\nds_read_b128 {a_(aRING+8*n+4,4)}, v{vKVR} offset:{n*256}')
        for n in range(4):
            I(f'v_mfma_f32_32x32x16_bf16 v[80:95], {a_(aRING+8*n,4)}, {v(vTMP+4*n,4)}, {"0" if n == 0 else "v[80:95]"}')
        for n in range(4):
            I(f'v_mfma_f32_32x32x16_bf16 v[64:79], {a_(aRING+8*n+4,4)}, {v(vTMP+4*n,4)}, {"0" if n == 0 else "v[64:79]"}')
        I('v_add_f32 v80, 0x358637bd, v80\nv_add_f32 v88, 0x358637bd, v88\nv_rcp_f32 v80, v80\nv_rcp_f32 v88, v88')
        so = s.SO(s, sT0)
        I(f's_lshl_b32 s{sT0+3}, s{sJ}, 11\ns_add_u32 s{sT0+3}, s{sT0+3}, s{sXIN}')
        for c in range(2):
            for r in range(0, 8, 2): I(f'v_pk_mul_f32 {v(64+8*c+r,2)}, {v(64+8*c+r,2)}, {v(80+8*c,2)} op_sel_hi:[1,0]')
            for r in range(4): I(f'v_cvt_pk_bf16_f32 v{96+4*c+r}, v{64+8*c+2*r}, v{64+8*c+2*r+1}')
            t = s.pub(s.ld(so, v(96+4*c, 4), vL16, sT0+3, bB*0x200000 + c*1024, op='buffer_store_dwordx4'))
        k.wait(t)
        s.flag(sFOP, 0, L + 1)
        s.stamp('opub')
        if L == 0:
            Lb = s.label('FU'); D = s.label('FUD')
            I(f's_mov_b32 s{sT0+9}, 0\n{Lb}:\nv_cmp_ne_u32 vcc, s{sTAG}, v112\ns_cbranch_vccz {D}')
            with k.cond():
                fuld(); I('s_waitcnt vmcnt(0)')
                I(f's_add_u32 s{sT0+9}, s{sT0+9}, 1\ns_cmp_lt_u32 s{sT0+9}, s{sLIM}\ns_cbranch_scc1 {Lb}\ns_mov_b32 s{sLIM}, 1')
            I(f'{D}:')
            k.retire()
            s.stamp('fu_ok')
            I(f's_lshr_b32 s{sT0}, s{sRK}, 3' + ('' if s.P['ws'] == 1 else f'\ns_xor_b32 s{sT0}, s{sT0}, s{sCG}\ns_and_b32 s{sT0}, s{sT0}, {3 if s.P["ws"] else 0}'))
            for q in range(4):
                I(f's_xor_b32 s{sT0+2}, s{sT0}, {q}\ns_mul_i32 s{sT0+2}, s{sT0+2}, 7168\ns_add_u32 s{sHQ+q}, s{sHIN}, s{sT0+2}\ns_lshl1_add_u32 s{sWQ+q}, s{sT0+2}, s{sWD}')
        if P['ot'][L]: tot = otr()
        k.wait(tot)
        k.put(s.take(P['t2'][L]))
        k.put(s.takew(P['w2']))
        k.put(s.touches(P['to'][L]))
        return s.stop == f'o{L}'

    def red_write(s, slot, rt2, ct):
        I = s.I; a = vACC + 32*rt2 + 16*ct; t = None
        for h in range(2):
            for r in range(4): I(f'v_cvt_pk_bf16_f32 v{a+8*h+r}, v{a+8*h+2*r}, v{a+8*h+2*r+1}')
            t = I(f'ds_write_b128 v{vT1}, {v(a+8*h,4)} offset:{rt2*16384 + (2*ct+h)*512}')
        return t
    def red_finish(s, slot, scale, L, buf, p, final, pre, after=None, idle=None):
        I = s.I; k = s.k; rb = vXB + 64
        I(f's_add_u32 s{sT0+3}, s{sM0}, {hex(slot*0x8000)}\nv_add_u32 v{vT0}, s{sT0+3}, v{vL16}')
        k.wait(*pre); I('s_barrier')
        if scale: I(f'ds_read_b32 v{vT2}, v{vRSR}')
        t = None
        for c in range(2):
            for src in range(4): t = I(f'ds_read_b128 {v(rb+16*c+4*src,4)}, v{vT0} offset:{src*2048 + c*1024}')
        so = s.SO(s, sT0)
        for c in range(2):
            for src in range(4):
                for e in range(8):
                    d = (vACC if scale else vRES) + 8*c + e
                    I(f'v_dot2_f32_bf16 v{d}, v{rb+16*c+4*src+e//2}, s{sSELHI if e & 1 else sSELLO}, {"0" if scale and src == 0 else v(d)}')
            if scale:
                for e in range(0, 8, 2): I(f'v_pk_fma_f32 {v(vRES+8*c+e,2)}, {v(vACC+8*c+e,2)}, {v(vT2,2)}, {v(vRES+8*c+e,2)} op_sel_hi:[1,0,1]')
            for r in range(4): I(f'v_cvt_pk_bf16_f32 v{vTMP+4*c+r}, v{vRES+8*c+2*r}, v{vRES+8*c+2*r+1}')
            if final: s.ld(so, v(vTMP+4*c, 4), vNAT, sNAT, 64*c, s.P['om'], op='buffer_store_dwordx4', srdn=OS)
            else: s.pub(s.ld(so, v(vTMP+4*c, 4), vPUB, sXPUB, buf*0x200000 + 2048*c, op='buffer_store_dwordx4'))
        if final: return
        for r in range(8):
            I(f'v_dot2_f32_bf16 v{vT2}, v{vTMP+r}, s{sONES}, {"0" if r == 0 else v(vT2)}')
            I(f'v_dot2_f32_bf16 v{vT3}, v{vTMP+r}, v{vTMP+r}, {"0" if r == 0 else v(vT3)}')
        I(f'v_permlane32_swap_b32 v{vT2}, v{vT3}\nv_add_f32 v{vT2}, v{vT2}, v{vT3}\nv_mov_b32 v{vT3}, v{vT2}')
        I(f'v_permlane16_swap_b32 v{vT2}, v{vT3}\nv_add_f32 v{vT2}, v{vT2}, v{vT3}')
        t2 = s.pub(s.ld(so, v(vT2), vSTW, sSTPUB, buf*0x20000, op='buffer_store_dword'))
        if idle: idle()
        k.wait(t2)
        s.flag(sFXP, 0, p)
        if after: after()

    def wo(s, L):
        I = s.I; k = s.k
        SQ = 3 - L; bA, bB = L, 1 - L
        I(f'v_add_u32 v{vT1}, {hex(SQ*0x8000)}, v{vREDW}')
        if L == 0:
            for i in range(7, -1, -1): I(f'v_and_b32 v{vRES+2*i+1}, 0xffff0000, v{vRES+i}\nv_lshlrev_b32 v{vRES+2*i}, 16, v{vRES+i}')
        s.poll(vFO, sFOC, 0, L + 1)
        s.stamp('o_ok')
        so = s.SO(s, sT0); wob = s.wob; ob = 2*vXB + 64 - wob
        with k.cap() as fl:
            for rt2 in range(2):
                for kk in range(8): s.ld(so, v(ob + 32*rt2 + 4*kk, 4), vL16, sXO, bB*0x200000 + rt2*0x8000 + kk*1024, 'sc1')
        k.put(fl[:8])
        with k.cap() as base:
            for rt2 in range(2):
                for kk in range(8):
                    for ct in range(2):
                        a = vACC + 32*rt2 + 16*ct
                        I(f'v_mfma_f32_32x32x16_bf16 {v(a,16)}, {v(wob+8*kk+4*ct,4)}, {v(ob+32*rt2+4*kk,4)}, {"0" if kk == 0 else v(a,16)}')
        with k.cap() as f1:
            s.red_write(SQ, 0, 0); s.red_write(SQ, 0, 1)
        k.weave(base, (fl[8:], 0, 15), (s.take(s.P['t3'][L]) + s.takew(s.P['w3']), 18, 31), (f1, 19, 30))
        s.red_write(SQ, 1, 0); t = s.red_write(SQ, 1, 1)
        s.stamp('wo_gemm')
        def after():
            if L == 0:
                I(f's_mul_i32 s{sT0+3}, s{sJ}, 896\ns_lshl_b32 s{sT0+4}, s{sW}, 8\ns_add_u32 s{sT0+3}, s{sT0+3}, s{sT0+4}\nv_lshlrev_b32 v{vT2}, 2, v0')
                for q in range(4):
                    I(f's_add_u32 s{sT0+3}, s{sT0+3}, {hex(CS if q == 0 else 14336)}\nbuffer_load_dword v{56+q}, v{vT2}, {WS}, s{sT0+3} offen sc1')
            assert s.gslot(L, 1 + 2*L) == SQ; s.gtile(1 + 2*L)
            k.put(s.take(s.P['t4'][L])); k.put(s.takew(s.P['w4']))
        s.red_finish(SQ, False, L, bA, 2*L + 1, False, [t], after)
        s.stamp('x1pub')
        return s.stop == f'x{2*L+1}'

    def gu_epi(s, L, t):
        I = s.I; a = vACC + 16*(t % 4)
        for r in range(8): I(f'v_max_f32 v{a+r}, 0, v{a+r}')
        for r in range(8): I(f'v_mul_f32 v{a+r}, v{a+r}, v{a+8+r}')
        for r in range(4): I(f'v_cvt_pk_bf16_f32 v{a+8+r}, v{a+2*r}, v{a+2*r+1}')
        if s.P['hm'][L]: return s.ld(s.soH, v(a+8, 4), vL16, sHPUB, s.ord(L)[t]*1024, s.P['hm'][L], op='buffer_store_dwordx4')
        return s.pub(s.ld(s.soH, v(a+8, 4), vL16, sHPUB, s.ord(L)[t]*1024, op='buffer_store_dwordx4'))
    def ord(s, L): return s.P['o1'] if L else range(7)
    def gslot(s, L, t): return (3, 0, 1, 2)[t % 4] if L else (0, 3)[t % 2]
    def gtile(s, t): s.bg_tile(t, sGU, s.ord(s.L)[t]*0x8000, s.gslot(s.L, t))
    def gu(s, L):
        I = s.I; k = s.k; P = s.P
        slot = lambda t: s.gslot(L, t)
        bA = L; n1 = P['n1'][L]; ns = 2 + 2*L; E1 = 32*n1; EM = max(E1, 64)
        acc = lambda t: vACC + 16*(t % 4)
        s.poll(vFX, sFXC, 0, 2*L + 1)
        s.stamp('x1_ok')
        fill = [s.xloads(bA, n1)]
        nb = L and P['fb']
        k.wait(*[s.tok[t] for t in range(3 if nb else n1)]); I('s_barrier')
        fill.append((s.take(99), *(P['tr'] if nb else (E1*5//8, E1 - 4))))
        for names, g in P['tg'][L]: fill.append((s.touches(names), g, g + len(names) - 1))
        tcs = []
        if L == 0:
            with k.cap() as f:
                I(f'v_add_f32 v56, v56, v57\nv_add_f32 v58, v58, v59\nv_add_f32 v56, v56, v58')
                I('v_cvt_pk_bf16_f32 v57, v56, v56\nv_and_b32 v57, 0xffff0000, v57\nv_sub_f32 v57, v56, v57\nv_cvt_pk_bf16_f32 v57, v56, v57')
                with k.group(): I(f's_lshl_b32 s{sT0+3}, s{sW}, 8\ns_add_u32 s{sT0+3}, s{sT0+3}, {hex(WPH)}\nv_add_u32 v{vT2}, s{sT0+3}, v{vT2}')
                tcs.append(I(f'ds_write_b32 v{vT2}, v57'))
            fill.append((f, 24, 36))
        with k.cap() as f:
            s.stats(); s.meanop(60, vTMP, vTMP+2)
            I(f'v_rcp_f32 v{vRSTD}, v{vTMP+1}')
            I(f'v_mov_b32 v61, 0\nv_mov_b32 v62, 0\nv_mov_b32 v63, 0\nv_and_b32 v{vT2}, 31, v0\nv_lshlrev_b32 v{vT2}, 2, v{vT2}\nv_add_u32 v{vT2}, {hex(WPH)}, v{vT2}')
            s.tRS = I(f'ds_write_b32 v{vRSW}, v{vRSTD}')
        fill.append((f, EM - 27, EM - 5))
        steps = []
        for kc in range(32): steps += [(slot(t), kc, acc(t), kc == 0) for t in range(n1)]
        for t in range(n1, 7): steps += [(slot(t), kc, acc(t), kc == 0) for kc in range(32)]
        fences = {32*t - 4: (32*t, tcs if 32*t == EM else []) for t in range(n1, 7)}
        bub = n1 == ns; g = 0; dm = {}
        if nb:
            for t in range(4, 7):
                s.gtile(t); a, b = P['fd'][t - 4]; fill.append((s.take(8), a, b))
                assert any(max(32*(t - 3), E1) <= g < a for g, _ in nb) and any(t in ts and b <= g for g, ts in nb) and (t == 4 or a > P['fd'][t - 5][1])
            fences = {g: (32*min(ts, default=7), [s.tok[t] for t in ts], 0) for g, ts in nb}
            assert sorted(t for g, ts in nb for t in ts) == [3, 4, 5, 6]
        for t in range(n1, 7 if not nb else 0):
            if t >= ns:
                s.gtile(t); dm[t] = s.take(8)
                g = max(g, max(32*(t - ns + 1), E1) - 3)
                if bub and t == ns: fill.append((dm[t], g, g + 2))
                elif not (bub and t == ns + 1): fill.append((dm[t], g, g + P['dl'][L])); g += P['dl'][L] + 1
            if bub and t == ns: fences[32*t - 1] = (32*t, [s.tok[t]])
            else: fences[32*t - 4] = (32*t, fences[32*t - 4][1] + [s.tok[t]])
        s.soH = s.SO(s, sT0+4)
        th = {}; fb = []; ge = 0
        for t in range(7):
            r = 56 + 2*(t == 1); early = 32*t < EM
            with k.cap() as f:
                if t < 2: I(f'ds_read2_b32 {v(r,2)}, v{vT2} offset0:{32*s.ord(L)[t]} offset1:{32*s.ord(L)[t]}')
                else: I(f'ds_read_b32 v{r}, v{vT2} offset:{128*s.ord(L)[t]}')
                with k.group(): I(f'v_mfma_f32_32x32x16_bf16 {v(acc(t),16)}, {v(r,4)}, v[60:63], {v(acc(t),16)}')
            gm = (EM, EM + 1, EM + 5)[t] if early else 32*t + 24
            gr = EM - 3 if t < 2 else gm - 4
            fill.append(([f[0]], gr, gr))
            if bub and early: fb.insert(t, f[1])
            else: fill.append(([f[1]], gm, gm))
            if t < 6:
                with k.cap() as f: th[t] = s.gu_epi(L, t)
                ge = max(ge, (EM if early else 32*t + 32) + 4)
                if bub and early: fb += f
                else: fill.append((f, ge, ge + 9 + (not early))); ge += 10
        if bub:
            with k.cap() as f: k.sprinkle(fb, dm[ns + 1], 1, 5)
            fill.append((f, E1 - 1, E1 - 1))
        if L == 0:
            for n, g0, g1 in P['wl']: fill.append((s.takew(min(n, len(s.bw) - 8)), g0, g1))
            assert len(s.bw) == 8
        for g in P.get('gs', ()):
            with k.cap() as f: s.stamp(f'g{g}')
            fill.append((f, g, g))
        base, last = s.gemm(steps, fences)
        ne, e0, e1 = s.P['he'][L]; g4, gp, gc, g6 = s.P['hg'][L]
        s.hso = [s.SO(s, sT0), s.SO(s, sT0+2)]
        with k.cap() as f:
            with k.group():
                I(f's_add_u32 s{sT0+5}, s{sFOP}, {hex(FH - FO)}\ns_add_u32 s{sT0+6}, s{sFOC}, {hex(FH - FO)}')
                if ne: k.wait(th[3]); s.flag(sT0+5, 0, 7*L + 4)
            with k.group(): k.wait(th[5]); s.flag(sT0+5, 0, 7*L + 6)
            if ne:
                s.hpoll(); s.hcheck(7*L + 4)
                for i in range(ne): s.hld(i)
        for g, t0, t1 in s.P['ht'][L]:
            if g < 224:
                with k.cap() as ft: s.htouch(th[t1], t0, t1)
                fill.append((ft, g, g))
        fill.append((f[:1], g4, g4))
        if ne:
            assert all(e0 + (i*(e1 - e0 + 1))//ne >= 192 + i for i in range(ne)) and e0 >= gc > gp > g4
            fill += [(f[2:3], gp, gp), (f[3:4], gc, gc), (f[4:], e0, e1)]
        if g6 < 224: fill.append((f[1:2], g6, g6))
        k.weave(base, *fill)
        s.f6 = f[1:2]
        with k.cap() as s.fe6: s.th6 = s.gu_epi(L, 6)
        if not P['h0'] or s.stop == f'h{L}':
            k.wait(last); I('s_barrier'); k.put(s.fe6); s.fe6 = []
        s.stamp('gu')
        return s.stop == f'h{L}'

    @property
    def horder(s):
        h0, tl = s.P['h0'], s.P['tl']
        return ([(t, jj, rt2) for rt2 in range(2) for t in range(h0) for jj in range(4)] + [(t, jj, rt2) for t in range(h0, 7 - tl) for jj in range(4) for rt2 in range(2)]
                + [(t, jj, rt2) for rt2 in range(2) for t in range(7 - tl, 7) for jj in range(4)])
    def hld(s, i):
        t, jj, rt2 = s.horder[i]
        s.ld(s.hso[rt2], v(vXB + 4*(i % 32), 4), vL16, sHQ + jj, rt2*112*1024 + s.ord(s.L)[t]*1024, s.md('h'))
    def htouch(s, tok, t0, t1):
        with s.k.group():
            s.k.wait(tok)
            s.I(f'v_min_u32 v{vT3}, {8*(t1 - t0) + 7}, v0\nv_add_lshl_u32 v{vT3}, v{vT3}, {8*t0}, 7\nbuffer_load_dword v21, v{vT3}, {WS}, s{sHPUB} offen sc1')
    def hpoll(s): s.I(f'buffer_load_dword v{vT0}, v{vFO}, {WS}, s{sT0+6} offen sc1')
    def hcheck(s, p):
        D = s.label('HC')
        with s.k.group():
            s.check(vT0, p)
            s.I(f's_cbranch_vccz {D}')
            with s.k.cond(): s.poll(vFO, sT0+6, 0, p)
            s.I(f'{D}:')
    def down(s, L):
        I = s.I; k = s.k
        SR = s.gslot(L, 6); bB = 1 - L
        I(f'v_add_u32 v{vT1}, {hex(SR*0x8000)}, v{vREDW}')
        ne = s.P['he'][L][0]; p6, p7 = s.P['hp'][L]
        if not ne:
            s.poll(vFO, sT0+6, 0, 7*L + 6)
            s.flag(sT0+5, 0, 7*L + 7)
            s.stamp('h_ok')
        n = max(s.P['hf'], ne); hld = s.hld
        assert ne + n <= 48 and 32 < p7 < 48 and (not ne or n <= p6 < 32)
        for i in range(ne, n): hld(i)
        P = s.P; seen = set()
        def mm(i, ct):
            t, jj, rt2 = s.horder[i]; a = vACC + 32*rt2 + 16*ct
            I(f'v_mfma_f32_32x32x16_bf16 {v(a,16)}, {a_(aWD(jj, s.ord(L)[t], ct),4)}, {v(vXB+4*(i%32),4)}, {v(a,16) if a in seen else "0"}'); seen.add(a)
        with k.cap() as base:
            for i in range(56):
                mm(i, 0)
                if i < 52 or not P['tl']: mm(i, 1)
                if i in P.get('ds', ()): s.stamp(f'd{i}')
                if i == P['hg'][L][3] - 224: k.put(s.f6)
                if ne and i == (P['f7'][L] if P['h0'] else ne): k.wait(s.th6); s.flag(sT0+5, 0, 7*L + 7)
                if P['h0'] and i == P['bi'][L]: I('s_barrier')
                if i + n == p7 or ne and i + n == p6: s.hpoll()
                if ne and i + n == 32: s.hcheck(7*L + 6)
                if i + n == 48: s.hcheck(7*L + 7)
                if i + n < 56: hld(i + n)
                if L == 0:
                    w0, w1 = P['wd']; assert w0 + 7*w1 < 47
                    if i >= w0 and (i - w0) % w1 == 0: k.put(s.takew(1))
            if P['tl']:
                for i in range(52, 56): mm(i, 1)
        rw = []
        for q in range(4):
            with k.cap() as f: t = s.red_write(SR, q >> 1, q & 1)
            rw.append((f, *(((105, 106), (107, 108), (109, 111), (999, 999))[q] if P['tl'] else (999, 999))))
        k.weave(base, (s.fe6, 1, 8*P['h0'] - 1), *rw)
        s.stamp('dn_gemm')
        def after():
            for i in range(8): s.tok['K'] = I(f'ds_write_b128 v{vT0}, {a_(aKP + 4*i, 4)} offset:{i*1024}')
        s.red_finish(SR, True, L, bB, 2*L + 2, L == 1, [t, s.tRS], None, after)
        s.stamp('x2pub')
        return s.stop == f'x{2*L+2}'

    def gen(s):
        I = s.I
        for L in range(2):
            s.L = L; s.ring = 192 + 32*L
            if s.qkv(L) or s.wo(L) or s.gu(L) or s.down(L): break
        I(f's_or_b32 s64, s{sR}, s{sJ}\ns_or_b32 s64, s64, s{sW}\ns_cmp_lg_u32 s64, 0\ns_cbranch_scc1 M_FIN')
        with s.k.cond():
            I(f's_add_u32 s64, s{sE}, 1\nv_mov_b32 v{vT5}, s64\nbuffer_store_dword v{vT5}, v{vL0}, {WS}, 0 offen')
        I('M_FIN:')
        if s.ts:
            s.stamp('end')
            I('s_memrealtime s[78:79]\ns_waitcnt lgkmcnt(0)\nv_writelane_b32 v23, s78, 61')
            I(f'v_writelane_b32 v23, s{sLIM}, 62\nv_writelane_b32 v23, s{sSLOW}, 63')
            I(f's_lshl_b32 s64, s{sR}, 4\ns_add_u32 s64, s64, s{sJ}\ns_lshl_b32 s64, s64, 2\ns_add_u32 s64, s64, s{sW}\ns_lshl_b32 s64, s64, 8\ns_add_u32 s64, s64, {hex(TS)}')
            I(f'v_lshlrev_b32 v{vT0}, 2, v0\nbuffer_store_dword v23, v{vT0}, {WS}, s64 offen sc1')
        if s.P.get('wb'): I('s_waitcnt vmcnt(0)\nbuffer_wbl2 sc1\ns_waitcnt vmcnt(0)')
        if s.P.get('dbg'):
            I(f's_cmp_lg_u32 s2, {s.P.get("dwg", 0)}\ns_cbranch_scc1 DB_END\ns_cmp_lg_u32 s{sW}, 0\ns_cbranch_scc1 DB_END')
            with s.k.cond():
                I('v_readlane_b32 s65, v23, 0\nv_mov_b32 v24, 0')
                for n, i in enumerate(s.P['dbg']): I(f'v_readlane_b32 s66, v23, {i}\ns_sub_u32 s66, s66, s65\nv_writelane_b32 v24, s66, {n}')
                I(f'v_lshlrev_b32 v25, 2, v0\nbuffer_store_dword v24, v25, {DS}, 0 offen')
            I('DB_END:')
        dg = s.P.get('diag')
        if dg is not None:
            I(f's_cmp_lg_u32 s2, {s.P.get("dwg", 0)}\ns_cbranch_scc1 DG_END\ns_cmp_lg_u32 s{sW}, 0\ns_cbranch_scc1 DG_END')
            with s.k.cond():
                I('v_readlane_b32 s64, v23, 60\ns_add_u32 s64, s64, 10000')
                if dg == 'rt': I('v_readlane_b32 s65, v23, 60\nv_readlane_b32 s66, v23, 61\ns_sub_u32 s66, s66, s65\ns_lshl_b32 s66, s66, 2\ns_add_u32 s64, s64, s66')
                elif dg:
                    i = [n for n, nm in enumerate(s.tsnames) if nm == dg[0]][dg[1]]
                    I(f'v_readlane_b32 s65, v23, 0\nv_readlane_b32 s66, v23, {i}\ns_sub_u32 s66, s66, s65\ns_lshr_b32 s66, s66, 2\ns_min_u32 s66, s66, 100000\ns_add_u32 s64, s64, s66')
                gs = s.P.get('gstat')
                if gs:
                    i = 60 if gs[0] == 'start' else [n for n, nm in enumerate(s.tsnames) if nm == gs[0]][gs[1]]
                    I('s_sub_u32 s68, s64, 2500\ns_mov_b32 s67, 0\nDG_W:\ns_memrealtime s[78:79]\ns_waitcnt lgkmcnt(0)\ns_sub_u32 s66, s78, s68\ns_cmp_lt_u32 s66, 0x80000000\ns_cbranch_scc1 DG_W2')
                    I('s_add_u32 s67, s67, 1\ns_cmp_lt_u32 s67, 200000\ns_cbranch_scc1 DG_W\nDG_W2:')
                    I(f'v_lshlrev_b32 v25, 10, v0\nv_readlane_b32 s65, v23, 60')
                    for q in range(4):
                        I(f's_mov_b32 s66, {hex(TS + q*65536)}\nbuffer_load_dword v{32+q}, v25, {WS}, s66 offen offset:240 sc1\nbuffer_load_dword v{36+q}, v25, {WS}, s66 offen offset:{4*i} sc1')
                    I('s_waitcnt vmcnt(0)')
                    for q in range(8): I(f'v_subrev_u32 v{32+q}, s65, v{32+q}')
                    op = {'max': 'max_i32', 'min': 'min_i32', 'mean': 'add_u32'}[gs[2]]
                    for q in range(1, 4): I(f'v_min_i32 v32, v32, v{32+q}\nv_{op} v36, v36, v{36+q}')
                    I('v_readlane_b32 s68, v32, 0\nv_readlane_b32 s69, v36, 0\ns_mov_b32 s67, 1\nDG_R:\ns_nop 4\nv_readlane_b32 s70, v32, s67\nv_readlane_b32 s71, v36, s67\ns_nop 4')
                    I(f's_min_i32 s68, s68, s70\ns_{op} s69, s69, s71\ns_add_u32 s67, s67, 1\ns_cmp_lt_u32 s67, 64\ns_cbranch_scc1 DG_R')
                    if gs[2] == 'mean': I('s_ashr_i32 s69, s69, 8')
                    I('s_sub_u32 s69, s69, s68\ns_lshl_b32 s69, s69, 2\ns_min_u32 s69, s69, 100000\ns_add_u32 s64, s64, s69')
                I('s_mov_b32 s67, 0\nDG_L:\ns_memrealtime s[78:79]\ns_waitcnt lgkmcnt(0)\ns_sub_u32 s66, s78, s64\ns_cmp_lt_u32 s66, 0x80000000\ns_cbranch_scc1 DG_END')
                I('s_add_u32 s67, s67, 1\ns_cmp_lt_u32 s67, 200000\ns_cbranch_scc1 DG_L')
            I('DG_END:')
        I('s_waitcnt vmcnt(0)\nM_END:\ns_endpgm')
        return s.k

HEADER = open('cdna_kernels/' + NAME + '.s.ref').read().split('; Override')[0] if __name__ == '__main__' else ''

def build(stop=None, ts=False, header='', **kw):
    st = {}
    m = Main(stop, ts, **kw)
    main = m.gen().finish(st)
    txt = header
    ls = kw.get('lst', 0)
    if ls == 2: txt += '; @launch kernel=pre_kernel grid=(256,1,1) block=(64,1,1) lds=0\n'
    txt += f'; @launch {"kernel=" + NAME + "_kernel " if ls else ""}grid=(256,1,1) block=(256,1,1) lds={LDS_MAIN}\n'
    if ls == 3: txt += '; @launch kernel=pre_kernel grid=(256,1,1) block=(64,1,1) lds=0\n'
    txt += '.amdgcn_target "amdgcn-amd-amdhsa--gfx950"\n.text\n'
    if ls > 1: txt += head('pre_kernel') + 's_endpgm\n' + kd('pre_kernel', 8, 8, 16)
    txt += head(NAME + '_kernel') + main + '\nCODE_END:\n'
    txt += kd(NAME + '_kernel', 512, 256)
    return txt, (st, m.tsnames)

if __name__ == '__main__':
    txt, st = build(header=HEADER)
    out = sys.argv[1] if len(sys.argv) > 1 else 'cdna_kernels/' + NAME + '.s'
    open(out, 'w').write(txt); print(st, len(txt))
```

```python
import sys, contextlib
from asm import Asm, Ins
NAME = 'interleave_layers__linear_kernel_hedgehog__glu_gated_reglu__prompt'

FX, FO, FH, FU, S0 = 0x2000, 0x4000, 0x6000, 0x30000, 0x10000
CS = 0x20000
ST = 0x40000
XB = (0x200000, 0x400000)
KVP = 0x600000
KVZ = 0x680000
HB = 0x800000
WQKV, WO_P, WD_P, WGU = 0x1000000, 0x1180000, 0x1200000, 0x1400000
TS = 0x2000000
WS_SIZE = 0x10000000
OOB = 0x7ffffff0
XA = 0x20000; PS = 2112
KVA = 0x26400; ZA = 0x26C00; ZERO = 0x26D00; RS = 0x27100
SUMS = (0x27400, 0x27600, 0x27C00, 0x27E00); WPH = 0x27800
LDS_MAIN = 163840

def v(a, n=1): return f'v{a}' if n == 1 else f'v[{a}:{a+n-1}]'
def a_(a, n=1): return f'a{a}' if n == 1 else f'a[{a}:{a+n-1}]'
def s_(a, n=1): return f's{a}' if n == 1 else f's[{a}:{a+n-1}]'

def kd(name, vgpr, acc, sgpr=102):
    return f'''.section .rodata,"a"
.p2align 6
.amdhsa_kernel {name}
  .amdhsa_next_free_vgpr {vgpr}
  .amdhsa_next_free_sgpr {sgpr}
  .amdhsa_accum_offset {acc}
  .amdhsa_group_segment_fixed_size 0
  .amdhsa_kernarg_size 88
  .amdhsa_user_sgpr_count 2
  .amdhsa_user_sgpr_kernarg_segment_ptr 1
  .amdhsa_system_sgpr_workgroup_id_x 1
.end_amdhsa_kernel
.text
'''
def head(name):
    return f'.globl {name}\n.p2align 8\n.type {name},@function\n{name}:\n'

def srd(I, d, b, size):
    I(f's_mov_b32 s{d}, s{b}\ns_mov_b32 s{d+1}, s{b+1}\ns_mov_b32 s{d+2}, {hex(size)}\ns_mov_b32 s{d+3}, 0x20000')

WS, XS, OS, DS = 's[8:11]', 's[12:15]', 's[16:19]', 's[20:23]'
sW, sG, sRK, sR, sJ, sHB, sCG, sTAG, sE, sLIM = 24, 25, 26, 27, 28, 29, 30, 31, 32, 33
sQKV, sGU, sWO, sWD = 34, 35, 36, 37
sXIN, sXO, sXPUB, sSTIN, sSTPUB = 38, 39, 40, 41, 42
sHPUB, sHIN, sFXC, sFXP, sFOC, sFOP, sKVP, sKVC, sNAT, sM0 = 43, 44, 45, 46, 47, 48, 49, 50, 51, 52
sSELLO, sSELHI, sONES, sLOG2E, sOM, sSLOW, sMARK = 53, 54, 55, 56, 57, 58, 59
sT0 = 60
QS, US, PS_, DS2, CSRD = 's[80:83]', 's[84:87]', 's[88:91]', 's[72:75]', 's[4:7]'
sPO, sWM, sXB, sXM, sUB, sUST, sUD = 92, 96, 97, 98, 99, 100, 101
sHQ, sWQ = 72, 80
sUKC, sUCS, sUB2, sUD2 = 76, 77, 88, 89
vW0, vX0, vU0, vWR, vXR, vSW, vSR, vWW = 32, 34, 36, 38, 40, 44, 45, 46
vUR, vUD = 40, 42
vMU, vMK = 20, 22
vROW = 240
vL, vL16, vL16b, vFX, vFO, vL0, vSTL, vPUB, vPHW, vTRA, vTRB, vKVW, vZW, vKVR, vZR, vREDW, vNAT, vSTW, vRSW, vRSR = range(20)
vRSTD, vC, vT0, vT1, vT2, vT3, vT4, vT5 = range(24, 32)
vRES = 32; vTMP = 48; vACC = 64; vXB = 128; aKP = 224
def aWD(jj, t, ct): return 4*((12*jj + 2*t if t < 6 else 48 + 2*jj) + ct)

P0 = dict(xf=8, hf=10, uf='nt', xnt='', rnt='nt', ct=1, k0=20, kn=3, ko=range(9),
          sp=(0, 0, 1), xa=6, xe=8, tp=('', 10, 18), xb=4, xc=4, xd=1, xr=2.5, ug=0, kq=((50, 8), (2, 12), (110, 4)), fg=-30, fup=1, sl=12, oq=((0, 6), (0, 12)), ot=(0, 0), on=(4, 0), oe=35, og=(4, 13), tw=('Xf', ''), twp=(7, 1),
          t1=(0, 6), t2=(4, 4), t3=(4, 6), t4=(8, 4), late=(1, 1), w2=0, w3=8, w4=2, n1=(2, 2), ub=4, qw=0, qo=0, up=7, rl=1, f1p=(0, 0, 1), uc=12, f1=(27, 30), oh=28, po=(), fe=0, w1=0, ue=0, uw=(2, 4, 15, 0, 15), vm=0, tq=('', ''), tz=('', ''), h0=1, f7=(17, 17), bi=(40, 40), fb=0, o1=(5, 4, 6, 3, 2, 1, 0), fd=((71, 88), (89, 106), (121, 150)), tr=(40, 60), tl=1, t1l=3, wa=0, kf=(0, 0), ta=0, tb=(0, 0, 24), op=0, wd=(10, 5), kw=(8, 4), kp=(2, 16),
          wl=((8, 44, 60), (11, 64, 92), (7, 108, 124), (7, 140, 156), (7, 172, 188)), dl=(14, 31),
          he=((12, 201, 223), (12, 201, 223)), hg=((175, 188, 200, 219), (175, 188, 200, 219)), hp=((22, 38), (22, 38)), ht=((), ()), ws=0, tk=('', 'xf'), tkg=(59, 60), hm=('sc1', 'sc1'), om='', nt=('', ''), tg=((('XSf', 190),), (('f', 190),)), to=('xs', ''))
WOX = (0x18000, 0x8000)
class Main:
    def __init__(s, stop=None, ts=False, **kw):
        s.k = Asm(); s.I = s.k.I; s.stop = stop; s.ts = ts; s.nl = 0; s.nts = 0; s.tsnames = []; s.bg = []; s.m0dirty = False; s.bw = []; s.tok = {}; s.P = dict(P0); s.P.update(kw)
    def md(s, key, d='sc1'): return d + (' nt' if str(key) in s.P['nt'][s.L] else '')
    def label(s, p):
        s.nl += 1; return f'{p}_{s.nl}'
    def stamp(s, name):
        if not s.ts or s.ts == 2 and name != 'end' or name in s.P.get('nos', ()): return
        r = 80 + 2*(s.nts % 10)
        s.tsnames.append(name)
        with s.k.group():
            s.I(f's_mem{"real" if s.P.get("gstat") else ""}time s[78:79]\ns_waitcnt lgkmcnt(0)\nv_writelane_b32 v23, s78, {s.nts}')
        s.nts += 1
    class SO:
        def __init__(o, m, tmp): o.m = m; o.tmp = tmp; o.key = None
        def get(o, base, off):
            hi = off & ~4095; lo = off & 4095
            if hi == 0: return f's{base}', lo
            if o.key != (base, hi):
                o.m.I(f's_add_u32 s{o.tmp}, s{base}, {hex(hi)}'); o.key = (base, hi)
            return f's{o.tmp}', lo
    def ld(s, so, dst, voff, base, off, mod='', op='buffer_load_dwordx4', srdn=WS):
        with s.k.group():
            r, lo = so.get(base, off)
            t = s.I(f'{op} {dst}, v{voff}, {srdn}, {r} offen' + (f' offset:{lo}' if lo else '') + (' ' + mod if mod else ''))
        return t
    def pub(s, t):
        t.alt = (f's{sSLOW}', t.text + ' sc1'); return t
    def dma_tile(s, so, base, off, slot, mod):
        t = None
        for h in range(2):
            for i in range(4):
                with s.k.group():
                    if i == 0:
                        s.I(f's_add_u32 m0, s{sM0}, {hex(slot*0x8000 + h*4096)}')
                        s.I(f's_add_u32 s{so}, s{base}, {hex(off + h*4096)}')
                    t = s.I(f'buffer_load_dwordx4 v{vL16}, {WS}, s{so} offen' + (f' offset:{i*1024}' if i else '') + f' {mod} lds')
        return t
    def bg_tile(s, key, base, off, slot):
        with s.k.cap() as f: s.tok[key] = s.dma_tile(sT0+1, base, off, slot, s.md(key))
        if (s.L, key) in s.P.get('st', ()): s.tok[key] = None; return
        s.bg += f
    def take(s, n):
        r = s.bg[:n]; s.bg = s.bg[n:]
        if r and len(r[0]) == 1 and s.m0dirty: r[0] = [Ins(x.text) for x in s.setup] + r[0]
        if r: s.m0dirty = False
        for g in r:
            if len(g) == 3: s.setup = g[:2]
        return r
    def takew(s, n):
        r = s.bw[:n]; s.bw = s.bw[n:]; return r
    def check(s, vt, p):
        s.I(f's_add_u32 s{sT0+8}, s{sTAG}, {p}\nv_subrev_u32 v{vt}, s{sT0+8}, v{vt}\nv_cmp_lt_u32 vcc, 15, v{vt}')
    def poll(s, voff, sbase, off, p, vt=vT0):
        I = s.I; L = s.label('POLL'); D = s.label('PD')
        I(f's_mov_b32 s{sT0+9}, 0')
        I(f'{L}:')
        I(f'buffer_load_dword v{vt}, v{voff}, {WS}, s{sbase} offen' + (f' offset:{off}' if off else '') + ' sc1')
        I('s_waitcnt vmcnt(0)')
        s.check(vt, p)
        I(f's_cbranch_vccz {D}')
        with s.k.cond():
            I(f's_add_u32 s{sT0+9}, s{sT0+9}, 1\ns_cmp_lt_u32 s{sT0+9}, s{sLIM}\ns_cbranch_scc1 {L}\ns_mov_b32 s{sLIM}, 1')
        I(f'{D}:')
    def flag(s, sbase, off, p):
        with s.k.group():
            s.I(f's_add_u32 s{sT0+10}, s{sTAG}, {p}\nv_mov_b32 v{vT5}, s{sT0+10}')
            s.pub(s.I(f'buffer_store_dword v{vT5}, v{vL0}, {WS}, s{sbase} offen' + (f' offset:{off}' if off else '')))
    def tX(s, buf, t=vT3):
        with s.k.group():
            s.I(f's_lshl_b32 s{sT0+11}, s{sJ}, 11\ns_add_u32 s{sT0+11}, s{sT0+11}, s{sXIN}' + (f'\ns_add_u32 s{sT0+11}, s{sT0+11}, 0x200000' if buf else ''))
            s.I(f'v_lshlrev_b32 v{t}, 5, v{vFX}\nbuffer_load_dword v21, v{t}, {WS}, s{sT0+11} offen sc1')
    def tS(s, buf, t=vT3):
        with s.k.group():
            if s.P['t1l'] & 1:
                s.I(f's_lshl_b32 s{sT0+11}, s{sJ}, 7\ns_add_u32 s{sT0+11}, s{sT0+11}, s{sSTIN}' + (f'\ns_add_u32 s{sT0+11}, s{sT0+11}, 0x20000' if buf else ''))
                s.I(f'buffer_load_dword v21, v{vL0}, {WS}, s{sT0+11} offen sc1')
                return
            if buf: s.I(f's_add_u32 s{sT0+11}, s{sSTIN}, 0x20000')
            s.I(f'v_lshlrev_b32 v{t}, 5, v{vFX}\nbuffer_load_dword v21, v{t}, {WS}, s{sT0+11 if buf else sSTIN} offen sc1')
    def tF(s, t=vT3):
        with s.k.group():
            if s.P['t1l'] & 2:
                s.I(f's_and_b32 s{sT0+11}, s{sJ}, 3\ns_lshl_b32 s{sT0+11}, s{sT0+11}, 13\ns_add_u32 s{sT0+11}, s{sT0+11}, s{sFXC}')
                s.I(f'buffer_load_dword v21, v{vL0}, {WS}, s{sT0+11} offen sc1')
                return
            s.I(f'v_and_b32 v{t}, 3, v0\nv_lshlrev_b32 v{t}, 13, v{t}\nbuffer_load_dword v21, v{t}, {WS}, s{sFXC} offen sc1')
    def tH(s, t=vT3):
        with s.k.group():
            s.I(f'v_min_u32 v{t}, 55, v0\nv_lshlrev_b32 v{t}, 7, v{t}\nbuffer_load_dword v21, v{t}, {WS}, s{sHPUB} offen sc1')
    def tG(s, d, t):
        o = s.ord(s.L); a, b = sorted((o[d], o[min(d + 1, 6)]))
        with s.k.group():
            s.I(f's_and_b32 s{sT0+11}, s{sR}, 1\ns_lshl_b32 s{sT0+11}, s{sT0+11}, 12\ns_add_u32 s{sT0+11}, s{sT0+11}, s{sGU}\ns_add_u32 s{sT0+11}, s{sT0+11}, {hex(a*0x8000)}')
            if a == b: s.I(f'v_and_b32 v{t}, 31, v0\nv_lshlrev_b32 v{t}, 7, v{t}')
            else: s.I(f'v_and_b32 v{t}, 32, v0\nv_mul_u32_u24 v{t}, {hex((b - a)*8 - 1)}, v{t}\nv_add_lshl_u32 v{t}, v{t}, v0, 7')
            s.I(f'buffer_load_dword v21, v{t}, {WS}, s{sT0+11} offen sc1')
    def tW(s, h, t):
        with s.k.group():
            s.I(f's_lshr_b32 s{sT0+11}, s{sRK}, 3\ns_lshl_b32 s{sT0+11}, s{sT0+11}, 7\ns_add_u32 s{sT0+11}, s{sT0+11}, s{sWD}' + (f'\ns_add_u32 s{sT0+11}, s{sT0+11}, 28672' if h else ''))
            s.I(f'v_min_u32 v{t}, 55, v0\nv_lshlrev_b32 v{t}, 9, v{t}\nbuffer_load_dword v21, v{t}, {WS}, s{sT0+11} offen sc1')
    def touches(s, names, t=vT3):
        with s.k.cap() as f:
            for n in names:
                if n.isdigit(): s.tG(int(n), t); continue
                if n in 'wW': s.tW(n == 'W', t); continue
                {'x': lambda: s.tX(0, t), 'X': lambda: s.tX(1, t), 's': lambda: s.tS(0, t), 'S': lambda: s.tS(1, t), 'f': lambda: s.tF(t), 'h': lambda: s.tH(t)}[n]()
        return f
    def ldsA(s, slot, kc):
        a = slot*0x8000 + kc*1024
        return (vL16, a) if a < 0x10000 else (vL16b, a - 0x10000)
    def gemm(s, steps, fences={}, LA=6):
        I = s.I; n = len(steps); nr = 0; last = None; aRING = s.ring
        blocked = sorted((f[0], g) for g, f in fences.items())
        def limit(i):
            for st, g in blocked:
                if g > i: return st
            return n
        def rd():
            nonlocal nr, last
            vr, off = s.ldsA(steps[nr][0], steps[nr][1])
            last = I(f'ds_read_b128 {a_(aRING + 4*(nr % 8), 4)}, v{vr} offset:{off}'); nr += 1
        with s.k.cap() as base:
            while nr < min(LA, limit(-1)): rd()
            for i, (slot, kc, acc, first) in enumerate(steps):
                assert nr > i
                I(f'v_mfma_f32_32x32x16_bf16 {v(acc,16)}, {a_(aRING + 4*(i % 8), 4)}, {v(vXB+4*kc,4)}, {"0" if first else v(acc,16)}')
                if i in fences:
                    if len(fences[i]) == 2:
                        assert nr == fences[i][0], (nr, i, fences[i])
                        s.k.wait(last)
                    s.k.wait(*fences[i][1]); I('s_barrier')
                c = 0
                while nr < min(i + 1 + LA, limit(i), n) and c < 2: rd(); c += 1
        return base, last

    def init0(s):
        I = s.I; k = s.k
        I('s_cmp_ge_u32 s2, 256\ns_cbranch_scc1 M_END')
        I('s_load_dwordx2 s[80:81], s[0:1], 8\ns_load_dwordx2 s[88:89], s[0:1], 16\ns_load_dwordx2 s[12:13], s[0:1], 0')
        if s.ts:
            I('s_memtime s[78:79]\ns_memrealtime s[70:71]'); s.tsnames.append('start'); s.nts = 1
        I(f's_lshr_b32 s{sRK}, s2, 3')
        if s.P['ct']:
            I(f's_getpc_b64 s[4:5]\nPC0:\nv_lshrrev_b32 v2, 4, v0\nv_lshl_add_u32 v2, s{sRK}, 4, v2\nv_lshlrev_b32 v2, 7, v2\nv_min_u32 v2, CODE_END-PC0-4, v2')
            I(f'v_mov_b32 v3, s5\nv_add_co_u32 v2, vcc, s4, v2\nv_addc_co_u32 v3, vcc, 0, v3, vcc\nglobal_load_dword v21, v[2:3], off')
        I(f'v_lshrrev_b32 v1, 6, v0\nv_and_b32 v0, 63, v0\nv_readfirstlane_b32 s{sW}, v1')
        I(f's_mov_b32 s82, {hex(512*3072)}\ns_mov_b32 s83, 0x20000\ns_lshr_b32 s64, s{sRK}, 4')
        I(f's_and_b32 s{sJ}, s{sRK}, 15\ns_and_b32 s{sCG}, s{sJ}, 7\ns_lshl_b32 s{sM0}, s{sW}, 13')
        I(f's_lshl_b32 s65, s64, 11\ns_add_u32 s{sWM}, s65, s{sM0}')
        I(f's_lshl_b32 s65, s{sCG}, 1\ns_lshl_b32 s66, s{sW}, 2\ns_xor_b32 s65, s65, s66\ns_or_b32 s67, s64, s65')
        I(f's_lshl_b32 s65, s{sJ}, 6\ns_mul_i32 s66, s67, {32*3072}\ns_add_u32 s{sPO}, s66, s65')
        I(f'v_lshrrev_b32 v48, 2, v0\nv_and_b32 v49, 3, v0\nv_lshrrev_b32 v51, 4, v0\nv_xor_b32 v49, v49, v51\nv_lshlrev_b32 v49, 4, v49')
        I(f'v_mul_u32_u24 v{vW0}, 3072, v48\nv_add_u32 v{vW0}, v{vW0}, v49\nv_add_u32 v{vW0+1}, {16*3072-1024}, v{vW0}')
        I('s_waitcnt lgkmcnt(0)')
        s.wdma(0, 0, 1024)
        I('s_load_dwordx2 s[8:9], s[0:1], 80\ns_load_dwordx2 s[16:17], s[0:1], 64\ns_load_dwordx2 s[20:21], s[0:1], 72')
        I('s_load_dwordx4 s[40:43], s[0:1], 40\ns_load_dwordx2 s[72:73], s[0:1], 56')
        I('s_load_dwordx2 s[6:7], s[0:1], 24')
        I(f's_mov_b32 s90, {hex(32*512)}\ns_mov_b32 s91, 0x20000\nv_lshlrev_b32 v{vL16}, 4, v0\ns_lshl_b32 s66, s{sJ}, 10\ns_mov_b32 m0, {hex(WPH)}')
        s.tok['P'] = I(f'buffer_load_dwordx4 v{vL16}, {PS_}, s66 offen lds')
        s.wdma(0, 1, 2048)
        I(f's_and_b32 s{sG}, s2, 7\ns_lshl_b32 s{sR}, s{sG}, 1\ns_add_u32 s{sR}, s{sR}, s64\ns_mov_b32 s14, {hex(2048*1024)}\ns_mov_b32 s15, 0x20000')
        I(f's_lshl_b32 s64, s{sR}, 17\ns_lshl_b32 s66, s{sJ}, 13\ns_add_u32 s64, s64, s66\ns_lshl_b32 s66, s{sW}, 11\ns_add_u32 s64, s64, s66')
        I(f'buffer_load_dwordx4 {v(vROW,4)}, v{vL16}, {XS}, s64 offen {s.P["rnt"]}\nbuffer_load_dwordx4 {v(vROW+4,4)}, v{vL16}, {XS}, s64 offen offset:1024 {s.P["rnt"]}')
        if s.ts: I('v_mov_b32 v23, 0\nv_writelane_b32 v23, s78, 0\nv_writelane_b32 v23, s70, 60')
        s.stamp('r1')
        if s.P.get('lat'):
            for n in (7, 6, 5, 4, 3, 2, 0): I(f's_waitcnt vmcnt({n})'); s.stamp(f'vm{n}')
        for p in range(1, 4): I(f's_xor_b32 s66, s67, {p}\ns_mul_i32 s66, s66, {32*3072}\ns_add_u32 s{sPO+p}, s66, s65')
        for d, size in ((8, WS_SIZE), (16, 2048*1024), (20, 256)):
            I(f's_mov_b32 s{d+2}, {hex(size)}\ns_mov_b32 s{d+3}, 0x20000')
        I(f's_lshr_b32 s{sHB}, s{sJ}, 3')
        I(f's_lshl_b32 s64, s{sR}, 2\ns_add_u32 s64, s64, s{sW}\ns_lshl_b32 s64, s64, 15\ns_lshl_b32 s65, s{sCG}, 7\ns_or_b32 s64, s64, s65\ns_lshl_b32 s65, s{sHB}, 14\ns_or_b32 s{sXB}, s64, s65')
        I(f's_lshl_b32 s65, s{sHB}, 11\ns_or_b32 s{sXM}, s65, s{sM0}')
        I(f'v_and_b32 v50, 7, v0\nv_lshlrev_b32 v53, 4, v50\nv_xor_b32 v50, v50, v51\nv_lshlrev_b32 v50, 4, v50\nv_lshrrev_b32 v52, 3, v0\nv_lshl_or_b32 v{vX0}, v52, 10, v50')
        I(f'v_xor_b32 v{vX0+1}, 64, v{vX0}\nv_add_u32 v{vX0+1}, {8192-1024}, v{vX0+1}')
    def wdma(s, p, slot, col):
        with s.k.group():
            s.I(f's_xor_b32 m0, s{sWM}, {hex(slot*0x8000 + p*2048)}\ns_add_u32 s{sT0+1}, s{sPO+p}, {col}')
            s.I(f'buffer_load_dwordx4 v{vW0}, {QS}, s{sT0+1} offen lds')
            return s.I(f'buffer_load_dwordx4 v{vW0+1}, {QS}, s{sT0+1} offen offset:1024 lds')
    def udma(s, i):
        with s.k.group():
            s.I(f's_add_u32 m0, s{sM0}, {hex(0x18000 + i*1024)}')
            if i < 4:
                t = s.I(f'buffer_load_dwordx4 v{vU0}, {US}, s{sUB} offen {s.P["uf"]} lds')
                if i < 3: s.I(f's_add_u32 s{sUB}, s{sUB}, {8*3584}')
            else:
                t = s.I(f'buffer_load_dwordx4 v{vU0+1}, {DS2}, s{sUB2} offen {s.P["uf"]} lds')
                if i < 5: s.I(f's_add_u32 s{sUB2}, s{sUB2}, 8192')
            return t
    def xreg(s, c): return (2 + (c >> 1 & 1))*0x8000 + (c & 1)*4096
    def xdma(s, c, p):
        with s.k.group():
            s.I(f's_xor_b32 m0, s{sXM}, {hex(s.xreg(c) + p*2048)}\ns_xor_b32 s{sT0+1}, s{sXB}, {hex(c*128 + p*16384)}')
            s.I(f'buffer_load_dwordx4 v{vX0}, {XS}, s{sT0+1} offen {s.P["xnt"]} lds')
            return s.I(f'buffer_load_dwordx4 v{vX0+1}, {XS}, s{sT0+1} offen offset:1024 {s.P["xnt"]} lds')
    def unit(s):
        I = s.I; k = s.k
        I(f's_lshr_b32 s64, s2, 6\ns_and_b32 s65, s2, 63\ns_and_b32 s66, s2, 7')
        I(f's_lshr_b32 s67, s{sW}, 1\ns_lshl_b32 s67, s67, 2\ns_and_b32 s68, s{sW}, 1\ns_or_b32 s67, s67, s68\ns_lshl_b32 s67, s67, 8')
        I(f's_mov_b32 s87, 0x20000\ns_mov_b32 s75, 0x20000')
        with k.group(): I(f's_cmp_lt_u32 s65, 56\ns_cselect_b32 s74, {hex(1792*1024)}, 0\ns_cselect_b32 s68, 0, 0x70000000')
        I(f's_mov_b32 s86, s74\ns_mul_i32 s70, s64, 7\ns_lshr_b32 s71, s65, 3\ns_add_u32 s70, s70, s71')
        I(f's_lshl_b32 s{sUB2}, s70, 16\ns_lshl_b32 s71, s{sW}, 14\ns_add_u32 s{sUB2}, s{sUB2}, s71\ns_lshl_b32 s71, s66, 7\ns_add_u32 s{sUB2}, s{sUB2}, s71')
        I(f's_mul_i32 s{sUD2}, s66, {224*1024}\ns_lshl_b32 s70, s70, 13\ns_add_u32 s{sUD2}, s{sUD2}, s70\ns_add_u32 s67, s67, s68\ns_add_u32 s{sUD2}, s{sUD2}, s67\ns_add_u32 s{sUD2}, s{sUD2}, {hex(WD_P)}')
        with k.group(): I(f's_cmp_ge_u32 s65, 28\ns_cselect_b32 s84, s42, s40\ns_cselect_b32 s85, s43, s41\ns_cselect_b32 s70, 28, 0\ns_cselect_b32 s71, 1, 0')
        I(f's_sub_u32 s65, s65, s70\ns_lshl_b32 s{sUB}, s65, 7\ns_lshl_b32 s65, s65, 2\ns_add_u32 s65, s65, s{sW}')
        I(f's_lshl_b32 s69, s64, 2\ns_add_u32 s69, s69, s{sW}\ns_mul_i32 s69, s69, {32*3584}\ns_add_u32 s{sUB}, s{sUB}, s69')
        I(f's_lshl_b32 s{sUD}, s65, 15\ns_lshl_b32 s70, s64, 13\ns_add_u32 s{sUD}, s{sUD}, s70\ns_lshl_b32 s70, s71, 8\ns_add_u32 s70, s70, s68\ns_add_u32 s{sUD}, s{sUD}, s70\ns_add_u32 s{sUD}, s{sUD}, {hex(WGU)}')
        I(f's_mul_i32 s64, s64, 112\ns_add_u32 s64, s64, s65\ns_lshl_b32 s64, s64, 1\ns_add_u32 s64, s64, s71\ns_lshl_b32 s64, s64, 6\ns_add_u32 s64, s64, s68\ns_add_u32 s{sUCS}, s64, {hex(CS)}')
        I(f'v_mul_u32_u24 v{vU0}, 3584, v52\nv_add_u32 v{vU0}, v{vU0}, v53\nv_lshl_or_b32 v{vU0+1}, v52, 10, v53')
    def uaddr(s):
        I = s.I; t0, t1 = vT2, vT4
        I(f'v_bfe_u32 v{t0}, v0, 2, 2\nv_lshrrev_b32 v{t1}, 5, v0\nv_lshl_or_b32 v{t0}, v{t1}, 3, v{t0}\nv_lshlrev_b32 v{vUR}, 7, v{t0}')
        I(f'v_lshlrev_b32 v{vUD}, 2, v{vFX}\nv_lshl_or_b32 v{vUD}, v{t1}, 9, v{vUD}')
        I(f'v_and_b32 v{t0}, 1, v0\nv_lshl_or_b32 v{vUR}, v{t0}, 4, v{vUR}\nv_bfe_u32 v{t0}, v0, 1, 1\nv_lshl_or_b32 v{vUR}, v{t0}, 3, v{vUR}')
        with s.k.group(): I(f's_lshl_b32 s{sT0+3}, s{sW}, 5\ns_add_u32 s{sT0+3}, s{sT0+3}, 0x18000\nv_add_u32 v{vUR}, s{sT0+3}, v{vUR}')
        I(f'v_bfe_u32 v{t0}, v0, 4, 1\nv_lshl_or_b32 v{vUR+1}, v{t0}, 13, v{vUR}\nv_lshl_or_b32 v{vUR}, v{t0}, 11, v{vUR}')
        I(f'v_lshl_or_b32 v{vUD+1}, v{t0}, 11, v{vUD}\nv_lshl_or_b32 v{vUD}, v{t0}, 10, v{vUD}')
    def uproc(s):
        I = s.I; k = s.k; d = 64; v = globals()['v']
        if s.P['ue']: d = 96; v = a_
        for n, r in (('a', sUD), ('b', sUD2), ('c', sUCS)):
            if n in s.P.get('nou', ''): I(f's_mov_b32 s{r}, 0x70000000')
        with k.group():
            k.wait(s.tok['U'])
            if s.P.get('xs'): s.stamp('u_ok')
            I('s_barrier')
        for q in range(6):
            with k.group():
                for r in range(2):
                    if q < 4: t = I(f'ds_read_b64_tr_b16 {v(d+4*q+2*r,2)}, v{vUR} offset:{q*8192 + r*512}')
                    else: t = I(f'ds_read_b64_tr_b16 {v(d+4*q+2*r,2)}, v{vUR+1} offset:{(q-4)*16384 + 4096 + r*512}')
        with k.group(): k.wait(t); I('s_barrier')
        for q in range(6):
            with k.group():
                if q < 4:
                    I(f'v_mfma_f32_16x16x32_bf16 {v(d+24,4)}, a[64:67], {v(d+4*q,4)}, {"0" if q == 0 else v(d+24,4)}')
                    I(f'buffer_store_dwordx4 {v(d+4*q,4)}, v{vUD}, {WS}, s{sUD} offen' + (' offset:2048' if q & 1 else '') + ' sc1')
                    if q == 1: I(f's_add_u32 s{sUD}, s{sUD}, 4096')
                else:
                    I(f'buffer_store_dwordx4 {v(d+4*q,4)}, v{vUD+1}, {WS}, s{sUD2} offen sc1')
                    if q < 5: I(f's_add_u32 s{sUD2}, s{sUD2}, 4096')
        return I(f'buffer_store_dword {"av"[not s.P["ue"]]}{d+24}, v{vFX}, {WS}, s{sUCS} offen sc1')
    def meanop(s, d, m, t):
        I = s.I
        I(f'v_cvt_pk_bf16_f32 v{d}, -v{m}, -v{m}\nv_and_b32 v{t}, 0xffff0000, v{d}\nv_sub_f32 v{t}, -v{m}, v{t}\nv_cvt_pk_bf16_f32 v{t}, v{t}, v{t}')
        with s.k.group(): I(f'v_cmp_gt_u32 vcc, 32, v0\nv_cndmask_b32 v{d}, v{t}, v{d}, vcc')
    def finit(s):
        I = s.I; k = s.k
        n, hf, sw, b2, t0, t1, t2 = 50, 51, 52, 53, 54, 55, 56
        I(f'v_and_b32 v{n}, 31, v0\nv_lshrrev_b32 v{hf}, 5, v0\nv_bfe_u32 v{b2}, v0, 2, 1\nv_bfe_u32 v{t0}, v0, 3, 1')
        I(f'v_and_b32 v{sw}, 19, v{n}\nv_lshl_or_b32 v{sw}, v{b2}, 3, v{sw}\nv_lshl_or_b32 v{sw}, v{t0}, 2, v{sw}')
        I(f'v_lshl_or_b32 v{t0}, v{b2}, 1, v{t0}\nv_xor_b32 v{t0}, v{t0}, v{hf}\nv_lshlrev_b32 v{t0}, 4, v{t0}\nv_lshl_or_b32 v{t0}, v{sw}, 6, v{t0}')
        I(f'v_add_u32 v{vWR}, s{sM0}, v{t0}\nv_xor_b32 v{vWR+1}, 32, v{vWR}\nv_add_u32 v{vWW}, s{sM0}, v{vL16}')
        I(f'v_bfe_u32 v{t0}, v0, 1, 3\nv_xor_b32 v{t0}, v{t0}, v{hf}\nv_lshlrev_b32 v{t0}, 4, v{t0}\nv_lshl_or_b32 v{t0}, v{n}, 7, v{t0}')
        I(f's_add_u32 s64, s{sM0}, 0x10000\nv_add_u32 v{vXR}, s64, v{t0}')
        for q in range(1, 4): I(f'v_xor_b32 v{vXR+q}, {32*q}, v{vXR}')
        I(f'v_lshlrev_b32 v{t0}, 4, v{n}\nv_add_u32 v{vSR}, 0x20000, v{t0}\ns_lshl_b32 s64, s{sW}, 2\nv_add_u32 v{vSW}, s64, v{vSR}')
        I(f'v_bfe_u32 v{t1}, v0, 4, 1')
        I(f'v_and_b32 v{t0}, 1, v0\nv_lshlrev_b32 v{t0}, 9, v{t0}\nv_lshl_or_b32 v{t0}, v{hf}, 8, v{t0}\nv_bfe_u32 v{t2}, v0, 2, 2\nv_lshl_or_b32 v{t0}, v{t2}, 5, v{t0}')
        I(f'v_lshl_or_b32 v{t0}, v{t1}, 4, v{t0}\nv_bfe_u32 v{t2}, v0, 1, 1\nv_lshl_or_b32 v{t0}, v{t2}, 3, v{t0}\nv_add_u32 v57, {hex(WPH)}, v{t0}')
        I(f'v_lshrrev_b32 v{t0}, 3, v{n}\nv_and_b32 v{t1}, 3, v{n}\nv_lshl_or_b32 v{t0}, v{t0}, 2, v{t1}\nv_lshl_or_b32 v{t0}, v{b2}, 4, v{t0}')
        I(f'v_mov_b32 v58, 0x3f80')
        for d, cm in ((64, t0),):
            I(f'v_lshlrev_b32 v{t1}, 3, v{hf}\nv_sub_u32 v{t1}, v{cm}, v{t1}\nv_and_b32 v{t2}, 1, v{t1}\nv_lshlrev_b32 v{t2}, 4, v{t2}\nv_lshlrev_b32 v{t2}, v{t2}, v58\nv_ashrrev_i32 v{t1}, 1, v{t1}')
            for p in range(2):
                for r in range(4): I(f'v_cmp_eq_u32 vcc, {8*p+r}, v{t1}\nv_cndmask_b32 v{d+4*p+r}, 0, v{t2}, vcc')
        for r in range(8): I(f'v_accvgpr_write_b32 a{r}, v{64+r}')
        for r in range(4): I(f'v_accvgpr_write_b32 a{64+r}, s{sONES}')
        if s.P['rl']:
            I(f'v_lshrrev_b32 v{t0}, 4, v0\nv_bfe_u32 v{t1}, v0, 1, 3\nv_xor_b32 v{t0}, v{t0}, v{t1}\nv_lshlrev_b32 v{t0}, 4, v{t0}\nv_lshl_or_b32 v{t0}, v{vFX}, 5, v{t0}')
            I(f's_lshl_b32 s64, s{sW}, 11\ns_lshl_b32 s65, s{sW}, 12\ns_or_b32 s64, s64, s65\ns_and_b32 s64, s64, 0x2800\ns_lshl_b32 s65, s{sHB}, 14\ns_or_b32 s64, s64, s65\ns_or_b32 s64, s64, 0x10000\nv_or_b32 v47, s64, v{t0}')
        I(f's_mul_i32 s{sTAG}, s{sE}, 0x9E3779B1\ns_add_u32 s{sTAG}, s{sTAG}, 0x7F4A7C15')
    def fold(s):
        I = s.I
        s.k.wait(s.tok['P'])
        I('ds_read_b64_tr_b16 v[60:61], v57\nds_read_b64_tr_b16 v[62:63], v57 offset:128')
        I('v_cmp_eq_u32 vcc, 0, v53')
        for r in range(4): I(f'v_cndmask_b32 v{80+r}, 0, v{60+r}, vcc\nv_cndmask_b32 v{84+r}, v{60+r}, 0, vcc')
        for r in range(8): I(f'v_accvgpr_write_b32 a{16+r}, v{80+r}')
    def lbuild(s, tok, slot, B, si):
        I = s.I; k = s.k; off = (slot & 1)*0x8000
        k.wait(tok)
        for b in range(4):
            for p in range(2): I(f'ds_read_b128 {a_(32+8*b+4*p,4)}, v{vWR+p} offset:{off + b*2048}')
        def T(i):
            b, p = i >> 1, i & 1; d = 64 + 16*b
            I(f'v_mfma_f32_32x32x16_bf16 {v(d,16)}, {a_(32+8*b+4*p,4)}, {a_(B+4*p,4)}, {"0" if p == 0 else v(d,16)}')
        def C(i):
            d = 64 + 8*i
            for r in range(4): I(f'v_cvt_pk_bf16_f32 v{d+r}, v{d+2*r}, v{d+2*r+1}')
            I(f'ds_write_b128 v{vWW}, {v(d,4)} offset:{off + i*1024}')
        def S(i): I(f'v_mfma_f32_32x32x16_bf16 v[48:63], a[64:67], {v(64+8*i,4)}, {"0" if i == 0 else "v[48:63]"}')
        for i in range(16):
            (T if i < 8 else S)(i & 7)
            if 3 <= i < 11: C(i - 3)
        I('v_cvt_pk_bf16_f32 v49, v48, v48\nv_and_b32 v50, 0xffff0000, v49\nv_sub_f32 v50, v48, v50\nv_cvt_pk_bf16_f32 v49, v48, v50')
        return I(f'ds_write_b32 v{vSW}, v49 offset:{SUMS[si] - 0x20000}')
    def rowstats(s):
        I = s.I
        for r in range(2):
            for i in range(4):
                x = vROW + 4*r + i
                I(f'v_dot2_f32_bf16 v{248+r}, v{x}, s{sONES}, {"0" if i == 0 else v(248+r)}')
                I(f'v_dot2_f32_bf16 v{250+r}, v{x}, v{x}, {"0" if i == 0 else v(250+r)}')
        I('v_permlane32_swap_b32 v248, v249\nv_permlane32_swap_b32 v250, v251\nv_add_f32 v248, v248, v249\nv_add_f32 v250, v250, v251')
        I(f'v_and_b32 v252, 15, v0\nv_cmp_eq_u32 vcc, 0, v252\nv_lshrrev_b32 v252, 1, v0\nv_mov_b32 v253, {hex(OOB)}')
        I('v_permlane16_swap_b32 v248, v250\nv_cndmask_b32 v252, v253, v252, vcc\nv_add_f32 v248, v248, v250')
        I(f'v_mov_b32 v249, s{sTAG}\ns_lshl_b32 s64, s{sR}, 11\ns_lshl_b32 s65, s{sJ}, 7\ns_add_u32 s64, s64, s65\ns_lshl_b32 s65, s{sW}, 5\ns_add_u32 s64, s64, s65\ns_add_u32 s64, s64, {hex(S0)}')
        for mod in ('quad_perm:[1,0,3,2]', 'quad_perm:[2,3,0,1]', 'row_half_mirror', 'row_mirror'):
            I(f'v_add_f32_dpp v248, v248, v248 {mod} row_mask:0xf bank_mask:0xf')
        s.k.wait(s.tok['C'])
        I(f'buffer_store_dwordx2 v[248:249], v252, {WS}, s64 offen sc1')
    def init(s):
        I = s.I; k = s.k
        I(f's_load_dword s{sE}, s[8:9], 0')
        I(f's_lshl_b32 s64, s{sJ}, 2\ns_add_u32 s64, s64, s{sW}\ns_lshl_b32 s64, s64, 4\ns_add_u32 s{sKVP}, s64, s{sR}')
        I(f's_lshl_b32 s64, s{sKVP}, 9\ns_add_u32 s64, s64, {hex(KVP)}\ns_and_b32 s{sKVC}, s64, 0xfffff800\ns_lshl_b32 s65, s{sKVP}, 6\ns_add_u32 s65, s65, {hex(KVZ)}')
        for r in range(4): I(f'v_mov_b32 v{96+r}, -1')
        I(f'v_lshlrev_b32 v100, 11, v{vL16}\nv_or_b32 v100, v100, v{vL16}\nv_and_b32 v100, 0x1001f0, v100\nbuffer_store_dwordx4 v[96:99], v100, {WS}, s64 offen sc1')
        I(f'v_lshlrev_b32 v101, 16, v0\nv_lshl_or_b32 v101, v0, 2, v101\nv_and_b32 v101, 0x10003c, v101')
        s.tok['C'] = I(f'buffer_store_dword v96, v101, {WS}, s65 offen sc1')
        I(f's_getreg_b32 s{sMARK}, hwreg(HW_REG_XCC_ID)\ns_and_b32 s{sMARK}, s{sMARK}, 15\ns_or_b32 s{sMARK}, s{sMARK}, 0x80')
        I(f'v_add_u32 v{vL16b}, 0x10000, v{vL16}')
        I(f'v_cmp_eq_u32 vcc, 0, v0\nv_mov_b32 v{vT0}, {hex(OOB)}\nv_cndmask_b32 v{vL0}, v{vT0}, v0, vcc')
        I(f's_mov_b32 s{sLIM}, 20000')
        I(f'v_and_b32 v50, 15, v0\nv_lshrrev_b32 v51, 4, v0\nv_and_b32 v52, 31, v0\nv_lshrrev_b32 v53, 5, v0')
        I(f'v_lshlrev_b32 v{vFX}, 2, v50')
        I(f'v_bfe_u32 v54, v0, 2, 1\nv_and_b32 v55, 3, v0\nv_lshlrev_b32 v55, 2, v55\nv_lshl_or_b32 v{vFO}, v54, 7, v55')
        I(f'v_lshlrev_b32 v54, 4, v50\nv_lshl_or_b32 v{vPUB}, v51, 9, v54')
        I(f's_lshl_b32 s64, s{sW}, 9\ns_add_u32 s64, s64, {hex(XA)}\ns_movk_i32 s65, {6*PS}')
        I(f'v_mul_lo_u32 v54, v53, s65\nv_lshl_add_u32 v54, v52, 4, v54\nv_add_u32 v{vPHW}, s64, v54')
        I(f's_movk_i32 s65, {PS}\nv_bfe_u32 v54, v0, 1, 1\nv_mul_lo_u32 v54, v54, s65\nv_and_b32 v55, 1, v0\nv_lshl_add_u32 v54, v55, 3, v54')
        I(f'v_lshrrev_b32 v55, 2, v50\nv_lshl_add_u32 v55, v51, 3, v55\nv_lshl_add_u32 v54, v55, 4, v54')
        I(f's_lshr_b32 s66, s{sW}, 1\ns_mul_i32 s66, s66, {6*PS}\ns_add_u32 s66, s66, {hex(XA)}\ns_and_b32 s67, s{sW}, 1\ns_mul_i32 s67, s67, {2*PS}\ns_add_u32 s67, s67, s66\ns_add_u32 s66, s66, {4*PS}')
        I(f'v_add_u32 v{vTRA}, s67, v54\nv_add_u32 v{vTRB}, s66, v54')
        I(f'v_lshlrev_b32 v54, 4, v50\nv_lshl_or_b32 v54, v53, 8, v54\nv_and_b32 v55, 1, v51\nv_lshl_or_b32 v54, v55, 3, v54')
        I(f's_lshl_b32 s64, s{sW}, 9\ns_add_u32 s64, s64, {hex(KVA)}\nv_add_u32 v{vKVW}, s64, v54')
        I(f's_lshl_b32 s64, s{sW}, 5\ns_add_u32 s64, s64, {hex(ZA)}\nv_and_b32 v54, 3, v0\nv_lshl_or_b32 v54, v54, 1, v55\nv_lshl_or_b32 v54, v54, 1, v53\nv_lshl_add_u32 v{vZW}, v54, 1, s64')
        I(f'v_and_b32 v54, 3, v0\nv_bfe_u32 v55, v0, 2, 1\nv_lshl_or_b32 v54, v55, 3, v54\nv_bfe_u32 v55, v0, 3, 1\nv_lshl_or_b32 v54, v55, 2, v54')
        I(f'v_lshlrev_b32 v54, 4, v54\nv_lshl_or_b32 v54, v53, 10, v54\nv_add_u32 v54, {hex(KVA)}, v54')
        I(f'v_lshlrev_b32 v55, 6, v53\nv_add_u32 v55, {hex(ZA)}, v55\nv_bfe_u32 v56, v0, 4, 1\nv_cmp_eq_u32 vcc, v56, v53\nv_mov_b32 v57, {hex(ZERO)}')
        I(f'v_cndmask_b32 v{vKVR}, v57, v54, vcc\nv_cndmask_b32 v{vZR}, v57, v55, vcc')
        I(f'v_lshlrev_b32 v54, 4, v50\nv_lshl_or_b32 v54, v53, 8, v54\nv_lshl_or_b32 v54, v56, 13, v54\ns_lshl_b32 s64, s{sW}, 11\nv_add_u32 v{vREDW}, s64, v54')
        I(f'v_lshlrev_b32 v54, 10, v50\nv_lshl_or_b32 v{vNAT}, v51, 4, v54')
        I(f'v_lshlrev_b32 v54, 4, v50\nv_lshl_or_b32 v54, v53, 2, v54\nv_cmp_eq_u32 vcc, 0, v56\nv_mov_b32 v55, {hex(OOB)}\nv_cndmask_b32 v{vSTW}, v55, v54, vcc')
        I(f's_lshl_b32 s64, s{sW}, 7\ns_add_u32 s64, s64, {hex(RS)}\nv_lshlrev_b32 v54, 2, v52\nv_add_u32 v{vRSW}, s64, v54')
        I(f'v_mov_b32 v56, 0\nv_mov_b32 v57, 0\nv_mov_b32 v58, 0\nv_mov_b32 v59, 0\nv_add_u32 v54, {hex(ZERO)}, v{vL16}\nds_write_b128 v54, v[56:59]')
        I(f's_mov_b32 s{sSELLO}, 0x3f80\ns_mov_b32 s{sSELHI}, 0x3f800000\ns_mov_b32 s{sONES}, 0x3f803f80\ns_mov_b32 s{sLOG2E}, 0x3fb8aa3b')
        I(f's_lshl_b32 s66, s{sR}, 2\ns_add_u32 s65, s66, s{sW}')
        I(f's_lshl_b32 s64, s65, 15\ns_add_u32 s{sXIN}, s64, {hex(XB[0])}')
        I(f's_lshl_b32 s64, s65, 11\ns_add_u32 s{sSTIN}, s64, {hex(ST)}')
        I(f's_mul_i32 s64, s{sJ}, {224*1024}\ns_add_u32 s64, s64, s{sM0}\ns_add_u32 s{sGU}, s64, {hex(WGU)}')
        I(f's_lshr_b32 s67, s{sRK}, 3\ns_lshl_b32 s64, s{sW}, 2\ns_or_b32 s64, s64, s67\ns_lshl_b32 s64, s64, 8\ns_or_b32 s64, s64, s{sCG}\ns_lshl_b32 s{sWO}, s64, 7')
        I(f's_lshl_b32 s67, s{sHB}, 12\ns_or_b32 s{sOM}, s67, s{sM0}')
        I(f's_mul_i32 s64, s{sCG}, {224*1024}\ns_mul_i32 s67, s{sW}, {56*1024}\ns_add_u32 s64, s64, s67\ns_add_u32 s{sWD}, s64, {hex(WD_P)}')
        I(f's_lshl_b32 s67, s{sHB}, 1\ns_add_u32 s66, s66, s67')
        I(f's_lshr_b32 s67, s{sW}, 1\ns_add_u32 s67, s67, s66\ns_and_b32 s68, s{sW}, 1')
        I(f's_lshl_b32 s64, s66, 15\ns_add_u32 s64, s64, s{sM0}\ns_add_u32 s{sXO}, s64, {hex(XB[0])}')
        I(f's_lshl_b32 s64, s67, 15\ns_lshl_b32 s69, s{sCG}, 12\ns_add_u32 s64, s64, s69\ns_lshl_b32 s69, s68, 8\ns_add_u32 s64, s64, s69\ns_add_u32 s{sXPUB}, s64, {hex(XB[0])}')
        I(f's_lshl_b32 s64, s67, 11\ns_lshl_b32 s69, s68, 8\ns_add_u32 s64, s64, s69\ns_mul_i32 s69, s{sCG}, 0x108\ns_and_b32 s69, s69, 0x608\ns_add_u32 s64, s64, s69\ns_add_u32 s{sSTPUB}, s64, {hex(ST)}')
        I(f's_mul_i32 s64, s65, {112*1024}\ns_mul_i32 s69, s{sJ}, {7*1024}\ns_add_u32 s64, s64, s69\ns_add_u32 s{sHPUB}, s64, {hex(HB)}')
        I(f's_mul_i32 s64, s66, {112*1024}\ns_mul_i32 s69, s{sW}, {28*1024}\ns_add_u32 s64, s64, s69\ns_add_u32 s{sHIN}, s64, {hex(HB)}')
        I(f's_lshl_b32 s64, s65, 7\ns_add_u32 s{sFXC}, s64, {hex(FX)}')
        I(f's_lshl_b32 s69, s{sJ}, 2\ns_add_u32 s64, s64, s69\ns_add_u32 s{sFOP}, s64, {hex(FO)}')
        I(f's_lshl_b32 s64, s67, 7\ns_lshl_b32 s69, s{sCG}, 3\ns_add_u32 s64, s64, s69\ns_lshl_b32 s69, s68, 2\ns_add_u32 s64, s64, s69\ns_add_u32 s{sFXP}, s64, {hex(FX)}')
        I(f's_lshl_b32 s64, s66, 7\ns_lshl_b32 s69, s{sW}, 4\ns_add_u32 s64, s64, s69\ns_add_u32 s{sFOC}, s64, {hex(FO)}')
        I(f's_lshl_b32 s64, s{sR}, 17\ns_lshl_b32 s69, s{sHB}, 16\ns_add_u32 s64, s64, s69\ns_lshl_b32 s69, s{sW}, 14\ns_add_u32 s64, s64, s69\ns_lshl_b32 s69, s{sCG}, 7\ns_add_u32 s{sNAT}, s64, s69')
        I(f's_lshl_b32 s64, s{sHB}, 8\ns_lshl_b32 s69, s{sW}, 6\ns_add_u32 s64, s64, s69\ns_add_u32 s64, s64, {hex(RS)}\nv_add_u32 v{vRSR}, s64, v{vFX}')

    def xloads(s, buf, n1=2, perm=None):
        so = s.SO(s, sT0)
        d = buf*0x20000; n = s.P['xf']
        with s.k.cap() as f:
            for kc in range(33):
                if kc == s.P['sl']: s.ld(so, v(vTMP, 4), vL16, sSTIN, d, 'sc1'); s.ld(so, v(vTMP+4, 4), vL16, sSTIN, d + 1024, 'sc1')
                if kc == 32: break
                if perm is None: s.ld(so, v(vXB + 4*kc, 4), vL16, sXIN, buf*0x200000 + kc*1024, 'sc1')
                else:
                    with s.k.group():
                        if kc % 4 == 0 and kc: s.I(f's_xor_b32 s{perm}, s{perm}, {hex((kc ^ kc - 4) << 10)}')
                        s.I(f'buffer_load_dwordx4 {v(vXB + 4*kc, 4)}, v{vL16}, {WS}, s{perm} offen offset:{kc % 4*1024} sc1')
        s.k.put(f[:n])
        return (f[n:], 0, n1*(32 - n) - 1)
    def stats(s, own=False):
        I = s.I; t = vTMP
        I(f'v_add_f32 v{t}, v{t}, v{t+2}\nv_add_f32 v{t+1}, v{t+1}, v{t+3}')
        if not own:
            I(f'v_add_f32 v{t+4}, v{t+4}, v{t+6}\nv_add_f32 v{t+5}, v{t+5}, v{t+7}')
            I(f'v_add_f32 v{t}, v{t}, v{t+4}\nv_add_f32 v{t+1}, v{t+1}, v{t+5}')
        I(f'v_permlane32_swap_b32 v{t}, v{t+1}')
        I(f'v_add_f32 v{t}, v{t}, v{t+1}')
        I(f'v_mul_f32 v{t}, 0x3b000000, v{t}')
        I(f'v_mov_b32 v{t+1}, v{t}')
        I(f'v_permlane32_swap_b32 v{t}, v{t+1}')
        I(f'v_fma_f32 v{t+1}, -v{t}, v{t}, v{t+1}')
        I(f'v_max_f32 v{t+1}, 0, v{t+1}')
        I(f'v_add_f32 v{t+1}, 0x3727c5ac, v{t+1}')
    def phi(s, p, tA, tB, out, emit=None):
        I = s.I; mx, mn = vT0, vT2
        I(f'v_max3_f32 v{mx}, v{p}, v{p+1}, v{p+2}\nv_min3_f32 v{mn}, v{p}, v{p+1}, v{p+2}')
        for r in range(3, 15, 2): I(f'v_max3_f32 v{mx}, v{mx}, v{p+r}, v{p+r+1}\nv_min3_f32 v{mn}, v{mn}, v{p+r}, v{p+r+1}')
        I(f'v_max_f32 v{mx}, v{mx}, v{p+15}\nv_min_f32 v{mn}, v{mn}, v{p+15}')
        I(f'v_mul_f32 v{mx}, v{mx}, v{vC}\nv_mul_f32 v{mn}, v{mn}, v{vC}')
        for sg, t, m in ((0, tA, mx), (1, tB, mn)):
            for r in range(0, 16, 2):
                if sg == 0: I(f'v_pk_fma_f32 {v(t+r,2)}, {v(p+r,2)}, {v(vC-1,2)}, {v(m,2)} op_sel:[0,1,0] op_sel_hi:[1,1,0] neg_lo:[0,0,1] neg_hi:[0,0,1]')
                else: I(f'v_pk_fma_f32 {v(t+r,2)}, {v(p+r,2)}, {v(vC-1,2)}, {v(m,2)} op_sel:[0,1,0] op_sel_hi:[1,1,0] neg_lo:[1,0,0] neg_hi:[1,0,0]')
            for r in range(16): I(f'v_exp_f32 v{t+r}, v{t+r}')
            I(f'v_pk_add_f32 {v(vT4,2)}, {v(t,2)}, {v(t+2,2)}')
            for r in range(4, 16, 2): I(f'v_pk_add_f32 {v(vT4,2)}, {v(vT4,2)}, {v(t+r,2)}')
            I(f'v_add_f32 v{vT4}, v{vT4}, v{vT5}\nv_rcp_f32 v{vT4}, v{vT4}')
            for r in range(0, 16, 2): I(f'v_pk_mul_f32 {v(t+r,2)}, {v(t+r,2)}, {v(vT4,2)} op_sel_hi:[1,0]')
            for r in range(8):
                I(f'v_cvt_pk_bf16_f32 v{out+8*sg+r}, v{t+2*r}, v{t+2*r+1}')
                if emit and r % 4 == 3: emit(2*sg + r//4)

    def front(s):
        I = s.I; k = s.k; P = s.P
        s.init0()
        tx = {}; tr = {}; dl = {}
        def X(i):
            with k.group():
                if i >= 8 and i % 2 == 0: k.wait(tr[i//2 - 4])
                tx[i] = s.xdma(i//2, i % 2)
        def RD(c):
            with k.group() as g:
                k.wait(tx[2*c+1])
                for q in range(4): tr[c] = I(f'ds_read_b128 {v(vXB+16*c+4*q,4)}, v{vXR+q} offset:{s.xreg(c) - 0x10000}')
            dl[id(g)] = 8*c - 3
        def SL():
            with k.group() as g:
                I(f's_lshl_b32 s{sT0+3}, s{sR}, 11\ns_lshl_b32 s{sT0+4}, s{sW}, 9\ns_add_u32 s{sT0+3}, s{sT0+3}, s{sT0+4}\ns_add_u32 s{sT0+3}, s{sT0+3}, {hex(S0)}')
                I(f'v_and_b32 v{vT4}, 0x1f0, v{vL16}\nbuffer_load_dwordx4 v[52:55], v{vT4}, {WS}, s{sT0+3} offen sc1')
                I(f's_lshl_b32 s{sT0+5}, s{sJ}, 7\ns_add_u32 s{sT0+5}, s{sT0+5}, s{sM0}\ns_add_u32 s{sT0+5}, s{sT0+5}, {hex(S0)}')
                I(f'v_lshlrev_b32 v57, 9, v0\nv_lshl_or_b32 v57, v0, 5, v57\nv_and_b32 v57, 0x1860, v57\nbuffer_load_dword v56, v57, {WS}, s{sT0+5} offen offset:4 sc1')
            dl[id(g)] = 40; s.gSL = g
        def Q(p):
            with k.group():
                if p == 0: k.wait(tr[5])
                s.tok['Q0'] = s.wdma(p, 2, 0)
        def U(i):
            with k.group():
                if i == 0: k.wait(tr[7])
                s.tok['U'] = s.udma(i)
        with k.cap() as xs:
            for p in range(1, 4): tk = s.wdma(p, 0, 1024)
            for p in range(1, 4): tv = s.wdma(p, 1, 2048)
            for i in range(16):
                X(i)
                if i >= 5 and i % 2 == 1: RD((i - 5)//2)
            SL(); Q(0); RD(6); Q(1); RD(7); Q(2); Q(3)
            for i in range(6): U(i)
        for pos, md in P['po']:
            with k.cap() as f:
                with k.group():
                    if md == 1: I(f's_lshl_b32 s{sT0+11}, s{sRK}, 2\ns_add_u32 s{sT0+11}, s{sT0+11}, s{sW}\ns_lshl_b32 s{sT0+11}, s{sT0+11}, 5\nv_and_or_b32 v22, v0, 31, s{sT0+11}')
                    else: I(f's_lshl_b32 s{sT0+11}, s2, 2\ns_add_u32 s{sT0+11}, s{sT0+11}, s{sW}\ns_lshl_b32 s{sT0+11}, s{sT0+11}, 2\nv_and_or_b32 v22, v0, 3, s{sT0+11}')
                    if md == 2: I(f's_lshr_b32 s{sT0+11}, s{sT0+11}, 3\ns_lshl_b32 s{sT0+11}, s{sT0+11}, 11\nv_lshlrev_b32 v22, 7, v22\nbuffer_load_dword v21, v22, {QS}, s{sT0+11} offen')
                    else: I(f'v_lshlrev_b32 v22, 7, v22\nglobal_load_dword v21, v22, s[6:7]')
            xs[pos] = [xs[pos], f] if id(xs[pos]) not in dl else 1/0
        with k.cap() as pre:
            s.unit()
            if P.get('tlb'):
                n, sh = P['tlb']
                I(f'v_min_u32 v54, {n - 1}, v0\nv_lshlrev_b32 v54, {sh}, v54\ns_lshl_b32 s64, s2, 7\nbuffer_load_dword v21, v54, {WS}, s64 offen offset:1024')
            s.init(); s.finit()
        n, f0, ev = P['sp']
        k.sprinkle(pre, xs[:n], f0, ev); xs = xs[n:]
        s.stamp('init')
        xa, xb, xc, xd = P['xa'], P['xb'], P['xc'], P['xd']
        with k.cap() as f:
            s.fold(); s.rowstats()
            I(f's_lshl_b32 s64, s{sG}, 5\ns_add_u32 s64, s64, s{sRK}\nv_mov_b32 v{vT0}, s{sMARK}\nbuffer_store_byte v{vT0}, v{vL0}, {DS}, s64 offen')
        k.sprinkle(f, xs[:xa], 0, P['xe']); xs = xs[xa:]
        s.stamp('issued')
        with k.cap() as f: s.lbuild(tk, 0, 16, 0)
        k.weave(f, (xs[:xb], 0, 15)); xs = xs[xb:]
        s.stamp('kbuild')
        with k.cap() as f: t = s.lbuild(tv, 1, 0, 1)
        k.weave(f, (xs[:xc], 0, 15)); xs = xs[xc:]
        if P['rl']: k.wait(tx[1]); I('v_xor_b32 v64, 64, v47')
        k.wait(t); I('s_barrier')
        if P['rl']: s.tok['R'] = I('ds_read_b128 a[68:71], v47\nds_read_b128 a[72:75], v64')
        s.stamp('vbuild')
        while any(dl.get(id(x), 99) < 0 for x in xs[xd:]): xd += 1
        k.put(xs[:xd]); xs = xs[xd:]
        assert any(x is s.gSL for x in xs)
        s.late = []
        while len(s.late) < P['up']:
            i = max(i for i, x in enumerate(xs) if id(x) not in dl); s.late.insert(0, xs.pop(i))
        gaps = [min(63, int(i*P['xr'])) for i in range(len(xs))]
        for i in range(len(xs) - 1, -1, -1):
            gaps[i] = min(gaps[i], dl.get(id(xs[i]), 63), max(gaps[i+1] - 1, 0) if i + 1 < len(xs) else 63)
        s.gaps = gaps
        assert not P['rl'] or [g for it, g in zip(xs, gaps) if tx[8] in Asm.flat([it])][0] >= P['rl'] - 1
        fill = [([it], g, g) for it, g in zip(xs, gaps)]
        if P['rl']:
            with k.cap() as f: k.wait(s.tok['R']); I('s_barrier')
            fill.insert(0, (f, P['rl'] - 1, P['rl'] - 1))
        with k.cap() as f:
            for i in range(8): I(f'ds_read_b128 {a_(aKP+4*i,4)}, v{vWW} offset:{i*1024}')
        fill.append((f, *P['kp']))
        with k.cap() as f:
            I(f'ds_read_b128 a[28:31], v{vSR} offset:{SUMS[0] - 0x20000}\nds_read_b128 a[32:35], v{vSR} offset:{SUMS[1] - 0x20000}')
            Lb = s.label('S0'); D = s.label('S0D')
            with k.group():
                I(f's_mov_b32 s{sT0+9}, 0\n{Lb}:')
                I(f'v_xor_b32 v53, s{sTAG}, v53\nv_xor_b32 v55, s{sTAG}, v55\nv_xor_b32 v56, s{sTAG}, v56\nv_or3_b32 v53, v53, v55, v56\nv_cmp_ne_u32 vcc, 0, v53\ns_cbranch_vccz {D}')
                with k.cond():
                    I(f'buffer_load_dwordx4 v[52:55], v{vT4}, {WS}, s{sT0+3} offen sc1\nbuffer_load_dword v56, v57, {WS}, s{sT0+5} offen offset:4 sc1\ns_waitcnt vmcnt(0)')
                    I(f's_add_u32 s{sT0+9}, s{sT0+9}, 1\ns_cmp_lt_u32 s{sT0+9}, s{sLIM}\ns_cbranch_scc1 {Lb}\ns_mov_b32 s{sLIM}, 1')
                I(f'{D}:'); k.retire()
            I('v_mul_f32 v52, 0xbb000000, v52\nv_mul_f32 v54, 0x3b000000, v54')
            I('v_cvt_pk_bf16_f32 v53, v52, v52\nv_fma_f32 v54, -v52, v52, v54\nv_and_b32 v55, 0xffff0000, v53\nv_max_f32 v54, 0, v54')
            I(f'v_sub_f32 v55, v52, v55\nv_add_f32 v54, 0x3727c5ac, v54\nv_cvt_pk_bf16_f32 v55, v55, v55\nv_rsq_f32 v{vRSTD}, v54')
            with k.group(): I('v_cmp_gt_u32 vcc, 32, v0\nv_cndmask_b32 v53, v55, v53, vcc')
            I(f'v_mul_f32 v{vC}, s{sLOG2E}, v{vRSTD}')
            for r in range(4): I(f'v_accvgpr_write_b32 a{24+r}, v53')
        fill.append((f, 54, 62))
        return fill

    def wodma(s, L, p0, p1):
        I = s.I; k = s.k; P = s.P; two = None
        with k.cap() as fo:
            for p in range(p0, p1):
                with k.group():
                    if p == p0: I(f'v_lshrrev_b32 v{vT1}, 3, v0\nv_and_b32 v{vT3}, 0x70, v1\nv_lshl_or_b32 v{vT1}, v{vT1}, 10, v{vT3}\nv_add_u32 v{vT3}, 7168, v{vT1}')
                    I(f's_xor_b32 m0, s{sOM}, {hex((p >> 2)*WOX[L] + (p & 3)*2048)}\ns_xor_b32 s{sT0+1}, s{sWO}, {hex(p << 14)}')
                    I(f'buffer_load_dwordx4 v{vT1}, {US}, s{sT0+1} offen {s.md("w", "")} lds')
                    two = I(f'buffer_load_dwordx4 v{vT3}, {US}, s{sT0+1} offen offset:1024 {s.md("w", "")} lds')
                    if p == P['twp'][L]: k.put(s.touches(P['tw'][L], vMK if L else 47))
        return fo, two
    def qkv(s, L):
        I = s.I; k = s.k; P = s.P
        SK, SV, SQ = 0, 1, 2
        bA, bB = L, 1 - L
        aK, aV, aQ = vACC, vACC+16, vACC+32
        qw = P['qw']*L
        def wosrd(): I('s_mov_b32 s84, s6\ns_mov_b32 s85, s7\ns_mov_b32 s86, 0x80000\ns_mov_b32 s87, 0x20000')
        if L == 0:
            fill = s.front()
            with k.cap() as s.bw:
                so = s.SO(s, sT0+7)
                for jj, i in [(jj, i) for jj in range(4) for i in range(12)] + [(jj, i) for jj in range(4) for i in (12, 13)]:
                    s.ld(so, a_(aWD(jj, i//2, i % 2), 4), vL16, sWQ + jj, i*1024, s.md('d'))
        else:
            I(f's_lshl_b32 s{sT0+2}, s{sCG}, 12\ns_add_u32 s{sT0+2}, s{sT0+2}, s{sXIN}\ns_add_u32 s{sT0+2}, s{sT0+2}, {hex(bA*0x200000)}')
            s.poll(vFX, sFXC, 0, 2*L)
            s.stamp('x_ok')
            fill = [s.xloads(bA, 2, sT0+2)]
            k.wait(s.tok['K']); I('s_barrier')
            with k.cap() as f:
                I(f'v_and_b32 v{vT4}, 0x1f0, v{vL16}\nv_add_u32 v{vT4}, 0x20000, v{vT4}')
                I(f'ds_read_b128 v[112:115], v{vT4} offset:{SUMS[0] - 0x20000}\nds_read_b128 v[116:119], v{vT4} offset:{SUMS[1] - 0x20000}')
                if qw: I(f'ds_read_b128 v[120:123], v{vT4} offset:{SUMS[3] - 0x20000}')
                s.stats(); s.meanop(vMU, vTMP, vTMP+2)
                for r in range(4): I(f'v_mov_b32 v{124+r}, v{vMU}')
                I(f'v_rsq_f32 v{vRSTD}, v{vTMP+1}')
                I(f'v_mul_f32 v{vC}, s{sLOG2E}, v{vRSTD}')
            fill.append((f, 44, 60))
        fill.append((s.touches(P['tk'][L]), P['tkg'][L], 63))
        if L == 0: s.gtile(0)
        else: s.tok[0] = None
        steps = []
        for kc in range(32): steps += [(SV, kc, aV, kc == 0), (SK, kc, aK, kc == 0)]
        if qw: steps += [(SQ, kc, aQ, False) for kc in range(32)]
        base, _ = s.gemm(steps, {63: (96, [], 1)} if qw and P['on'][1] else {P['kf'][L]: (64, [])} if P['kf'][L] else {})
        with k.cap() as fm:
            if L == 0:
                I(f'v_mfma_f32_32x32x16_bf16 {v(aV,16)}, a[32:35], a[24:27], {v(aV,16)}\nv_mfma_f32_32x32x16_bf16 {v(aK,16)}, a[28:31], a[24:27], {v(aK,16)}')
            else:
                I(f'v_mfma_f32_32x32x16_bf16 {v(aV,16)}, v[116:119], v[124:127], {v(aV,16)}\nv_mfma_f32_32x32x16_bf16 {v(aK,16)}, v[112:115], v[124:127], {v(aK,16)}')
                if qw: I(f'v_mfma_f32_32x32x16_bf16 {v(aQ,16)}, v[120:123], v[124:127], 0')
        if not qw:
            nv = P['vm'] >> L & 1
            k.weave(base, *fill, (fm[:nv], 62, 62)); k.put(fm[nv:])
            s.stamp('kv_gemm')
        wob, kb = vXB + 64, vXB
        fo, two = s.wodma(L, P.get('so1', 0)*L, 8)
        with k.cap() as fx:
            I('v_bfe_u32 v126, v0, 2, 2\nv_lshrrev_b32 v125, 5, v0\nv_lshl_or_b32 v126, v125, 3, v126\nv_bfe_u32 v125, v0, 4, 1\nv_lshl_or_b32 v126, v126, 2, v125')
            I('v_and_b32 v125, 1, v0\nv_lshl_or_b32 v126, v126, 1, v125\nv_bfe_u32 v125, v0, 1, 1\nv_lshl_or_b32 v126, v126, 1, v125')
            with k.group(): I(f's_and_b32 s{sT0+3}, s{sR}, 1\ns_mul_i32 s{sT0+3}, s{sT0+3}, {hex(WOX[L])}\ns_or_b32 s{sT0+3}, s{sT0+3}, s{sM0}\nv_lshl_add_u32 v125, v126, 3, s{sT0+3}')
            I(f'v_xor_b32 v126, {hex(WOX[L])}, v125')
        def otr():
            k.wait(two)
            for kk in range(8):
                for ct in range(2):
                    for r in range(2): t = I(f'ds_read_b64_tr_b16 {v(wob+8*kk+4*ct+2*r,2)}, v{125 + (kk >> 2)} offset:{(kk & 3)*2048 + ct*64 + r*512}')
            return t
        on = P['on'][L]
        with k.cap() as f:
            for r in range(0, 16, 2): I(f'v_pk_mul_f32 {v(aV+r,2)}, {v(aV+r,2)}, {v(vRSTD,2)} op_sel_hi:[1,0]')
            for r in range(8): I(f'v_cvt_pk_bf16_f32 v{aV+r}, v{aV+2*r}, v{aV+2*r+1}')
            I(f'ds_write_b128 v{vPHW}, {v(aV,4)} offset:{4*PS}\nds_write_b128 v{vPHW}, {v(aV+4,4)} offset:{5*PS}')
            tw = []
            s.phi(aK, vACC+48, aK, vTMP, emit=lambda n: tw.append(I(f'ds_write_b128 v{vPHW}, {v(vTMP+4*n,4)} offset:{n*PS}')))
            for r in range(4): I(f'v_mov_b32 v{72+r}, s{sONES}')
        if qw: cap = k.cap(); fq = cap.__enter__()
        ta = vXB if qw else 96
        if L == 0:
            assert P['op'] == 0 or P['kf'][0]
            k.sprinkle(f, s.late + fo[:P['op']], *P['tp'][1:]); fo = fo[P['op']:]; on -= P['op']
        else:
            s.gtile(1); s.gtile(2)
            assert on == 0 or P['kf'][1] or qw
            k.sprinkle(f, fo[:on], 9 + qw//4 if qw else 2, P['oe']); fo = fo[on:]
        with k.group():
            k.wait(tw[-1])
            if L == 0 and P['ue'] == 2: k.wait(s.tok['U'])
            I('s_barrier')
            s.stamp('phik')
        for u in range(4):
            for p in range(2):
                I(f'ds_read_b64_tr_b16 {v(ta+4*u+2*p,2)}, v{vTRA} offset:{u*512+p*64}')
            for p in range(2):
                I(f'ds_read_b64_tr_b16 {v(ta+16+4*u+2*p,2)}, v{vTRB} offset:{u*512+p*64}')
        if L == 0 and P['ue']: s.uaddr()
        with k.group():
            for u in range(4):
                I(f'v_mfma_f32_16x16x32_bf16 v[64:67], {v(ta+4*u,4)}, {v(ta+16+4*u,4)}, {"0" if u == 0 else "v[64:67]"}')
                I(f'v_mfma_f32_16x16x32_bf16 v[68:71], v[72:75], {v(ta+4*u,4)}, {"0" if u == 0 else "v[68:71]"}')
        I(f's_sub_u32 s{sT0}, s{sKVP}, s{sW}\ns_lshl_b32 s{sT0}, s{sT0}, 9\ns_add_u32 s{sT0}, s{sT0}, {hex(KVP - KVA + L*0x100000)}')
        I(f's_lshl_b32 s{sT0+3}, s{sKVP}, 6\ns_add_u32 s{sT0+3}, s{sT0+3}, {hex(KVZ + L*0x100000)}')
        I('v_cvt_pk_bf16_f32 v112, v64, v65\nv_cvt_pk_bf16_f32 v113, v66, v67\nv_mov_b32 v114, v68')
        I(f'buffer_store_dwordx2 v[112:113], v{vKVW}, {WS}, s{sT0} offen sc1\nbuffer_store_dword v114, v{vFX}, {WS}, s{sT0+3} offen sc1')
        s.stamp('kvpub')
        if qw:
            cap.__exit__(None, None, None)
            fill += [(fm[:1], 62, 62), (fm[1:2] + fq[:8] + fm[2:], 63, 63)]; c = 0
            for it in fq[8:]:
                gq = 63 + c//qw
                fill.append(([it], gq, gq))
                c += sum(16 if x.text[:5] in ('v_exp', 'v_rcp') else 4 for x in Asm.flat([it]) if x.text[:2] != 's_')
            fill.append((fo[:P['qo']], gq + 1, 95)); fo = fo[P['qo']:]
            k.weave(base, *fill)
        s.wob = wob; zb = kb + 32; sel = kb + 40
        def kvld(r):
            with k.group():
                if r < 8: I(f's_xor_b32 s{sT0}, s{sKVC}, {hex(L*0x100000 + (3 - r//2)*2048)}\nbuffer_load_dwordx4 {v(kb+4*r,4)}, v{vPUB}, {WS}, s{sT0} offen offset:{256*(r & 1)} {s.md("k")}')
                else: I(f's_lshr_b32 s{sT0}, s{sKVP}, 4\ns_lshl_b32 s{sT0}, s{sT0}, 10\ns_add_u32 s{sT0}, s{sT0}, {hex(KVZ + L*0x100000)}\nbuffer_load_dwordx4 {v(zb,4)}, v{vL16}, {WS}, s{sT0} offen {s.md("k")}')
        with k.cap() as fk:
            for r in P['ko']: kvld(r)
        with k.cap() as fs:
            I(f'v_and_b32 v{sel+8}, 1, v0\nv_lshlrev_b32 v{sel+8}, 4, v{sel+8}\nv_lshlrev_b32 v{sel+8}, v{sel+8}, s{sSELLO}\nv_bfe_u32 v{sel+9}, v0, 1, 3')
            for r in range(8):
                with k.group(): I(f'v_cmp_eq_u32 vcc, {r}, v{sel+9}\nv_cndmask_b32 v{sel+r}, 0, v{sel+8}, vcc')
        assert P['ot'] == (0, 0)
        if L == 0:
            assert P['op'] == 0; wosrd()
            I(f'v_add_u32 v{vWR}, 0x10000, v{vWR}\nv_add_u32 v{vWR+1}, 0x10000, v{vWR+1}\nv_add_u32 v{vWW}, 0x10000, v{vWW}')
            with k.cap() as fa: s.uaddr()
            with k.cap() as f: t = s.lbuild(s.tok['Q0'], SQ, 16, 3)
            with k.cap() as fu: tu = s.uproc()
            if P['ue']:
                if P['ue'] == 1: k.put(fu[:1])
                u0, u1, u2, o0, o1 = P['uw']
                k.weave(f, (fu[1:7], 0, u0), (fu[8:], u1, u2), (fo[:on], o0, o1)); fu = []
            else: k.weave(f, (fa[:8], 0, 2), (fa[8:], 11, 15), (fo[:on], 0, 15))
            fo = fo[on:]
            k.wait(t); I('s_barrier')
            s.stamp('qbuild')
            with k.cap() as ff:
                with k.group():
                    if P.get('xs'): s.stamp('ff0')
                    k.wait(tu)
                    if P.get('xs'): s.stamp('ff1')
                    I(f's_barrier\ns_lshl_b32 s{sT0+3}, s2, 8\ns_lshl_b32 s{sT0+4}, s{sW}, 28\ns_add_u32 s{sT0+3}, s{sT0+3}, s{sT0+4}\ns_add_u32 s{sT0+3}, s{sT0+3}, {hex(FU)}')
                    I(f'v_mov_b32 v116, s{sTAG}\nv_lshlrev_b32 v117, 2, v0\nbuffer_store_dword v116, v117, {WS}, s{sT0+3} offen sc1')
            with k.cap() as fy:
                I(f'v_and_b32 v122, 7, v0\nv_min_u32 v127, 2, v122\nv_bfe_u32 v121, v0, 3, 1\nv_mad_u32_u24 v127, v121, 28, v127')
                with k.group(): I(f's_mul_i32 s{sT0+3}, s{sJ}, 7\ns_lshr_b32 s{sT0+3}, s{sT0+3}, 2\nv_add_u32 v127, s{sT0+3}, v127')
                with k.group(): I(f'v_lshl_add_u32 v121, v122, 3, s{sCG}\nv_cmp_lt_u32 vcc, 15, v0\nv_cndmask_b32 v127, v127, v121, vcc')
                with k.group(): I(f's_lshl_b32 s{sT0+3}, s{sW}, 6\nv_add_u32 v127, s{sT0+3}, v127')
                I(f'v_lshlrev_b32 v127, 8, v127')
            if s.stop == 'kv0':
                k.put(fu); k.put(ff); return True
            with k.cap() as f1:
                so = s.SO(s, sT0+2)
                if P['rl']:
                    for r in range(8): I(f'v_accvgpr_read_b32 v{vRES+r}, a{68+r}')
                else: s.ld(so, v(vRES, 4), vNAT, sNAT, 0, srdn=XS); s.ld(so, v(vRES+4, 4), vNAT, sNAT, 64, srdn=XS)
                with k.group(): I(f'v_and_b32 v{vMK}, 28, v{vFX}\ns_lshl_b32 s{sT0+3}, s{sG}, 5\nbuffer_load_dword v{vMK}, v{vMK}, {DS}, s{sT0+3} offen sc1')
                I(f'ds_read_b128 a[28:31], v{vSR} offset:{SUMS[3] - 0x20000}')
            assert P['og'][1] > P['ub'] or P['ue']
            n = P['f1p'][0]; fr = f1[:n]; f1 = f1[n:]
            fill = [(fu[:8], 0, P['ub']), (fu[8:], P['ub'] + 1, P['uc']), (f1, *P['f1']), (fx + fy, 6, 30), (fs, 14, 30), (fo[:P['og'][0]], P['og'][1], P['oh'])]; fo = fo[P['og'][0]:]
            if P['fg'] < 0: fill.append((ff, -P['fg'], -P['fg'])); ff = []
        else:
            with k.cap() as f1:
                I(f'v_and_b32 v{vT4}, 0x1f0, v{vL16}\nv_add_u32 v{vT4}, 0x20000, v{vT4}\nds_read_b128 v[64:67], v{vT4} offset:{SUMS[3] - 0x20000}')
                for r in range(4): I(f'v_mov_b32 v{68+r}, v{vMU}')
            fill = [(fo, *P['tb'][1:]), (fk[:P['kn']], P['k0'], 31), (f1 + fx, 10, 28), (fs, 14, 30)]
        if not qw:
            base, _ = s.gemm([(SQ, kc, aQ, kc == 0) for kc in range(32)])
            k.weave(base, *fill)
            if L == 0: I(f'v_mfma_f32_32x32x16_bf16 {v(aQ,16)}, a[28:31], a[24:27], {v(aQ,16)}')
            else: I(f'v_mfma_f32_32x32x16_bf16 {v(aQ,16)}, v[64:67], v[68:71], {v(aQ,16)}')
            s.stamp('q_gemm')
        with k.cap() as f: s.phi(aQ, vACC, vACC+16, vTMP)
        if L == 0:
            with k.cap() as f2: k.sprinkle(f, ff, P['fg'], 1)
            with k.cap() as f3: k.sprinkle(f2, fo, *P['oq'][0])
            with k.cap() as f4: k.sprinkle(f3, fk, *P['kq'][0])
            if P['f1p'][1] < 200: k.sprinkle(f4, fr, *P['f1p'][1:]); fr = []
            else: k.put(f4)
        elif qw:
            f = fx + f + fs
            with k.cap() as f3: k.sprinkle(f, fo, *P['oq'][1])
            k.sprinkle(f3, fk, *P['kq'][2])
        else: k.sprinkle(f, fk[P['kn']:], *P['kq'][1])
        s.stamp('phiq')
        def fuld(): return I(f's_mov_b32 s{sT0+4}, {hex(FU)}\nbuffer_load_dword v112, v127, {WS}, s{sT0+4} offen sc1')
        if L == 0 and P['fup'] == 0: fuld()
        if P['ot'][L] == 0: tot = otr()
        MK = [76] + list(range(88, 102, 2))
        Lb = s.label('KV'); D = s.label('KVD')
        I(f's_mov_b32 s{sT0+9}, 0')
        I(f'{Lb}:')
        first = True
        for r in P['ko']:
            if r < 8:
                I(f'v_mfma_f32_16x16x32_bf16 v[64:67], {v(sel+4*(r & 1),4)}, {v(kb+4*r,4)}, {"0" if first else "v[64:67]"}'); first = False
            else:
                I(f'v_permlane32_swap_b32 v{zb}, v{zb+1}\nv_permlane32_swap_b32 v{zb+2}, v{zb+3}\nv_add_f32 v68, v{zb}, v{zb+1}\nv_add_f32 v69, v{zb+2}, v{zb+3}')
                I('v_permlane16_swap_b32 v68, v69\nv_add_f32 v68, v68, v69')
                for n in (4, 8): I(f'v_add_f32_dpp v68, v68, v68 row_ror:{n} row_mask:0xf bank_mask:0xf')
        I(f'v_add_f32 v69, v68, v64\nv_cmp_u_f32 vcc, v69, v66\ns_cbranch_vccz {D}')
        with k.cond():
            kvld(8)
            for r in range(8):
                I(f'v_max3_u32 v69, v{kb+4*r}, v{kb+4*r+1}, v{kb+4*r+2}\nv_max_u32 v69, v69, v{kb+4*r+3}\nv_cmp_eq_u32 {s_(MK[r],2)}, -1, v69')
            for r in range(8):
                I(f's_mov_b64 exec, {s_(MK[r],2)}'); kvld(r)
            I('s_mov_b64 exec, -1\ns_waitcnt vmcnt(0)')
            I(f's_add_u32 s{sT0+9}, s{sT0+9}, 1\ns_cmp_lt_u32 s{sT0+9}, s{sLIM}\ns_cbranch_scc1 {Lb}\ns_mov_b32 s{sLIM}, 1')
        I(f'{D}:')
        k.retire()
        s.stamp('kv_ok')
        def fuok():
            Lb = s.label('FU'); D = s.label('FUD')
            I(f's_mov_b32 s{sT0+9}, 0\n{Lb}:\nv_cmp_ne_u32 vcc, s{sTAG}, v112\ns_cbranch_vccz {D}')
            with k.cond():
                fuld(); I('s_waitcnt vmcnt(0)')
                I(f's_add_u32 s{sT0+9}, s{sT0+9}, 1\ns_cmp_lt_u32 s{sT0+9}, s{sLIM}\ns_cbranch_scc1 {Lb}\ns_mov_b32 s{sLIM}, 1')
            I(f'{D}:')
            k.retire()
            s.stamp('fu_ok')
            I(f's_lshr_b32 s{sT0}, s{sRK}, 3' + ('' if s.P['ws'] == 1 else f'\ns_xor_b32 s{sT0}, s{sT0}, s{sCG}\ns_and_b32 s{sT0}, s{sT0}, {3 if s.P["ws"] else 0}'))
            for q in range(4):
                I(f's_xor_b32 s{sT0+2}, s{sT0}, {q}\ns_mul_i32 s{sT0+2}, s{sT0+2}, 7168\ns_add_u32 s{sHQ+q}, s{sHIN}, s{sT0+2}\ns_lshl1_add_u32 s{sWQ+q}, s{sT0+2}, s{sWD}')
        if L == 0:
            I(f's_mul_i32 s{sT0+3}, s{sMARK}, 0x01010101\nv_cmp_ne_u32 vcc, s{sT0+3}, v{vMK}\ns_or_b32 s{sSLOW}, vcc_lo, vcc_hi')
            if P['f1p'][1] == 200: k.put(fr); fr = []
        if L == 0 and P['fup']: fuld()
        if L == 0 and P['fe']:
            fuok(); k.wait(tot); k.put(s.take(P['t1'][0])); k.put(s.takew(P['w1']))
        if L:
            if P['ot'][L] == 0: k.wait(tot)
            k.put(s.take(P['t1'][L] if P['ot'][L] == 0 else min(8, P['t1'][L])))
        I('v_cvt_pk_bf16_f32 v70, v64, v65\nv_cvt_pk_bf16_f32 v71, v66, v67\nv_cvt_pk_bf16_f32 v68, v68, v68')
        I(f'ds_write_b64 v{vKVW}, v[70:71]')
        t = I(f'ds_write_b16 v{vZW}, v68')
        k.wait(t); I('s_barrier')
        aRING = s.ring
        for n in range(4):
            I(f'ds_read_b128 {a_(aRING+8*n,4)}, v{vZR} offset:{n*16}\nds_read_b128 {a_(aRING+8*n+4,4)}, v{vKVR} offset:{n*256}')
        for n in range(4):
            I(f'v_mfma_f32_32x32x16_bf16 v[80:95], {a_(aRING+8*n,4)}, {v(vTMP+4*n,4)}, {"0" if n == 0 else "v[80:95]"}')
        for n in range(4):
            I(f'v_mfma_f32_32x32x16_bf16 v[64:79], {a_(aRING+8*n+4,4)}, {v(vTMP+4*n,4)}, {"0" if n == 0 else "v[64:79]"}')
        I('v_add_f32 v80, 0x358637bd, v80\nv_add_f32 v88, 0x358637bd, v88\nv_rcp_f32 v80, v80\nv_rcp_f32 v88, v88')
        so = s.SO(s, sT0)
        I(f's_lshl_b32 s{sT0+3}, s{sJ}, 11\ns_add_u32 s{sT0+3}, s{sT0+3}, s{sXIN}')
        for c in range(2):
            for r in range(0, 8, 2): I(f'v_pk_mul_f32 {v(64+8*c+r,2)}, {v(64+8*c+r,2)}, {v(80+8*c,2)} op_sel_hi:[1,0]')
            for r in range(4): I(f'v_cvt_pk_bf16_f32 v{96+4*c+r}, v{64+8*c+2*r}, v{64+8*c+2*r+1}')
            t = s.pub(s.ld(so, v(96+4*c, 4), vL16, sT0+3, bB*0x200000 + c*1024, op='buffer_store_dwordx4'))
        k.wait(t)
        s.flag(sFOP, 0, L + 1)
        s.stamp('opub')
        if L == 0 and not P['fe']: fuok()
        if P['ot'][L]: tot = otr()
        k.wait(tot)
        k.put(s.take(P['t2'][L]))
        k.put(s.takew(P['w2']))
        k.put(s.touches(P['to'][L]))
        if L == 0: k.put(fr)
        return s.stop == f'o{L}'

    def red_write(s, slot, rt2, ct):
        I = s.I; a = vACC + 32*rt2 + 16*ct; t = None
        for h in range(2):
            for r in range(4): I(f'v_cvt_pk_bf16_f32 v{a+8*h+r}, v{a+8*h+2*r}, v{a+8*h+2*r+1}')
            t = I(f'ds_write_b128 v{vT1}, {v(a+8*h,4)} offset:{rt2*16384 + (2*ct+h)*512}')
        return t
    def red_finish(s, slot, scale, L, buf, p, final, pre, after=None, idle=None):
        I = s.I; k = s.k; rb = vXB + 64
        I(f's_add_u32 s{sT0+3}, s{sM0}, {hex(slot*0x8000)}\nv_add_u32 v{vT0}, s{sT0+3}, v{vL16}')
        k.wait(*pre); I('s_barrier')
        if scale: I(f'ds_read_b32 v{vT2}, v{vRSR}')
        t = None
        for c in range(2):
            for src in range(4): t = I(f'ds_read_b128 {v(rb+16*c+4*src,4)}, v{vT0} offset:{src*2048 + c*1024}')
        so = s.SO(s, sT0)
        for c in range(2):
            for src in range(4):
                for e in range(8):
                    d = (vACC if scale else vRES) + 8*c + e
                    I(f'v_dot2_f32_bf16 v{d}, v{rb+16*c+4*src+e//2}, s{sSELHI if e & 1 else sSELLO}, {"0" if scale and src == 0 else v(d)}')
            if scale:
                for e in range(0, 8, 2): I(f'v_pk_fma_f32 {v(vRES+8*c+e,2)}, {v(vACC+8*c+e,2)}, {v(vT2,2)}, {v(vRES+8*c+e,2)} op_sel_hi:[1,0,1]')
            for r in range(4): I(f'v_cvt_pk_bf16_f32 v{vTMP+4*c+r}, v{vRES+8*c+2*r}, v{vRES+8*c+2*r+1}')
            if final: s.ld(so, v(vTMP+4*c, 4), vNAT, sNAT, 64*c, s.P['om'], op='buffer_store_dwordx4', srdn=OS)
            else: s.pub(s.ld(so, v(vTMP+4*c, 4), vPUB, sXPUB, buf*0x200000 + 2048*c, op='buffer_store_dwordx4'))
        if final: return
        for r in range(8):
            I(f'v_dot2_f32_bf16 v{vT2}, v{vTMP+r}, s{sONES}, {"0" if r == 0 else v(vT2)}')
            I(f'v_dot2_f32_bf16 v{vT3}, v{vTMP+r}, v{vTMP+r}, {"0" if r == 0 else v(vT3)}')
        I(f'v_permlane32_swap_b32 v{vT2}, v{vT3}\nv_add_f32 v{vT2}, v{vT2}, v{vT3}\nv_mov_b32 v{vT3}, v{vT2}')
        I(f'v_permlane16_swap_b32 v{vT2}, v{vT3}\nv_add_f32 v{vT2}, v{vT2}, v{vT3}')
        t2 = s.pub(s.ld(so, v(vT2), vSTW, sSTPUB, buf*0x20000, op='buffer_store_dword'))
        if idle: idle()
        k.wait(t2)
        s.flag(sFXP, 0, p)
        if after: after()

    def wo(s, L):
        I = s.I; k = s.k
        SQ = 3 - L; bA, bB = L, 1 - L
        I(f'v_add_u32 v{vT1}, {hex(SQ*0x8000)}, v{vREDW}')
        if L == 0:
            for i in range(7, -1, -1): I(f'v_and_b32 v{vRES+2*i+1}, 0xffff0000, v{vRES+i}\nv_lshlrev_b32 v{vRES+2*i}, 16, v{vRES+i}')
        s.poll(vFO, sFOC, 0, L + 1)
        s.stamp('o_ok')
        so = s.SO(s, sT0); wob = s.wob; ob = 2*vXB + 64 - wob
        with k.cap() as fl:
            for rt2 in range(2):
                for kk in range(8): s.ld(so, v(ob + 32*rt2 + 4*kk, 4), vL16, sXO, bB*0x200000 + rt2*0x8000 + kk*1024, 'sc1')
        k.put(fl[:8])
        with k.cap() as base:
            for rt2 in range(2):
                for kk in range(8):
                    for ct in range(2):
                        a = vACC + 32*rt2 + 16*ct
                        I(f'v_mfma_f32_32x32x16_bf16 {v(a,16)}, {v(wob+8*kk+4*ct,4)}, {v(ob+32*rt2+4*kk,4)}, {"0" if kk == 0 else v(a,16)}')
        with k.cap() as f1:
            s.red_write(SQ, 0, 0); s.red_write(SQ, 0, 1)
        k.weave(base, (fl[8:], 0, 15), (s.take(s.P['t3'][L]) + s.takew(s.P['w3']) + s.touches(s.P['tq'][L]), 18, 31), (f1, 19, 30))
        s.red_write(SQ, 1, 0); t = s.red_write(SQ, 1, 1)
        s.stamp('wo_gemm')
        def after():
            if L == 0:
                I(f's_mul_i32 s{sT0+3}, s{sJ}, 896\ns_lshl_b32 s{sT0+4}, s{sW}, 8\ns_add_u32 s{sT0+3}, s{sT0+3}, s{sT0+4}\nv_lshlrev_b32 v{vT2}, 2, v0')
                for q in range(4):
                    I(f's_add_u32 s{sT0+3}, s{sT0+3}, {hex(CS if q == 0 else 14336)}\nbuffer_load_dword v{56+q}, v{vT2}, {WS}, s{sT0+3} offen sc1')
            assert s.gslot(L, 1 + 2*L) == SQ; s.gtile(1 + 2*L)
            k.put(s.take(s.P['t4'][L])); k.put(s.takew(s.P['w4'])); k.put(s.touches(s.P['tz'][L]))
        s.red_finish(SQ, False, L, bA, 2*L + 1, False, [t], after)
        s.stamp('x1pub')
        return s.stop == f'x{2*L+1}'

    def gu_epi(s, L, t):
        I = s.I; a = vACC + 16*(t % 4)
        for r in range(8): I(f'v_max_f32 v{a+r}, 0, v{a+r}')
        for r in range(8): I(f'v_mul_f32 v{a+r}, v{a+r}, v{a+8+r}')
        for r in range(4): I(f'v_cvt_pk_bf16_f32 v{a+8+r}, v{a+2*r}, v{a+2*r+1}')
        if s.P['hm'][L]: return s.ld(s.soH, v(a+8, 4), vL16, sHPUB, s.ord(L)[t]*1024, s.P['hm'][L], op='buffer_store_dwordx4')
        return s.pub(s.ld(s.soH, v(a+8, 4), vL16, sHPUB, s.ord(L)[t]*1024, op='buffer_store_dwordx4'))
    def ord(s, L): return s.P['o1'] if L else range(7)
    def gslot(s, L, t): return (3, 0, 1, 2)[t % 4] if L else (0, 3)[t % 2]
    def gtile(s, t): s.bg_tile(t, sGU, s.ord(s.L)[t]*0x8000, s.gslot(s.L, t))
    def gu(s, L):
        I = s.I; k = s.k; P = s.P
        slot = lambda t: s.gslot(L, t)
        bA = L; n1 = P['n1'][L]; ns = 2 + 2*L; E1 = 32*n1; EM = max(E1, 64)
        acc = lambda t: vACC + 16*(t % 4)
        s.poll(vFX, sFXC, 0, 2*L + 1)
        s.stamp('x1_ok')
        fill = [s.xloads(bA, n1)]
        nb = L and P['fb']
        k.wait(*[s.tok[t] for t in range(3 if nb else n1)]); I('s_barrier')
        fill.append((s.take(99), *(P['tr'] if nb else (E1*5//8, E1 - 4))))
        for names, g in P['tg'][L]: fill.append((s.touches(names), g, g + len(names) - 1))
        tcs = []
        if L == 0:
            with k.cap() as f:
                I(f'v_add_f32 v56, v56, v57\nv_add_f32 v58, v58, v59\nv_add_f32 v56, v56, v58')
                I('v_cvt_pk_bf16_f32 v57, v56, v56\nv_and_b32 v57, 0xffff0000, v57\nv_sub_f32 v57, v56, v57\nv_cvt_pk_bf16_f32 v57, v56, v57')
                with k.group(): I(f's_lshl_b32 s{sT0+3}, s{sW}, 8\ns_add_u32 s{sT0+3}, s{sT0+3}, {hex(WPH)}\nv_add_u32 v{vT2}, s{sT0+3}, v{vT2}')
                tcs.append(I(f'ds_write_b32 v{vT2}, v57'))
            fill.append((f, 24, 36))
        with k.cap() as f:
            s.stats(); s.meanop(60, vTMP, vTMP+2)
            I(f'v_rcp_f32 v{vRSTD}, v{vTMP+1}')
            I(f'v_mov_b32 v61, 0\nv_mov_b32 v62, 0\nv_mov_b32 v63, 0\nv_and_b32 v{vT2}, 31, v0\nv_lshlrev_b32 v{vT2}, 2, v{vT2}\nv_add_u32 v{vT2}, {hex(WPH)}, v{vT2}')
            s.tRS = I(f'ds_write_b32 v{vRSW}, v{vRSTD}')
        fill.append((f, EM - 27, EM - 5))
        steps = []
        for kc in range(32): steps += [(slot(t), kc, acc(t), kc == 0) for t in range(n1)]
        for t in range(n1, 7): steps += [(slot(t), kc, acc(t), kc == 0) for kc in range(32)]
        fences = {32*t - 4: (32*t, tcs if 32*t == EM else []) for t in range(n1, 7)}
        bub = n1 == ns; g = 0; dm = {}
        if nb:
            for t in range(4, 7):
                s.gtile(t); a, b = P['fd'][t - 4]; fill.append((s.take(8), a, b))
                assert any(max(32*(t - 3), E1) <= g < a for g, _ in nb) and any(t in ts and b <= g for g, ts in nb) and (t == 4 or a > P['fd'][t - 5][1])
            fences = {g: (32*min(ts, default=7), [s.tok[t] for t in ts], 0) for g, ts in nb}
            assert sorted(t for g, ts in nb for t in ts) == [3, 4, 5, 6]
        for t in range(n1, 7 if not nb else 0):
            if t >= ns:
                s.gtile(t); dm[t] = s.take(8)
                g = max(g, max(32*(t - ns + 1), E1) - 3)
                if bub and t == ns: fill.append((dm[t], g, g + 2))
                elif not (bub and t == ns + 1): fill.append((dm[t], g, g + P['dl'][L])); g += P['dl'][L] + 1
            if bub and t == ns: fences[32*t - 1] = (32*t, [s.tok[t]])
            else: fences[32*t - 4] = (32*t, fences[32*t - 4][1] + [s.tok[t]])
        s.soH = s.SO(s, sT0+4)
        th = {}; fb = []; ge = 0
        for t in range(7):
            r = 56 + 2*(t == 1); early = 32*t < EM
            with k.cap() as f:
                if t < 2: I(f'ds_read2_b32 {v(r,2)}, v{vT2} offset0:{32*s.ord(L)[t]} offset1:{32*s.ord(L)[t]}')
                else: I(f'ds_read_b32 v{r}, v{vT2} offset:{128*s.ord(L)[t]}')
                with k.group(): I(f'v_mfma_f32_32x32x16_bf16 {v(acc(t),16)}, {v(r,4)}, v[60:63], {v(acc(t),16)}')
            gm = (EM, EM + 1, EM + 5)[t] if early else 32*t + 24
            gr = EM - 3 if t < 2 else gm - 4
            fill.append(([f[0]], gr, gr))
            if bub and early: fb.insert(t, f[1])
            else: fill.append(([f[1]], gm, gm))
            if t < 6:
                with k.cap() as f: th[t] = s.gu_epi(L, t)
                ge = max(ge, (EM if early else 32*t + 32) + 4)
                if bub and early: fb += f
                else: fill.append((f, ge, ge + 9 + (not early))); ge += 10
        if bub:
            with k.cap() as f: k.sprinkle(fb, dm[ns + 1], 1, 5)
            fill.append((f, E1 - 1, E1 - 1))
        if L == 0:
            for n, g0, g1 in P['wl']: fill.append((s.takew(min(n, len(s.bw) - 8)), g0, g1))
            assert len(s.bw) == 8
        for g in P.get('gs', ()):
            with k.cap() as f: s.stamp(f'g{g}')
            fill.append((f, g, g))
        base, last = s.gemm(steps, fences)
        ne, e0, e1 = s.P['he'][L]; g4, gp, gc, g6 = s.P['hg'][L]
        s.hso = [s.SO(s, sT0), s.SO(s, sT0+2)]
        with k.cap() as f:
            with k.group():
                I(f's_add_u32 s{sT0+5}, s{sFOP}, {hex(FH - FO)}\ns_add_u32 s{sT0+6}, s{sFOC}, {hex(FH - FO)}')
                if ne: k.wait(th[3]); s.flag(sT0+5, 0, 7*L + 4)
            with k.group(): k.wait(th[5]); s.flag(sT0+5, 0, 7*L + 6)
            if ne:
                s.hpoll(); s.hcheck(7*L + 4)
                for i in range(ne): s.hld(i)
        for g, t0, t1 in s.P['ht'][L]:
            if g < 224:
                with k.cap() as ft: s.htouch(th[t1], t0, t1)
                fill.append((ft, g, g))
        fill.append((f[:1], g4, g4))
        if ne:
            assert all(e0 + (i*(e1 - e0 + 1))//ne >= 192 + i for i in range(ne)) and e0 >= gc > gp > g4
            fill += [(f[2:3], gp, gp), (f[3:4], gc, gc), (f[4:], e0, e1)]
        if g6 < 224: fill.append((f[1:2], g6, g6))
        k.weave(base, *fill)
        s.f6 = f[1:2]
        with k.cap() as s.fe6: s.th6 = s.gu_epi(L, 6)
        if not P['h0'] or s.stop == f'h{L}':
            k.wait(last); I('s_barrier'); k.put(s.fe6); s.fe6 = []
        s.stamp('gu')
        return s.stop == f'h{L}'

    @property
    def horder(s):
        h0, tl = s.P['h0'], s.P['tl']
        return ([(t, jj, rt2) for rt2 in range(2) for t in range(h0) for jj in range(4)] + [(t, jj, rt2) for t in range(h0, 7 - tl) for jj in range(4) for rt2 in range(2)]
                + [(t, jj, rt2) for rt2 in range(2) for t in range(7 - tl, 7) for jj in range(4)])
    def hld(s, i):
        t, jj, rt2 = s.horder[i]
        s.ld(s.hso[rt2], v(vXB + 4*(i % 32), 4), vL16, sHQ + jj, rt2*112*1024 + s.ord(s.L)[t]*1024, s.md('h'))
    def htouch(s, tok, t0, t1):
        with s.k.group():
            s.k.wait(tok)
            s.I(f'v_min_u32 v{vT3}, {8*(t1 - t0) + 7}, v0\nv_add_lshl_u32 v{vT3}, v{vT3}, {8*t0}, 7\nbuffer_load_dword v21, v{vT3}, {WS}, s{sHPUB} offen sc1')
    def hpoll(s): s.I(f'buffer_load_dword v{vT0}, v{vFO}, {WS}, s{sT0+6} offen sc1')
    def hcheck(s, p):
        D = s.label('HC')
        with s.k.group():
            s.check(vT0, p)
            s.I(f's_cbranch_vccz {D}')
            with s.k.cond(): s.poll(vFO, sT0+6, 0, p)
            s.I(f'{D}:')
    def down(s, L):
        I = s.I; k = s.k
        SR = s.gslot(L, 6); bB = 1 - L
        I(f'v_add_u32 v{vT1}, {hex(SR*0x8000)}, v{vREDW}')
        ne = s.P['he'][L][0]; p6, p7 = s.P['hp'][L]
        if not ne:
            s.poll(vFO, sT0+6, 0, 7*L + 6)
            s.flag(sT0+5, 0, 7*L + 7)
            s.stamp('h_ok')
        n = max(s.P['hf'], ne); hld = s.hld
        assert ne + n <= 48 and 32 < p7 < 48 and (not ne or n <= p6 < 32)
        for i in range(ne, n): hld(i)
        P = s.P; seen = set()
        def mm(i, ct):
            t, jj, rt2 = s.horder[i]; a = vACC + 32*rt2 + 16*ct
            I(f'v_mfma_f32_32x32x16_bf16 {v(a,16)}, {a_(aWD(jj, s.ord(L)[t], ct),4)}, {v(vXB+4*(i%32),4)}, {v(a,16) if a in seen else "0"}'); seen.add(a)
        with k.cap() as base:
            for i in range(56):
                mm(i, 0)
                if i < 52 or not P['tl']: mm(i, 1)
                if i in P.get('ds', ()): s.stamp(f'd{i}')
                if i == P['hg'][L][3] - 224: k.put(s.f6)
                if ne and i == (P['f7'][L] if P['h0'] else ne): k.wait(s.th6); s.flag(sT0+5, 0, 7*L + 7)
                if P['h0'] and i == P['bi'][L]: I('s_barrier')
                if i + n == p7 or ne and i + n == p6: s.hpoll()
                if ne and i + n == 32: s.hcheck(7*L + 6)
                if i + n == 48: s.hcheck(7*L + 7)
                if i + n < 56: hld(i + n)
                if L == 0:
                    w0, w1 = P['wd']; assert w0 + 7*w1 < 47
                    if i >= w0 and (i - w0) % w1 == 0: k.put(s.takew(1))
            if P['tl']:
                for i in range(52, 56): mm(i, 1)
        rw = []
        for q in range(4):
            with k.cap() as f: t = s.red_write(SR, q >> 1, q & 1)
            rw.append((f, *(((105, 106), (107, 108), (109, 111), (999, 999))[q] if P['tl'] else (999, 999))))
        k.weave(base, (s.fe6, 1, 8*P['h0'] - 1), *rw)
        s.stamp('dn_gemm')
        def after():
            for i in range(8): s.tok['K'] = I(f'ds_write_b128 v{vT0}, {a_(aKP + 4*i, 4)} offset:{i*1024}')
        s.red_finish(SR, True, L, bB, 2*L + 2, L == 1, [t, s.tRS], None, after)
        s.stamp('x2pub')
        return s.stop == f'x{2*L+2}'

    def gen(s):
        I = s.I
        for L in range(2):
            s.L = L; s.ring = 192 + 32*L
            if s.qkv(L) or s.wo(L) or s.gu(L) or s.down(L): break
        I(f's_or_b32 s64, s{sR}, s{sJ}\ns_or_b32 s64, s64, s{sW}\ns_cmp_lg_u32 s64, 0\ns_cbranch_scc1 M_FIN')
        with s.k.cond():
            I(f's_add_u32 s64, s{sE}, 1\nv_mov_b32 v{vT5}, s64\nbuffer_store_dword v{vT5}, v{vL0}, {WS}, 0 offen')
        I('M_FIN:')
        if s.ts:
            s.stamp('end')
            I('s_memrealtime s[78:79]\ns_waitcnt lgkmcnt(0)\nv_writelane_b32 v23, s78, 61')
            I(f'v_writelane_b32 v23, s{sLIM}, 62\nv_writelane_b32 v23, s{sSLOW}, 63')
            I(f's_lshl_b32 s64, s{sR}, 4\ns_add_u32 s64, s64, s{sJ}\ns_lshl_b32 s64, s64, 2\ns_add_u32 s64, s64, s{sW}\ns_lshl_b32 s64, s64, 8\ns_add_u32 s64, s64, {hex(TS)}')
            I(f'v_lshlrev_b32 v{vT0}, 2, v0\nbuffer_store_dword v23, v{vT0}, {WS}, s64 offen sc1')
        if s.P.get('wb'): I('s_waitcnt vmcnt(0)\nbuffer_wbl2 sc1\ns_waitcnt vmcnt(0)')
        if s.P.get('dbg'):
            I(f's_cmp_lg_u32 s2, {s.P.get("dwg", 0)}\ns_cbranch_scc1 DB_END\ns_cmp_lg_u32 s{sW}, 0\ns_cbranch_scc1 DB_END')
            with s.k.cond():
                I('v_readlane_b32 s65, v23, 0\nv_mov_b32 v24, 0')
                for n, i in enumerate(s.P['dbg']): I(f'v_readlane_b32 s66, v23, {i}\ns_sub_u32 s66, s66, s65\nv_writelane_b32 v24, s66, {n}')
                I(f'v_lshlrev_b32 v25, 2, v0\nbuffer_store_dword v24, v25, {DS}, 0 offen')
            I('DB_END:')
        dg = s.P.get('diag')
        if dg is not None:
            I(f's_cmp_lg_u32 s2, {s.P.get("dwg", 0)}\ns_cbranch_scc1 DG_END\ns_cmp_lg_u32 s{sW}, 0\ns_cbranch_scc1 DG_END')
            with s.k.cond():
                I('v_readlane_b32 s64, v23, 60\ns_add_u32 s64, s64, 10000')
                if dg == 'rt': I('v_readlane_b32 s65, v23, 60\nv_readlane_b32 s66, v23, 61\ns_sub_u32 s66, s66, s65\ns_lshl_b32 s66, s66, 2\ns_add_u32 s64, s64, s66')
                elif dg:
                    i = [n for n, nm in enumerate(s.tsnames) if nm == dg[0]][dg[1]]
                    I(f'v_readlane_b32 s65, v23, 0\nv_readlane_b32 s66, v23, {i}\ns_sub_u32 s66, s66, s65\ns_lshr_b32 s66, s66, 2\ns_min_u32 s66, s66, 100000\ns_add_u32 s64, s64, s66')
                gs = s.P.get('gstat')
                if gs:
                    i = 60 if gs[0] == 'start' else [n for n, nm in enumerate(s.tsnames) if nm == gs[0]][gs[1]]
                    I('s_sub_u32 s68, s64, 2500\ns_mov_b32 s67, 0\nDG_W:\ns_memrealtime s[78:79]\ns_waitcnt lgkmcnt(0)\ns_sub_u32 s66, s78, s68\ns_cmp_lt_u32 s66, 0x80000000\ns_cbranch_scc1 DG_W2')
                    I('s_add_u32 s67, s67, 1\ns_cmp_lt_u32 s67, 200000\ns_cbranch_scc1 DG_W\nDG_W2:')
                    I(f'v_lshlrev_b32 v25, 10, v0\nv_readlane_b32 s65, v23, 60')
                    for q in range(4):
                        I(f's_mov_b32 s66, {hex(TS + q*65536)}\nbuffer_load_dword v{32+q}, v25, {WS}, s66 offen offset:240 sc1\nbuffer_load_dword v{36+q}, v25, {WS}, s66 offen offset:{4*i} sc1')
                    I('s_waitcnt vmcnt(0)')
                    for q in range(8): I(f'v_subrev_u32 v{32+q}, s65, v{32+q}')
                    op = {'max': 'max_i32', 'min': 'min_i32', 'mean': 'add_u32'}[gs[2]]
                    for q in range(1, 4): I(f'v_min_i32 v32, v32, v{32+q}\nv_{op} v36, v36, v{36+q}')
                    I('v_readlane_b32 s68, v32, 0\nv_readlane_b32 s69, v36, 0\ns_mov_b32 s67, 1\nDG_R:\ns_nop 4\nv_readlane_b32 s70, v32, s67\nv_readlane_b32 s71, v36, s67\ns_nop 4')
                    I(f's_min_i32 s68, s68, s70\ns_{op} s69, s69, s71\ns_add_u32 s67, s67, 1\ns_cmp_lt_u32 s67, 64\ns_cbranch_scc1 DG_R')
                    if gs[2] == 'mean': I('s_ashr_i32 s69, s69, 8')
                    I('s_sub_u32 s69, s69, s68\ns_lshl_b32 s69, s69, 2\ns_min_u32 s69, s69, 100000\ns_add_u32 s64, s64, s69')
                I('s_mov_b32 s67, 0\nDG_L:\ns_memrealtime s[78:79]\ns_waitcnt lgkmcnt(0)\ns_sub_u32 s66, s78, s64\ns_cmp_lt_u32 s66, 0x80000000\ns_cbranch_scc1 DG_END')
                I('s_add_u32 s67, s67, 1\ns_cmp_lt_u32 s67, 200000\ns_cbranch_scc1 DG_L')
            I('DG_END:')
        I('s_waitcnt vmcnt(0)\nM_END:\ns_endpgm')
        return s.k

HEADER = open('cdna_kernels/' + NAME + '.s.ref').read().split('; Override')[0] if __name__ == '__main__' else ''

def build(stop=None, ts=False, header='', **kw):
    st = {}
    m = Main(stop, ts, **kw)
    main = m.gen().finish(st)
    txt = header
    ls = kw.get('lst', 0)
    if ls == 2: txt += '; @launch kernel=pre_kernel grid=(256,1,1) block=(64,1,1) lds=0\n'
    txt += f'; @launch {"kernel=" + NAME + "_kernel " if ls else ""}grid=(256,1,1) block=(256,1,1) lds={LDS_MAIN}\n'
    if ls == 3: txt += '; @launch kernel=pre_kernel grid=(256,1,1) block=(64,1,1) lds=0\n'
    txt += '.amdgcn_target "amdgcn-amd-amdhsa--gfx950"\n.text\n'
    if ls > 1: txt += head('pre_kernel') + 's_endpgm\n' + kd('pre_kernel', 8, 8, 16)
    txt += head(NAME + '_kernel') + main + '\nCODE_END:\n'
    txt += kd(NAME + '_kernel', 512, 256)
    return txt, (st, m.tsnames)

if __name__ == '__main__':
    txt, st = build(header=HEADER)
    out = sys.argv[1] if len(sys.argv) > 1 else 'cdna_kernels/' + NAME + '.s'
    open(out, 'w').write(txt); print(st, len(txt))
```

```python
import sys, contextlib
from asm import Asm, Ins
NAME = 'interleave_layers__linear_kernel_hedgehog__glu_gated_reglu__prompt'

FX, FO, FH, FU, S0 = 0x2000, 0x4000, 0x6000, 0x30000, 0x10000
CS = 0x20000
ST = 0x40000
XB = (0x200000, 0x400000)
KVP = 0x600000
KVZ = 0x680000
HB = 0x800000
WQKV, WO_P, WD_P, WGU = 0x1000000, 0x1180000, 0x1200000, 0x1400000
TS = 0x2000000
WS_SIZE = 0x10000000
OOB = 0x7ffffff0
XA = 0x20000; PS = 2112
KVA = 0x26400; ZA = 0x26C00; ZERO = 0x26D00; RS = 0x27100
SUMS = (0x27400, 0x27600, 0x27C00, 0x27E00); WPH = 0x27800
LDS_MAIN = 163840

def v(a, n=1): return f'v{a}' if n == 1 else f'v[{a}:{a+n-1}]'
def a_(a, n=1): return f'a{a}' if n == 1 else f'a[{a}:{a+n-1}]'
def s_(a, n=1): return f's{a}' if n == 1 else f's[{a}:{a+n-1}]'

def kd(name, vgpr, acc, sgpr=102):
    return f'''.section .rodata,"a"
.p2align 6
.amdhsa_kernel {name}
  .amdhsa_next_free_vgpr {vgpr}
  .amdhsa_next_free_sgpr {sgpr}
  .amdhsa_accum_offset {acc}
  .amdhsa_group_segment_fixed_size 0
  .amdhsa_kernarg_size 88
  .amdhsa_user_sgpr_count 2
  .amdhsa_user_sgpr_kernarg_segment_ptr 1
  .amdhsa_system_sgpr_workgroup_id_x 1
.end_amdhsa_kernel
.text
'''
def head(name):
    return f'.globl {name}\n.p2align 8\n.type {name},@function\n{name}:\n'

def srd(I, d, b, size):
    I(f's_mov_b32 s{d}, s{b}\ns_mov_b32 s{d+1}, s{b+1}\ns_mov_b32 s{d+2}, {hex(size)}\ns_mov_b32 s{d+3}, 0x20000')

WS, XS, OS, DS = 's[8:11]', 's[12:15]', 's[16:19]', 's[20:23]'
sW, sG, sRK, sR, sJ, sHB, sCG, sTAG, sE, sLIM = 24, 25, 26, 27, 28, 29, 30, 31, 32, 33
sQKV, sGU, sWO, sWD = 34, 35, 36, 37
sXIN, sXO, sXPUB, sSTIN, sSTPUB = 38, 39, 40, 41, 42
sHPUB, sHIN, sFXC, sFXP, sFOC, sFOP, sKVP, sKVC, sNAT, sM0 = 43, 44, 45, 46, 47, 48, 49, 50, 51, 52
sSELLO, sSELHI, sONES, sLOG2E, sOM, sSLOW, sMARK = 53, 54, 55, 56, 57, 58, 59
sT0 = 60
QS, US, PS_, DS2, CSRD = 's[80:83]', 's[84:87]', 's[88:91]', 's[72:75]', 's[4:7]'
sPO, sWM, sXB, sXM, sUB, sUST, sUD = 92, 96, 97, 98, 99, 100, 101
sHQ, sWQ = 72, 80
sUKC, sUCS, sUB2, sUD2 = 76, 77, 88, 89
vW0, vX0, vU0, vWR, vXR, vSW, vSR, vWW = 32, 34, 36, 38, 40, 44, 45, 46
vUR, vUD = 40, 42
vMU, vMK = 20, 22
vROW = 240
vL, vL16, vL16b, vFX, vFO, vL0, vSTL, vPUB, vPHW, vTRA, vTRB, vKVW, vZW, vKVR, vZR, vREDW, vNAT, vSTW, vRSW, vRSR = range(20)
vRSTD, vC, vT0, vT1, vT2, vT3, vT4, vT5 = range(24, 32)
vRES = 32; vTMP = 48; vACC = 64; vXB = 128; aKP = 224
def aWD(jj, t, ct): return 4*((12*jj + 2*t if t < 6 else 48 + 2*jj) + ct)

P0 = dict(ka=3, pad=-1, pg=(4,1), xf=8, hf=10, uf='nt', xnt='', rnt='', ct=1, k0=20, kn=3, ko=range(9),
          sp=(0, 0, 1), xa=6, xe=8, tp=('', 10, 18), xb=4, xc=4, xd=1, xr=2.5, ug=0, kq=((50, 8), (2, 12), (110, 4)), fg=-30, fup=1, sl=12, oq=((0, 6), (0, 12)), ot=(0, 0), on=(4, 0), oe=35, og=(4, 13), tw=('Xf', ''), twp=(7, 1),
          t1=(0, 6), t2=(4, 4), t3=(4, 6), t4=(8, 4), late=(1, 1), w2=0, w3=8, w4=2, n1=(2, 2), ub=4, qw=0, qo=0, wm=272, fl=0, ee=0, ew=1, s2=0, up=7, rl=1, f1p=(0, 0, 1), uc=12, f1=(27, 30), oh=28, po=((10, 0), (9, 21)), fe=0, w1=0, ue=0, uw=(2, 4, 15, 0, 15), vm=0, tq=('', ''), tz=('', ''), h0=1, f7=(17, 17), bi=(40, 40), fb=0, o1=(5, 4, 6, 3, 2, 1, 0), fd=((71, 88), (89, 106), (121, 150)), tr=(40, 60), tl=1, t1l=3, wa=0, kf=(0, 0), ta=0, tb=(0, 0, 24), op=0, wd=(10, 5), kw=(8, 4), kp=(2, 16),
          wl=((8, 44, 60), (11, 64, 92), (7, 108, 124), (7, 140, 156), (7, 172, 188)), dl=(14, 31),
          he=((12, 201, 223), (12, 201, 223)), hg=((175, 188, 200, 219), (175, 188, 200, 219)), hp=((22, 38), (22, 38)), ht=((), ()), ws=0, tk=('', 'xf'), tkg=(59, 60), hm=('sc1', 'sc1'), om='sc1', nt=('', ''), tg=((('XSf', 190),), (('f', 190),)), to=('xs', ''))
WOX = (0x18000, 0x8000)
class Main:
    def __init__(s, stop=None, ts=False, **kw):
        s.k = Asm(); s.I = s.k.I; s.stop = stop; s.ts = ts; s.nl = 0; s.nts = 0; s.tsnames = []; s.bg = []; s.m0dirty = False; s.bw = []; s.tok = {}; s.P = dict(P0); s.P.update(kw)
    def md(s, key, d='sc1'): return d + (' nt' if str(key) in s.P['nt'][s.L] else '')
    def label(s, p):
        s.nl += 1; return f'{p}_{s.nl}'
    def stamp(s, name):
        if s.P.get('p2') == name and not getattr(s, 'p2d', 0): s.p2d = 1; s.I('PGW:')
        if not s.ts or s.ts == 2 and name != 'end' or name in s.P.get('nos', ()): return
        r = 80 + 2*(s.nts % 10)
        s.tsnames.append(name)
        with s.k.group():
            s.I(f's_mem{"real" if s.P.get("gstat") else ""}time s[78:79]\ns_waitcnt lgkmcnt(0)\nv_writelane_b32 v23, s78, {s.nts}')
        s.nts += 1
    class SO:
        def __init__(o, m, tmp): o.m = m; o.tmp = tmp; o.key = None
        def get(o, base, off):
            hi = off & ~4095; lo = off & 4095
            if hi == 0: return f's{base}', lo
            if o.key != (base, hi):
                o.m.I(f's_add_u32 s{o.tmp}, s{base}, {hex(hi)}'); o.key = (base, hi)
            return f's{o.tmp}', lo
    def ld(s, so, dst, voff, base, off, mod='', op='buffer_load_dwordx4', srdn=WS):
        with s.k.group():
            r, lo = so.get(base, off)
            t = s.I(f'{op} {dst}, v{voff}, {srdn}, {r} offen' + (f' offset:{lo}' if lo else '') + (' ' + mod if mod else ''))
        return t
    def pub(s, t):
        t.alt = (f's{sSLOW}', t.text + ' sc1'); return t
    def dma_tile(s, so, base, off, slot, mod):
        t = None
        for h in range(2):
            for i in range(4):
                with s.k.group():
                    if i == 0:
                        s.I(f's_add_u32 m0, s{sM0}, {hex(slot*0x8000 + h*4096)}')
                        s.I(f's_add_u32 s{so}, s{base}, {hex(off + h*4096)}')
                    t = s.I(f'buffer_load_dwordx4 v{vL16}, {WS}, s{so} offen' + (f' offset:{i*1024}' if i else '') + f' {mod} lds')
        return t
    def bg_tile(s, key, base, off, slot):
        with s.k.cap() as f: s.tok[key] = s.dma_tile(sT0+1, base, off, slot, s.md(key))
        if (s.L, key) in s.P.get('st', ()): s.tok[key] = None; return
        s.bg += f
    def take(s, n):
        r = s.bg[:n]; s.bg = s.bg[n:]
        if r and len(r[0]) == 1 and s.m0dirty: r[0] = [Ins(x.text) for x in s.setup] + r[0]
        if r: s.m0dirty = False
        for g in r:
            if len(g) == 3: s.setup = g[:2]
        return r
    def takew(s, n):
        r = s.bw[:n]; s.bw = s.bw[n:]; return r
    def check(s, vt, p):
        s.I(f's_add_u32 s{sT0+8}, s{sTAG}, {p}\nv_subrev_u32 v{vt}, s{sT0+8}, v{vt}\nv_cmp_lt_u32 vcc, 15, v{vt}')
    def poll(s, voff, sbase, off, p, vt=vT0):
        I = s.I; L = s.label('POLL'); D = s.label('PD')
        I(f's_mov_b32 s{sT0+9}, 0')
        I(f'{L}:')
        I(f'buffer_load_dword v{vt}, v{voff}, {WS}, s{sbase} offen' + (f' offset:{off}' if off else '') + ' sc1')
        I('s_waitcnt vmcnt(0)')
        s.check(vt, p)
        I(f's_cbranch_vccz {D}')
        with s.k.cond():
            I(f's_add_u32 s{sT0+9}, s{sT0+9}, 1\ns_cmp_lt_u32 s{sT0+9}, s{sLIM}\ns_cbranch_scc1 {L}\ns_mov_b32 s{sLIM}, 1')
        I(f'{D}:')
    def flag(s, sbase, off, p):
        with s.k.group():
            s.I(f's_add_u32 s{sT0+10}, s{sTAG}, {p}\nv_mov_b32 v{vT5}, s{sT0+10}')
            s.pub(s.I(f'buffer_store_dword v{vT5}, v{vL0}, {WS}, s{sbase} offen' + (f' offset:{off}' if off else '')))
    def tX(s, buf, t=vT3):
        with s.k.group():
            s.I(f's_lshl_b32 s{sT0+11}, s{sJ}, 11\ns_add_u32 s{sT0+11}, s{sT0+11}, s{sXIN}' + (f'\ns_add_u32 s{sT0+11}, s{sT0+11}, 0x200000' if buf else ''))
            s.I(f'v_lshlrev_b32 v{t}, 5, v{vFX}\nbuffer_load_dword v21, v{t}, {WS}, s{sT0+11} offen sc1')
    def tS(s, buf, t=vT3):
        with s.k.group():
            if s.P['t1l'] & 1:
                s.I(f's_lshl_b32 s{sT0+11}, s{sJ}, 7\ns_add_u32 s{sT0+11}, s{sT0+11}, s{sSTIN}' + (f'\ns_add_u32 s{sT0+11}, s{sT0+11}, 0x20000' if buf else ''))
                s.I(f'buffer_load_dword v21, v{vL0}, {WS}, s{sT0+11} offen sc1')
                return
            if buf: s.I(f's_add_u32 s{sT0+11}, s{sSTIN}, 0x20000')
            s.I(f'v_lshlrev_b32 v{t}, 5, v{vFX}\nbuffer_load_dword v21, v{t}, {WS}, s{sT0+11 if buf else sSTIN} offen sc1')
    def tF(s, t=vT3):
        with s.k.group():
            if s.P['t1l'] & 2:
                s.I(f's_and_b32 s{sT0+11}, s{sJ}, 3\ns_lshl_b32 s{sT0+11}, s{sT0+11}, 13\ns_add_u32 s{sT0+11}, s{sT0+11}, s{sFXC}')
                s.I(f'buffer_load_dword v21, v{vL0}, {WS}, s{sT0+11} offen sc1')
                return
            s.I(f'v_and_b32 v{t}, 3, v0\nv_lshlrev_b32 v{t}, 13, v{t}\nbuffer_load_dword v21, v{t}, {WS}, s{sFXC} offen sc1')
    def tH(s, t=vT3):
        with s.k.group():
            s.I(f'v_min_u32 v{t}, 55, v0\nv_lshlrev_b32 v{t}, 7, v{t}\nbuffer_load_dword v21, v{t}, {WS}, s{sHPUB} offen sc1')
    def tG(s, d, t):
        o = s.ord(s.L); a, b = sorted((o[d], o[min(d + 1, 6)]))
        with s.k.group():
            s.I(f's_and_b32 s{sT0+11}, s{sR}, 1\ns_lshl_b32 s{sT0+11}, s{sT0+11}, 12\ns_add_u32 s{sT0+11}, s{sT0+11}, s{sGU}\ns_add_u32 s{sT0+11}, s{sT0+11}, {hex(a*0x8000)}')
            if a == b: s.I(f'v_and_b32 v{t}, 31, v0\nv_lshlrev_b32 v{t}, 7, v{t}')
            else: s.I(f'v_and_b32 v{t}, 32, v0\nv_mul_u32_u24 v{t}, {hex((b - a)*8 - 1)}, v{t}\nv_add_lshl_u32 v{t}, v{t}, v0, 7')
            s.I(f'buffer_load_dword v21, v{t}, {WS}, s{sT0+11} offen sc1')
    def tW(s, h, t):
        with s.k.group():
            s.I(f's_lshr_b32 s{sT0+11}, s{sRK}, 3\ns_lshl_b32 s{sT0+11}, s{sT0+11}, 7\ns_add_u32 s{sT0+11}, s{sT0+11}, s{sWD}' + (f'\ns_add_u32 s{sT0+11}, s{sT0+11}, 28672' if h else ''))
            s.I(f'v_min_u32 v{t}, 55, v0\nv_lshlrev_b32 v{t}, 9, v{t}\nbuffer_load_dword v21, v{t}, {WS}, s{sT0+11} offen sc1')
    def touches(s, names, t=vT3):
        with s.k.cap() as f:
            for n in names:
                if n.isdigit(): s.tG(int(n), t); continue
                if n in 'wW': s.tW(n == 'W', t); continue
                {'x': lambda: s.tX(0, t), 'X': lambda: s.tX(1, t), 's': lambda: s.tS(0, t), 'S': lambda: s.tS(1, t), 'f': lambda: s.tF(t), 'h': lambda: s.tH(t)}[n]()
        return f
    def ldsA(s, slot, kc):
        a = slot*0x8000 + kc*1024
        return (vL16, a) if a < 0x10000 else (vL16b, a - 0x10000)
    def gemm(s, steps, fences={}, LA=6):
        I = s.I; n = len(steps); nr = 0; last = None; aRING = s.ring
        blocked = sorted((f[0], g) for g, f in fences.items())
        def limit(i):
            for st, g in blocked:
                if g > i: return st
            return n
        def rd():
            nonlocal nr, last
            vr, off = s.ldsA(steps[nr][0], steps[nr][4 if len(steps[nr]) > 4 else 1])
            last = I(f'ds_read_b128 {a_(aRING + 4*(nr % 8), 4)}, v{vr} offset:{off}'); nr += 1
        with s.k.cap() as base:
            while nr < min(LA, limit(-1)): rd()
            for i, (slot, kc, acc, first, *_) in enumerate(steps):
                assert nr > i
                I(f'v_mfma_f32_32x32x16_bf16 {v(acc,16)}, {a_(aRING + 4*(i % 8), 4)}, {v(vXB+4*kc,4)}, {"0" if first else v(acc,16)}')
                if i in fences:
                    if len(fences[i]) == 2:
                        assert nr == fences[i][0], (nr, i, fences[i])
                        s.k.wait(last)
                    s.k.wait(*fences[i][1]); I('s_barrier')
                c = 0
                while nr < min(i + 1 + LA, limit(i), n) and c < 2: rd(); c += 1
        return base, last

    def init0(s):
        I = s.I; k = s.k
        I('s_cmp_ge_u32 s2, 256\ns_cbranch_scc1 M_END')
        I('s_load_dwordx2 s[80:81], s[0:1], 8\ns_load_dwordx2 s[88:89], s[0:1], 16\ns_load_dwordx2 s[12:13], s[0:1], 0')
        ka = ['s_load_dwordx2 s[8:9], s[0:1], 80', 's_load_dwordx2 s[16:17], s[0:1], 64\ns_load_dwordx2 s[20:21], s[0:1], 72',
              's_load_dwordx4 s[40:43], s[0:1], 40\ns_load_dwordx2 s[72:73], s[0:1], 56\ns_load_dwordx2 s[6:7], s[0:1], 24']
        for t in ka[:s.P.get('ka', 0)]: I(t)
        if s.ts:
            I('s_memtime s[78:79]\ns_memrealtime s[70:71]'); s.tsnames.append('start'); s.nts = 1
        I(f's_lshr_b32 s{sRK}, s2, 3')
        if s.P.get('jx'): I(f's_xor_b32 s{sRK}, s{sRK}, {s.P["jx"]}')
        if s.P['ct']:
            I(f's_getpc_b64 s[4:5]\nPC0:\nv_lshrrev_b32 v2, 4, v0\nv_lshl_add_u32 v2, s{sRK}, 4, v2\nv_lshlrev_b32 v2, 7, v2\nv_min_u32 v2, CODE_END-PC0-4, v2')
            I(f'v_mov_b32 v3, s5\nv_add_co_u32 v2, vcc, s4, v2\nv_addc_co_u32 v3, vcc, 0, v3, vcc\nglobal_load_dword v21, v[2:3], off')
        I(f'v_lshrrev_b32 v1, 6, v0\nv_and_b32 v0, 63, v0\nv_readfirstlane_b32 s{sW}, v1')
        I(f's_mov_b32 s82, {hex(512*3072)}\ns_mov_b32 s83, 0x20000\ns_lshr_b32 s64, s{sRK}, 4')
        I(f's_and_b32 s{sJ}, s{sRK}, 15\ns_and_b32 s{sCG}, s{sJ}, 7\ns_lshl_b32 s{sM0}, s{sW}, 13')
        I(f's_lshl_b32 s65, s64, 11\ns_add_u32 s{sWM}, s65, s{sM0}')
        I(f's_lshl_b32 s65, s{sCG}, 1\ns_lshl_b32 s66, s{sW}, 2\ns_xor_b32 s65, s65, s66\ns_or_b32 s67, s64, s65')
        dx = s.P.get('dx', 0)
        I(f's_lshl_b32 s65, s{sJ}, 6')
        if dx & 4: I('s_xor_b32 s65, s65, 0x200')
        if dx >> 3: I(f's_xor_b32 s65, s65, {dx >> 3 << 7}')
        I(f's_mul_i32 s66, s67, {32*3072}\ns_add_u32 s{sPO}, s66, s65')
        I(f'v_lshrrev_b32 v48, 2, v0\nv_and_b32 v49, 3, v0\nv_lshrrev_b32 v51, 4, v0\nv_xor_b32 v49, v49, v51\nv_lshlrev_b32 v49, 4, v49')
        I(f'v_mul_u32_u24 v{vW0}, 3072, v48\nv_add_u32 v{vW0}, v{vW0}, v49\nv_add_u32 v{vW0+1}, {16*3072-1024}, v{vW0}')
        if s.P.get('o0'):
            I(f's_and_b32 s{sG}, s2, 7\ns_lshl_b32 s{sR}, s{sG}, 1\ns_add_u32 s{sR}, s{sR}, s64\ns_mov_b32 s14, {hex(2048*1024)}\ns_mov_b32 s15, 0x20000')
            I(f's_lshl_b32 s64, s{sR}, 17\ns_lshl_b32 s66, s{sJ}, 13\ns_add_u32 s64, s64, s66\ns_lshl_b32 s66, s{sW}, 11\ns_add_u32 s64, s64, s66')
            I(f's_mov_b32 s90, {hex(32*512)}\ns_mov_b32 s91, 0x20000\nv_lshlrev_b32 v{vL16}, 4, v0\ns_lshl_b32 s66, s{sJ}, 10')
            I('s_waitcnt lgkmcnt(0)')
            assert s.P['ka'] == 3
            for c in s.P['o0']:
                if c == 'K': s.wdma(0, 0, 1024)
                if c == 'V': s.wdma(0, 1, 2048)
                if c == 'P':
                    I(f's_mov_b32 m0, {hex(WPH)}')
                    s.tok['P'] = I(f'buffer_load_dwordx4 v{vL16}, {PS_}, s66 offen lds')
                if c == 'R': I(f'buffer_load_dwordx4 {v(vROW,4)}, v{vL16}, {XS}, s64 offen {s.P["rnt"]}\nbuffer_load_dwordx4 {v(vROW+4,4)}, v{vL16}, {XS}, s64 offen offset:1024 {s.P["rnt"]}')
        else:
            I('s_waitcnt lgkmcnt(0)')
            s.wdma(0, 0, 1024)
            for t in ka[s.P.get('ka', 0):]: I(t)
            I(f's_mov_b32 s90, {hex(32*512)}\ns_mov_b32 s91, 0x20000\nv_lshlrev_b32 v{vL16}, 4, v0\ns_lshl_b32 s66, s{sJ}, 10\ns_mov_b32 m0, {hex(WPH)}')
            if dx & 1: I('s_xor_b32 s66, s66, 0x2000')
            s.tok['P'] = I(f'buffer_load_dwordx4 v{vL16}, {PS_}, s66 offen lds')
            s.wdma(0, 1, 2048)
            I(f's_and_b32 s{sG}, s2, 7\ns_lshl_b32 s{sR}, s{sG}, 1\ns_add_u32 s{sR}, s{sR}, s64\ns_mov_b32 s14, {hex(2048*1024)}\ns_mov_b32 s15, 0x20000')
            I(f's_lshl_b32 s64, s{sR}, 17\ns_lshl_b32 s66, s{sJ}, 13\ns_add_u32 s64, s64, s66\ns_lshl_b32 s66, s{sW}, 11\ns_add_u32 s64, s64, s66')
            if dx & 2: I('s_xor_b32 s64, s64, 0x10000')
            I(f'buffer_load_dwordx4 {v(vROW,4)}, v{vL16}, {XS}, s64 offen {s.P["rnt"]}\nbuffer_load_dwordx4 {v(vROW+4,4)}, v{vL16}, {XS}, s64 offen offset:1024 {s.P["rnt"]}')
        if s.ts: I('v_mov_b32 v23, 0\nv_writelane_b32 v23, s78, 0\nv_writelane_b32 v23, s70, 60\nv_writelane_b32 v23, s4, 59')
        s.stamp('r1')
        if s.P.get('lat'):
            for n in (7, 6, 5, 4, 3, 2, 0): I(f's_waitcnt vmcnt({n})'); s.stamp(f'vm{n}')
        for p in range(1, 4): I(f's_xor_b32 s66, s67, {p}\ns_mul_i32 s66, s66, {32*3072}\ns_add_u32 s{sPO+p}, s66, s65')
        for d, size in ((8, WS_SIZE), (16, 2048*1024), (20, 256)):
            I(f's_mov_b32 s{d+2}, {hex(size)}\ns_mov_b32 s{d+3}, 0x20000')
        I(f's_lshr_b32 s{sHB}, s{sJ}, 3')
        I(f's_lshl_b32 s64, s{sR}, 2\ns_add_u32 s64, s64, s{sW}\ns_lshl_b32 s64, s64, 15\ns_lshl_b32 s65, s{sCG}, 7\ns_or_b32 s64, s64, s65\ns_lshl_b32 s65, s{sHB}, 14\ns_or_b32 s{sXB}, s64, s65')
        I(f's_lshl_b32 s65, s{sHB}, 11\ns_or_b32 s{sXM}, s65, s{sM0}')
        I(f'v_and_b32 v50, 7, v0\nv_lshlrev_b32 v53, 4, v50\nv_xor_b32 v50, v50, v51\nv_lshlrev_b32 v50, 4, v50\nv_lshrrev_b32 v52, 3, v0\nv_lshl_or_b32 v{vX0}, v52, 10, v50')
        I(f'v_xor_b32 v{vX0+1}, 64, v{vX0}\nv_add_u32 v{vX0+1}, {8192-1024}, v{vX0+1}')
    def wdma(s, p, slot, col):
        with s.k.group():
            s.I(f's_xor_b32 m0, s{sWM}, {hex(slot*0x8000 + p*2048)}\ns_add_u32 s{sT0+1}, s{sPO+p}, {col}')
            s.I(f'buffer_load_dwordx4 v{vW0}, {QS}, s{sT0+1} offen lds')
            return s.I(f'buffer_load_dwordx4 v{vW0+1}, {QS}, s{sT0+1} offen offset:1024 lds')
    def udma(s, i):
        with s.k.group():
            s.I(f's_add_u32 m0, s{sM0}, {hex(0x18000 + i*1024)}')
            if i < 4:
                t = s.I(f'buffer_load_dwordx4 v{vU0}, {US}, s{sUB} offen {s.P["uf"]} lds')
                if i < 3: s.I(f's_add_u32 s{sUB}, s{sUB}, {8*3584}')
            else:
                t = s.I(f'buffer_load_dwordx4 v{vU0+1}, {DS2}, s{sUB2} offen {s.P["uf"]} lds')
                if i < 5: s.I(f's_add_u32 s{sUB2}, s{sUB2}, 8192')
            return t
    def xreg(s, c): return (2 + (c >> 1 & 1))*0x8000 + (c & 1)*4096
    def xdma(s, c, p):
        with s.k.group():
            s.I(f's_xor_b32 m0, s{sXM}, {hex(s.xreg(c) + p*2048)}\ns_xor_b32 s{sT0+1}, s{sXB}, {hex(c*128 + p*16384)}')
            s.I(f'buffer_load_dwordx4 v{vX0}, {XS}, s{sT0+1} offen {s.P["xnt"]} lds')
            return s.I(f'buffer_load_dwordx4 v{vX0+1}, {XS}, s{sT0+1} offen offset:1024 {s.P["xnt"]} lds')
    def unit(s):
        I = s.I; k = s.k
        I(f's_lshr_b32 s64, s2, 6\ns_and_b32 s65, s2, 63\ns_and_b32 s66, s2, 7')
        I(f's_lshr_b32 s67, s{sW}, 1\ns_lshl_b32 s67, s67, 2\ns_and_b32 s68, s{sW}, 1\ns_or_b32 s67, s67, s68\ns_lshl_b32 s67, s67, 8')
        I(f's_mov_b32 s87, 0x20000\ns_mov_b32 s75, 0x20000')
        with k.group(): I(f's_cmp_lt_u32 s65, 56\ns_cselect_b32 s74, {hex(1792*1024)}, 0\ns_cselect_b32 s68, 0, 0x70000000')
        I(f's_mov_b32 s86, s74\ns_mul_i32 s70, s64, 7\ns_lshr_b32 s71, s65, 3\ns_add_u32 s70, s70, s71')
        I(f's_lshl_b32 s{sUB2}, s70, 16\ns_lshl_b32 s71, s{sW}, 14\ns_add_u32 s{sUB2}, s{sUB2}, s71\ns_lshl_b32 s71, s66, 7\ns_add_u32 s{sUB2}, s{sUB2}, s71')
        I(f's_mul_i32 s{sUD2}, s66, {224*1024}\ns_lshl_b32 s70, s70, 13\ns_add_u32 s{sUD2}, s{sUD2}, s70\ns_add_u32 s67, s67, s68\ns_add_u32 s{sUD2}, s{sUD2}, s67\ns_add_u32 s{sUD2}, s{sUD2}, {hex(WD_P)}')
        with k.group(): I(f's_cmp_ge_u32 s65, 28\ns_cselect_b32 s84, s42, s40\ns_cselect_b32 s85, s43, s41\ns_cselect_b32 s70, 28, 0\ns_cselect_b32 s71, 1, 0')
        I(f's_sub_u32 s65, s65, s70\ns_lshl_b32 s{sUB}, s65, 7\ns_lshl_b32 s65, s65, 2\ns_add_u32 s65, s65, s{sW}')
        I(f's_lshl_b32 s69, s64, 2\ns_add_u32 s69, s69, s{sW}\ns_mul_i32 s69, s69, {32*3584}\ns_add_u32 s{sUB}, s{sUB}, s69')
        I(f's_lshl_b32 s{sUD}, s65, 15\ns_lshl_b32 s70, s64, 13\ns_add_u32 s{sUD}, s{sUD}, s70\ns_lshl_b32 s70, s71, 8\ns_add_u32 s70, s70, s68\ns_add_u32 s{sUD}, s{sUD}, s70\ns_add_u32 s{sUD}, s{sUD}, {hex(WGU)}')
        I(f's_mul_i32 s64, s64, 112\ns_add_u32 s64, s64, s65\ns_lshl_b32 s64, s64, 1\ns_add_u32 s64, s64, s71\ns_lshl_b32 s64, s64, 6\ns_add_u32 s64, s64, s68\ns_add_u32 s{sUCS}, s64, {hex(CS)}')
        I(f'v_mul_u32_u24 v{vU0}, 3584, v52\nv_add_u32 v{vU0}, v{vU0}, v53\nv_lshl_or_b32 v{vU0+1}, v52, 10, v53')
    def uaddr(s):
        I = s.I; t0, t1 = vT2, vT4
        I(f'v_bfe_u32 v{t0}, v0, 2, 2\nv_lshrrev_b32 v{t1}, 5, v0\nv_lshl_or_b32 v{t0}, v{t1}, 3, v{t0}\nv_lshlrev_b32 v{vUR}, 7, v{t0}')
        I(f'v_lshlrev_b32 v{vUD}, 2, v{vFX}\nv_lshl_or_b32 v{vUD}, v{t1}, 9, v{vUD}')
        I(f'v_and_b32 v{t0}, 1, v0\nv_lshl_or_b32 v{vUR}, v{t0}, 4, v{vUR}\nv_bfe_u32 v{t0}, v0, 1, 1\nv_lshl_or_b32 v{vUR}, v{t0}, 3, v{vUR}')
        with s.k.group(): I(f's_lshl_b32 s{sT0+3}, s{sW}, 5\ns_add_u32 s{sT0+3}, s{sT0+3}, 0x18000\nv_add_u32 v{vUR}, s{sT0+3}, v{vUR}')
        I(f'v_bfe_u32 v{t0}, v0, 4, 1\nv_lshl_or_b32 v{vUR+1}, v{t0}, 13, v{vUR}\nv_lshl_or_b32 v{vUR}, v{t0}, 11, v{vUR}')
        I(f'v_lshl_or_b32 v{vUD+1}, v{t0}, 11, v{vUD}\nv_lshl_or_b32 v{vUD}, v{t0}, 10, v{vUD}')
    def uproc(s):
        I = s.I; k = s.k; d = 64; v = globals()['v']
        if s.P['ue']: d = 96; v = a_
        for n, r in (('a', sUD), ('b', sUD2), ('c', sUCS)):
            if n in s.P.get('nou', ''): I(f's_mov_b32 s{r}, 0x70000000')
        with k.group():
            k.wait(s.tok['U'])
            if s.P.get('xs'): s.stamp('u_ok')
            I('s_barrier')
        for q in range(6):
            with k.group():
                for r in range(2):
                    if q < 4: t = I(f'ds_read_b64_tr_b16 {v(d+4*q+2*r,2)}, v{vUR} offset:{q*8192 + r*512}')
                    else: t = I(f'ds_read_b64_tr_b16 {v(d+4*q+2*r,2)}, v{vUR+1} offset:{(q-4)*16384 + 4096 + r*512}')
        with k.group(): k.wait(t); I('s_barrier')
        for q in range(6):
            with k.group():
                if q < 4:
                    I(f'v_mfma_f32_16x16x32_bf16 {v(d+24,4)}, a[64:67], {v(d+4*q,4)}, {"0" if q == 0 else v(d+24,4)}')
                    I(f'buffer_store_dwordx4 {v(d+4*q,4)}, v{vUD}, {WS}, s{sUD} offen' + (' offset:2048' if q & 1 else '') + ' sc1')
                    if q == 1: I(f's_add_u32 s{sUD}, s{sUD}, 4096')
                else:
                    I(f'buffer_store_dwordx4 {v(d+4*q,4)}, v{vUD+1}, {WS}, s{sUD2} offen sc1')
                    if q < 5: I(f's_add_u32 s{sUD2}, s{sUD2}, 4096')
        return I(f'buffer_store_dword {"av"[not s.P["ue"]]}{d+24}, v{vFX}, {WS}, s{sUCS} offen sc1')
    def meanop(s, d, m, t):
        I = s.I
        I(f'v_cvt_pk_bf16_f32 v{d}, -v{m}, -v{m}\nv_and_b32 v{t}, 0xffff0000, v{d}\nv_sub_f32 v{t}, -v{m}, v{t}\nv_cvt_pk_bf16_f32 v{t}, v{t}, v{t}')
        with s.k.group(): I(f'v_cmp_gt_u32 vcc, 32, v0\nv_cndmask_b32 v{d}, v{t}, v{d}, vcc')
    def finit(s):
        I = s.I; k = s.k
        n, hf, sw, b2, t0, t1, t2 = 50, 51, 52, 53, 54, 55, 56
        I(f'v_and_b32 v{n}, 31, v0\nv_lshrrev_b32 v{hf}, 5, v0\nv_bfe_u32 v{b2}, v0, 2, 1\nv_bfe_u32 v{t0}, v0, 3, 1')
        I(f'v_and_b32 v{sw}, 19, v{n}\nv_lshl_or_b32 v{sw}, v{b2}, 3, v{sw}\nv_lshl_or_b32 v{sw}, v{t0}, 2, v{sw}')
        I(f'v_lshl_or_b32 v{t0}, v{b2}, 1, v{t0}\nv_xor_b32 v{t0}, v{t0}, v{hf}\nv_lshlrev_b32 v{t0}, 4, v{t0}\nv_lshl_or_b32 v{t0}, v{sw}, 6, v{t0}')
        I(f'v_add_u32 v{vWR}, s{sM0}, v{t0}\nv_xor_b32 v{vWR+1}, 32, v{vWR}\nv_add_u32 v{vWW}, s{sM0}, v{vL16}')
        I(f'v_bfe_u32 v{t0}, v0, 1, 3\nv_xor_b32 v{t0}, v{t0}, v{hf}\nv_lshlrev_b32 v{t0}, 4, v{t0}\nv_lshl_or_b32 v{t0}, v{n}, 7, v{t0}')
        I(f's_add_u32 s64, s{sM0}, 0x10000\nv_add_u32 v{vXR}, s64, v{t0}')
        for q in range(1, 4): I(f'v_xor_b32 v{vXR+q}, {32*q}, v{vXR}')
        I(f'v_lshlrev_b32 v{t0}, 4, v{n}\nv_add_u32 v{vSR}, 0x20000, v{t0}\ns_lshl_b32 s64, s{sW}, 2\nv_add_u32 v{vSW}, s64, v{vSR}')
        I(f'v_bfe_u32 v{t1}, v0, 4, 1')
        I(f'v_and_b32 v{t0}, 1, v0\nv_lshlrev_b32 v{t0}, 9, v{t0}\nv_lshl_or_b32 v{t0}, v{hf}, 8, v{t0}\nv_bfe_u32 v{t2}, v0, 2, 2\nv_lshl_or_b32 v{t0}, v{t2}, 5, v{t0}')
        I(f'v_lshl_or_b32 v{t0}, v{t1}, 4, v{t0}\nv_bfe_u32 v{t2}, v0, 1, 1\nv_lshl_or_b32 v{t0}, v{t2}, 3, v{t0}\nv_add_u32 v57, {hex(WPH)}, v{t0}')
        I(f'v_lshrrev_b32 v{t0}, 3, v{n}\nv_and_b32 v{t1}, 3, v{n}\nv_lshl_or_b32 v{t0}, v{t0}, 2, v{t1}\nv_lshl_or_b32 v{t0}, v{b2}, 4, v{t0}')
        I(f'v_mov_b32 v58, 0x3f80')
        for d, cm in ((64, t0),):
            I(f'v_lshlrev_b32 v{t1}, 3, v{hf}\nv_sub_u32 v{t1}, v{cm}, v{t1}\nv_and_b32 v{t2}, 1, v{t1}\nv_lshlrev_b32 v{t2}, 4, v{t2}\nv_lshlrev_b32 v{t2}, v{t2}, v58\nv_ashrrev_i32 v{t1}, 1, v{t1}')
            for p in range(2):
                for r in range(4): I(f'v_cmp_eq_u32 vcc, {8*p+r}, v{t1}\nv_cndmask_b32 v{d+4*p+r}, 0, v{t2}, vcc')
        for r in range(8): I(f'v_accvgpr_write_b32 a{r}, v{64+r}')
        for r in range(4): I(f'v_accvgpr_write_b32 a{64+r}, s{sONES}')
        if s.P['rl']:
            I(f'v_lshrrev_b32 v{t0}, 4, v0\nv_bfe_u32 v{t1}, v0, 1, 3\nv_xor_b32 v{t0}, v{t0}, v{t1}\nv_lshlrev_b32 v{t0}, 4, v{t0}\nv_lshl_or_b32 v{t0}, v{vFX}, 5, v{t0}')
            I(f's_lshl_b32 s64, s{sW}, 11\ns_lshl_b32 s65, s{sW}, 12\ns_or_b32 s64, s64, s65\ns_and_b32 s64, s64, 0x2800\ns_lshl_b32 s65, s{sHB}, 14\ns_or_b32 s64, s64, s65\ns_or_b32 s64, s64, 0x10000\nv_or_b32 v47, s64, v{t0}')
        I(f's_mul_i32 s{sTAG}, s{sE}, 0x9E3779B1\ns_add_u32 s{sTAG}, s{sTAG}, 0x7F4A7C15')
    def fold(s):
        I = s.I
        s.k.wait(s.tok['P'])
        I('ds_read_b64_tr_b16 v[60:61], v57\nds_read_b64_tr_b16 v[62:63], v57 offset:128')
        I('v_cmp_eq_u32 vcc, 0, v53')
        for r in range(4): I(f'v_cndmask_b32 v{80+r}, 0, v{60+r}, vcc\nv_cndmask_b32 v{84+r}, v{60+r}, 0, vcc')
        for r in range(8): I(f'v_accvgpr_write_b32 a{16+r}, v{80+r}')
    def lbuild(s, tok, slot, B, si):
        I = s.I; k = s.k; off = (slot & 1)*0x8000
        k.wait(tok)
        for b in range(4):
            for p in range(2): I(f'ds_read_b128 {a_(32+8*b+4*p,4)}, v{vWR+p} offset:{off + b*2048}')
        def T(i):
            b, p = i >> 1, i & 1; d = 64 + 16*b
            I(f'v_mfma_f32_32x32x16_bf16 {v(d,16)}, {a_(32+8*b+4*p,4)}, {a_(B+4*p,4)}, {"0" if p == 0 else v(d,16)}')
        def C(i):
            d = 64 + 8*i
            for r in range(4): I(f'v_cvt_pk_bf16_f32 v{d+r}, v{d+2*r}, v{d+2*r+1}')
            I(f'ds_write_b128 v{vWW}, {v(d,4)} offset:{off + i*1024}')
        def S(i): I(f'v_mfma_f32_32x32x16_bf16 v[48:63], a[64:67], {v(64+8*i,4)}, {"0" if i == 0 else "v[48:63]"}')
        for i in range(16):
            (T if i < 8 else S)(i & 7)
            if 3 <= i < 11: C(i - 3)
        I('v_cvt_pk_bf16_f32 v49, v48, v48\nv_and_b32 v50, 0xffff0000, v49\nv_sub_f32 v50, v48, v50\nv_cvt_pk_bf16_f32 v49, v48, v50')
        return I(f'ds_write_b32 v{vSW}, v49 offset:{SUMS[si] - 0x20000}')
    def rowstats(s):
        I = s.I
        for r in range(2):
            for i in range(4):
                x = vROW + 4*r + i
                I(f'v_dot2_f32_bf16 v{248+r}, v{x}, s{sONES}, {"0" if i == 0 else v(248+r)}')
                I(f'v_dot2_f32_bf16 v{250+r}, v{x}, v{x}, {"0" if i == 0 else v(250+r)}')
        I('v_permlane32_swap_b32 v248, v249\nv_permlane32_swap_b32 v250, v251\nv_add_f32 v248, v248, v249\nv_add_f32 v250, v250, v251')
        I(f'v_and_b32 v252, 15, v0\nv_cmp_eq_u32 vcc, 0, v252\nv_lshrrev_b32 v252, 1, v0\nv_mov_b32 v253, {hex(OOB)}')
        I('v_permlane16_swap_b32 v248, v250\nv_cndmask_b32 v252, v253, v252, vcc\nv_add_f32 v248, v248, v250')
        I(f'v_mov_b32 v249, s{sTAG}\ns_lshl_b32 s64, s{sR}, 11\ns_lshl_b32 s65, s{sJ}, 7\ns_add_u32 s64, s64, s65\ns_lshl_b32 s65, s{sW}, 5\ns_add_u32 s64, s64, s65\ns_add_u32 s64, s64, {hex(S0)}')
        for mod in ('quad_perm:[1,0,3,2]', 'quad_perm:[2,3,0,1]', 'row_half_mirror', 'row_mirror'):
            I(f'v_add_f32_dpp v248, v248, v248 {mod} row_mask:0xf bank_mask:0xf')
        s.k.wait(s.tok['C'])
        I(f'buffer_store_dwordx2 v[248:249], v252, {WS}, s64 offen sc1')
    def init(s):
        I = s.I; k = s.k
        I(f's_load_dword s{sE}, s[8:9], 0')
        I(f's_lshl_b32 s64, s{sJ}, 2\ns_add_u32 s64, s64, s{sW}\ns_lshl_b32 s64, s64, 4\ns_add_u32 s{sKVP}, s64, s{sR}')
        I(f's_lshl_b32 s64, s{sKVP}, 9\ns_add_u32 s64, s64, {hex(KVP)}\ns_and_b32 s{sKVC}, s64, 0xfffff800\ns_lshl_b32 s65, s{sKVP}, 6\ns_add_u32 s65, s65, {hex(KVZ)}')
        for r in range(4): I(f'v_mov_b32 v{96+r}, -1')
        I(f'v_lshlrev_b32 v100, 11, v{vL16}\nv_or_b32 v100, v100, v{vL16}\nv_and_b32 v100, 0x1001f0, v100\nbuffer_store_dwordx4 v[96:99], v100, {WS}, s64 offen sc1')
        I(f'v_lshlrev_b32 v101, 16, v0\nv_lshl_or_b32 v101, v0, 2, v101\nv_and_b32 v101, 0x10003c, v101')
        s.tok['C'] = I(f'buffer_store_dword v96, v101, {WS}, s65 offen sc1')
        I(f's_getreg_b32 s{sMARK}, hwreg(HW_REG_XCC_ID)\ns_and_b32 s{sMARK}, s{sMARK}, 15\ns_or_b32 s{sMARK}, s{sMARK}, 0x80')
        I(f'v_add_u32 v{vL16b}, 0x10000, v{vL16}')
        I(f'v_cmp_eq_u32 vcc, 0, v0\nv_mov_b32 v{vT0}, {hex(OOB)}\nv_cndmask_b32 v{vL0}, v{vT0}, v0, vcc')
        I(f's_mov_b32 s{sLIM}, 20000')
        I(f'v_and_b32 v50, 15, v0\nv_lshrrev_b32 v51, 4, v0\nv_and_b32 v52, 31, v0\nv_lshrrev_b32 v53, 5, v0')
        I(f'v_lshlrev_b32 v{vFX}, 2, v50')
        I(f'v_bfe_u32 v54, v0, 2, 1\nv_and_b32 v55, 3, v0\nv_lshlrev_b32 v55, 2, v55\nv_lshl_or_b32 v{vFO}, v54, 7, v55')
        I(f'v_lshlrev_b32 v54, 4, v50\nv_lshl_or_b32 v{vPUB}, v51, 9, v54')
        I(f's_lshl_b32 s64, s{sW}, 9\ns_add_u32 s64, s64, {hex(XA)}\ns_movk_i32 s65, {6*PS}')
        I(f'v_mul_lo_u32 v54, v53, s65\nv_lshl_add_u32 v54, v52, 4, v54\nv_add_u32 v{vPHW}, s64, v54')
        I(f's_movk_i32 s65, {PS}\nv_bfe_u32 v54, v0, 1, 1\nv_mul_lo_u32 v54, v54, s65\nv_and_b32 v55, 1, v0\nv_lshl_add_u32 v54, v55, 3, v54')
        I(f'v_lshrrev_b32 v55, 2, v50\nv_lshl_add_u32 v55, v51, 3, v55\nv_lshl_add_u32 v54, v55, 4, v54')
        I(f's_lshr_b32 s66, s{sW}, 1\ns_mul_i32 s66, s66, {6*PS}\ns_add_u32 s66, s66, {hex(XA)}\ns_and_b32 s67, s{sW}, 1\ns_mul_i32 s67, s67, {2*PS}\ns_add_u32 s67, s67, s66\ns_add_u32 s66, s66, {4*PS}')
        I(f'v_add_u32 v{vTRA}, s67, v54\nv_add_u32 v{vTRB}, s66, v54')
        I(f'v_lshlrev_b32 v54, 4, v50\nv_lshl_or_b32 v54, v53, 8, v54\nv_and_b32 v55, 1, v51\nv_lshl_or_b32 v54, v55, 3, v54')
        I(f's_lshl_b32 s64, s{sW}, 9\ns_add_u32 s64, s64, {hex(KVA)}\nv_add_u32 v{vKVW}, s64, v54')
        I(f's_lshl_b32 s64, s{sW}, 5\ns_add_u32 s64, s64, {hex(ZA)}\nv_and_b32 v54, 3, v0\nv_lshl_or_b32 v54, v54, 1, v55\nv_lshl_or_b32 v54, v54, 1, v53\nv_lshl_add_u32 v{vZW}, v54, 1, s64')
        I(f'v_and_b32 v54, 3, v0\nv_bfe_u32 v55, v0, 2, 1\nv_lshl_or_b32 v54, v55, 3, v54\nv_bfe_u32 v55, v0, 3, 1\nv_lshl_or_b32 v54, v55, 2, v54')
        I(f'v_lshlrev_b32 v54, 4, v54\nv_lshl_or_b32 v54, v53, 10, v54\nv_add_u32 v54, {hex(KVA)}, v54')
        I(f'v_lshlrev_b32 v55, 6, v53\nv_add_u32 v55, {hex(ZA)}, v55\nv_bfe_u32 v56, v0, 4, 1\nv_cmp_eq_u32 vcc, v56, v53\nv_mov_b32 v57, {hex(ZERO)}')
        I(f'v_cndmask_b32 v{vKVR}, v57, v54, vcc\nv_cndmask_b32 v{vZR}, v57, v55, vcc')
        I(f'v_lshlrev_b32 v54, 4, v50\nv_lshl_or_b32 v54, v53, 8, v54\nv_lshl_or_b32 v54, v56, 13, v54\ns_lshl_b32 s64, s{sW}, 11\nv_add_u32 v{vREDW}, s64, v54')
        I(f'v_lshlrev_b32 v54, 10, v50\nv_lshl_or_b32 v{vNAT}, v51, 4, v54')
        if s.P['fl']: assert s.P['rl']; I(f'v_and_b32 v54, 8, v0\nv_and_b32 v{vNAT}, 0x1fff, v{vNAT}\nv_lshl_or_b32 v{vNAT}, v54, 3, v{vNAT}')
        I(f'v_lshlrev_b32 v54, 4, v50\nv_lshl_or_b32 v54, v53, 2, v54\nv_cmp_eq_u32 vcc, 0, v56\nv_mov_b32 v55, {hex(OOB)}\nv_cndmask_b32 v{vSTW}, v55, v54, vcc')
        I(f's_lshl_b32 s64, s{sW}, 7\ns_add_u32 s64, s64, {hex(RS)}\nv_lshlrev_b32 v54, 2, v52\nv_add_u32 v{vRSW}, s64, v54')
        I(f'v_mov_b32 v56, 0\nv_mov_b32 v57, 0\nv_mov_b32 v58, 0\nv_mov_b32 v59, 0\nv_add_u32 v54, {hex(ZERO)}, v{vL16}\nds_write_b128 v54, v[56:59]')
        I(f's_mov_b32 s{sSELLO}, 0x3f80\ns_mov_b32 s{sSELHI}, 0x3f800000\ns_mov_b32 s{sONES}, 0x3f803f80\ns_mov_b32 s{sLOG2E}, 0x3fb8aa3b')
        I(f's_lshl_b32 s66, s{sR}, 2\ns_add_u32 s65, s66, s{sW}')
        I(f's_lshl_b32 s64, s65, 15\ns_add_u32 s{sXIN}, s64, {hex(XB[0])}')
        I(f's_lshl_b32 s64, s65, 11\ns_add_u32 s{sSTIN}, s64, {hex(ST)}')
        I(f's_mul_i32 s64, s{sJ}, {224*1024}\ns_add_u32 s64, s64, s{sM0}\ns_add_u32 s{sGU}, s64, {hex(WGU)}')
        I(f's_lshr_b32 s67, s{sRK}, 3\ns_lshl_b32 s64, s{sW}, 2\ns_or_b32 s64, s64, s67\ns_lshl_b32 s64, s64, 8\ns_or_b32 s64, s64, s{sCG}\ns_lshl_b32 s{sWO}, s64, 7')
        I(f's_lshl_b32 s67, s{sHB}, 12\ns_or_b32 s{sOM}, s67, s{sM0}')
        I(f's_mul_i32 s64, s{sCG}, {224*1024}\ns_mul_i32 s67, s{sW}, {56*1024}\ns_add_u32 s64, s64, s67\ns_add_u32 s{sWD}, s64, {hex(WD_P)}')
        I(f's_lshl_b32 s67, s{sHB}, 1\ns_add_u32 s66, s66, s67')
        I(f's_lshr_b32 s67, s{sW}, 1\ns_add_u32 s67, s67, s66\ns_and_b32 s68, s{sW}, 1')
        I(f's_lshl_b32 s64, s66, 15\ns_add_u32 s64, s64, s{sM0}\ns_add_u32 s{sXO}, s64, {hex(XB[0])}')
        I(f's_lshl_b32 s64, s67, 15\ns_lshl_b32 s69, s{sCG}, 12\ns_add_u32 s64, s64, s69\ns_lshl_b32 s69, s68, 8\ns_add_u32 s64, s64, s69\ns_add_u32 s{sXPUB}, s64, {hex(XB[0])}')
        I(f's_lshl_b32 s64, s67, 11\ns_lshl_b32 s69, s68, 8\ns_add_u32 s64, s64, s69\ns_mul_i32 s69, s{sCG}, 0x108\ns_and_b32 s69, s69, 0x608\ns_add_u32 s64, s64, s69\ns_add_u32 s{sSTPUB}, s64, {hex(ST)}')
        I(f's_mul_i32 s64, s65, {112*1024}\ns_mul_i32 s69, s{sJ}, {7*1024}\ns_add_u32 s64, s64, s69\ns_add_u32 s{sHPUB}, s64, {hex(HB)}')
        I(f's_mul_i32 s64, s66, {112*1024}\ns_mul_i32 s69, s{sW}, {28*1024}\ns_add_u32 s64, s64, s69\ns_add_u32 s{sHIN}, s64, {hex(HB)}')
        I(f's_lshl_b32 s64, s65, 7\ns_add_u32 s{sFXC}, s64, {hex(FX)}')
        I(f's_lshl_b32 s69, s{sJ}, 2\ns_add_u32 s64, s64, s69\ns_add_u32 s{sFOP}, s64, {hex(FO)}')
        I(f's_lshl_b32 s64, s67, 7\ns_lshl_b32 s69, s{sCG}, 3\ns_add_u32 s64, s64, s69\ns_lshl_b32 s69, s68, 2\ns_add_u32 s64, s64, s69\ns_add_u32 s{sFXP}, s64, {hex(FX)}')
        I(f's_lshl_b32 s64, s66, 7\ns_lshl_b32 s69, s{sW}, 4\ns_add_u32 s64, s64, s69\ns_add_u32 s{sFOC}, s64, {hex(FO)}')
        I(f's_lshl_b32 s64, s{sR}, 17\ns_lshl_b32 s69, s{sHB}, 16\ns_add_u32 s64, s64, s69\ns_lshl_b32 s69, s{sW}, 14\ns_add_u32 s64, s64, s69\ns_lshl_b32 s69, s{sCG}, 7\ns_add_u32 s{sNAT}, s64, s69')
        I(f's_lshl_b32 s64, s{sHB}, 8\ns_lshl_b32 s69, s{sW}, 6\ns_add_u32 s64, s64, s69\ns_add_u32 s64, s64, {hex(RS)}\nv_add_u32 v{vRSR}, s64, v{vFX}')

    def xloads(s, buf, n1=2, perm=None):
        so = s.SO(s, sT0)
        d = buf*0x20000; n = s.P['xf']
        with s.k.cap() as f:
            for kc in range(33):
                if kc == s.P['sl']: s.ld(so, v(vTMP, 4), vL16, sSTIN, d, 'sc1'); s.ld(so, v(vTMP+4, 4), vL16, sSTIN, d + 1024, 'sc1')
                if kc == 32: break
                if perm is None: s.ld(so, v(vXB + 4*kc, 4), vL16, sXIN, buf*0x200000 + kc*1024, 'sc1')
                else:
                    with s.k.group():
                        if kc % 4 == 0 and kc: s.I(f's_xor_b32 s{perm}, s{perm}, {hex((kc ^ kc - 4) << 10)}')
                        s.I(f'buffer_load_dwordx4 {v(vXB + 4*kc, 4)}, v{vL16}, {WS}, s{perm} offen offset:{kc % 4*1024} sc1')
        s.k.put(f[:n])
        return (f[n:], 0, n1*(32 - n) - 1)
    def stats(s, own=False):
        I = s.I; t = vTMP
        I(f'v_add_f32 v{t}, v{t}, v{t+2}\nv_add_f32 v{t+1}, v{t+1}, v{t+3}')
        if not own:
            I(f'v_add_f32 v{t+4}, v{t+4}, v{t+6}\nv_add_f32 v{t+5}, v{t+5}, v{t+7}')
            I(f'v_add_f32 v{t}, v{t}, v{t+4}\nv_add_f32 v{t+1}, v{t+1}, v{t+5}')
        I(f'v_permlane32_swap_b32 v{t}, v{t+1}')
        I(f'v_add_f32 v{t}, v{t}, v{t+1}')
        I(f'v_mul_f32 v{t}, 0x3b000000, v{t}')
        I(f'v_mov_b32 v{t+1}, v{t}')
        I(f'v_permlane32_swap_b32 v{t}, v{t+1}')
        I(f'v_fma_f32 v{t+1}, -v{t}, v{t}, v{t+1}')
        I(f'v_max_f32 v{t+1}, 0, v{t+1}')
        I(f'v_add_f32 v{t+1}, 0x3727c5ac, v{t+1}')
    def phi(s, p, tA, tB, out, emit=None):
        I = s.I; mx, mn = vT0, vT2
        I(f'v_max3_f32 v{mx}, v{p}, v{p+1}, v{p+2}\nv_min3_f32 v{mn}, v{p}, v{p+1}, v{p+2}')
        for r in range(3, 15, 2): I(f'v_max3_f32 v{mx}, v{mx}, v{p+r}, v{p+r+1}\nv_min3_f32 v{mn}, v{mn}, v{p+r}, v{p+r+1}')
        I(f'v_max_f32 v{mx}, v{mx}, v{p+15}\nv_min_f32 v{mn}, v{mn}, v{p+15}')
        I(f'v_mul_f32 v{mx}, v{mx}, v{vC}\nv_mul_f32 v{mn}, v{mn}, v{vC}')
        for sg, t, m in ((0, tA, mx), (1, tB, mn)):
            for r in range(0, 16, 2):
                if sg == 0: I(f'v_pk_fma_f32 {v(t+r,2)}, {v(p+r,2)}, {v(vC-1,2)}, {v(m,2)} op_sel:[0,1,0] op_sel_hi:[1,1,0] neg_lo:[0,0,1] neg_hi:[0,0,1]')
                else: I(f'v_pk_fma_f32 {v(t+r,2)}, {v(p+r,2)}, {v(vC-1,2)}, {v(m,2)} op_sel:[0,1,0] op_sel_hi:[1,1,0] neg_lo:[1,0,0] neg_hi:[1,0,0]')
            for r in range(16): I(f'v_exp_f32 v{t+r}, v{t+r}')
            I(f'v_pk_add_f32 {v(vT4,2)}, {v(t,2)}, {v(t+2,2)}')
            for r in range(4, 16, 2): I(f'v_pk_add_f32 {v(vT4,2)}, {v(vT4,2)}, {v(t+r,2)}')
            I(f'v_add_f32 v{vT4}, v{vT4}, v{vT5}\nv_rcp_f32 v{vT4}, v{vT4}')
            for r in range(0, 16, 2): I(f'v_pk_mul_f32 {v(t+r,2)}, {v(t+r,2)}, {v(vT4,2)} op_sel_hi:[1,0]')
            for r in range(8):
                I(f'v_cvt_pk_bf16_f32 v{out+8*sg+r}, v{t+2*r}, v{t+2*r+1}')
                if emit and r % 4 == 3: emit(2*sg + r//4)

    def front(s):
        I = s.I; k = s.k; P = s.P
        s.init0()
        tx = {}; tr = {}; dl = {}
        def X(i):
            with k.group():
                if i >= 8 and i % 2 == 0: k.wait(tr[i//2 - 4])
                tx[i] = s.xdma(i//2, i % 2)
        def RD(c):
            with k.group() as g:
                k.wait(tx[2*c+1])
                for q in range(4): tr[c] = I(f'ds_read_b128 {v(vXB+16*c+4*q,4)}, v{vXR+q} offset:{s.xreg(c) - 0x10000}')
            dl[id(g)] = 8*c - 3
        def SL():
            with k.group() as g:
                I(f's_lshl_b32 s{sT0+3}, s{sR}, 11\ns_lshl_b32 s{sT0+4}, s{sW}, 9\ns_add_u32 s{sT0+3}, s{sT0+3}, s{sT0+4}\ns_add_u32 s{sT0+3}, s{sT0+3}, {hex(S0)}')
                I(f'v_and_b32 v{vT4}, 0x1f0, v{vL16}\nbuffer_load_dwordx4 v[52:55], v{vT4}, {WS}, s{sT0+3} offen sc1')
                I(f's_lshl_b32 s{sT0+5}, s{sJ}, 7\ns_add_u32 s{sT0+5}, s{sT0+5}, s{sM0}\ns_add_u32 s{sT0+5}, s{sT0+5}, {hex(S0)}')
                I(f'v_lshlrev_b32 v57, 9, v0\nv_lshl_or_b32 v57, v0, 5, v57\nv_and_b32 v57, 0x1860, v57\nbuffer_load_dword v56, v57, {WS}, s{sT0+5} offen offset:4 sc1')
            dl[id(g)] = 40; s.gSL = g
        def Q(p):
            with k.group():
                if p == 0: k.wait(tr[5])
                s.tok['Q0'] = s.wdma(p, 2, 0)
        def U(i):
            with k.group():
                if i == 0: k.wait(tr[7])
                s.tok['U'] = s.udma(i)
        with k.cap() as xs:
            for p in range(1, 4): tk = s.wdma(p, 0, 1024)
            for p in range(1, 4): tv = s.wdma(p, 1, 2048)
            for i in range(16):
                X(i)
                if i >= 5 and i % 2 == 1: RD((i - 5)//2)
            SL(); Q(0); RD(6); Q(1); RD(7); Q(2); Q(3)
            for i in range(6): U(i)
        for pos, md in P['po']:
            with k.cap() as f:
                with k.group():
                  if md == 3: I(f'buffer_load_dword v21, v{vL0}, {US}, s{sUB} offen\nbuffer_load_dword v21, v{vL0}, {DS2}, s{sUB2} offen')
                  elif md == 4: I(f'buffer_load_dword v21, v{vL0}, {OS}, s{sNAT} offen')
                  elif md >= 5: I(f'v_min_u32 v22, {(24 << 20 >> md) - 1}, v0\nv_lshlrev_b32 v22, {md}, v22\nbuffer_load_dword v21, v22, {WS}, 0 offen offset:1024 sc1')
                  else:
                    if md == 1: I(f's_lshl_b32 s{sT0+11}, s{sRK}, 2\ns_add_u32 s{sT0+11}, s{sT0+11}, s{sW}\ns_lshl_b32 s{sT0+11}, s{sT0+11}, 5\nv_and_or_b32 v22, v0, 31, s{sT0+11}')
                    else: I(f's_lshl_b32 s{sT0+11}, s2, 2\ns_add_u32 s{sT0+11}, s{sT0+11}, s{sW}\ns_lshl_b32 s{sT0+11}, s{sT0+11}, 2\nv_and_or_b32 v22, v0, 3, s{sT0+11}')
                    if md == 2: I(f's_lshr_b32 s{sT0+11}, s{sT0+11}, 3\ns_lshl_b32 s{sT0+11}, s{sT0+11}, 11\nv_lshlrev_b32 v22, 7, v22\nbuffer_load_dword v21, v22, {QS}, s{sT0+11} offen')
                    else: I(f'v_lshlrev_b32 v22, 7, v22\nglobal_load_dword v21, v22, s[6:7]')
            xs[pos] = [xs[pos], f] if id(xs[pos]) not in dl else 1/0
        with k.cap() as pre:
            s.unit()
            if P.get('tlb'):
                n, sh = P['tlb']
                I(f'v_min_u32 v54, {n - 1}, v0\nv_lshlrev_b32 v54, {sh}, v54\ns_lshl_b32 s64, s2, 7\nbuffer_load_dword v21, v54, {WS}, s64 offen offset:1024')
            s.init(); s.finit()
        n, f0, ev = P['sp']
        k.sprinkle(pre, xs[:n], f0, ev); xs = xs[n:]
        s.stamp('init')
        if P.get('pg'): I('PGV:')
        xa, xb, xc, xd = P['xa'], P['xb'], P['xc'], P['xd']
        with k.cap() as f:
            s.fold(); s.rowstats()
            I(f's_lshl_b32 s64, s{sG}, 5\ns_add_u32 s64, s64, s{sRK}\nv_mov_b32 v{vT0}, s{sMARK}\nbuffer_store_byte v{vT0}, v{vL0}, {DS}, s64 offen')
        k.sprinkle(f, xs[:xa], 0, P['xe']); xs = xs[xa:]
        s.stamp('issued')
        with k.cap() as f: s.lbuild(tk, 0, 16, 0)
        k.weave(f, (xs[:xb], 0, 15)); xs = xs[xb:]
        s.stamp('kbuild')
        with k.cap() as f: t = s.lbuild(tv, 1, 0, 1)
        k.weave(f, (xs[:xc], 0, 15)); xs = xs[xc:]
        if P['rl']: k.wait(tx[1]); I('v_xor_b32 v64, 64, v47')
        k.wait(t); I('s_barrier')
        if P['rl']: s.tok['R'] = I('ds_read_b128 a[68:71], v47\nds_read_b128 a[72:75], v64')
        s.stamp('vbuild')
        while any(dl.get(id(x), 99) < 0 for x in xs[xd:]): xd += 1
        k.put(xs[:xd]); xs = xs[xd:]
        assert any(x is s.gSL for x in xs)
        s.late = []
        while len(s.late) < P['up']:
            i = max(i for i, x in enumerate(xs) if id(x) not in dl); s.late.insert(0, xs.pop(i))
        gaps = [min(63, int(i*P['xr'])) for i in range(len(xs))]
        for i in range(len(xs) - 1, -1, -1):
            gaps[i] = min(gaps[i], dl.get(id(xs[i]), 63), max(gaps[i+1] - 1, 0) if i + 1 < len(xs) else 63)
        s.gaps = gaps
        assert not P['rl'] or [g for it, g in zip(xs, gaps) if tx[8] in Asm.flat([it])][0] >= P['rl'] - 1
        fill = [([it], g, g) for it, g in zip(xs, gaps)]
        if P['rl']:
            with k.cap() as f: k.wait(s.tok['R']); I('s_barrier')
            fill.insert(0, (f, P['rl'] - 1, P['rl'] - 1))
        with k.cap() as f:
            for i in range(8): I(f'ds_read_b128 {a_(aKP+4*i,4)}, v{vWW} offset:{i*1024}')
        fill.append((f, *P['kp']))
        with k.cap() as f:
            I(f'ds_read_b128 a[28:31], v{vSR} offset:{SUMS[0] - 0x20000}\nds_read_b128 a[32:35], v{vSR} offset:{SUMS[1] - 0x20000}')
            Lb = s.label('S0'); D = s.label('S0D')
            with k.group():
                I(f's_mov_b32 s{sT0+9}, 0\n{Lb}:')
                I(f'v_xor_b32 v53, s{sTAG}, v53\nv_xor_b32 v55, s{sTAG}, v55\nv_xor_b32 v56, s{sTAG}, v56\nv_or3_b32 v53, v53, v55, v56\nv_cmp_ne_u32 vcc, 0, v53\ns_cbranch_vccz {D}')
                with k.cond():
                    I(f'buffer_load_dwordx4 v[52:55], v{vT4}, {WS}, s{sT0+3} offen sc1\nbuffer_load_dword v56, v57, {WS}, s{sT0+5} offen offset:4 sc1\ns_waitcnt vmcnt(0)')
                    I(f's_add_u32 s{sT0+9}, s{sT0+9}, 1\ns_cmp_lt_u32 s{sT0+9}, s{sLIM}\ns_cbranch_scc1 {Lb}\ns_mov_b32 s{sLIM}, 1')
                I(f'{D}:'); k.retire()
            I('v_mul_f32 v52, 0xbb000000, v52\nv_mul_f32 v54, 0x3b000000, v54')
            I('v_cvt_pk_bf16_f32 v53, v52, v52\nv_fma_f32 v54, -v52, v52, v54\nv_and_b32 v55, 0xffff0000, v53\nv_max_f32 v54, 0, v54')
            I(f'v_sub_f32 v55, v52, v55\nv_add_f32 v54, 0x3727c5ac, v54\nv_cvt_pk_bf16_f32 v55, v55, v55\nv_rsq_f32 v{vRSTD}, v54')
            with k.group(): I('v_cmp_gt_u32 vcc, 32, v0\nv_cndmask_b32 v53, v55, v53, vcc')
            I(f'v_mul_f32 v{vC}, s{sLOG2E}, v{vRSTD}')
            for r in range(4): I(f'v_accvgpr_write_b32 a{24+r}, v53')
        fill.append((f, 54, 62))
        return fill

    def wodma(s, L, p0, p1):
        I = s.I; k = s.k; P = s.P; two = None
        with k.cap() as fo:
            for p in range(p0, p1):
                with k.group():
                    if p == p0: I(f'v_lshrrev_b32 v{vT1}, 3, v0\nv_and_b32 v{vT3}, 0x70, v1\nv_lshl_or_b32 v{vT1}, v{vT1}, 10, v{vT3}\nv_add_u32 v{vT3}, 7168, v{vT1}')
                    I(f's_xor_b32 m0, s{sOM}, {hex((p >> 2)*WOX[L] + (p & 3)*2048)}\ns_xor_b32 s{sT0+1}, s{sWO}, {hex(p << 14)}')
                    I(f'buffer_load_dwordx4 v{vT1}, {US}, s{sT0+1} offen {s.md("w", "")} lds')
                    two = I(f'buffer_load_dwordx4 v{vT3}, {US}, s{sT0+1} offen offset:1024 {s.md("w", "")} lds')
                    if p == P['twp'][L]: k.put(s.touches(P['tw'][L], vMK if L else 47))
        return fo, two
    def qkv(s, L):
        I = s.I; k = s.k; P = s.P
        SK, SV, SQ = 0, 1, 2
        bA, bB = L, 1 - L
        aK, aV, aQ = vACC, vACC+16, vACC+32
        qw = P['qw']*L
        def wosrd(): I('s_mov_b32 s84, s6\ns_mov_b32 s85, s7\ns_mov_b32 s86, 0x80000\ns_mov_b32 s87, 0x20000')
        if L == 0:
            fill = s.front()
            with k.cap() as s.bw:
                so = s.SO(s, sT0+7)
                for jj, i in [(jj, i) for jj in range(4) for i in range(12)] + [(jj, i) for jj in range(4) for i in (12, 13)]:
                    s.ld(so, a_(aWD(jj, i//2, i % 2), 4), vL16, sWQ + jj, i*1024, s.md('d'))
        else:
            I(f's_lshl_b32 s{sT0+2}, s{sCG}, 12\ns_add_u32 s{sT0+2}, s{sT0+2}, s{sXIN}\ns_add_u32 s{sT0+2}, s{sT0+2}, {hex(bA*0x200000)}')
            s.poll(vFX, sFXC, 0, 2*L)
            s.stamp('x_ok')
            fill = [s.xloads(bA, 2, sT0+2)]
            k.wait(s.tok['K']); I('s_barrier')
            with k.cap() as f:
                I(f'v_and_b32 v{vT4}, 0x1f0, v{vL16}\nv_add_u32 v{vT4}, 0x20000, v{vT4}')
                I(f'ds_read_b128 v[112:115], v{vT4} offset:{SUMS[0] - 0x20000}\nds_read_b128 v[116:119], v{vT4} offset:{SUMS[1] - 0x20000}')
                if qw: I(f'ds_read_b128 v[120:123], v{vT4} offset:{SUMS[3] - 0x20000}')
                s.stats(); s.meanop(vMU, vTMP, vTMP+2)
                for r in range(4): I(f'v_mov_b32 v{124+r}, v{vMU}')
                I(f'v_rsq_f32 v{vRSTD}, v{vTMP+1}')
                I(f'v_mul_f32 v{vC}, s{sLOG2E}, v{vRSTD}')
            fill.append((f, 44, 60))
        fill.append((s.touches(P['tk'][L]), P['tkg'][L], 63))
        if L == 0: s.gtile(0)
        else: s.tok[0] = None
        steps = []
        for kc in range(32): steps += [(SV, kc, aV, kc == 0), (SK, kc, aK, kc == 0)]
        if qw: steps += [(SQ, kc, aQ, False) for kc in range(32)]
        base, _ = s.gemm(steps, {63: (96, [], 1)} if qw and P['on'][1] else {P['kf'][L]: (64, [])} if P['kf'][L] else {})
        with k.cap() as fm:
            if L == 0:
                I(f'v_mfma_f32_32x32x16_bf16 {v(aV,16)}, a[32:35], a[24:27], {v(aV,16)}\nv_mfma_f32_32x32x16_bf16 {v(aK,16)}, a[28:31], a[24:27], {v(aK,16)}')
            else:
                I(f'v_mfma_f32_32x32x16_bf16 {v(aV,16)}, v[116:119], v[124:127], {v(aV,16)}\nv_mfma_f32_32x32x16_bf16 {v(aK,16)}, v[112:115], v[124:127], {v(aK,16)}')
                if qw: I(f'v_mfma_f32_32x32x16_bf16 {v(aQ,16)}, v[120:123], v[124:127], 0')
        if not qw:
            nv = P['vm'] >> L & 1
            k.weave(base, *fill, (fm[:nv], 62, 62)); k.put(fm[nv:])
            s.stamp('kv_gemm')
        wob, kb = vXB + 64, vXB
        fo, two = s.wodma(L, P.get('so1', 0)*L, 8)
        with k.cap() as fx:
            I('v_bfe_u32 v126, v0, 2, 2\nv_lshrrev_b32 v125, 5, v0\nv_lshl_or_b32 v126, v125, 3, v126\nv_bfe_u32 v125, v0, 4, 1\nv_lshl_or_b32 v126, v126, 2, v125')
            I('v_and_b32 v125, 1, v0\nv_lshl_or_b32 v126, v126, 1, v125\nv_bfe_u32 v125, v0, 1, 1\nv_lshl_or_b32 v126, v126, 1, v125')
            with k.group(): I(f's_and_b32 s{sT0+3}, s{sR}, 1\ns_mul_i32 s{sT0+3}, s{sT0+3}, {hex(WOX[L])}\ns_or_b32 s{sT0+3}, s{sT0+3}, s{sM0}\nv_lshl_add_u32 v125, v126, 3, s{sT0+3}')
            I(f'v_xor_b32 v126, {hex(WOX[L])}, v125')
        def otr():
            k.wait(two)
            for kk in range(8):
                for ct in range(2):
                    for r in range(2): t = I(f'ds_read_b64_tr_b16 {v(wob+8*kk+4*ct+2*r,2)}, v{125 + (kk >> 2)} offset:{(kk & 3)*2048 + ct*64 + r*512}')
            return t
        on = P['on'][L]
        with k.cap() as f:
            for r in range(0, 16, 2): I(f'v_pk_mul_f32 {v(aV+r,2)}, {v(aV+r,2)}, {v(vRSTD,2)} op_sel_hi:[1,0]')
            for r in range(8): I(f'v_cvt_pk_bf16_f32 v{aV+r}, v{aV+2*r}, v{aV+2*r+1}')
            I(f'ds_write_b128 v{vPHW}, {v(aV,4)} offset:{4*PS}\nds_write_b128 v{vPHW}, {v(aV+4,4)} offset:{5*PS}')
            tw = []
            s.phi(aK, vACC+48, aK, vTMP, emit=lambda n: tw.append(I(f'ds_write_b128 v{vPHW}, {v(vTMP+4*n,4)} offset:{n*PS}')))
            for r in range(4): I(f'v_mov_b32 v{72+r}, s{sONES}')
        if qw: cap = k.cap(); fq = cap.__enter__()
        ta = vXB if qw else 96
        if L == 0:
            assert P['op'] == 0 or P['kf'][0]
            k.sprinkle(f, s.late + fo[:P['op']], *P['tp'][1:]); fo = fo[P['op']:]; on -= P['op']
        else:
            s.gtile(1); s.gtile(2)
            assert on == 0 or P['kf'][1] or qw
            k.sprinkle(f, fo[:on], 9 + qw//4 if qw else 2, P['oe']); fo = fo[on:]
        with k.group():
            k.wait(tw[-1])
            if L == 0 and P['ue'] == 2: k.wait(s.tok['U'])
            I('s_barrier')
            s.stamp('phik')
        for u in range(4):
            for p in range(2):
                I(f'ds_read_b64_tr_b16 {v(ta+4*u+2*p,2)}, v{vTRA} offset:{u*512+p*64}')
            for p in range(2):
                I(f'ds_read_b64_tr_b16 {v(ta+16+4*u+2*p,2)}, v{vTRB} offset:{u*512+p*64}')
        if L == 0 and P['ue']: s.uaddr()
        with k.group():
            for u in range(4):
                I(f'v_mfma_f32_16x16x32_bf16 v[64:67], {v(ta+4*u,4)}, {v(ta+16+4*u,4)}, {"0" if u == 0 else "v[64:67]"}')
                I(f'v_mfma_f32_16x16x32_bf16 v[68:71], v[72:75], {v(ta+4*u,4)}, {"0" if u == 0 else "v[68:71]"}')
        I(f's_sub_u32 s{sT0}, s{sKVP}, s{sW}\ns_lshl_b32 s{sT0}, s{sT0}, 9\ns_add_u32 s{sT0}, s{sT0}, {hex(KVP - KVA + L*0x100000)}')
        I(f's_lshl_b32 s{sT0+3}, s{sKVP}, 6\ns_add_u32 s{sT0+3}, s{sT0+3}, {hex(KVZ + L*0x100000)}')
        I('v_cvt_pk_bf16_f32 v112, v64, v65\nv_cvt_pk_bf16_f32 v113, v66, v67\nv_mov_b32 v114, v68')
        I(f'buffer_store_dwordx2 v[112:113], v{vKVW}, {WS}, s{sT0} offen sc1\nbuffer_store_dword v114, v{vFX}, {WS}, s{sT0+3} offen sc1')
        s.stamp('kvpub')
        if qw:
            cap.__exit__(None, None, None)
            fill += [(fm[:1], 62, 62), (fm[1:2] + fq[:8] + fm[2:], 63, 63)]; c = 0
            for it in fq[8:]:
                gq = 63 + c//qw
                fill.append(([it], gq, gq))
                c += sum(16 if x.text[:5] in ('v_exp', 'v_rcp') else 4 for x in Asm.flat([it]) if x.text[:2] != 's_')
            fill.append((fo[:P['qo']], gq + 1, 95)); fo = fo[P['qo']:]
            k.weave(base, *fill)
        s.wob = wob; zb = kb + 32; sel = kb + 40
        def kvld(r):
            with k.group():
                if r < 8: I(f's_xor_b32 s{sT0}, s{sKVC}, {hex(L*0x100000 + (3 - r//2)*2048)}\nbuffer_load_dwordx4 {v(kb+4*r,4)}, v{vPUB}, {WS}, s{sT0} offen offset:{256*(r & 1)} {s.md("k")}')
                else: I(f's_lshr_b32 s{sT0}, s{sKVP}, 4\ns_lshl_b32 s{sT0}, s{sT0}, 10\ns_add_u32 s{sT0}, s{sT0}, {hex(KVZ + L*0x100000)}\nbuffer_load_dwordx4 {v(zb,4)}, v{vL16}, {WS}, s{sT0} offen {s.md("k")}')
        with k.cap() as fk:
            for r in P['ko']: kvld(r)
        with k.cap() as fs:
            I(f'v_and_b32 v{sel+8}, 1, v0\nv_lshlrev_b32 v{sel+8}, 4, v{sel+8}\nv_lshlrev_b32 v{sel+8}, v{sel+8}, s{sSELLO}\nv_bfe_u32 v{sel+9}, v0, 1, 3')
            for r in range(8):
                with k.group(): I(f'v_cmp_eq_u32 vcc, {r}, v{sel+9}\nv_cndmask_b32 v{sel+r}, 0, v{sel+8}, vcc')
        assert P['ot'] == (0, 0)
        if L == 0:
            assert P['op'] == 0; wosrd()
            I(f'v_add_u32 v{vWR}, 0x10000, v{vWR}\nv_add_u32 v{vWR+1}, 0x10000, v{vWR+1}\nv_add_u32 v{vWW}, 0x10000, v{vWW}')
            with k.cap() as fa: s.uaddr()
            with k.cap() as f: t = s.lbuild(s.tok['Q0'], SQ, 16, 3)
            with k.cap() as fu: tu = s.uproc()
            if P['ue']:
                if P['ue'] == 1: k.put(fu[:1])
                u0, u1, u2, o0, o1 = P['uw']
                k.weave(f, (fu[1:7], 0, u0), (fu[8:], u1, u2), (fo[:on], o0, o1)); fu = []
            else: k.weave(f, (fa[:8], 0, 2), (fa[8:], 11, 15), (fo[:on], 0, 15))
            fo = fo[on:]
            k.wait(t); I('s_barrier')
            s.stamp('qbuild')
            with k.cap() as ff:
                with k.group():
                    if P.get('xs'): s.stamp('ff0')
                    k.wait(tu)
                    if P.get('xs'): s.stamp('ff1')
                    I(f's_barrier\ns_lshl_b32 s{sT0+3}, s2, 8\ns_lshl_b32 s{sT0+4}, s{sW}, 28\ns_add_u32 s{sT0+3}, s{sT0+3}, s{sT0+4}\ns_add_u32 s{sT0+3}, s{sT0+3}, {hex(FU)}')
                    I(f'v_mov_b32 v116, s{sTAG}\nv_lshlrev_b32 v117, 2, v0\nbuffer_store_dword v116, v117, {WS}, s{sT0+3} offen sc1')
            with k.cap() as fy:
                I(f'v_and_b32 v122, 7, v0\nv_min_u32 v127, 2, v122\nv_bfe_u32 v121, v0, 3, 1\nv_mad_u32_u24 v127, v121, 28, v127')
                with k.group(): I(f's_mul_i32 s{sT0+3}, s{sJ}, 7\ns_lshr_b32 s{sT0+3}, s{sT0+3}, 2\nv_add_u32 v127, s{sT0+3}, v127')
                with k.group(): I(f'v_lshl_add_u32 v121, v122, 3, s{sCG}\nv_cmp_lt_u32 vcc, 15, v0\nv_cndmask_b32 v127, v127, v121, vcc')
                with k.group(): I(f's_lshl_b32 s{sT0+3}, s{sW}, 6\nv_add_u32 v127, s{sT0+3}, v127')
                I(f'v_lshlrev_b32 v127, 8, v127')
            if s.stop == 'kv0':
                k.put(fu); k.put(ff); return True
            with k.cap() as f1:
                so = s.SO(s, sT0+2)
                if P['rl']:
                    for r in range(8): I(f'v_accvgpr_read_b32 v{vRES+r}, a{68+r}')
                else: s.ld(so, v(vRES, 4), vNAT, sNAT, 0, srdn=XS); s.ld(so, v(vRES+4, 4), vNAT, sNAT, 64, srdn=XS)
                with k.group(): I(f'v_and_b32 v{vMK}, 28, v{vFX}\ns_lshl_b32 s{sT0+3}, s{sG}, 5\nbuffer_load_dword v{vMK}, v{vMK}, {DS}, s{sT0+3} offen sc1')
                I(f'ds_read_b128 a[28:31], v{vSR} offset:{SUMS[3] - 0x20000}')
            assert P['og'][1] > P['ub'] or P['ue']
            n = P['f1p'][0]; fr = f1[:n]; f1 = f1[n:]
            fill = [(fu[:8], 0, P['ub']), (fu[8:], P['ub'] + 1, P['uc']), (f1, *P['f1']), (fx + fy, 6, 30), (fs, 14, 30), (fo[:P['og'][0]], P['og'][1], P['oh'])]; fo = fo[P['og'][0]:]
            if P['fg'] < 0: fill.append((ff, -P['fg'], -P['fg'])); ff = []
        else:
            with k.cap() as f1:
                I(f'v_and_b32 v{vT4}, 0x1f0, v{vL16}\nv_add_u32 v{vT4}, 0x20000, v{vT4}\nds_read_b128 v[64:67], v{vT4} offset:{SUMS[3] - 0x20000}')
                for r in range(4): I(f'v_mov_b32 v{68+r}, v{vMU}')
            fill = [(fo, *P['tb'][1:]), (fk[:P['kn']], P['k0'], 31), (f1 + fx, 10, 28), (fs, 14, 30)]
        if not qw:
            base, _ = s.gemm([(SQ, kc, aQ, kc == 0) for kc in range(32)])
            k.weave(base, *fill)
            if L == 0: I(f'v_mfma_f32_32x32x16_bf16 {v(aQ,16)}, a[28:31], a[24:27], {v(aQ,16)}')
            else: I(f'v_mfma_f32_32x32x16_bf16 {v(aQ,16)}, v[64:67], v[68:71], {v(aQ,16)}')
            s.stamp('q_gemm')
        with k.cap() as f: s.phi(aQ, vACC, vACC+16, vTMP)
        if L == 0:
            with k.cap() as f2: k.sprinkle(f, ff, P['fg'], 1)
            with k.cap() as f3: k.sprinkle(f2, fo, *P['oq'][0])
            with k.cap() as f4: k.sprinkle(f3, fk, *P['kq'][0])
            if P['f1p'][1] < 200: k.sprinkle(f4, fr, *P['f1p'][1:]); fr = []
            else: k.put(f4)
        elif qw:
            f = fx + f + fs
            with k.cap() as f3: k.sprinkle(f, fo, *P['oq'][1])
            k.sprinkle(f3, fk, *P['kq'][2])
        else: k.sprinkle(f, fk[P['kn']:], *P['kq'][1])
        s.stamp('phiq')
        def fuld(): return I(f's_mov_b32 s{sT0+4}, {hex(FU)}\nbuffer_load_dword v112, v127, {WS}, s{sT0+4} offen sc1')
        if L == 0 and P['fup'] == 0: fuld()
        if P['ot'][L] == 0: tot = otr()
        MK = [76] + list(range(88, 102, 2))
        Lb = s.label('KV'); D = s.label('KVD')
        I(f's_mov_b32 s{sT0+9}, 0')
        I(f'{Lb}:')
        first = True
        for r in P['ko']:
            if r < 8:
                I(f'v_mfma_f32_16x16x32_bf16 v[64:67], {v(sel+4*(r & 1),4)}, {v(kb+4*r,4)}, {"0" if first else "v[64:67]"}'); first = False
            else:
                I(f'v_permlane32_swap_b32 v{zb}, v{zb+1}\nv_permlane32_swap_b32 v{zb+2}, v{zb+3}\nv_add_f32 v68, v{zb}, v{zb+1}\nv_add_f32 v69, v{zb+2}, v{zb+3}')
                I('v_permlane16_swap_b32 v68, v69\nv_add_f32 v68, v68, v69')
                for n in (4, 8): I(f'v_add_f32_dpp v68, v68, v68 row_ror:{n} row_mask:0xf bank_mask:0xf')
        I(f'v_add_f32 v69, v68, v64\nv_cmp_u_f32 vcc, v69, v66\ns_cbranch_vccz {D}')
        with k.cond():
            kvld(8)
            for r in range(8):
                I(f'v_max3_u32 v69, v{kb+4*r}, v{kb+4*r+1}, v{kb+4*r+2}\nv_max_u32 v69, v69, v{kb+4*r+3}\nv_cmp_eq_u32 {s_(MK[r],2)}, -1, v69')
            for r in range(8):
                I(f's_mov_b64 exec, {s_(MK[r],2)}'); kvld(r)
            I('s_mov_b64 exec, -1\ns_waitcnt vmcnt(0)')
            I(f's_add_u32 s{sT0+9}, s{sT0+9}, 1\ns_cmp_lt_u32 s{sT0+9}, s{sLIM}\ns_cbranch_scc1 {Lb}\ns_mov_b32 s{sLIM}, 1')
        I(f'{D}:')
        k.retire()
        s.stamp('kv_ok')
        def fuok():
            Lb = s.label('FU'); D = s.label('FUD')
            I(f's_mov_b32 s{sT0+9}, 0\n{Lb}:\nv_cmp_ne_u32 vcc, s{sTAG}, v112\ns_cbranch_vccz {D}')
            with k.cond():
                fuld(); I('s_waitcnt vmcnt(0)')
                I(f's_add_u32 s{sT0+9}, s{sT0+9}, 1\ns_cmp_lt_u32 s{sT0+9}, s{sLIM}\ns_cbranch_scc1 {Lb}\ns_mov_b32 s{sLIM}, 1')
            I(f'{D}:')
            k.retire()
            if P['s2']: I(f's_barrier\ns_and_b32 s{sT0}, s{sW}, 2\ns_lshl_b32 s{sT0}, s{sT0}, 13\ns_add_u32 s{sQKV}, s{sGU}, s{sT0}')
            s.stamp('fu_ok')
            I(f's_lshr_b32 s{sT0}, s{sRK}, 3' + ('' if s.P['ws'] == 1 else f'\ns_xor_b32 s{sT0}, s{sT0}, s{sCG}\ns_and_b32 s{sT0}, s{sT0}, {3 if s.P["ws"] else 0}'))
            for q in range(4):
                I(f's_xor_b32 s{sT0+2}, s{sT0}, {q}\ns_mul_i32 s{sT0+2}, s{sT0+2}, 7168\ns_add_u32 s{sHQ+q}, s{sHIN}, s{sT0+2}\ns_lshl1_add_u32 s{sWQ+q}, s{sT0+2}, s{sWD}')
        if L == 0:
            I(f's_mul_i32 s{sT0+3}, s{sMARK}, 0x01010101\nv_cmp_ne_u32 vcc, s{sT0+3}, v{vMK}\ns_or_b32 s{sSLOW}, vcc_lo, vcc_hi')
            if P['f1p'][1] == 200: k.put(fr); fr = []
        if L == 0 and P['fup']: fuld()
        if L == 0 and P['fe']:
            fuok(); k.wait(tot); k.put(s.take(P['t1'][0])); k.put(s.takew(P['w1']))
        if L:
            if P['ot'][L] == 0: k.wait(tot)
            k.put(s.take(P['t1'][L] if P['ot'][L] == 0 else min(8, P['t1'][L])))
        I('v_cvt_pk_bf16_f32 v70, v64, v65\nv_cvt_pk_bf16_f32 v71, v66, v67\nv_cvt_pk_bf16_f32 v68, v68, v68')
        I(f'ds_write_b64 v{vKVW}, v[70:71]')
        t = I(f'ds_write_b16 v{vZW}, v68')
        k.wait(t); I('s_barrier')
        aRING = s.ring
        for n in range(4):
            I(f'ds_read_b128 {a_(aRING+8*n,4)}, v{vZR} offset:{n*16}\nds_read_b128 {a_(aRING+8*n+4,4)}, v{vKVR} offset:{n*256}')
        for n in range(4):
            I(f'v_mfma_f32_32x32x16_bf16 v[80:95], {a_(aRING+8*n,4)}, {v(vTMP+4*n,4)}, {"0" if n == 0 else "v[80:95]"}')
        for n in range(4):
            I(f'v_mfma_f32_32x32x16_bf16 v[64:79], {a_(aRING+8*n+4,4)}, {v(vTMP+4*n,4)}, {"0" if n == 0 else "v[64:79]"}')
        I('v_add_f32 v80, 0x358637bd, v80\nv_add_f32 v88, 0x358637bd, v88\nv_rcp_f32 v80, v80\nv_rcp_f32 v88, v88')
        so = s.SO(s, sT0)
        I(f's_lshl_b32 s{sT0+3}, s{sJ}, 11\ns_add_u32 s{sT0+3}, s{sT0+3}, s{sXIN}')
        for c in range(2):
            for r in range(0, 8, 2): I(f'v_pk_mul_f32 {v(64+8*c+r,2)}, {v(64+8*c+r,2)}, {v(80+8*c,2)} op_sel_hi:[1,0]')
            for r in range(4): I(f'v_cvt_pk_bf16_f32 v{96+4*c+r}, v{64+8*c+2*r}, v{64+8*c+2*r+1}')
            t = s.pub(s.ld(so, v(96+4*c, 4), vL16, sT0+3, bB*0x200000 + c*1024, op='buffer_store_dwordx4'))
        k.wait(t)
        s.flag(sFOP, 0, L + 1)
        s.stamp('opub')
        if L == 0 and not P['fe']: fuok()
        if P['ot'][L]: tot = otr()
        k.wait(tot)
        k.put(s.take(P['t2'][L]))
        k.put(s.takew(P['w2']))
        k.put(s.touches(P['to'][L]))
        if L == 0: k.put(fr)
        return s.stop == f'o{L}'

    def red_write(s, slot, rt2, ct):
        I = s.I; a = vACC + 32*rt2 + 16*ct; t = None
        for h in range(2):
            for r in range(4): I(f'v_cvt_pk_bf16_f32 v{a+8*h+r}, v{a+8*h+2*r}, v{a+8*h+2*r+1}')
            t = I(f'ds_write_b128 v{vT1}, {v(a+8*h,4)} offset:{rt2*16384 + (2*ct+h)*512}')
        return t
    def red_finish(s, slot, scale, L, buf, p, final, pre, after=None, idle=None):
        I = s.I; k = s.k; rb = vXB + 64
        I(f's_add_u32 s{sT0+3}, s{sM0}, {hex(slot*0x8000)}\nv_add_u32 v{vT0}, s{sT0+3}, v{vL16}')
        k.wait(*pre); I('s_barrier')
        if scale: I(f'ds_read_b32 v{vT2}, v{vRSR}')
        t = None
        for c in range(2):
            for src in range(4): t = I(f'ds_read_b128 {v(rb+16*c+4*src,4)}, v{vT0} offset:{src*2048 + c*1024}')
        so = s.SO(s, sT0)
        for c in range(2):
            for src in range(4):
                for e in range(8):
                    d = (vACC if scale else vRES) + 8*c + e
                    I(f'v_dot2_f32_bf16 v{d}, v{rb+16*c+4*src+e//2}, s{sSELHI if e & 1 else sSELLO}, {"0" if scale and src == 0 else v(d)}')
            if scale:
                for e in range(0, 8, 2): I(f'v_pk_fma_f32 {v(vRES+8*c+e,2)}, {v(vACC+8*c+e,2)}, {v(vT2,2)}, {v(vRES+8*c+e,2)} op_sel_hi:[1,0,1]')
            for r in range(4): I(f'v_cvt_pk_bf16_f32 v{vTMP+4*c+r}, v{vRES+8*c+2*r}, v{vRES+8*c+2*r+1}')
            if final and s.P['fl']:
                if c == 0:
                    for r in range(4): I(f'v_mov_b32 v{vTMP+8+r}, v{vTMP+r}')
                    continue
                for r in range(4): I(f'v_mov_b32_dpp v{vTMP+r}, v{vTMP+4+r} row_ror:8 row_mask:0xf bank_mask:0xc')
                s.ld(so, v(vTMP, 4), vNAT, sNAT, 0, s.P['om'], op='buffer_store_dwordx4', srdn=OS)
                for r in range(4): I(f'v_mov_b32_dpp v{vTMP+4+r}, v{vTMP+8+r} row_ror:8 row_mask:0xf bank_mask:0x3')
                s.ld(so, v(vTMP+4, 4), vNAT, sNAT, 8192, s.P['om'], op='buffer_store_dwordx4', srdn=OS)
            elif final: s.ld(so, v(vTMP+4*c, 4), vNAT, sNAT, 64*c, s.P['om'], op='buffer_store_dwordx4', srdn=OS)
            else: s.pub(s.ld(so, v(vTMP+4*c, 4), vPUB, sXPUB, buf*0x200000 + 2048*c, op='buffer_store_dwordx4'))
        if final: return
        for r in range(8):
            I(f'v_dot2_f32_bf16 v{vT2}, v{vTMP+r}, s{sONES}, {"0" if r == 0 else v(vT2)}')
            I(f'v_dot2_f32_bf16 v{vT3}, v{vTMP+r}, v{vTMP+r}, {"0" if r == 0 else v(vT3)}')
        I(f'v_permlane32_swap_b32 v{vT2}, v{vT3}\nv_add_f32 v{vT2}, v{vT2}, v{vT3}\nv_mov_b32 v{vT3}, v{vT2}')
        I(f'v_permlane16_swap_b32 v{vT2}, v{vT3}\nv_add_f32 v{vT2}, v{vT2}, v{vT3}')
        t2 = s.pub(s.ld(so, v(vT2), vSTW, sSTPUB, buf*0x20000, op='buffer_store_dword'))
        if idle: idle()
        k.wait(t2)
        s.flag(sFXP, 0, p)
        if after: after()

    def wo(s, L):
        I = s.I; k = s.k
        SQ = 3 - L; bA, bB = L, 1 - L
        I(f'v_add_u32 v{vT1}, {hex(SQ*0x8000)}, v{vREDW}')
        if L == 0:
            for i in range(7, -1, -1): I(f'v_and_b32 v{vRES+2*i+1}, 0xffff0000, v{vRES+i}\nv_lshlrev_b32 v{vRES+2*i}, 16, v{vRES+i}')
        s.poll(vFO, sFOC, 0, L + 1)
        s.stamp('o_ok')
        so = s.SO(s, sT0); wob = s.wob; ob = 2*vXB + 64 - wob
        with k.cap() as fl:
            for rt2 in range(2):
                for kk in range(8): s.ld(so, v(ob + 32*rt2 + 4*kk, 4), vL16, sXO, bB*0x200000 + rt2*0x8000 + kk*1024, 'sc1')
        k.put(fl[:8])
        with k.cap() as base:
            for rt2 in range(2):
                for kk in range(8):
                    for ct in range(2):
                        a = vACC + 32*rt2 + 16*ct
                        I(f'v_mfma_f32_32x32x16_bf16 {v(a,16)}, {v(wob+8*kk+4*ct,4)}, {v(ob+32*rt2+4*kk,4)}, {"0" if kk == 0 else v(a,16)}')
        with k.cap() as f1:
            s.red_write(SQ, 0, 0); s.red_write(SQ, 0, 1)
        k.weave(base, (fl[8:], 0, 15), (s.take(s.P['t3'][L]) + s.takew(s.P['w3']) + s.touches(s.P['tq'][L]), 18, 31), (f1, 19, 30))
        s.red_write(SQ, 1, 0); t = s.red_write(SQ, 1, 1)
        s.stamp('wo_gemm')
        def after():
            if L == 0:
                I(f's_mul_i32 s{sT0+3}, s{sJ}, 896\ns_lshl_b32 s{sT0+4}, s{sW}, 8\ns_add_u32 s{sT0+3}, s{sT0+3}, s{sT0+4}\nv_lshlrev_b32 v{vT2}, 2, v0')
                for q in range(4):
                    I(f's_add_u32 s{sT0+3}, s{sT0+3}, {hex(CS if q == 0 else 14336)}\nbuffer_load_dword v{56+q}, v{vT2}, {WS}, s{sT0+3} offen sc1')
            assert s.gslot(L, 1 + 2*L) == SQ; s.gtile(1 + 2*L)
            k.put(s.take(s.P['t4'][L])); k.put(s.takew(s.P['w4'])); k.put(s.touches(s.P['tz'][L]))
        s.red_finish(SQ, False, L, bA, 2*L + 1, False, [t], after)
        s.stamp('x1pub')
        return s.stop == f'x{2*L+1}'

    def gu_epi(s, L, t):
        I = s.I; a = vACC + 16*(t % 4)
        for r in range(8): I(f'v_max_f32 v{a+r}, 0, v{a+r}')
        for r in range(8): I(f'v_mul_f32 v{a+r}, v{a+r}, v{a+8+r}')
        for r in range(4): I(f'v_cvt_pk_bf16_f32 v{a+8+r}, v{a+2*r}, v{a+2*r+1}')
        if s.P['hm'][L]: return s.ld(s.soH, v(a+8, 4), vL16, sHPUB, s.ord(L)[t]*1024, s.P['hm'][L], op='buffer_store_dwordx4')
        return s.pub(s.ld(s.soH, v(a+8, 4), vL16, sHPUB, s.ord(L)[t]*1024, op='buffer_store_dwordx4'))
    def ord(s, L): return s.P['o1'] if L else range(7)
    def gslot(s, L, t): return (3, 0, 1, 2)[t % 4] if L else (0, 3)[t % 2]
    def gtile(s, t):
        if s.L == 0 and t < 2 and s.P['s2']: s.bg_tile(t, sQKV, t*0x4000, s.gslot(0, t))
        else: s.bg_tile(t, sGU, s.ord(s.L)[t]*0x8000, s.gslot(s.L, t))
    def gu(s, L):
        I = s.I; k = s.k; P = s.P
        slot = lambda t: s.gslot(L, t)
        bA = L; n1 = P['n1'][L]; ns = 2 + 2*L; E1 = 32*n1; EM = max(E1, 64)
        acc = lambda t: vACC + 16*(t % 4)
        s.poll(vFX, sFXC, 0, 2*L + 1)
        s.stamp('x1_ok')
        fill = [s.xloads(bA, n1)]
        nb = L and P['fb']
        s2 = L == 0 and P['s2']
        k.wait(*[s.tok[t] for t in range(1 if s2 else 3 if nb else n1)]); I('s_barrier')
        fill.append((s.take(99), *(s2[:2] if s2 else P['tr'] if nb else (E1*5//8, E1 - 4))))
        for names, g in P['tg'][L]: fill.append((s.touches(names), g, g + len(names) - 1))
        tcs = []
        if L == 0:
            with k.cap() as f:
                I(f'v_add_f32 v56, v56, v57\nv_add_f32 v58, v58, v59\nv_add_f32 v56, v56, v58')
                I('v_cvt_pk_bf16_f32 v57, v56, v56\nv_and_b32 v57, 0xffff0000, v57\nv_sub_f32 v57, v56, v57\nv_cvt_pk_bf16_f32 v57, v56, v57')
                with k.group(): I(f's_lshl_b32 s{sT0+3}, s{sW}, 8\ns_add_u32 s{sT0+3}, s{sT0+3}, {hex(WPH)}\nv_add_u32 v{vT2}, s{sT0+3}, v{vT2}')
                tcs.append(I(f'ds_write_b32 v{vT2}, v57'))
            fill.append((f, 24, 36))
        with k.cap() as f:
            s.stats(); s.meanop(60, vTMP, vTMP+2)
            I(f'v_rcp_f32 v{vRSTD}, v{vTMP+1}')
            I(f'v_mov_b32 v61, 0\nv_mov_b32 v62, 0\nv_mov_b32 v63, 0\nv_and_b32 v{vT2}, 31, v0\nv_lshlrev_b32 v{vT2}, 2, v{vT2}\nv_add_u32 v{vT2}, {hex(WPH)}, v{vT2}')
            s.tRS = I(f'ds_write_b32 v{vRSW}, v{vRSTD}')
        fill.append((f, EM - 27, EM - 5))
        steps = []
        for kc in range(32): steps += [(slot(kc >> 4), kc, acc(t), kc == 0, 16*t + kc % 16) if s2 else (slot(t), kc, acc(t), kc == 0) for t in range(n1)]
        for t in range(n1, 7): steps += [(slot(t), kc, acc(t), kc == 0) for kc in range(32)]
        fences = {32*t - 4: (32*t, tcs if 32*t == EM else []) for t in range(n1, 7)}
        bub = n1 == ns and not s2; g = 0; dm = {}
        if s2: fences[28] = (32, [s.tok[1]])
        if nb:
            for t in range(4, 7):
                s.gtile(t); a, b = P['fd'][t - 4]; fill.append((s.take(8), a, b))
                assert any(max(32*(t - 3), E1) <= g < a for g, _ in nb) and any(t in ts and b <= g for g, ts in nb) and (t == 4 or a > P['fd'][t - 5][1])
            fences = {g: (32*min(ts, default=7), [s.tok[t] for t in ts], 0) for g, ts in nb}
            assert sorted(t for g, ts in nb for t in ts) == [3, 4, 5, 6]
        for t in range(n1, 7 if not nb else 0):
            if t >= ns:
                s.gtile(t); dm[t] = s.take(8)
                g = max(g, max(32*(t - ns + 1), E1) - 3)
                if s2 and t == 2: assert s2[1] <= 28 < s2[2]; fill.append((dm[t], *s2[2:]))
                elif bub and t == ns: fill.append((dm[t], g, g + 2))
                elif not (bub and t == ns + 1): fill.append((dm[t], g, g + P['dl'][L])); g += P['dl'][L] + 1
            if bub and t == ns: fences[32*t - 1] = (32*t, [s.tok[t]])
            else: fences[32*t - 4] = (32*t, fences[32*t - 4][1] + [s.tok[t]])
        s.soH = s.SO(s, sT0+4)
        th = {}; fb = []; ge = 0
        for t in range(7):
            r = 56 + 2*(t == 1); early = 32*t < EM
            with k.cap() as f:
                if t < 2: I(f'ds_read2_b32 {v(r,2)}, v{vT2} offset0:{32*s.ord(L)[t]} offset1:{32*s.ord(L)[t]}')
                else: I(f'ds_read_b32 v{r}, v{vT2} offset:{128*s.ord(L)[t]}')
                with k.group(): I(f'v_mfma_f32_32x32x16_bf16 {v(acc(t),16)}, {v(r,4)}, v[60:63], {v(acc(t),16)}')
            gm = (EM, EM + 1, EM + 5)[t] if early else 32*t + 24
            gr = EM - 3 if t < 2 else gm - 4
            fill.append(([f[0]], gr, gr))
            if bub and early: fb.insert(t, f[1])
            else: fill.append(([f[1]], gm, gm))
            if t < 6:
                with k.cap() as f: th[t] = s.gu_epi(L, t)
                ge = max(ge, (EM if early else 32*t + 32) + 4)
                if bub and early: fb += f
                else: fill.append((f, ge, ge + 9 + (not early))); ge += 10
        if bub:
            with k.cap() as f: k.sprinkle(fb, dm[ns + 1], 1, 5)
            fill.append((f, E1 - 1, E1 - 1))
        if L == 0:
            for n, g0, g1 in P['wl']: fill.append((s.takew(min(n, len(s.bw) - 8)), g0, g1))
            assert len(s.bw) == 8
        if L and P['ee'] and not s.stop:
            with k.cap() as f: s.epoch()
            fill.append((f, P['ee'], P['ee']))
        if L and P['wm']:
            D = s.label('WB')
            with k.cap() as f:
                with k.group():
                    I(f's_or_b32 s{sT0+3}, s{sRK}, s{sW}\ns_cselect_b32 s{sT0+3}, 0, 1')
                    I(f'buffer_load_dword v21, v{vL0}, {WS}, s{sFXC} offen').alt = (f's{sT0+3}', 'buffer_wbl2 sc1')
            if P['wm'] < 224: fill.append((f, P['wm'], P['wm']))
            s.fwb = f
        for g in P.get('gs', ()):
            with k.cap() as f: s.stamp(f'g{g}')
            fill.append((f, g, g))
        base, last = s.gemm(steps, fences)
        ne, e0, e1 = s.P['he'][L]; g4, gp, gc, g6 = s.P['hg'][L]
        s.hso = [s.SO(s, sT0), s.SO(s, sT0+2)]
        with k.cap() as f:
            with k.group():
                I(f's_add_u32 s{sT0+5}, s{sFOP}, {hex(FH - FO)}\ns_add_u32 s{sT0+6}, s{sFOC}, {hex(FH - FO)}')
                if ne: k.wait(th[3]); s.flag(sT0+5, 0, 7*L + 4)
            with k.group(): k.wait(th[5]); s.flag(sT0+5, 0, 7*L + 6)
            if ne:
                s.hpoll(); s.hcheck(7*L + 4)
                for i in range(ne): s.hld(i)
        for g, t0, t1 in s.P['ht'][L]:
            if g < 224:
                with k.cap() as ft: s.htouch(th[t1], t0, t1)
                fill.append((ft, g, g))
        fill.append((f[:1], g4, g4))
        if ne:
            assert all(e0 + (i*(e1 - e0 + 1))//ne >= 192 + i for i in range(ne)) and e0 >= gc > gp > g4
            fill += [(f[2:3], gp, gp), (f[3:4], gc, gc), (f[4:], e0, e1)]
        if g6 < 224: fill.append((f[1:2], g6, g6))
        k.weave(base, *fill)
        s.f6 = f[1:2]
        with k.cap() as s.fe6: s.th6 = s.gu_epi(L, 6)
        if not P['h0'] or s.stop == f'h{L}':
            k.wait(last); I('s_barrier'); k.put(s.fe6); s.fe6 = []
        s.stamp('gu')
        return s.stop == f'h{L}'

    @property
    def horder(s):
        h0, tl = s.P['h0'], s.P['tl']
        return ([(t, jj, rt2) for rt2 in range(2) for t in range(h0) for jj in range(4)] + [(t, jj, rt2) for t in range(h0, 7 - tl) for jj in range(4) for rt2 in range(2)]
                + [(t, jj, rt2) for rt2 in range(2) for t in range(7 - tl, 7) for jj in range(4)])
    def hld(s, i):
        t, jj, rt2 = s.horder[i]
        s.ld(s.hso[rt2], v(vXB + 4*(i % 32), 4), vL16, sHQ + jj, rt2*112*1024 + s.ord(s.L)[t]*1024, s.md('h'))
    def htouch(s, tok, t0, t1):
        with s.k.group():
            s.k.wait(tok)
            s.I(f'v_min_u32 v{vT3}, {8*(t1 - t0) + 7}, v0\nv_add_lshl_u32 v{vT3}, v{vT3}, {8*t0}, 7\nbuffer_load_dword v21, v{vT3}, {WS}, s{sHPUB} offen sc1')
    def hpoll(s): s.I(f'buffer_load_dword v{vT0}, v{vFO}, {WS}, s{sT0+6} offen sc1')
    def hcheck(s, p):
        D = s.label('HC')
        with s.k.group():
            s.check(vT0, p)
            s.I(f's_cbranch_vccz {D}')
            with s.k.cond(): s.poll(vFO, sT0+6, 0, p)
            s.I(f'{D}:')
    def down(s, L):
        I = s.I; k = s.k
        SR = s.gslot(L, 6); bB = 1 - L
        I(f'v_add_u32 v{vT1}, {hex(SR*0x8000)}, v{vREDW}')
        ne = s.P['he'][L][0]; p6, p7 = s.P['hp'][L]
        if not ne:
            s.poll(vFO, sT0+6, 0, 7*L + 6)
            s.flag(sT0+5, 0, 7*L + 7)
            s.stamp('h_ok')
        n = max(s.P['hf'], ne); hld = s.hld
        assert ne + n <= 48 and 32 < p7 < 48 and (not ne or n <= p6 < 32)
        for i in range(ne, n): hld(i)
        P = s.P; seen = set()
        def mm(i, ct):
            t, jj, rt2 = s.horder[i]; a = vACC + 32*rt2 + 16*ct
            I(f'v_mfma_f32_32x32x16_bf16 {v(a,16)}, {a_(aWD(jj, s.ord(L)[t], ct),4)}, {v(vXB+4*(i%32),4)}, {v(a,16) if a in seen else "0"}'); seen.add(a)
        with k.cap() as base:
            for i in range(56):
                mm(i, 0)
                if i < 52 or not P['tl']: mm(i, 1)
                if i in P.get('ds', ()): s.stamp(f'd{i}')
                if i == P['hg'][L][3] - 224: k.put(s.f6)
                if ne and i == (P['f7'][L] if P['h0'] else ne): k.wait(s.th6); s.flag(sT0+5, 0, 7*L + 7)
                if P['h0'] and i == P['bi'][L]: I('s_barrier')
                if i + n == p7 or ne and i + n == p6: s.hpoll()
                if ne and i + n == 32: s.hcheck(7*L + 6)
                if i + n == 48: s.hcheck(7*L + 7)
                if i + n < 56: hld(i + n)
                if L and i == P['wm'] - 224: k.put(s.fwb)
                if L == 0:
                    w0, w1 = P['wd']; assert w0 + 7*w1 < 47
                    if i >= w0 and (i - w0) % w1 == 0: k.put(s.takew(1))
            if P['tl']:
                for i in range(52, 56): mm(i, 1)
        rw = []
        for q in range(4):
            with k.cap() as f: t = s.red_write(SR, q >> 1, q & 1)
            rw.append((f, *(((105, 106), (107, 108), (109, 111), (999, 999))[q] if P['tl'] else (999, 999))))
        k.weave(base, (s.fe6, 1, 8*P['h0'] - 1), *rw)
        s.stamp('dn_gemm')
        def after():
            for i in range(8): s.tok['K'] = I(f'ds_write_b128 v{vT0}, {a_(aKP + 4*i, 4)} offset:{i*1024}')
        s.red_finish(SR, True, L, bB, 2*L + 2, L == 1, [t, s.tRS], None, after)
        s.stamp('x2pub')
        return s.stop == f'x{2*L+2}'

    def epoch(s):
        I = s.I
        with s.k.group():
            I(f's_or_b32 s{sT0+3}, s{sR}, s{sJ}\ns_or_b32 s{sT0+3}, s{sT0+3}, s{sW}\ns_cselect_b32 s{sT0+3}, 0x70000000, 0')
            I(f's_add_u32 s{sT0+10}, s{sE}, 1\nv_mov_b32 v{vT5}, s{sT0+10}\nbuffer_store_dword v{vT5}, v{vL0}, {WS}, s{sT0+3} offen sc1')
    def gen(s):
        I = s.I
        for L in range(2):
            s.L = L; s.ring = 192 + 32*L
            if s.qkv(L) or s.wo(L) or s.gu(L) or s.down(L): break
        if s.stop or not s.P['ee']: s.epoch()
        if s.ts:
            s.stamp('end')
            I('s_memrealtime s[78:79]\ns_waitcnt lgkmcnt(0)\nv_writelane_b32 v23, s78, 61')
            I(f'v_writelane_b32 v23, s{sLIM}, 62\nv_writelane_b32 v23, s{sSLOW}, 63')
            I(f's_lshl_b32 s64, s{sR}, 4\ns_add_u32 s64, s64, s{sJ}\ns_lshl_b32 s64, s64, 2\ns_add_u32 s64, s64, s{sW}\ns_lshl_b32 s64, s64, 8\ns_add_u32 s64, s64, {hex(TS)}')
            I(f'v_lshlrev_b32 v{vT0}, 2, v0\nbuffer_store_dword v23, v{vT0}, {WS}, s64 offen sc1')
        if s.P.get('wb'): I('s_waitcnt vmcnt(0)\nbuffer_wbl2 sc1\ns_waitcnt vmcnt(0)')
        if s.P.get('dbg'):
            I(f's_cmp_lg_u32 s2, {s.P.get("dwg", 0)}\ns_cbranch_scc1 DB_END\ns_cmp_lg_u32 s{sW}, 0\ns_cbranch_scc1 DB_END')
            with s.k.cond():
                I('v_readlane_b32 s65, v23, 0\nv_mov_b32 v24, 0')
                for n, i in enumerate(s.P['dbg']): I(f'v_readlane_b32 s66, v23, {i}\ns_sub_u32 s66, s66, s65\nv_writelane_b32 v24, s66, {n}')
                I(f'v_lshlrev_b32 v25, 2, v0\nbuffer_store_dword v24, v25, {DS}, 0 offen')
            I('DB_END:')
        dg = s.P.get('diag')
        if dg is not None:
            I(f's_cmp_lg_u32 s2, {s.P.get("dwg", 0)}\ns_cbranch_scc1 DG_END\ns_cmp_lg_u32 s{sW}, 0\ns_cbranch_scc1 DG_END')
            with s.k.cond():
                I('v_readlane_b32 s64, v23, 60\ns_add_u32 s64, s64, 10000')
                if dg == 'rt': I('v_readlane_b32 s65, v23, 60\nv_readlane_b32 s66, v23, 61\ns_sub_u32 s66, s66, s65\ns_lshl_b32 s66, s66, 2\ns_add_u32 s64, s64, s66')
                elif dg:
                    i = [n for n, nm in enumerate(s.tsnames) if nm == dg[0]][dg[1]]
                    I(f'v_readlane_b32 s65, v23, 0\nv_readlane_b32 s66, v23, {i}\ns_sub_u32 s66, s66, s65\ns_lshr_b32 s66, s66, 2\ns_min_u32 s66, s66, 100000\ns_add_u32 s64, s64, s66')
                gs = s.P.get('gstat')
                if gs:
                    i = 60 if gs[0] == 'start' else [n for n, nm in enumerate(s.tsnames) if nm == gs[0]][gs[1]]
                    I('s_sub_u32 s68, s64, 2500\ns_mov_b32 s67, 0\nDG_W:\ns_memrealtime s[78:79]\ns_waitcnt lgkmcnt(0)\ns_sub_u32 s66, s78, s68\ns_cmp_lt_u32 s66, 0x80000000\ns_cbranch_scc1 DG_W2')
                    I('s_add_u32 s67, s67, 1\ns_cmp_lt_u32 s67, 200000\ns_cbranch_scc1 DG_W\nDG_W2:')
                    I(f'v_lshlrev_b32 v25, 10, v0\nv_readlane_b32 s65, v23, 60')
                    for q in range(4):
                        I(f's_mov_b32 s66, {hex(TS + q*65536)}\nbuffer_load_dword v{32+q}, v25, {WS}, s66 offen offset:240 sc1\nbuffer_load_dword v{36+q}, v25, {WS}, s66 offen offset:{4*i} sc1')
                    I('s_waitcnt vmcnt(0)')
                    for q in range(8): I(f'v_subrev_u32 v{32+q}, s65, v{32+q}')
                    op = {'max': 'max_i32', 'min': 'min_i32', 'mean': 'add_u32'}[gs[2]]
                    for q in range(1, 4): I(f'v_min_i32 v32, v32, v{32+q}\nv_{op} v36, v36, v{36+q}')
                    I('v_readlane_b32 s68, v32, 0\nv_readlane_b32 s69, v36, 0\ns_mov_b32 s67, 1\nDG_R:\ns_nop 4\nv_readlane_b32 s70, v32, s67\nv_readlane_b32 s71, v36, s67\ns_nop 4')
                    I(f's_min_i32 s68, s68, s70\ns_{op} s69, s69, s71\ns_add_u32 s67, s67, 1\ns_cmp_lt_u32 s67, 64\ns_cbranch_scc1 DG_R')
                    if gs[2] == 'mean': I('s_ashr_i32 s69, s69, 8')
                    I('s_sub_u32 s69, s69, s68\ns_lshl_b32 s69, s69, 2\ns_min_u32 s69, s69, 100000\ns_add_u32 s64, s64, s69')
                I('s_mov_b32 s67, 0\nDG_L:\ns_memrealtime s[78:79]\ns_waitcnt lgkmcnt(0)\ns_sub_u32 s66, s78, s64\ns_cmp_lt_u32 s66, 0x80000000\ns_cbranch_scc1 DG_END')
                I('s_add_u32 s67, s67, 1\ns_cmp_lt_u32 s67, 200000\ns_cbranch_scc1 DG_L')
            I('DG_END:')
        I(('s_waitcnt vmcnt(0)\n' if s.P['ew'] else '') + 'M_END:\ns_endpgm')
        return s.k

HEADER = open('cdna_kernels/' + NAME + '.s.ref').read().split('; Override')[0] if __name__ == '__main__' else ''

def pages(main, nw, first, lg=12, go=1, S=0x300):
    import subprocess, re, tempfile
    two = 'PGW:' in main
    def visit(n, b='PGB'):
        t = '; code prefetch: while the first loads are in flight, each wave passes once through the first instruction (PGn) of some of\n; the later 4 KB code pages; otherwise instruction fetch stalls at every page boundary of the straight-line code\n'
        for w in range(nw - 1): t += f'  s_cmp_eq_u32 s{sW}, {w}\n  s_cbranch_scc1 PG{first + n + w}\n'
        return t + f'  s_branch PG{first + n + nw - 1}\n{b}:'
    first += S >> lg; G = 1 << lg
    main = main.replace('PGV:', visit(0) if go else 'PGB:').replace('PGW:', visit(nw, 'PGC'))
    d = tempfile.mkdtemp()
    open(d + '/a.s', 'w').write('.amdgcn_target "amdgcn-amd-amdhsa--gfx950"\n.text\n' + main + '\nCODE_END:\n' + ''.join(f'PG{i}:\n' for i in range(300)))
    subprocess.run(f'clang -target amdgcn-amd-amdhsa -mcpu=gfx950 -c {d}/a.s -o {d}/a.o', shell=True, check=True)
    o = subprocess.run(f'llvm-objdump -d {d}/a.o', shell=True, capture_output=True, text=True).stdout
    sz = [4*len(l.split('//')[1].split(':')[1].split('<')[0].split()) for l in o.split('\n') if re.search(r'// [0-9A-F]+:', l)]
    out = []; pos = S; i = 0; k = S >> lg
    for l in main.split('\n'):
        t = l.split(';')[0].strip()
        if t and not t.endswith(':') and not t.startswith('.'):
            if pos + sz[i] + 4 > (k + 1)*G:
                k += 1
                if k >= first: out.append(f'  s_branch PGS{k}\n.p2align {lg}\nPG{k}:\n  s_branch @{k}@\nPGS{k}:'); pos = k*G + 4
            pos += sz[i]; i += 1
        out.append(l)
    assert i == len(sz), (i, len(sz))
    return re.sub(r'@(\d+)@', lambda m: 'PGB' if two and int(m[1]) < first + nw else f'PG{int(m[1]) + nw}' if int(m[1]) + nw <= k else 'PGC' if two else 'PGB', '\n'.join(out))
def build(stop=None, ts=False, header='', **kw):
    st = {}
    m = Main(stop, ts, **kw)
    main = m.gen().finish(st)
    if m.P.get('pg'): main = pages(main, *m.P['pg'])
    txt = header
    ls = kw.get('lst', 0)
    if ls == 2: txt += '; @launch kernel=pre_kernel grid=(256,1,1) block=(64,1,1) lds=0\n'
    txt += f'; @launch {"kernel=" + NAME + "_kernel " if ls else ""}grid=(256,1,1) block=(256,1,1) lds={LDS_MAIN}\n'
    if ls == 3: txt += '; @launch kernel=pre_kernel grid=(256,1,1) block=(64,1,1) lds=0\n'
    txt += '.amdgcn_target "amdgcn-amd-amdhsa--gfx950"\n.text\n'
    if ls > 1: txt += head('pre_kernel') + 's_endpgm\n' + kd('pre_kernel', 8, 8, 16)
    pad = m.P.get('pad', 0)
    if pad > 0: txt += '.p2align 10\n' + 's_endpgm\n'*(64*(pad - 1))
    if pad < 0: txt += '.p2align 12\n' + 's_endpgm\n'*(64*(-pad - 1))
    txt += head(NAME + '_kernel') + main + '\nCODE_END:\n'
    txt += kd(NAME + '_kernel', 512, 256)
    return txt, (st, m.tsnames)

if __name__ == '__main__':
    txt, st = build(header=HEADER)
    out = sys.argv[1] if len(sys.argv) > 1 else 'cdna_kernels/' + NAME + '.s'
    open(out, 'w').write(txt); print(st, len(txt))
```
